```python
import torch

def _softmax(x, axis=-1):
    return torch.softmax(x, dim=axis)
def _gelu(x):
    return torch.nn.functional.gelu(x, approximate="tanh")
def _silu(x):
    return torch.nn.functional.silu(x)
def _sigmoid(x):
    return torch.sigmoid(x)
def _layernorm(x, axis=-1, eps=1e-5):
    m = x.mean(dim=axis, keepdim=True)
    v = x.var(dim=axis, keepdim=True, unbiased=False)
    return (x - m) / torch.sqrt(v + eps)
def _scatter_add(tgt, idx, src, axis=0):
    return tgt.clone().index_add_(axis, idx, src)
def _segment_sum(src, seg, n):
    out = torch.zeros((n,) + src.shape[1:], dtype=src.dtype)
    return out.index_add_(0, seg, src)
def _pad(x, pw):
    flat = tuple(v for pair in reversed(pw) for v in pair)
    return torch.nn.functional.pad(x, flat)

kernel_name = 'interleave_layers__linear_attn_block__dense_activation_silu__prompt'

def setup_inputs():

    _w = (lambda a: (lambda t: t.to(torch.bfloat16) if t.is_floating_point() else t)(torch.as_tensor(a)))
    def _A_setup():
        B, S, D = 1, 2048, 512
        return {
            "x": _w((lambda *s: torch.randn(*s, dtype=torch.bfloat16) * 0.05)(B, S, D)),
            "wqkv": _w((lambda *s: torch.randn(*s, dtype=torch.bfloat16) * 0.05)(D, 3 * D)),
            "wo": _w((lambda *s: torch.randn(*s, dtype=torch.bfloat16) * 0.05)(D, D)),
        }
    _A_in = _A_setup()

    def _B_setup():
        B, S, D, F = 1, 2048, 512, 1792
        return {
            "x": _w((lambda *s: torch.randn(*s, dtype=torch.bfloat16) * 0.05)(B, S, D)),
            "w1": _w((lambda *s: torch.randn(*s, dtype=torch.bfloat16) * 0.8)(D, F) * (D ** -0.5)),
            "w2": _w((lambda *s: torch.randn(*s, dtype=torch.bfloat16) * 0.8)(F, D) * (F ** -0.5)),
        }
    _B_in = _B_setup()

    return {
        "A_x": _A_in["x"],
        "A_wqkv": _A_in["wqkv"],
        "A_wo": _A_in["wo"],
        "B_x": _B_in["x"],
        "B_w1": _B_in["w1"],
        "B_w2": _B_in["w2"],
    }

def reference(A_x, A_wqkv, A_wo, B_x, B_w1, B_w2):
    def _A_ref(x, wqkv, wo):
        B, S, D = x.shape
        H = 32; Dh = D // H
        qkv = (lambda x, *d: x.permute(*d))((x @ wqkv).reshape(B, S, 3, H, Dh), 2, 0, 3, 1, 4)
        q, k, v = qkv[0], qkv[1], qkv[2]
        phi = lambda t: torch.where(t > 0, t + 1, torch.exp(t)) + 1e-6
        pq, pk = phi(q), phi(k)
        kv = torch.einsum("bhsd,bhse->bhde", pk, v)
        z = torch.einsum("bhsd->bhd", pk)
        num = torch.einsum("bhqd,bhde->bhqe", pq, kv)
        den = torch.einsum("bhqd,bhd->bhq", pq, z)[..., None] + 1e-6
        o = num / den
        return (lambda x, *d: x.permute(*d))(o, 0, 2, 1, 3).reshape(B, S, D) @ wo

    def _B_ref(x, w1, w2):
        h = torch.einsum("bsd,df->bsf", x, w1)
        h = _silu(h)
        out = torch.einsum("bsf,fd->bsd", h, w2)
        return out

    x = A_x
    x = x + _A_ref(_layernorm(x, axis=-1), A_wqkv, A_wo)
    x = x + _B_ref(_layernorm(x, axis=-1), B_w1, B_w2)
    x = x + _A_ref(_layernorm(x, axis=-1), A_wqkv, A_wo)
    x = x + _B_ref(_layernorm(x, axis=-1), B_w1, B_w2)
    return x
```

```python
import re

TRANS = ("v_exp_f32", "v_log_f32", "v_rcp_f32", "v_rsq_f32", "v_sqrt_f32", "v_sin_f32", "v_cos_f32")

def regs_of(tok):
    tok = tok.strip()
    tok = tok.lstrip('-')
    m = re.fullmatch(r"abs\((.*)\)", tok)
    if m: tok = m.group(1)
    m = re.fullmatch(r"([vsa])\[(\d+):(\d+)\]", tok)
    if m:
        return {f"{m.group(1)}{i}" for i in range(int(m.group(2)), int(m.group(3)) + 1)}
    m = re.fullmatch(r"([vsa])(\d+)", tok)
    if m: return {tok}
    if tok in ("vcc", "vcc_lo", "vcc_hi"): return {"vcc"}
    if tok in ("exec", "exec_lo", "exec_hi"): return {"exec"}
    if tok == "m0": return {"m0"}
    return set()

class Ins:
    __slots__ = ("text", "op", "ops", "mods", "dst", "src", "kind", "srcA", "srcB", "srcC", "lds_dma", "wide_store", "dpp", "tag")
    def __init__(self, text):
        self.text = text
        t = text.split(";")[0].strip()
        parts = t.split(None, 1)
        self.op = parts[0]
        rest = parts[1] if len(parts) > 1 else ""
        toks = []; depth = 0; cur = ""
        for ch in rest:
            if ch == "[": depth += 1
            if ch == "]": depth -= 1
            if ch == "," and depth == 0:
                toks.append(cur.strip()); cur = ""
            else: cur += ch
        if cur.strip(): toks.append(cur.strip())
        ops = []; mods = []
        for i, tk in enumerate(toks):
            sp = tk.split()
            if not sp: continue
            ops.append(sp[0]); mods += sp[1:]
        self.ops = ops; self.mods = mods
        self.dst = set(); self.src = set(); self.srcA = set(); self.srcB = set(); self.srcC = set()
        self.lds_dma = False; self.wide_store = False
        for m_ in mods:
            if m_.startswith("offset:"):
                o_ = int(m_[7:], 0)
                lim = 65535 if self.op.startswith("ds_") else 4095
                assert 0 <= o_ <= lim, "offset out of range: " + text
        self.dpp = any(m.startswith(("row_", "quad_perm", "wave_")) for m in mods) or self.op.endswith("_dpp")
        op = self.op
        R = lambda i: regs_of(ops[i]) if i < len(ops) else set()
        allsrc = lambda a: set().union(*[regs_of(o) for o in ops[a:]]) if len(ops) > a else set()
        if op.startswith("v_mfma"):
            self.kind = "mfma"; self.dst = R(0); self.srcA = R(1); self.srcB = R(2); self.srcC = R(3)
            self.src = self.srcA | self.srcB | self.srcC
        elif op.startswith("v_permlane") and "swap" in op:
            self.kind = "valu"; self.dst = R(0) | R(1); self.src = R(0) | R(1)
        elif op.startswith("v_"):
            self.kind = "trans" if op.replace("_e32", "").replace("_e64", "") in TRANS else "valu"
            self.dst = R(0); self.src = allsrc(1)
            if op.startswith(("v_fmac", "v_dot2c", "v_pk_fmac")): self.src |= R(0)
            if op.startswith("v_cndmask") and len(ops) == 3: self.src |= {"vcc"}
            if op.startswith(("v_add_co", "v_sub_co", "v_addc_co", "v_subb_co")): self.dst |= R(1); self.src = allsrc(2)
            if op.startswith("v_cmpx"): self.dst |= {"exec"}
            if self.dpp: self.src |= R(0)
        elif op.startswith("ds_"):
            self.kind = "ds"
            if op.startswith(("ds_read", "ds_bpermute", "ds_permute", "ds_swizzle")) : self.dst = R(0); self.src = allsrc(1)
            else: self.src = allsrc(0)
        elif op.startswith(("buffer_", "global_")):
            self.kind = "vm"
            if op in ("buffer_wbl2", "buffer_inv"):
                pass
            elif "lds" in mods or "_lds_" in op:
                self.lds_dma = True; self.src = allsrc(0) | {"m0"}
            elif "_load" in op:
                self.dst = R(0); self.src = allsrc(1)
            elif "atomic" in op and "sc0" in mods:
                self.dst = R(0); self.src = allsrc(0)
            else:
                self.src = allsrc(0)
                if op.endswith(("x3", "x4")): self.wide_store = True
        elif op.startswith(("s_load", "s_buffer_load", "s_atomic", "s_memtime", "s_memrealtime")):
            self.kind = "smem"; self.dst = R(0); self.src = allsrc(1)
        elif op in ("s_waitcnt", "s_barrier", "s_nop", "s_endpgm", "s_sleep", "s_setprio") or op.startswith(("s_cbranch", "s_branch")):
            self.kind = "sctl"
        elif op.startswith("s_cmp"):
            self.kind = "salu"; self.src = allsrc(0)
        elif op.startswith("s_"):
            self.kind = "salu"; self.dst = R(0); self.src = allsrc(1)
            if "saveexec" in op: self.dst |= {"exec"}; self.src |= {"exec"}
        else:
            raise ValueError("unknown instruction: " + text)

class Kern:
    def __init__(self, name):
        self.name = name
        self.items = []
        self.nv = 0
        self.maxv = 0
        self.lds = 0
    def valloc(self, n=1, align=None):
        if align is None: align = 1 if n == 1 else (2 if n < 4 else 4)
        self.nv = (self.nv + align - 1) // align * align
        r = self.nv; self.nv += n; self.maxv = max(self.maxv, self.nv)
        return r
    def aalloc(self, n=1, align=4):
        self.na = (getattr(self, "na", 0) + align - 1) // align * align
        r = self.na; self.na += n
        return r
    def I(self, text, tag=None):
        ins = Ins(text); ins.tag = tag; self.items.append(ins)
    def wait_tag(self, tag): self.items.append(("WAITTAG", tag))
    def L(self, label): self.items.append(label + ":")
    def C(self, text): self.items.append("; " + text)
    def __call__(self, text):
        for line in text.strip().split("\n"):
            line = line.strip()
            if not line: continue
            if line.startswith(";"): self.items.append(line)
            elif line.endswith(":"): self.items.append(line)
            else: self.I(line)

    def finalize(self):
        out = []
        vm = []
        lg = []
        hist = []
        pos = 0
        def emit_txt(t): out.append("    " + t)
        for it in self.items:
            if isinstance(it, tuple):
                idx = [i for i, (d, tg) in enumerate(vm) if tg == it[1]]
                if idx:
                    n = min(len(vm) - 1 - idx[-1], 63)
                    emit_txt(f"s_waitcnt vmcnt({n})"); pos += 1
                    vm = vm[len(vm) - n:] if n else []
                continue
            if isinstance(it, str):
                out.append(it if it.endswith(":") else "    " + it)
                if it.endswith(":"):
                    pass
                continue
            ins = it
            touched = ins.src | ins.dst
            if ins.op == "s_waitcnt":
                m = re.search(r"vmcnt\((\d+)\)", ins.text)
                if m:
                    n = int(m.group(1)); vm = vm[len(vm) - n:] if n < len(vm) else vm
                    if n == 0: vm = []
                m = re.search(r"lgkmcnt\((\d+)\)", ins.text)
                if m:
                    n = int(m.group(1)); lg = lg[len(lg) - n:] if n < len(lg) else lg
                    if n == 0: lg = []
            else:
                need_vm = None
                for i, (d, tg) in enumerate(vm):
                    if d & touched: need_vm = len(vm) - 1 - i
                need_lg = None
                for i, (d, sm) in enumerate(lg):
                    if d & touched:
                        need_lg = len(lg) - 1 - i
                        if any(s for _, s in lg): need_lg = 0
                w = []
                if need_vm is not None:
                    n = min(need_vm, 63); w.append(f"vmcnt({n})"); vm = vm[len(vm) - n:] if n else []
                if need_lg is not None:
                    n = min(need_lg, 15); w.append(f"lgkmcnt({n})"); lg = lg[len(lg) - n:] if n else []
                if w:
                    emit_txt("s_waitcnt " + " ".join(w)); pos += 1
            need = 0
            for (p, ppos) in reversed(hist):
                dist = pos - ppos - 1
                if dist >= 20: break
                req = 0
                pv = p.kind in ("valu", "trans")
                cv = ins.kind in ("valu", "trans")
                if p.kind == "mfma":
                    passes = 8 if "32x32" in p.op else 4
                    big = {4: 8, 8: 12}[passes]
                    if ins.kind == "mfma":
                        if p.dst & (ins.srcA | ins.srcB): req = max(req, big)
                        if p.dst & ins.srcC and not (p.dst == ins.srcC and p.op == ins.op): req = max(req, {4: 6, 8: 10}[passes])
                    elif ins.kind in ("valu", "trans", "vm", "ds"):
                        if p.dst & touched: req = max(req, big)
                        if cv and (p.srcC & ins.dst): req = max(req, {4: 3, 8: 7}[passes])
                if pv:
                    pvd = {r for r in p.dst if r[0] in "va" and r != "vcc"}
                    psd = {r for r in p.dst if r[0] == "s" or r == "vcc"}
                    if ins.kind == "mfma" and (pvd & ins.src): req = max(req, 2)
                    if ins.kind == "mfma" and "exec" in p.dst: req = max(req, 4)
                    if p.kind == "trans" and ins.kind == "valu" and (pvd & ins.src): req = max(req, 1)
                    if cv and (psd & ins.src): req = max(req, 4 if ins.op.startswith(("v_readlane", "v_writelane")) else 2)
                    if ins.kind == "vm" and (psd & ins.src): req = max(req, 5)
                    if ins.op.startswith(("v_readfirstlane", "v_readlane")) and (pvd & ins.src): req = max(req, 1)
                    if ins.op.startswith("v_permlane") and (pvd & ins.src): req = max(req, 2)
                    if ins.dpp and (pvd & ins.src): req = max(req, 2)
                    if ins.dpp and "exec" in p.dst: req = max(req, 5)
                    if "exec" in p.dst and ins.op.startswith(("v_readfirstlane", "v_readlane", "v_writelane", "v_permlane")): req = max(req, 4)
                    if ins.kind == "salu" and (psd & ins.src): req = max(req, 1)
                if p.kind == "salu" and "m0" in p.dst and ins.lds_dma: req = max(req, 1)
                if p.wide_store and (p.src & ins.dst) and ins.kind != "salu": req = max(req, 2)
                if req > dist: need = max(need, req - dist)
            while need > 0:
                n = min(need, 16); emit_txt(f"s_nop {n - 1}"); pos += n; need -= n
            emit_txt(ins.text)
            hist.append((ins, pos));
            if len(hist) > 40: hist = hist[-40:]
            if len(vm) > 62 and ins.kind == "vm": print("WARNING: >63 vm ops outstanding in", self.name)
            if ins.op == "s_nop": pos += int(ins.ops[0]) + 1
            else: pos += 1
            if ins.kind == "vm" and ins.op not in ("buffer_wbl2", "buffer_inv"): vm.append((set(ins.dst), ins.tag))
            if ins.kind == "vm" and ins.op in ("buffer_wbl2", "buffer_inv"): vm.append((set(), None))
            if ins.kind == "ds": lg.append((set(ins.dst), False))
            if ins.kind == "smem": lg.append((set(ins.dst), True))
        return out

    def text(self, nsgpr=100):
        body = self.finalize()
        assert self.maxv <= 256, self.maxv
        na = getattr(self, "na", 0)
        assert na <= 256
        acc_off = max(4, (self.maxv + 3) // 4 * 4)
        nv = max(8, (acc_off + na + 7) // 8 * 8)
        code = [f".globl {self.name}", ".p2align 8", f".type {self.name},@function", f"{self.name}:"] + body
        desc = [f".amdhsa_kernel {self.name}",
                f"  .amdhsa_next_free_vgpr {nv}",
                f"  .amdhsa_next_free_sgpr {nsgpr}",
                f"  .amdhsa_accum_offset {acc_off}",
                "  .amdhsa_group_segment_fixed_size 0",
                "  .amdhsa_kernarg_size 72",
                "  .amdhsa_user_sgpr_count 2",
                "  .amdhsa_user_sgpr_kernarg_segment_ptr 1",
                "  .amdhsa_system_sgpr_workgroup_id_x 1",
                "  .amdhsa_float_denorm_mode_32 3",
                ".end_amdhsa_kernel"]
        return "\n".join(code), "\n".join(desc)

def v(r, n=1): return f"v{r}" if n == 1 else f"v[{r}:{r + n - 1}]"
def a(r, n=1): return f"a{r}" if n == 1 else f"a[{r}:{r + n - 1}]"
def s(r, n=1): return f"s{r}" if n == 1 else f"s[{r}:{r + n - 1}]"

def build_file(header, launches, kerns):
    out = [header.rstrip()]
    for (k, g, b, l) in launches:
        out.append(f"; @launch kernel={k} grid=({g},1,1) block=({b},1,1) lds={l}")
    out.append('.amdgcn_target "amdgcn-amd-amdhsa--gfx950"')
    out.append(".text")
    descs = []
    for k in kerns:
        c, d = k.text(); out.append(c); descs.append(d)
    out.append('.section .rodata,"a"')
    for d in descs:
        out.append(".p2align 6"); out.append(d)
    return "\n".join(out) + "\n"
```

```python
import sys, struct
from asmlib import *

S_, D_, F_ = 2048, 512, 1792
WS_PQ, WS_X1, WS_X2, WS_H = 0x000000, 0x200000, 0x400000, 0x600000
WS_KV = 0xE00000
WS_CS = 0xE20000
WS_ST0, WS_ST1, WS_ST2 = 0xE40000, 0xE60000, 0xE80000
XB = S_ * D_ * 2
P_X, P_WQKV, P_WO, P_W1, P_W2, P_OUT, P_WS = 4, 6, 8, 12, 14, 16, 20
LOG2E = 0x3FB8AA3B
def fbits(x): return struct.unpack("<I", struct.pack("<f", x))[0]

def prologue(k, nwg):
    k(f"s_cmp_ge_u32 s2, {nwg}")
    k(f"s_cbranch_scc1 {k.name}_end")
    k("s_load_dwordx16 s[4:19], s[0:1], 0")
    k("s_load_dwordx2 s[20:21], s[0:1], 64")
    k.valloc(1)
    k.vL = k.valloc(); k.vR16 = k.valloc(); k.vG = k.valloc(); k.vT = k.valloc()
    k(f"v_lshrrev_b32 {v(k.vT)}, 6, v0")
    k(f"v_and_b32 {v(k.vL)}, 63, v0")
    k(f"v_readfirstlane_b32 s3, {v(k.vT)}")
    k(f"v_and_b32 {v(k.vR16)}, 15, v0")
    k(f"v_bfe_u32 {v(k.vG)}, v0, 4, 2")
    k("s_waitcnt lgkmcnt(0)")

def srd(k, d, p, off, nbytes):
    if off:
        k(f"s_add_u32 s{d}, s{p}, {off}")
        k(f"s_addc_u32 s{d+1}, s{p+1}, 0")
        k(f"s_and_b32 s{d+1}, s{d+1}, 0xffff")
    else:
        k(f"s_mov_b32 s{d}, s{p}")
        k(f"s_and_b32 s{d+1}, s{p+1}, 0xffff")
    k(f"s_mov_b32 s{d+2}, {nbytes}")
    k(f"s_mov_b32 s{d+3}, 0x20000")

def epilogue_end(k):
    k.L(f"{k.name}_end")
    k("s_endpgm")

def bf16_round(k, dst, src):
    k(f"v_cvt_pk_bf16_f32 {v(dst)}, {v(src)}, {v(src)}")
    k(f"v_lshlrev_b32 {v(dst)}, 16, {v(dst)}")

def ln_params(k, st, va, vb, t0, t1):
    k(f"v_add_f32 {v(t0)}, {v(st)}, {v(st+2)}")
    k(f"v_add_f32 {v(t1)}, {v(st+1)}, {v(st+3)}")
    for j in range(2, 8):
        k(f"v_add_f32 {v(t0)}, {v(t0)}, {v(st+2*j)}")
        k(f"v_add_f32 {v(t1)}, {v(t1)}, {v(st+2*j+1)}")
    k(f"v_mul_f32 {v(t0)}, {fbits(1/512):#x}, {v(t0)}")
    k(f"v_mul_f32 {v(t1)}, {fbits(1/512):#x}, {v(t1)}")
    k(f"v_fma_f32 {v(t1)}, -{v(t0)}, {v(t0)}, {v(t1)}")
    k(f"v_max_f32 {v(t1)}, 0, {v(t1)}")
    bf16_round(k, t0, t0)
    bf16_round(k, t1, t1)
    k(f"v_add_f32 {v(t1)}, {fbits(1e-5):#x}, {v(t1)}")
    bf16_round(k, t1, t1)
    k(f"v_sqrt_f32 {v(t1)}, {v(t1)}")
    bf16_round(k, t1, t1)
    k(f"v_rcp_f32 {v(va)}, {v(t1)}")
    k(f"v_mul_f32 {v(vb)}, {v(t0)}, {v(va)}")
    k(f"v_sub_f32 {v(vb)}, 0, {v(vb)}")

def xlane_sum_g(k, x, t):
    k(f"v_mov_b32 {v(t)}, {v(x)}")
    k(f"v_permlane16_swap_b32 {v(x)}, {v(t)}")
    k(f"v_add_f32 {v(x)}, {v(x)}, {v(t)}")
    k(f"v_mov_b32 {v(t)}, {v(x)}")
    k(f"v_permlane32_swap_b32 {v(x)}, {v(t)}")
    k(f"v_add_f32 {v(x)}, {v(x)}, {v(t)}")

def gen_k0(name):
    k = Kern(name); prologue(k, 256)
    SX, SST, SZ, SW, SCS = 24, 28, 32, 36, 40
    srd(k, SX, P_X, 0, XB)
    srd(k, SST, P_WS, WS_ST0, 2048 * 64)
    k("s_mov_b32 s44, 0x3f803f80")
    k("s_mov_b32 s45, 0x00003f80")
    k("s_mov_b32 s46, 0x3f800000")
    vo = k.valloc(); vd = [k.valloc(4), k.valloc(4)]; vs = [k.valloc(2), k.valloc(2)]; vso = k.valloc(); tt = k.valloc(2)
    k("s_lshl_b32 s47, s2, 3")
    k("s_lshl_b32 s48, s3, 1")
    k("s_add_u32 s47, s47, s48")
    k("s_lshl_b32 s48, s47, 10")
    k(f"v_lshlrev_b32 {v(vo)}, 4, {v(k.vL)}")
    k(f"v_add_u32 {v(vo)}, s48, {v(vo)}")
    k(f"buffer_load_dwordx4 {v(vd[0],4)}, {v(vo)}, s[{SX}:{SX+3}], 0 offen")
    k(f"buffer_load_dwordx4 {v(vd[1],4)}, {v(vo)}, s[{SX}:{SX+3}], 0 offen offset:1024")
    k("s_lshl_b32 s48, s47, 6")
    k(f"v_lshrrev_b32 {v(vso)}, 3, {v(k.vL)}")
    k(f"v_lshlrev_b32 {v(vso)}, 3, {v(vso)}")
    k(f"v_add_u32 {v(vso)}, s48, {v(vso)}")
    for r in range(2):
        k(f"v_mov_b32 {v(vs[r])}, 0")
        k(f"v_mov_b32 {v(vs[r]+1)}, 0")
    for r in range(2):
        for i in range(4):
            k(f"v_dot2_f32_bf16 {v(vs[r])}, {v(vd[r]+i)}, s44, {v(vs[r])}")
            k(f"v_dot2_f32_bf16 {v(vs[r]+1)}, {v(vd[r]+i)}, {v(vd[r]+i)}, {v(vs[r]+1)}")
    for dpp in ("quad_perm:[1,0,3,2]", "quad_perm:[2,3,0,1]", "row_half_mirror"):
        for r in range(2):
            for c in range(2):
                k(f"v_add_f32_dpp {v(tt+c)}, {v(vs[r]+c)}, {v(vs[r]+c)} {dpp} row_mask:0xf bank_mask:0xf")
            for c in range(2):
                k(f"v_mov_b32 {v(vs[r]+c)}, {v(tt+c)}")
    k(f"buffer_store_dwordx2 {v(vs[0],2)}, {v(vso)}, s[{SST}:{SST+3}], 0 offen")
    k(f"buffer_store_dwordx2 {v(vs[1],2)}, {v(vso)}, s[{SST}:{SST+3}], 0 offen offset:64")
    k("s_cmp_lt_u32 s2, 224")
    k(f"s_cbranch_scc1 {name}_nz")
    srd(k, SZ, P_WS, WS_KV, 0x20000)
    vz = k.valloc(4); vzo = k.valloc()
    for i in range(4): k(f"v_mov_b32 {v(vz+i)}, 0")
    k("s_sub_u32 s47, s2, 224")
    k("s_lshl_b32 s47, s47, 12")
    k(f"v_lshlrev_b32 {v(vzo)}, 4, v0")
    k(f"v_add_u32 {v(vzo)}, s47, {v(vzo)}")
    k(f"buffer_store_dwordx4 {v(vz,4)}, {v(vzo)}, s[{SZ}:{SZ+3}], 0 offen")
    k.L(f"{name}_nz")
    k("s_cmp_ge_u32 s2, 52")
    k(f"s_cbranch_scc1 {name}_end")
    k("s_cmp_lt_u32 s2, 24")
    k(f"s_cbranch_scc1 {name}_cq")
    srd(k, SW, P_W1, 0, 512 * 1792 * 2)
    srd(k, SCS, P_WS, WS_CS + 0x2000, 1792 * 4)
    k("s_mov_b32 s49, 3584")
    k("s_sub_u32 s50, s2, 24")
    k(f"s_branch {name}_cgo")
    k.L(f"{name}_cq")
    srd(k, SW, P_WQKV, 0, 512 * 1536 * 2)
    srd(k, SCS, P_WS, WS_CS, 1536 * 4)
    k("s_mov_b32 s49, 3072")
    k("s_mov_b32 s50, s2")
    k.L(f"{name}_cgo")
    vr = k.valloc(); vc = k.valloc(); vw = k.valloc(64, 4); acc = k.valloc(8, 4); vla = k.valloc()
    k(f"v_lshrrev_b32 {v(vr)}, 3, v0")
    k(f"v_and_b32 {v(vc)}, 7, v0")
    k(f"v_mul_lo_u32 {v(vo)}, {v(vr)}, s49")
    k(f"v_lshlrev_b32 {v(vc)}, 4, {v(vc)}")
    k("s_lshl_b32 s51, s50, 7")
    k(f"v_add3_u32 {v(vo)}, {v(vo)}, {v(vc)}, s51")
    k("s_lshl_b32 s52, s49, 5")
    k("s_mov_b32 s53, 0")
    for p in range(16):
        k(f"buffer_load_dwordx4 {v(vw+4*p,4)}, {v(vo)}, s[{SW}:{SW+3}], s53 offen")
        k("s_add_u32 s53, s53, s52")
    for i in range(8): k(f"v_mov_b32 {v(acc+i)}, 0")
    for p in range(16):
        for i in range(4):
            k(f"v_dot2_f32_bf16 {v(acc+2*i)}, {v(vw+4*p+i)}, s45, {v(acc+2*i)}")
            k(f"v_dot2_f32_bf16 {v(acc+2*i+1)}, {v(vw+4*p+i)}, s46, {v(acc+2*i+1)}")
    k(f"v_lshlrev_b32 {v(vla)}, 5, v0")
    k(f"ds_write_b128 {v(vla)}, {v(acc,4)}")
    k(f"ds_write_b128 {v(vla)}, {v(acc+4,4)} offset:16")
    k("s_waitcnt lgkmcnt(0)")
    k("s_barrier")
    k("s_cmp_lg_u32 s3, 0")
    k(f"s_cbranch_scc1 {name}_end")
    k(f"v_lshlrev_b32 {v(vla)}, 2, v0")
    for i in range(32):
        k(f"ds_read_b32 {v(vw+i)}, {v(vla)} offset:{i*256}")
    for i in range(1, 32):
        k(f"v_add_f32 {v(vw)}, {v(vw)}, {v(vw+i)}")
    k("s_lshl_b32 s51, s50, 8")
    k(f"v_add_u32 {v(vla)}, s51, {v(vla)}")
    k(f"buffer_store_dword {v(vw)}, {v(vla)}, s[{SCS}:{SCS+3}], 0 offen")
    epilogue_end(k)
    k.lds = 8192
    return k

def phi(k, t, tmp):
    k(f"v_mul_f32 {v(tmp)}, {LOG2E:#x}, {v(t)}")
    k(f"v_min_f32 {v(tmp)}, 0, {v(tmp)}")
    k(f"v_exp_f32 {v(tmp)}, {v(tmp)}")
    k(f"v_max_f32 {v(t)}, 0, {v(t)}")
    k(f"v_add_f32 {v(t)}, {fbits(1e-6):#x}, {v(t)}")
    k(f"v_add_f32 {v(t)}, {v(t)}, {v(tmp)}")

def round_pair(k, x0, x1, p):
    k(f"v_cvt_pk_bf16_f32 {v(p)}, {v(x0)}, {v(x1)}")
    k(f"v_lshlrev_b32 {v(x0)}, 16, {v(p)}")
    k(f"v_and_b32 {v(x1)}, 0xffff0000, {v(p)}")

def gen_k1(name, xsrc, kv_off, st_off):
    k = Kern(name); prologue(k, 256)
    SX, SW, SPQ, SKV, SCS, SST = 24, 28, 32, 36, 40, 44
    if xsrc == "in": srd(k, SX, P_X, 0, XB)
    else: srd(k, SX, P_WS, xsrc, XB)
    srd(k, SW, P_WQKV, 0, 512 * 1536 * 2)
    srd(k, SPQ, P_WS, WS_PQ, XB)
    srd(k, SKV, P_WS, kv_off, 34816)
    srd(k, SCS, P_WS, WS_CS, 1536 * 4)
    srd(k, SST, P_WS, st_off, 2048 * 64)
    k("s_bfe_u32 s48, s2, 0x20001")
    k("s_lshl_b32 s48, s48, 2")
    k("s_lshr_b32 s49, s2, 6")
    k("s_add_u32 s22, s48, s49")
    k("s_and_b32 s48, s2, 1")
    k("s_lshl_b32 s48, s48, 3")
    k("s_bfe_u32 s49, s2, 0x30003")
    k("s_add_u32 s23, s48, s49")
    k("s_lshl_b32 s50, s22, 7")
    k("s_lshl_b32 s51, s3, 5")
    k("s_add_u32 s50, s50, s51")
    LDS_ST, LDS_KV, LDS_Z = 98304, 99328, 107520
    k.lds = 108032
    vRow = k.valloc()
    k(f"v_add_u32 {v(vRow)}, s50, {v(k.vR16)}")
    Wb = [k.valloc(24, 4), k.valloc(24, 4)]
    acc = k.valloc(48, 4)
    A = k.aalloc(128)
    vt = k.valloc(); vt2 = k.valloc(); vt3 = k.valloc()
    stt = [Wb[0], Wb[1]]
    k(f"v_lshlrev_b32 {v(vt)}, 6, {v(vRow)}")
    for rt in range(2):
        for i in range(4):
            k(f"buffer_load_dwordx4 {v(stt[rt]+4*i,4)}, {v(vt)}, s[{SST}:{SST+3}], 0 offen offset:{rt*1024+i*16}")
    csq = k.valloc(8, 4); cskv = k.valloc(4)
    k("s_lshl_b32 s52, s23, 7")
    k(f"v_lshlrev_b32 {v(vt2)}, 4, {v(k.vG)}")
    k(f"v_add_u32 {v(vt2)}, s52, {v(vt2)}")
    for h in range(2):
        k(f"buffer_load_dwordx4 {v(csq+4*h,4)}, {v(vt2)}, s[{SCS}:{SCS+3}], 0 offen offset:{h*64}")
    k(f"v_lshlrev_b32 {v(vt3)}, 2, {v(k.vR16)}")
    k(f"v_add_u32 {v(vt3)}, s52, {v(vt3)}")
    k("s_mov_b32 s53, 2048")
    for kv in range(2):
        for h in range(2):
            k(f"buffer_load_dword {v(cskv+2*kv+h)}, {v(vt3)}, s[{SCS}:{SCS+3}], s53 offen offset:{2048*kv+h*64}")
    voA = [k.valloc(), k.valloc()]
    k(f"v_lshlrev_b32 {v(voA[0])}, 10, {v(vRow)}")
    k(f"v_lshl_add_u32 {v(voA[0])}, {v(k.vG)}, 4, {v(voA[0])}")
    k(f"v_add_u32 {v(voA[1])}, 16384, {v(voA[0])}")
    voB = [k.valloc() for _ in range(3)]
    u, row, rem, t_, c_ = [k.valloc() for _ in range(5)]
    k("s_mul_i32 s53, s3, 192")
    k("s_lshl_b32 s54, s23, 6")
    for i in range(3):
        k(f"v_add_u32 {v(u)}, s53, {v(k.vL)}")
        if i: k(f"v_add_u32 {v(u)}, {64*i}, {v(u)}")
        k(f"v_mul_u32_u24 {v(row)}, 0xaaab, {v(u)}")
        k(f"v_lshrrev_b32 {v(row)}, 19, {v(row)}")
        k(f"v_mul_u32_u24 {v(rem)}, 12, {v(row)}")
        k(f"v_sub_u32 {v(rem)}, {v(u)}, {v(rem)}")
        k(f"v_lshrrev_b32 {v(t_)}, 1, {v(rem)}")
        k(f"v_bfe_u32 {v(c_)}, {v(row)}, 3, 1")
        k(f"v_sub_u32 {v(t_)}, {v(t_)}, {v(c_)}")
        k(f"v_add_u32 {v(c_)}, 6, {v(t_)}")
        k(f"v_min_u32 {v(t_)}, {v(t_)}, {v(c_)}")
        k(f"v_lshrrev_b32 {v(c_)}, 1, {v(t_)}")
        k(f"v_lshlrev_b32 {v(c_)}, 10, {v(c_)}")
        k(f"v_and_b32 {v(t_)}, 1, {v(t_)}")
        k(f"v_lshl_add_u32 {v(c_)}, {v(t_)}, 5, {v(c_)}")
        k(f"v_and_b32 {v(rem)}, 1, {v(rem)}")
        k(f"v_lshl_add_u32 {v(c_)}, {v(rem)}, 4, {v(c_)}")
        k(f"v_mul_u32_u24 {v(row)}, 3072, {v(row)}")
        k(f"v_add3_u32 {v(voB[i])}, {v(row)}, {v(c_)}, s54")
    k("s_mul_i32 s55, s3, 3072")
    def issue_chunk(c):
        for rt in range(2):
            for kk in range(2):
                ks = 2 * c + kk
                k.I(f"buffer_load_dwordx4 {a(A+(rt*16+ks)*4,4)}, {v(voA[rt])}, s[{SX}:{SX+3}], 0 offen offset:{ks*64}", tag=f"c{c}")
        k(f"s_mov_b32 s56, {c*64*3072}")
        for i in range(3):
            k(f"s_add_u32 m0, s55, {c*12288+i*1024}")
            k.I(f"buffer_load_dwordx4 {v(voB[i])}, s[{SW}:{SW+3}], s56 offen lds", tag=f"c{c}")
    for c in range(6): issue_chunk(c)
    va = [k.valloc(), k.valloc()]; vb = [k.valloc(), k.valloc()]
    for rt in range(2): ln_params(k, stt[rt], va[rt], vb[rt], vt, vt2)
    for c in range(6, 8): issue_chunk(c)
    abn = [k.valloc(8, 4), k.valloc(8, 4)]
    pr = k.valloc(2, 2)
    k("s_lshl_b32 s57, s3, 8")
    k(f"s_add_u32 s57, s57, {LDS_ST}")
    k(f"v_lshlrev_b32 {v(vt)}, 3, {v(k.vR16)}")
    k(f"v_add_u32 {v(vt)}, s57, {v(vt)}")
    k(f"v_lshlrev_b32 {v(vt2)}, 5, {v(k.vG)}")
    k(f"v_add_u32 {v(vt2)}, s57, {v(vt2)}")
    for rt in range(2):
        k(f"v_mov_b32 {v(pr)}, {v(va[rt])}")
        k(f"v_mov_b32 {v(pr+1)}, {v(vb[rt])}")
        k(f"ds_write_b64 {v(vt)}, {v(pr,2)} offset:{rt*128}")
        k("s_waitcnt lgkmcnt(0)")
    for rt in range(2):
        k(f"ds_read_b128 {v(abn[rt],4)}, {v(vt2)} offset:{rt*128}")
        k(f"ds_read_b128 {v(abn[rt]+4,4)}, {v(vt2)} offset:{rt*128+16}")
    tb = [k.valloc() for _ in range(6)]
    k(f"v_bfe_u32 {v(vt)}, {v(k.vL)}, 2, 2")
    k(f"v_lshl_add_u32 {v(vt)}, {v(k.vG)}, 3, {v(vt)}")
    k(f"v_mul_u32_u24 {v(vt)}, 192, {v(vt)}")
    k(f"v_and_b32 {v(vt2)}, 3, {v(k.vL)}")
    k(f"v_lshl_add_u32 {v(vt)}, {v(vt2)}, 3, {v(vt)}")
    k(f"v_and_b32 {v(vt2)}, 1, {v(k.vG)}")
    k(f"v_lshlrev_b32 {v(vt2)}, 5, {v(vt2)}")
    for t in range(6):
        if t < 5:
            k(f"v_add_u32 {v(tb[t])}, {v(vt)}, {v(vt2)}")
            if t: k(f"v_add_u32 {v(tb[t])}, {t*32}, {v(tb[t])}")
        else:
            k(f"v_mul_u32_u24 {v(vt3)}, 5, {v(vt2)}")
            k(f"v_sub_u32 {v(tb[t])}, {v(vt)}, {v(vt3)}")
            k(f"v_add_u32 {v(tb[t])}, 160, {v(tb[t])}")
    for i in range(48): k(f"v_mov_b32 {v(acc+i)}, 0")
    def reads(ks):
        if ks == 8:
            for t in range(6): k(f"v_add_u32 {v(tb[t])}, 49152, {v(tb[t])}")
        b = Wb[ks & 1]
        for t in range(6):
            for hh in range(2):
                k(f"ds_read_b64_tr_b16 {v(b+4*t+2*hh,2)}, {v(tb[t])} offset:{(ks&7)*6144+hh*768}")
    def mfmas(ks):
        b = Wb[ks & 1]
        for t in range(6):
            for rt in range(2):
                ac = acc + (rt * 6 + t) * 4; af = A + (rt * 16 + ks) * 4; wf = b + 4 * t
                if t < 2: k(f"v_mfma_f32_16x16x32_bf16 {v(ac,4)}, {v(wf,4)}, {a(af,4)}, {v(ac,4)}")
                else:     k(f"v_mfma_f32_16x16x32_bf16 {v(ac,4)}, {a(af,4)}, {v(wf,4)}, {v(ac,4)}")
    for c in range(8):
        k.wait_tag(f"c{c}")
        k("s_barrier")
        reads(2 * c)
        if c: mfmas(2 * c - 1)
        reads(2 * c + 1)
        mfmas(2 * c)
    mfmas(15)
    tmp = [k.valloc() for _ in range(4)]
    fr = {}
    for kv in range(2):
        for h in range(2):
            f = k.valloc(4); fr[(kv, h)] = f
            for rt in range(2):
                ac = acc + (rt * 6 + 2 + 2 * kv + h) * 4
                for j in range(4):
                    k(f"v_mul_f32 {v(tmp[j])}, {v(abn[rt]+2*j+1)}, {v(cskv+2*kv+h)}")
                for j in range(4):
                    k(f"v_fma_f32 {v(ac+j)}, {v(abn[rt]+2*j)}, {v(ac+j)}, {v(tmp[j])}")
                if kv == 0:
                    round_pair(k, ac, ac + 1, tmp[0]); round_pair(k, ac + 2, ac + 3, tmp[1])
                    for j in range(4): phi(k, ac + j, tmp[j])
                k(f"v_cvt_pk_bf16_f32 {v(f+2*rt)}, {v(ac)}, {v(ac+1)}")
                k(f"v_cvt_pk_bf16_f32 {v(f+2*rt+1)}, {v(ac+2)}, {v(ac+3)}")
    ones = k.valloc(4)
    for i in range(4): k(f"v_mov_b32 {v(ones+i)}, 0x3f803f80")
    kvp = [k.valloc(4), k.valloc(4)]; zp = [k.valloc(4), k.valloc(4)]
    for h in range(2):
        k(f"v_mfma_f32_16x16x32_bf16 {v(kvp[h],4)}, {v(fr[(0,h)],4)}, {v(fr[(1,h)],4)}, 0")
        k(f"v_mfma_f32_16x16x32_bf16 {v(zp[h],4)}, {v(fr[(0,h)],4)}, {v(ones,4)}, 0")
    voq = k.valloc()
    k(f"v_lshlrev_b32 {v(voq)}, 10, {v(vRow)}")
    k(f"v_lshl_add_u32 {v(voq)}, {v(k.vG)}, 3, {v(voq)}")
    k(f"v_add_u32 {v(voq)}, s54, {v(voq)}")
    k(f"v_add_u32 {v(vt3)}, 16384, {v(voq)}")
    for rt in range(2):
        for h in range(2):
            ac = acc + (rt * 6 + h) * 4
            for j in range(4):
                k(f"v_mul_f32 {v(tmp[j])}, {v(vb[rt])}, {v(csq+4*h+j)}")
            for j in range(4):
                k(f"v_fma_f32 {v(ac+j)}, {v(va[rt])}, {v(ac+j)}, {v(tmp[j])}")
            round_pair(k, ac, ac + 1, tmp[0]); round_pair(k, ac + 2, ac + 3, tmp[1])
            for j in range(4): phi(k, ac + j, tmp[j])
            k(f"v_cvt_pk_bf16_f32 {v(ac)}, {v(ac)}, {v(ac+1)}")
            k(f"v_cvt_pk_bf16_f32 {v(ac+1)}, {v(ac+2)}, {v(ac+3)}")
            k(f"buffer_store_dwordx2 {v(ac,2)}, {v(voq if rt == 0 else vt3)}, s[{SPQ}:{SPQ+3}], 0 offen offset:{h*32}")
    k("s_lshl_b32 s57, s3, 11")
    k(f"s_add_u32 s57, s57, {LDS_KV}")
    k(f"v_lshlrev_b32 {v(vt)}, 4, {v(k.vL)}")
    k(f"v_add_u32 {v(vt)}, s57, {v(vt)}")
    k("s_lshl_b32 s58, s3, 7")
    k(f"s_add_u32 s58, s58, {LDS_Z}")
    k(f"v_lshlrev_b32 {v(vt2)}, 4, {v(k.vG)}")
    k(f"v_add_u32 {v(vt2)}, s58, {v(vt2)}")
    for h in range(2):
        k(f"ds_write_b128 {v(vt)}, {v(kvp[h],4)} offset:{h*1024}")
        k(f"ds_write_b128 {v(vt2)}, {v(zp[h],4)} offset:{h*64}")
    k("s_waitcnt lgkmcnt(0)")
    k("s_barrier")
    k(f"v_bfe_u32 {v(vt)}, v0, 3, 4")
    k(f"v_lshlrev_b32 {v(vt)}, 4, {v(vt)}")
    k(f"v_lshrrev_b32 {v(vt2)}, 7, v0")
    k(f"v_lshl_add_u32 {v(vt)}, {v(vt2)}, 9, {v(vt)}")
    k(f"v_bfe_u32 {v(vt2)}, v0, 2, 1")
    k(f"v_lshl_add_u32 {v(vt)}, {v(vt2)}, 8, {v(vt)}")
    k(f"v_and_b32 {v(vt2)}, 3, v0")
    k(f"v_lshl_add_u32 {v(vt)}, {v(vt2)}, 2, {v(vt)}")
    k(f"v_add_u32 {v(vt)}, {LDS_KV}, {v(vt)}")
    rd = acc
    for h in range(2):
        for w in range(4):
            k(f"ds_read_b32 {v(rd+4*h+w)}, {v(vt)} offset:{w*2048+h*1024}")
    k("s_lshl_b32 s57, s23, 11")
    k(f"v_lshlrev_b32 {v(vt2)}, 2, v0")
    k(f"v_add_u32 {v(vt2)}, s57, {v(vt2)}")
    for h in range(2):
        k(f"v_add_f32 {v(rd+4*h)}, {v(rd+4*h)}, {v(rd+4*h+1)}")
        k(f"v_add_f32 {v(rd+4*h+2)}, {v(rd+4*h+2)}, {v(rd+4*h+3)}")
        k(f"v_add_f32 {v(rd+4*h)}, {v(rd+4*h)}, {v(rd+4*h+2)}")
        k(f"buffer_atomic_add_f32 {v(rd+4*h)}, {v(vt2)}, s[{SKV}:{SKV+3}], 0 offen offset:{h*1024}")
    k("s_cmp_lg_u32 s3, 0")
    k(f"s_cbranch_scc1 {name}_end")
    k("s_mov_b64 exec, 0xffffffff")
    k(f"v_lshlrev_b32 {v(vt)}, 2, v0")
    k(f"v_add_u32 {v(vt2)}, {LDS_Z}, {v(vt)}")
    for w in range(4):
        k(f"ds_read_b32 {v(rd+8+w)}, {v(vt2)} offset:{w*128}")
    k("s_lshl_b32 s57, s23, 7")
    k(f"s_add_u32 s57, s57, 32768")
    k(f"v_add_u32 {v(vt)}, s57, {v(vt)}")
    k(f"v_add_f32 {v(rd+8)}, {v(rd+8)}, {v(rd+9)}")
    k(f"v_add_f32 {v(rd+10)}, {v(rd+10)}, {v(rd+11)}")
    k(f"v_add_f32 {v(rd+8)}, {v(rd+8)}, {v(rd+10)}")
    k(f"buffer_atomic_add_f32 {v(rd+8)}, {v(vt)}, s[{SKV}:{SKV+3}], 0 offen")
    epilogue_end(k)
    return k

def resid_epilogue(k, acc, xr, vRow, SDST, SST, cbreg_bytes_s, tmp, do_stats):
    vo = k.valloc(); sm = k.valloc(2, 2); t0, t1, t2, t3, t4 = tmp[:5]
    k(f"v_lshlrev_b32 {v(vo)}, 10, {v(vRow)}")
    k(f"v_lshl_add_u32 {v(vo)}, {v(k.vG)}, 3, {v(vo)}")
    k(f"v_add_u32 {v(vo)}, s{cbreg_bytes_s}, {v(vo)}")
    if do_stats:
        k(f"v_mov_b32 {v(sm)}, 0"); k(f"v_mov_b32 {v(sm+1)}, 0")
        k("s_mov_b32 s60, 0x3f803f80")
    for t in range(4):
        for p in range(2):
            a0 = acc + 4 * t + 2 * p; x = xr + 2 * t + p
            k(f"v_cvt_pk_bf16_f32 {v(t0)}, {v(a0)}, {v(a0+1)}")
            k(f"v_lshlrev_b32 {v(t1)}, 16, {v(t0)}")
            k(f"v_and_b32 {v(t2)}, 0xffff0000, {v(t0)}")
            k(f"v_lshlrev_b32 {v(t3)}, 16, {v(x)}")
            k(f"v_and_b32 {v(t4)}, 0xffff0000, {v(x)}")
            k(f"v_add_f32 {v(t1)}, {v(t1)}, {v(t3)}")
            k(f"v_add_f32 {v(t2)}, {v(t2)}, {v(t4)}")
            k(f"v_cvt_pk_bf16_f32 {v(x)}, {v(t1)}, {v(t2)}")
            if do_stats:
                k(f"v_dot2_f32_bf16 {v(sm)}, {v(x)}, s60, {v(sm)}")
                k(f"v_dot2_f32_bf16 {v(sm+1)}, {v(x)}, {v(x)}, {v(sm+1)}")
        k(f"buffer_store_dwordx2 {v(xr+2*t,2)}, {v(vo)}, s[{SDST}:{SDST+3}], 0 offen offset:{t*32}")
    if do_stats:
        xlane_sum_g(k, sm, t0); xlane_sum_g(k, sm + 1, t1)
        k(f"s_lshr_b32 s61, s{cbreg_bytes_s}, 4")
        k(f"v_lshlrev_b32 {v(vo)}, 6, {v(vRow)}")
        k(f"v_add_u32 {v(vo)}, s61, {v(vo)}")
        k(f"buffer_store_dwordx2 {v(sm,2)}, {v(vo)}, s[{SST}:{SST+3}], 0 offen")

def tilemap64(k):
    k("s_and_b32 s48, s2, 7")
    k("s_lshl_b32 s48, s48, 2")
    k("s_lshr_b32 s49, s2, 6")
    k("s_add_u32 s22, s48, s49")
    k("s_bfe_u32 s23, s2, 0x30003")
    k("s_lshl_b32 s50, s22, 6")
    k("s_lshl_b32 s51, s3, 4")
    k("s_add_u32 s50, s50, s51")
    k("s_lshl_b32 s54, s23, 7")

def gen_k2(name, xsrc, kv_off, xdst, st_off):
    k = Kern(name); prologue(k, 256)
    SX, SW, SPQ, SKV, SD, SST = 24, 28, 32, 36, 40, 44
    if xsrc == "in": srd(k, SX, P_X, 0, XB)
    else: srd(k, SX, P_WS, xsrc, XB)
    srd(k, SW, P_WO, 0, 512 * 512 * 2)
    srd(k, SPQ, P_WS, WS_PQ, XB)
    srd(k, SKV, P_WS, kv_off, 34816)
    srd(k, SD, P_WS, xdst, XB)
    srd(k, SST, P_WS, st_off, 2048 * 64)
    tilemap64(k)
    LDS_F, LDS_Z, LDS_0 = 65536, 81920, 82944
    k.lds = 83200
    vRow = k.valloc(); vt = k.valloc(); vt2 = k.valloc(); vt3 = k.valloc()
    k(f"v_add_u32 {v(vRow)}, s50, {v(k.vR16)}")
    kvf = k.valloc(32, 4); zf = k.valloc(2, 2)
    k("s_lshl_b32 s52, s3, 13")
    k(f"v_lshlrev_b32 {v(vt)}, 5, {v(k.vL)}")
    k(f"v_add_u32 {v(vt)}, s52, {v(vt)}")
    k(f"v_add_u32 {v(vt2)}, 4096, {v(vt)}")
    for p in range(4):
        for hlf in range(2):
            k(f"buffer_load_dwordx4 {v(kvf+8*p+4*hlf,4)}, {v(vt if p < 2 else vt2)}, s[{SKV}:{SKV+3}], 0 offen offset:{(p&1)*2048+hlf*16}")
    k(f"v_lshlrev_b32 {v(vt3)}, 3, v0")
    k(f"v_add_u32 {v(vt3)}, 32768, {v(vt3)}")
    k(f"buffer_load_dwordx2 {v(zf,2)}, {v(vt3)}, s[{SKV}:{SKV+3}], 0 offen")
    P = k.valloc(64, 4); voP = k.valloc(); voB = k.valloc()
    k(f"v_lshlrev_b32 {v(voP)}, 10, {v(vRow)}")
    k(f"v_lshl_add_u32 {v(voP)}, {v(k.vG)}, 4, {v(voP)}")
    k(f"v_lshrrev_b32 {v(vt)}, 3, {v(k.vL)}")
    k(f"v_bfe_u32 {v(vt2)}, {v(k.vL)}, 4, 2")
    k(f"v_lshlrev_b32 {v(vt2)}, 1, {v(vt2)}")
    k(f"v_and_b32 {v(vt3)}, 7, {v(k.vL)}")
    k(f"v_xor_b32 {v(vt2)}, {v(vt2)}, {v(vt3)}")
    k(f"v_lshlrev_b32 {v(vt2)}, 4, {v(vt2)}")
    k(f"v_lshl_add_u32 {v(voB)}, {v(vt)}, 10, {v(vt2)}")
    k("s_lshl_b32 s52, s3, 13")
    k("s_add_u32 s52, s52, s54")
    k(f"v_add_u32 {v(voB)}, s52, {v(voB)}")
    k("s_lshl_b32 s55, s3, 10")
    CH = 2
    for p in range(16):
        k.I(f"buffer_load_dwordx4 {v(P+4*p,4)}, {v(voP)}, s[{SPQ}:{SPQ+3}], 0 offen offset:{p*64}", tag=f"c{p//CH}")
        k(f"s_mov_b32 s56, {p*32768}")
        k(f"s_add_u32 m0, s55, {p*4096}")
        k.I(f"buffer_load_dwordx4 {v(voB)}, s[{SW}:{SW+3}], s56 offen lds", tag=f"c{p//CH}")
    xr = k.valloc(8, 4); voX = k.valloc()
    k(f"v_lshlrev_b32 {v(voX)}, 10, {v(vRow)}")
    k(f"v_lshl_add_u32 {v(voX)}, {v(k.vG)}, 3, {v(voX)}")
    k(f"v_add_u32 {v(voX)}, s54, {v(voX)}")
    for t in range(4):
        k(f"buffer_load_dwordx2 {v(xr+2*t,2)}, {v(voX)}, s[{SX}:{SX+3}], 0 offen offset:{t*32}")
    k("s_lshl_b32 s52, s3, 12")
    k(f"s_add_u32 s52, s52, {LDS_F}")
    k(f"v_lshlrev_b32 {v(vt)}, 4, {v(k.vL)}")
    k(f"v_add_u32 {v(vt)}, s52, {v(vt)}")
    for p in range(4):
        for i in range(4):
            k(f"v_cvt_pk_bf16_f32 {v(kvf+8*p+i)}, {v(kvf+8*p+2*i)}, {v(kvf+8*p+2*i+1)}")
        k(f"ds_write_b128 {v(vt)}, {v(kvf+8*p,4)} offset:{p*1024}")
    k(f"v_cvt_pk_bf16_f32 {v(zf)}, {v(zf)}, {v(zf+1)}")
    k(f"v_lshlrev_b32 {v(vt2)}, 2, v0")
    k(f"v_add_u32 {v(vt2)}, {LDS_Z}, {v(vt2)}")
    k(f"ds_write_b32 {v(vt2)}, {v(zf)}")
    k(f"v_mov_b32 {v(zf)}, 0")
    k(f"v_and_b32 {v(vt2)}, 3, v0")
    k(f"v_lshlrev_b32 {v(vt2)}, 2, {v(vt2)}")
    k(f"v_add_u32 {v(vt2)}, {LDS_0}, {v(vt2)}")
    k(f"ds_write_b32 {v(vt2)}, {v(zf)}")
    aA0, aA1, aAz, sA0, sA1, sAz = [k.valloc() for _ in range(6)]
    k(f"v_lshlrev_b32 {v(vt)}, 4, {v(k.vL)}")
    k(f"v_add_u32 {v(vt)}, {LDS_F}, {v(vt)}")
    k(f"v_mov_b32 {v(vt2)}, {LDS_0}")
    k(f"v_cmp_gt_u32 vcc, 2, {v(k.vG)}")
    k(f"v_cndmask_b32 {v(aA0)}, {v(vt2)}, {v(vt)}, vcc")
    k(f"v_cndmask_b32 {v(aA1)}, {v(vt)}, {v(vt2)}, vcc")
    k(f"v_mov_b32 {v(vt3)}, 1024")
    k(f"v_cndmask_b32 {v(sA0)}, 0, {v(vt3)}, vcc")
    k(f"v_cndmask_b32 {v(sA1)}, {v(vt3)}, 0, vcc")
    k(f"v_and_b32 {v(vt)}, 3, {v(k.vL)}")
    k(f"v_lshrrev_b32 {v(vt3)}, 1, {v(k.vG)}")
    k(f"v_cmp_eq_u32 vcc, {v(vt)}, {v(vt3)}")
    k(f"v_lshlrev_b32 {v(vt)}, 4, {v(k.vG)}")
    k(f"v_add_u32 {v(vt)}, {LDS_Z}, {v(vt)}")
    k(f"v_cndmask_b32 {v(aAz)}, {v(vt2)}, {v(vt)}, vcc")
    k(f"v_cndmask_b32 {v(sAz)}, 0, 64, vcc")
    tb = [k.valloc() for _ in range(4)]
    k(f"v_bfe_u32 {v(vt)}, {v(k.vL)}, 2, 2")
    k(f"v_lshl_add_u32 {v(vt)}, {v(k.vG)}, 2, {v(vt)}")
    k(f"v_bfe_u32 {v(vt2)}, {v(vt)}, 1, 2")
    k(f"v_lshlrev_b32 {v(vt)}, 7, {v(vt)}")
    k(f"v_and_b32 {v(vt3)}, 3, {v(k.vL)}")
    k(f"v_lshl_add_u32 {v(vt)}, {v(vt3)}, 3, {v(vt)}")
    for t in range(4):
        k(f"v_xor_b32 {v(vt3)}, {t}, {v(vt2)}")
        k(f"v_lshl_add_u32 {v(tb[t])}, {v(vt3)}, 5, {v(vt)}")
    acc = k.valloc(16, 4)
    for i in range(16): k(f"v_mov_b32 {v(acc+i)}, 0")
    Wb = [k.valloc(16, 4), k.valloc(16, 4)]
    Fb = k.valloc(12, 4)
    N = [k.valloc(12, 4), k.valloc(12, 4)]
    O = k.valloc(4); rr = k.valloc(2)
    def freads():
        k(f"ds_read_b128 {v(Fb,4)}, {v(aA0)}")
        k(f"ds_read_b128 {v(Fb+4,4)}, {v(aA1)}")
        k(f"ds_read_b128 {v(Fb+8,4)}, {v(aAz)}")
        k(f"v_add_u32 {v(aA0)}, {v(aA0)}, {v(sA0)}")
        k(f"v_add_u32 {v(aA1)}, {v(aA1)}, {v(sA1)}")
        k(f"v_add_u32 {v(aAz)}, {v(aAz)}, {v(sAz)}")
    def amfma(p):
        n = N[p & 1]
        for i in range(3):
            k(f"v_mfma_f32_16x16x32_bf16 {v(n+4*i,4)}, {v(Fb+4*i,4)}, {v(P+4*p,4)}, 0")
    k("s_waitcnt lgkmcnt(0)")
    for p in range(16):
        if p % CH == 0:
            k.wait_tag(f"c{p//CH}")
            k("s_barrier")
        if p == 0:
            freads(); amfma(0)
        b = Wb[p & 1]
        for t in range(4):
            for hh in range(2):
                k(f"ds_read_b64_tr_b16 {v(b+4*t+2*hh,2)}, {v(tb[t])} offset:{p*4096+hh*2048}")
        if p < 15: freads()
        n = N[p & 1]
        k(f"v_add_f32 {v(rr)}, {fbits(1e-6):#x}, {v(n+8)}")
        k(f"v_add_f32 {v(rr+1)}, {fbits(1e-6):#x}, {v(n+9)}")
        k(f"v_rcp_f32 {v(rr)}, {v(rr)}")
        k(f"v_rcp_f32 {v(rr+1)}, {v(rr+1)}")
        for h in range(2):
            for j in range(4):
                k(f"v_mul_f32 {v(n+4*h+j)}, {v(n+4*h+j)}, {v(rr+h)}")
        for h in range(2):
            k(f"v_cvt_pk_bf16_f32 {v(O+2*h)}, {v(n+4*h)}, {v(n+4*h+1)}")
            k(f"v_cvt_pk_bf16_f32 {v(O+2*h+1)}, {v(n+4*h+2)}, {v(n+4*h+3)}")
        for t in range(4):
            k(f"v_mfma_f32_16x16x32_bf16 {v(acc+4*t,4)}, {v(b+4*t,4)}, {v(O,4)}, {v(acc+4*t,4)}")
        if p < 15: amfma(p + 1)
    tmp = [k.valloc() for _ in range(5)]
    resid_epilogue(k, acc, xr, vRow, SD, SST, 54, tmp, True)
    epilogue_end(k)
    return k

def gen_k3(name, xsrc, st_off):
    k = Kern(name); prologue(k, 224)
    SX, SW, SH, SCS, SST = 24, 28, 32, 36, 40
    srd(k, SX, P_WS, xsrc, XB)
    srd(k, SW, P_W1, 0, 512 * 1792 * 2)
    srd(k, SH, P_WS, WS_H, S_ * F_ * 2)
    srd(k, SCS, P_WS, WS_CS + 0x2000, 1792 * 4)
    srd(k, SST, P_WS, st_off, 2048 * 64)
    k("s_lshr_b32 s48, s2, 3")
    k("s_mul_i32 s49, s48, 37")
    k("s_lshr_b32 s49, s49, 8")
    k("s_mul_i32 s51, s49, 7")
    k("s_sub_u32 s48, s48, s51")
    k("s_bfe_u32 s51, s2, 0x20001")
    k("s_lshl_b32 s51, s51, 2")
    k("s_add_u32 s22, s51, s49")
    k("s_and_b32 s51, s2, 1")
    k("s_mul_i32 s51, s51, 7")
    k("s_add_u32 s23, s51, s48")
    k("s_lshl_b32 s50, s22, 7")
    k("s_lshl_b32 s51, s3, 5")
    k("s_add_u32 s50, s50, s51")
    k("s_lshl_b32 s54, s23, 8")
    k.lds = 131072
    vRow = k.valloc(); vt = k.valloc(); vt2 = k.valloc(); vt3 = k.valloc()
    k(f"v_add_u32 {v(vRow)}, s50, {v(k.vR16)}")
    Wb = [k.valloc(32, 4), k.valloc(32, 4)]
    acc = k.valloc(64, 4)
    A = k.aalloc(128)
    stt = [Wb[0], Wb[1]]
    k(f"v_lshlrev_b32 {v(vt)}, 6, {v(vRow)}")
    for rt in range(2):
        for i in range(4):
            k(f"buffer_load_dwordx4 {v(stt[rt]+4*i,4)}, {v(vt)}, s[{SST}:{SST+3}], 0 offen offset:{rt*1024+i*16}")
    cs = k.valloc(32, 4)
    k("s_lshl_b32 s52, s23, 9")
    k(f"v_lshlrev_b32 {v(vt2)}, 4, {v(k.vG)}")
    k(f"v_add_u32 {v(vt2)}, s52, {v(vt2)}")
    for t in range(8):
        k(f"buffer_load_dwordx4 {v(cs+4*t,4)}, {v(vt2)}, s[{SCS}:{SCS+3}], 0 offen offset:{t*64}")
    voA = [k.valloc(), k.valloc()]
    k(f"v_lshlrev_b32 {v(voA[0])}, 10, {v(vRow)}")
    k(f"v_lshl_add_u32 {v(voA[0])}, {v(k.vG)}, 4, {v(voA[0])}")
    k(f"v_add_u32 {v(voA[1])}, 16384, {v(voA[0])}")
    voB = [k.valloc() for _ in range(4)]
    k("s_lshl_b32 s52, s3, 4")
    for i in range(4):
        k(f"v_lshlrev_b32 {v(vt)}, 1, {v(k.vG)}")
        if i >= 2: k(f"v_or_b32 {v(vt)}, 8, {v(vt)}")
        k(f"v_xor_b32 {v(vt)}, {v(vt)}, {v(k.vR16)}")
        k(f"v_lshlrev_b32 {v(vt)}, 4, {v(vt)}")
        k(f"v_add3_u32 {v(vt2)}, {v(k.vG)}, s52, {4*i}")
        k(f"v_mul_u32_u24 {v(vt2)}, 3584, {v(vt2)}")
        k(f"v_add3_u32 {v(voB[i])}, {v(vt2)}, {v(vt)}, s54")
    k("s_lshl_b32 s55, s3, 12")
    def issue_chunk(c):
        for rt in range(2):
            for kk in range(2):
                ks = 2 * c + kk
                k.I(f"buffer_load_dwordx4 {a(A+(rt*16+ks)*4,4)}, {v(voA[rt])}, s[{SX}:{SX+3}], 0 offen offset:{ks*64}", tag=f"c{c}")
        k(f"s_mov_b32 s56, {c*64*3584}")
        for i in range(4):
            k(f"s_add_u32 m0, s55, {c*16384+i*1024}")
            k.I(f"buffer_load_dwordx4 {v(voB[i])}, s[{SW}:{SW+3}], s56 offen lds", tag=f"c{c}")
    for c in range(5): issue_chunk(c)
    va = [k.valloc(), k.valloc()]; vb = [k.valloc(), k.valloc()]
    for rt in range(2): ln_params(k, stt[rt], va[rt], vb[rt], vt, vt2)
    issue_chunk(5)
    tb = [k.valloc() for _ in range(8)]
    k(f"v_bfe_u32 {v(vt)}, {v(k.vL)}, 2, 2")
    k(f"v_and_b32 {v(vt2)}, 1, {v(k.vG)}")
    k(f"v_lshl_add_u32 {v(vt2)}, {v(vt2)}, 2, {v(vt)}")
    k(f"v_lshl_add_u32 {v(vt)}, {v(k.vG)}, 3, {v(vt)}")
    k(f"v_lshlrev_b32 {v(vt)}, 8, {v(vt)}")
    k(f"v_and_b32 {v(vt3)}, 3, {v(k.vL)}")
    k(f"v_lshl_add_u32 {v(vt)}, {v(vt3)}, 3, {v(vt)}")
    for t in range(8):
        k(f"v_xor_b32 {v(vt3)}, {t}, {v(vt2)}")
        k(f"v_lshl_add_u32 {v(tb[t])}, {v(vt3)}, 5, {v(vt)}")
    for i in range(64): k(f"v_mov_b32 {v(acc+i)}, 0")
    def reads(ks):
        if ks == 8:
            for t in range(8): k(f"v_add_u32 {v(tb[t])}, 65536, {v(tb[t])}")
        b = Wb[ks & 1]
        for t in range(8):
            for hh in range(2):
                k(f"ds_read_b64_tr_b16 {v(b+4*t+2*hh,2)}, {v(tb[t])} offset:{(ks&7)*8192+hh*1024}")
    def mfmas(ks):
        b = Wb[ks & 1]
        for t in range(8):
            for rt in range(2):
                ac = acc + (rt * 8 + t) * 4
                k(f"v_mfma_f32_16x16x32_bf16 {v(ac,4)}, {v(b+4*t,4)}, {a(A+(rt*16+ks)*4,4)}, {v(ac,4)}")
    for c in range(8):
        k.wait_tag(f"c{c}")
        k("s_barrier")
        if c < 2: issue_chunk(6 + c)
        reads(2 * c)
        if c: mfmas(2 * c - 1)
        reads(2 * c + 1)
        mfmas(2 * c)
    mfmas(15)
    voH = [k.valloc(), k.valloc()]
    k("s_mov_b32 s57, 3584")
    k(f"v_mul_lo_u32 {v(voH[0])}, {v(vRow)}, s57")
    k(f"v_lshl_add_u32 {v(voH[0])}, {v(k.vG)}, 3, {v(voH[0])}")
    k(f"v_add_u32 {v(voH[0])}, s54, {v(voH[0])}")
    k(f"v_add_u32 {v(voH[1])}, {16*3584}, {v(voH[0])}")
    tmp = [k.valloc() for _ in range(8)]
    for rt in range(2):
        for t in range(8):
            ac = acc + (rt * 8 + t) * 4
            for j in range(4): k(f"v_mul_f32 {v(tmp[j])}, {v(vb[rt])}, {v(cs+4*t+j)}")
            for j in range(4): k(f"v_fma_f32 {v(ac+j)}, {v(va[rt])}, {v(ac+j)}, {v(tmp[j])}")
            round_pair(k, ac, ac + 1, tmp[0]); round_pair(k, ac + 2, ac + 3, tmp[1])
            for j in range(4): k(f"v_mul_f32 {v(tmp[j])}, {LOG2E | 0x80000000:#x}, {v(ac+j)}")
            for j in range(4): k(f"v_exp_f32 {v(tmp[j])}, {v(tmp[j])}")
            for j in range(4): k(f"v_add_f32 {v(tmp[j])}, 1.0, {v(tmp[j])}")
            for j in range(4): k(f"v_rcp_f32 {v(tmp[j])}, {v(tmp[j])}")
            for j in range(4): k(f"v_mul_f32 {v(ac+j)}, {v(ac+j)}, {v(tmp[j])}")
            k(f"v_cvt_pk_bf16_f32 {v(ac)}, {v(ac)}, {v(ac+1)}")
            k(f"v_cvt_pk_bf16_f32 {v(ac+1)}, {v(ac+2)}, {v(ac+3)}")
            k(f"buffer_store_dwordx2 {v(ac,2)}, {v(voH[rt])}, s[{SH}:{SH+3}], 0 offen offset:{t*32}")
    epilogue_end(k)
    return k

def gen_k4(name, xsrc, xdst, st_off):
    k = Kern(name); prologue(k, 256)
    SX, SW, SH, SD, SST = 24, 28, 32, 36, 40
    srd(k, SX, P_WS, xsrc, XB)
    srd(k, SW, P_W2, 0, 1792 * 512 * 2)
    srd(k, SH, P_WS, WS_H, S_ * F_ * 2)
    if xdst == "out": srd(k, SD, P_OUT, 0, XB)
    else: srd(k, SD, P_WS, xdst, XB)
    if st_off is not None: srd(k, SST, P_WS, st_off, 2048 * 64)
    tilemap64(k)
    NS, DEP, NC = 9, 7, 14
    k.lds = NS * 16384
    vRow = k.valloc(); vt = k.valloc(); vt2 = k.valloc(); vt3 = k.valloc()
    k(f"v_add_u32 {v(vRow)}, s50, {v(k.vR16)}")
    A = k.aalloc(224)
    voA = k.valloc()
    k("s_mov_b32 s57, 3584")
    k(f"v_mul_lo_u32 {v(voA)}, {v(vRow)}, s57")
    k(f"v_lshl_add_u32 {v(voA)}, {v(k.vG)}, 4, {v(voA)}")
    xr = k.valloc(8, 4); voX = k.valloc()
    k(f"v_lshlrev_b32 {v(voX)}, 10, {v(vRow)}")
    k(f"v_lshl_add_u32 {v(voX)}, {v(k.vG)}, 3, {v(voX)}")
    k(f"v_add_u32 {v(voX)}, s54, {v(voX)}")
    for t in range(4):
        k(f"buffer_load_dwordx2 {v(xr+2*t,2)}, {v(voX)}, s[{SX}:{SX+3}], 0 offen offset:{t*32}")
    voB = [k.valloc() for _ in range(4)]
    k("s_lshl_b32 s52, s3, 15")
    k("s_add_u32 s52, s52, s54")
    for i in range(4):
        k(f"v_bfe_u32 {v(vt)}, {v(k.vL)}, 4, 1")
        k(f"v_lshlrev_b32 {v(vt)}, 1, {v(vt)}")
        if i & 1: k(f"v_or_b32 {v(vt)}, 4, {v(vt)}")
        k(f"v_and_b32 {v(vt2)}, 7, {v(k.vL)}")
        k(f"v_xor_b32 {v(vt)}, {v(vt)}, {v(vt2)}")
        k(f"v_lshlrev_b32 {v(vt)}, 4, {v(vt)}")
        k(f"v_lshrrev_b32 {v(vt2)}, 3, {v(k.vL)}")
        k(f"v_add_u32 {v(vt2)}, {8*i}, {v(vt2)}")
        k(f"v_lshl_add_u32 {v(vt)}, {v(vt2)}, 10, {v(vt)}")
        k(f"v_add_u32 {v(voB[i])}, s52, {v(vt)}")
    k("s_lshl_b32 s55, s3, 12")
    def issue_chunk(c):
        for kk in range(4):
            ks = 4 * c + kk
            k.I(f"buffer_load_dwordx4 {a(A+ks*4,4)}, {v(voA)}, s[{SH}:{SH+3}], 0 offen offset:{ks*64}", tag=f"c{c}")
        k(f"s_mov_b32 s56, {c*131072}")
        for i in range(4):
            k(f"s_add_u32 m0, s55, {(c%NS)*16384+i*1024}")
            k.I(f"buffer_load_dwordx4 {v(voB[i])}, s[{SW}:{SW+3}], s56 offen lds", tag=f"c{c}")
    for c in range(DEP): issue_chunk(c)
    tb = [[k.valloc() for _ in range(4)] for _ in range(3)]
    k(f"v_bfe_u32 {v(vt)}, {v(k.vL)}, 2, 2")
    k(f"v_and_b32 {v(vt2)}, 1, {v(k.vG)}")
    k(f"v_lshlrev_b32 {v(vt2)}, 1, {v(vt2)}")
    k(f"v_bfe_u32 {v(vt3)}, {v(k.vL)}, 3, 1")
    k(f"v_or_b32 {v(vt2)}, {v(vt2)}, {v(vt3)}")
    k(f"v_lshl_add_u32 {v(vt)}, {v(k.vG)}, 3, {v(vt)}")
    k(f"v_lshlrev_b32 {v(vt)}, 7, {v(vt)}")
    k(f"v_and_b32 {v(vt3)}, 3, {v(k.vL)}")
    k(f"v_lshl_add_u32 {v(vt)}, {v(vt3)}, 3, {v(vt)}")
    for t in range(4):
        k(f"v_xor_b32 {v(vt3)}, {t}, {v(vt2)}")
        k(f"v_lshl_add_u32 {v(tb[0][t])}, {v(vt3)}, 5, {v(vt)}")
        k(f"v_add_u32 {v(tb[1][t])}, 65536, {v(tb[0][t])}")
        k(f"v_add_u32 {v(tb[2][t])}, 131072, {v(tb[0][t])}")
    acc = k.valloc(16, 4)
    for i in range(16): k(f"v_mov_b32 {v(acc+i)}, 0")
    Wb = [k.valloc(16, 4), k.valloc(16, 4)]
    def reads(ks):
        b = Wb[ks & 1]; sl = (ks // 4) % NS
        for t in range(4):
            for hh in range(2):
                k(f"ds_read_b64_tr_b16 {v(b+4*t+2*hh,2)}, {v(tb[sl//4][t])} offset:{(sl%4)*16384+(ks&3)*4096+hh*512}")
    def mfmas(ks):
        b = Wb[ks & 1]
        for t in range(4):
            k(f"v_mfma_f32_16x16x32_bf16 {v(acc+4*t,4)}, {v(b+4*t,4)}, {a(A+ks*4,4)}, {v(acc+4*t,4)}")
    for c in range(NC):
        k.wait_tag(f"c{c}")
        k("s_barrier")
        if c + DEP < NC: issue_chunk(c + DEP)
        for kk in range(4):
            ks = 4 * c + kk
            reads(ks)
            if ks: mfmas(ks - 1)
    mfmas(55)
    tmp = [k.valloc() for _ in range(5)]
    resid_epilogue(k, acc, xr, vRow, SD, SST, 54, tmp, st_off is not None)
    epilogue_end(k)
    return k

HEADER = """; Kernarg layout for this problem (72 bytes, ptrs only, base s[0:1]):
;   offset   0: d_in[0] A_x  shape=(1, 2048, 512) dtype=bfloat16
;   offset   8: d_in[1] A_wqkv  shape=(512, 1536) dtype=bfloat16
;   offset  16: d_in[2] A_wo  shape=(512, 512) dtype=bfloat16
;   offset  24: d_in[3] B_x  shape=(1, 2048, 512) dtype=bfloat16 (unused by the reference)
;   offset  32: d_in[4] B_w1  shape=(512, 1792) dtype=bfloat16
;   offset  40: d_in[5] B_w2  shape=(1792, 512) dtype=bfloat16
;   offset  48: d_out     shape=(1, 2048, 512) dtype=bfloat16
"""

def main(path):
    ks = [gen_k0("k0_kernel"),
          gen_k1("k1a_kernel", "in", WS_KV, WS_ST0),
          gen_k2("k2a_kernel", "in", WS_KV, WS_X1, WS_ST1),
          gen_k3("k3a_kernel", WS_X1, WS_ST1),
          gen_k4("k4a_kernel", WS_X1, WS_X2, WS_ST2),
          gen_k1("k1b_kernel", WS_X2, WS_KV + 0x10000, WS_ST2),
          gen_k2("k2b_kernel", WS_X2, WS_KV + 0x10000, WS_X1, WS_ST1),
          gen_k3("k3b_kernel", WS_X1, WS_ST1),
          gen_k4("k4b_kernel", WS_X1, "out", None)]
    grids = [256, 256, 256, 224, 256, 256, 256, 224, 256]
    launches = [(k.name, g, 256, k.lds) for k, g in zip(ks, grids)]
    open(path, "w").write(build_file(HEADER, launches, ks))
    for k in ks: print(k.name, "vgpr", k.maxv, "agpr", getattr(k, "na", 0), "lds", k.lds, "ninst", sum(1 for i in k.items if isinstance(i, Ins)))

if __name__ == "__main__":
    main(sys.argv[1] if len(sys.argv) > 1 else "interleave_layers__linear_attn_block__dense_activation_silu__prompt.s")
```

```python
import sys
from gen import *
import gen
def mk(path, nempty):
    ks = [gen_k0("k0_kernel"),
          gen_k1("k1a_kernel", "in", WS_KV, WS_ST0),
          gen_k2("k2a_kernel", "in", WS_KV, WS_X1, WS_ST1),
          gen_k3("k3a_kernel", WS_X1, WS_ST1),
          gen_k4("k4a_kernel", WS_X1, WS_X2, WS_ST2),
          gen_k1("k1b_kernel", WS_X2, WS_KV + 0x10000, WS_ST2),
          gen_k2("k2b_kernel", WS_X2, WS_KV + 0x10000, WS_X1, WS_ST1),
          gen_k3("k3b_kernel", WS_X1, WS_ST1),
          gen_k4("k4b_kernel", WS_X1, "out", None)]
    grids = [256, 256, 256, 224, 256, 256, 256, 224, 256]
    launches = [(k.name, g, 256, k.lds) for k, g in zip(ks, grids)]
    e = Kern("e_kernel"); e.valloc(1); e("s_endpgm")
    ks.append(e)
    launches = [("e_kernel", 256, 256, 0)] * nempty + launches
    open(path, "w").write(build_file(HEADER, launches, ks))
mk("exp_e10.s", 10)
mk("exp_e20.s", 20)
```

```python
import re

TRANS = ("v_exp_f32", "v_log_f32", "v_rcp_f32", "v_rsq_f32", "v_sqrt_f32", "v_sin_f32", "v_cos_f32")

def regs_of(tok):
    tok = tok.strip()
    tok = tok.lstrip('-')
    m = re.fullmatch(r"abs\((.*)\)", tok)
    if m: tok = m.group(1)
    m = re.fullmatch(r"([vsa])\[(\d+):(\d+)\]", tok)
    if m:
        return {f"{m.group(1)}{i}" for i in range(int(m.group(2)), int(m.group(3)) + 1)}
    m = re.fullmatch(r"([vsa])(\d+)", tok)
    if m: return {tok}
    if tok in ("vcc", "vcc_lo", "vcc_hi"): return {"vcc"}
    if tok in ("exec", "exec_lo", "exec_hi"): return {"exec"}
    if tok == "m0": return {"m0"}
    return set()

class Ins:
    __slots__ = ("text", "op", "ops", "mods", "dst", "src", "kind", "srcA", "srcB", "srcC", "lds_dma", "wide_store", "dpp", "tag")
    def __init__(self, text):
        self.text = text
        t = text.split(";")[0].strip()
        parts = t.split(None, 1)
        self.op = parts[0]
        rest = parts[1] if len(parts) > 1 else ""
        toks = []; depth = 0; cur = ""
        for ch in rest:
            if ch == "[": depth += 1
            if ch == "]": depth -= 1
            if ch == "," and depth == 0:
                toks.append(cur.strip()); cur = ""
            else: cur += ch
        if cur.strip(): toks.append(cur.strip())
        ops = []; mods = []
        for i, tk in enumerate(toks):
            sp = tk.split()
            if not sp: continue
            ops.append(sp[0]); mods += sp[1:]
        self.ops = ops; self.mods = mods
        self.dst = set(); self.src = set(); self.srcA = set(); self.srcB = set(); self.srcC = set()
        self.lds_dma = False; self.wide_store = False
        for m_ in mods:
            if m_.startswith("offset:"):
                o_ = int(m_[7:], 0)
                lim = 65535 if self.op.startswith("ds_") else 4095
                assert 0 <= o_ <= lim, "offset out of range: " + text
        self.dpp = any(m.startswith(("row_", "quad_perm", "wave_")) for m in mods) or self.op.endswith("_dpp")
        op = self.op
        R = lambda i: regs_of(ops[i]) if i < len(ops) else set()
        allsrc = lambda a: set().union(*[regs_of(o) for o in ops[a:]]) if len(ops) > a else set()
        if op.startswith("v_mfma"):
            self.kind = "mfma"; self.dst = R(0); self.srcA = R(1); self.srcB = R(2); self.srcC = R(3)
            self.src = self.srcA | self.srcB | self.srcC
        elif op.startswith("v_permlane") and "swap" in op:
            self.kind = "valu"; self.dst = R(0) | R(1); self.src = R(0) | R(1)
        elif op.startswith("v_"):
            self.kind = "trans" if op.replace("_e32", "").replace("_e64", "") in TRANS else "valu"
            self.dst = R(0); self.src = allsrc(1)
            if op.startswith(("v_fmac", "v_dot2c", "v_pk_fmac")): self.src |= R(0)
            if op.startswith("v_cndmask") and len(ops) == 3: self.src |= {"vcc"}
            if op.startswith(("v_add_co", "v_sub_co", "v_addc_co", "v_subb_co")): self.dst |= R(1); self.src = allsrc(2)
            if op.startswith("v_cmpx"): self.dst |= {"exec"}
            if self.dpp: self.src |= R(0)
        elif op.startswith("ds_"):
            self.kind = "ds"
            if op.startswith(("ds_read", "ds_bpermute", "ds_permute", "ds_swizzle")) : self.dst = R(0); self.src = allsrc(1)
            else: self.src = allsrc(0)
        elif op.startswith(("buffer_", "global_")):
            self.kind = "vm"
            if op in ("buffer_wbl2", "buffer_inv"):
                pass
            elif "lds" in mods or "_lds_" in op:
                self.lds_dma = True; self.src = allsrc(0) | {"m0"}
            elif "_load" in op:
                self.dst = R(0); self.src = allsrc(1)
            elif "atomic" in op and "sc0" in mods:
                self.dst = R(0); self.src = allsrc(0)
            else:
                self.src = allsrc(0)
                if op.endswith(("x3", "x4")): self.wide_store = True
        elif op.startswith(("s_load", "s_buffer_load", "s_atomic", "s_memtime", "s_memrealtime")):
            self.kind = "smem"; self.dst = R(0); self.src = allsrc(1)
        elif op in ("s_waitcnt", "s_barrier", "s_nop", "s_endpgm", "s_sleep", "s_setprio") or op.startswith(("s_cbranch", "s_branch")):
            self.kind = "sctl"
        elif op.startswith("s_cmp"):
            self.kind = "salu"; self.src = allsrc(0)
        elif op.startswith("s_"):
            self.kind = "salu"; self.dst = R(0); self.src = allsrc(1)
            if "saveexec" in op: self.dst |= {"exec"}; self.src |= {"exec"}
        else:
            raise ValueError("unknown instruction: " + text)

class Kern:
    def __init__(self, name):
        self.name = name
        self.items = []
        self.nv = 0
        self.maxv = 0
        self.lds = 0
    def valloc(self, n=1, align=None):
        if align is None: align = 1 if n == 1 else (2 if n < 4 else 4)
        self.nv = (self.nv + align - 1) // align * align
        r = self.nv; self.nv += n; self.maxv = max(self.maxv, self.nv)
        return r
    def aalloc(self, n=1, align=4):
        self.na = (getattr(self, "na", 0) + align - 1) // align * align
        r = self.na; self.na += n
        return r
    def I(self, text, tag=None):
        ins = Ins(text); ins.tag = tag; self.items.append(ins)
    def wait_tag(self, tag): self.items.append(("WAITTAG", tag))
    def reset(self): self.items.append(("RESET", None))
    def reset_vm(self): self.items.append(("RESETVM", None))
    def vm_limit(self, n): self.items.append(("VMLIMIT", n))
    def vm_save(self): self.items.append(("VMSAVE", None))
    def vm_restore(self): self.items.append(("VMRESTORE", None))
    stamps_on = False
    det = None; cur = None
    def dstamp(self):
        if self.det is not None and self.det == self.cur: self.stamp(True)
    def stamp(self, force=False):
        if not self.stamps_on: return
        if self.det is not None and not force and getattr(self, "nstamp", 0) > 0: return
        n = getattr(self, "nstamp", 0); self.nstamp = n + 1
        self("s_memrealtime s[68:69]"); self("s_waitcnt lgkmcnt(0)"); self(f"s_mov_b32 s{70+n}, s68")
    def stamp_set(self, n): self.nstamp = n
    def stamp_flush(self, wsptr, vt, vt2):
        if not self.stamps_on: return
        self(f"s_add_u32 s64, s{wsptr}, 0xF00000"); self(f"s_addc_u32 s65, s{wsptr+1}, 0"); self("s_and_b32 s65, s65, 0xffff")
        self("s_mov_b32 s66, 0x100000"); self("s_mov_b32 s67, 0x20000")
        self("s_lshl_b32 s68, s2, 3"); self("s_add_u32 s68, s68, s3"); self("s_lshl_b32 s68, s68, 7")
        self("s_mov_b64 exec, 1")
        self(f"v_mov_b32 v{vt}, s68")
        for i in range(22):
            self(f"v_mov_b32 v{vt2}, s{70+i}")
            self(f"buffer_store_dword v{vt2}, v{vt}, s[64:67], 0 offen offset:{4*i}")
            self("s_nop 1")
    def L(self, label): self.items.append(label + ":")
    def C(self, text): self.items.append("; " + text)
    def __call__(self, text):
        for line in text.strip().split("\n"):
            line = line.strip()
            if not line: continue
            if line.startswith(";"): self.items.append(line)
            elif line.endswith(":"): self.items.append(line)
            else: self.I(line)

    def finalize(self):
        out = []
        vm = []
        lg = []
        hist = []
        pos = 0
        def emit_txt(t): out.append("    " + t)
        for it in self.items:
            if isinstance(it, tuple) and it[0] == "RESETVM":
                continue
            if isinstance(it, tuple) and it[0] == "VMSAVE":
                vm_saved = list(vm); continue
            if isinstance(it, tuple) and it[0] == "VMRESTORE":
                vm = list(vm_saved); continue
            if isinstance(it, tuple) and it[0] == "VMLIMIT":
                if len(vm) > it[1]:
                    emit_txt(f"s_waitcnt vmcnt({it[1]})"); pos += 1
                    vm = vm[len(vm) - it[1]:] if it[1] else []
                continue
            if isinstance(it, tuple) and it[0] == "RESET":
                vm = []; lg = []; hist = []
                emit_txt("s_nop 7"); emit_txt("s_nop 7"); pos += 16
                continue
            if isinstance(it, tuple):
                idx = [i for i, (d, tg) in enumerate(vm) if tg == it[1]]
                if idx:
                    n = min(len(vm) - 1 - idx[-1], 63)
                    emit_txt(f"s_waitcnt vmcnt({n})"); pos += 1
                    vm = vm[len(vm) - n:] if n else []
                continue
            if isinstance(it, str):
                out.append(it if it.endswith(":") else "    " + it)
                if it.endswith(":"):
                    pass
                continue
            ins = it
            touched = ins.src | ins.dst
            if ins.op == "s_waitcnt":
                m = re.search(r"vmcnt\((\d+)\)", ins.text)
                if m:
                    n = int(m.group(1)); vm = vm[len(vm) - n:] if n < len(vm) else vm
                    if n == 0: vm = []
                m = re.search(r"lgkmcnt\((\d+)\)", ins.text)
                if m:
                    n = int(m.group(1)); lg = lg[len(lg) - n:] if n < len(lg) else lg
                    if n == 0: lg = []
            else:
                need_vm = None
                for i, (d, tg) in enumerate(vm):
                    if d & touched: need_vm = len(vm) - 1 - i
                need_lg = None
                for i, (d, sm) in enumerate(lg):
                    if d & touched:
                        need_lg = len(lg) - 1 - i
                        if any(s for _, s in lg): need_lg = 0
                w = []
                if need_vm is not None:
                    n = min(need_vm, 63); w.append(f"vmcnt({n})"); vm = vm[len(vm) - n:] if n else []
                if need_lg is not None:
                    n = min(need_lg, 15); w.append(f"lgkmcnt({n})"); lg = lg[len(lg) - n:] if n else []
                if w:
                    emit_txt("s_waitcnt " + " ".join(w)); pos += 1
            need = 0
            for (p, ppos) in reversed(hist):
                dist = pos - ppos - 1
                if dist >= 20: break
                req = 0
                pv = p.kind in ("valu", "trans")
                cv = ins.kind in ("valu", "trans")
                if p.kind == "mfma":
                    passes = 8 if "32x32" in p.op else 4
                    big = {4: 8, 8: 12}[passes]
                    if ins.kind == "mfma":
                        if p.dst & (ins.srcA | ins.srcB): req = max(req, big)
                        if p.dst & ins.srcC and not (p.dst == ins.srcC and p.op == ins.op): req = max(req, {4: 6, 8: 10}[passes])
                    elif ins.kind in ("valu", "trans", "vm", "ds"):
                        if p.dst & touched: req = max(req, big)
                        if cv and (p.srcC & ins.dst): req = max(req, {4: 3, 8: 7}[passes])
                if pv:
                    pvd = {r for r in p.dst if r[0] in "va" and r != "vcc"}
                    psd = {r for r in p.dst if r[0] == "s" or r == "vcc"}
                    if ins.kind == "mfma" and (pvd & ins.src): req = max(req, 2)
                    if ins.kind == "mfma" and "exec" in p.dst: req = max(req, 4)
                    if p.kind == "trans" and ins.kind == "valu" and (pvd & ins.src): req = max(req, 1)
                    if cv and (psd & ins.src): req = max(req, 4 if ins.op.startswith(("v_readlane", "v_writelane")) else 2)
                    if ins.kind == "vm" and (psd & ins.src): req = max(req, 5)
                    if ins.op.startswith(("v_readfirstlane", "v_readlane")) and (pvd & ins.src): req = max(req, 1)
                    if ins.op.startswith("v_permlane") and (pvd & ins.src): req = max(req, 2)
                    if ins.dpp and (pvd & ins.src): req = max(req, 2)
                    if ins.dpp and "exec" in p.dst: req = max(req, 5)
                    if "exec" in p.dst and ins.op.startswith(("v_readfirstlane", "v_readlane", "v_writelane", "v_permlane")): req = max(req, 4)
                    if ins.kind == "salu" and (psd & ins.src): req = max(req, 1)
                if p.kind == "salu" and "m0" in p.dst and ins.lds_dma: req = max(req, 1)
                if p.wide_store and (p.src & ins.dst) and ins.kind != "salu": req = max(req, 2)
                if req > dist: need = max(need, req - dist)
            while need > 0:
                n = min(need, 16); emit_txt(f"s_nop {n - 1}"); pos += n; need -= n
            emit_txt(ins.text)
            hist.append((ins, pos));
            if len(hist) > 40: hist = hist[-40:]
            if len(vm) > 62 and ins.kind == "vm": print("WARNING: >63 vm ops outstanding in", self.name)
            if ins.op == "s_nop": pos += int(ins.ops[0]) + 1
            else: pos += 1
            if ins.kind == "vm" and ins.op not in ("buffer_wbl2", "buffer_inv"): vm.append((set(ins.dst), ins.tag))
            if ins.kind == "vm" and ins.op in ("buffer_wbl2", "buffer_inv"): vm.append((set(), None))
            if ins.kind == "ds": lg.append((set(ins.dst), False))
            if ins.kind == "smem": lg.append((set(ins.dst), True))
        return out

    def text(self, nsgpr=100):
        body = self.finalize()
        assert self.maxv <= 256, self.maxv
        na = getattr(self, "na", 0)
        assert na <= 256
        acc_off = max(4, (self.maxv + 3) // 4 * 4)
        nv = max(8, (acc_off + na + 7) // 8 * 8)
        code = [f".globl {self.name}", ".p2align 8", f".type {self.name},@function", f"{self.name}:"] + body
        desc = [f".amdhsa_kernel {self.name}",
                f"  .amdhsa_next_free_vgpr {nv}",
                f"  .amdhsa_next_free_sgpr {nsgpr}",
                f"  .amdhsa_accum_offset {acc_off}",
                "  .amdhsa_group_segment_fixed_size 0",
                "  .amdhsa_kernarg_size 72",
                "  .amdhsa_user_sgpr_count 2",
                "  .amdhsa_user_sgpr_kernarg_segment_ptr 1",
                "  .amdhsa_system_sgpr_workgroup_id_x 1",
                "  .amdhsa_float_denorm_mode_32 3",
                ".end_amdhsa_kernel"]
        return "\n".join(code), "\n".join(desc)

def v(r, n=1): return f"v{r}" if n == 1 else f"v[{r}:{r + n - 1}]"
def a(r, n=1): return f"a{r}" if n == 1 else f"a[{r}:{r + n - 1}]"
def s(r, n=1): return f"s{r}" if n == 1 else f"s[{r}:{r + n - 1}]"

def build_file(header, launches, kerns):
    out = [header.rstrip()]
    for (k, g, b, l) in launches:
        out.append(f"; @launch kernel={k} grid=({g},1,1) block=({b},1,1) lds={l}")
    out.append('.amdgcn_target "amdgcn-amd-amdhsa--gfx950"')
    out.append(".text")
    descs = []
    for k in kerns:
        c, d = k.text(); out.append(c); descs.append(d)
    out.append('.section .rodata,"a"')
    for d in descs:
        out.append(".p2align 6"); out.append(d)
    return "\n".join(out) + "\n"
```

```python
import sys, struct
from asmlib import *

S_, D_, F_ = 2048, 512, 1792
WS_PQ, WS_X1, WS_X2, WS_H = 0x000000, 0x200000, 0x400000, 0x600000
WS_KV = 0xE00000
WS_CS = 0xE20000
WS_ST0, WS_ST1, WS_ST2 = 0xE40000, 0xE60000, 0xE80000
XB = S_ * D_ * 2
P_X, P_WQKV, P_WO, P_W1, P_W2, P_OUT, P_WS = 4, 6, 8, 12, 14, 16, 20
LOG2E = 0x3FB8AA3B
def fbits(x): return struct.unpack("<I", struct.pack("<f", x))[0]

def prologue(k, nwg, wait=True):
    k(f"s_cmp_ge_u32 s2, {nwg}")
    k(f"s_cbranch_scc1 {k.name}_end")
    k("s_load_dwordx16 s[4:19], s[0:1], 0")
    k("s_load_dwordx2 s[20:21], s[0:1], 64")
    k.valloc(1)
    k.vL = k.valloc(); k.vR16 = k.valloc(); k.vG = k.valloc(); k.vT = k.valloc()
    k(f"v_lshrrev_b32 {v(k.vT)}, 6, v0")
    k(f"v_and_b32 {v(k.vL)}, 63, v0")
    k(f"v_readfirstlane_b32 s3, {v(k.vT)}")
    k(f"v_and_b32 {v(k.vR16)}, 15, v0")
    k(f"v_bfe_u32 {v(k.vG)}, v0, 4, 2")
    if wait: k("s_waitcnt lgkmcnt(0)")

def srd(k, d, p, off, nbytes):
    if off:
        k(f"s_add_u32 s{d}, s{p}, {off}")
        k(f"s_addc_u32 s{d+1}, s{p+1}, 0")
        k(f"s_and_b32 s{d+1}, s{d+1}, 0xffff")
    else:
        k(f"s_mov_b32 s{d}, s{p}")
        k(f"s_and_b32 s{d+1}, s{p+1}, 0xffff")
    k(f"s_mov_b32 s{d+2}, {nbytes}")
    k(f"s_mov_b32 s{d+3}, 0x20000")

def epilogue_end(k):
    k.L(f"{k.name}_end")
    k("s_endpgm")

def bf16_round(k, dst, src):
    k(f"v_cvt_pk_bf16_f32 {v(dst)}, {v(src)}, {v(src)}")
    k(f"v_lshlrev_b32 {v(dst)}, 16, {v(dst)}")

def ln_params(k, st, va, vb, t0, t1):
    k(f"v_add_f32 {v(t0)}, {v(st)}, {v(st+2)}")
    k(f"v_add_f32 {v(t1)}, {v(st+1)}, {v(st+3)}")
    for j in range(2, 8):
        k(f"v_add_f32 {v(t0)}, {v(t0)}, {v(st+2*j)}")
        k(f"v_add_f32 {v(t1)}, {v(t1)}, {v(st+2*j+1)}")
    k(f"v_mul_f32 {v(t0)}, {fbits(1/512):#x}, {v(t0)}")
    k(f"v_mul_f32 {v(t1)}, {fbits(1/512):#x}, {v(t1)}")
    k(f"v_fma_f32 {v(t1)}, -{v(t0)}, {v(t0)}, {v(t1)}")
    k(f"v_max_f32 {v(t1)}, 0, {v(t1)}")
    bf16_round(k, t0, t0)
    bf16_round(k, t1, t1)
    k(f"v_add_f32 {v(t1)}, {fbits(1e-5):#x}, {v(t1)}")
    bf16_round(k, t1, t1)
    k(f"v_sqrt_f32 {v(t1)}, {v(t1)}")
    bf16_round(k, t1, t1)
    k(f"v_rcp_f32 {v(va)}, {v(t1)}")
    k(f"v_mul_f32 {v(vb)}, {v(t0)}, {v(va)}")
    k(f"v_sub_f32 {v(vb)}, 0, {v(vb)}")

def xlane_sum_g(k, x, t):
    k(f"v_mov_b32 {v(t)}, {v(x)}")
    k(f"v_permlane16_swap_b32 {v(x)}, {v(t)}")
    k(f"v_add_f32 {v(x)}, {v(x)}, {v(t)}")
    k(f"v_mov_b32 {v(t)}, {v(x)}")
    k(f"v_permlane32_swap_b32 {v(x)}, {v(t)}")
    k(f"v_add_f32 {v(x)}, {v(x)}, {v(t)}")

def gen_k0(name):
    k = Kern(name); prologue(k, 256)
    SX, SST, SZ, SW, SCS = 24, 28, 32, 36, 40
    srd(k, SX, P_X, 0, XB)
    srd(k, SST, P_WS, WS_ST0, 2048 * 64)
    k("s_mov_b32 s44, 0x3f803f80")
    k("s_mov_b32 s45, 0x00003f80")
    k("s_mov_b32 s46, 0x3f800000")
    vo = k.valloc(); vd = [k.valloc(4), k.valloc(4)]; vs = [k.valloc(2), k.valloc(2)]; vso = k.valloc(); tt = k.valloc(2)
    k("s_lshl_b32 s47, s2, 3")
    k("s_lshl_b32 s48, s3, 1")
    k("s_add_u32 s47, s47, s48")
    k("s_lshl_b32 s48, s47, 10")
    k(f"v_lshlrev_b32 {v(vo)}, 4, {v(k.vL)}")
    k(f"v_add_u32 {v(vo)}, s48, {v(vo)}")
    k(f"buffer_load_dwordx4 {v(vd[0],4)}, {v(vo)}, s[{SX}:{SX+3}], 0 offen")
    k(f"buffer_load_dwordx4 {v(vd[1],4)}, {v(vo)}, s[{SX}:{SX+3}], 0 offen offset:1024")
    k("s_lshl_b32 s48, s47, 6")
    k(f"v_lshrrev_b32 {v(vso)}, 3, {v(k.vL)}")
    k(f"v_lshlrev_b32 {v(vso)}, 3, {v(vso)}")
    k(f"v_add_u32 {v(vso)}, s48, {v(vso)}")
    for r in range(2):
        k(f"v_mov_b32 {v(vs[r])}, 0")
        k(f"v_mov_b32 {v(vs[r]+1)}, 0")
    for r in range(2):
        for i in range(4):
            k(f"v_dot2_f32_bf16 {v(vs[r])}, {v(vd[r]+i)}, s44, {v(vs[r])}")
            k(f"v_dot2_f32_bf16 {v(vs[r]+1)}, {v(vd[r]+i)}, {v(vd[r]+i)}, {v(vs[r]+1)}")
    for dpp in ("quad_perm:[1,0,3,2]", "quad_perm:[2,3,0,1]", "row_half_mirror"):
        for r in range(2):
            for c in range(2):
                k(f"v_add_f32_dpp {v(tt+c)}, {v(vs[r]+c)}, {v(vs[r]+c)} {dpp} row_mask:0xf bank_mask:0xf")
            for c in range(2):
                k(f"v_mov_b32 {v(vs[r]+c)}, {v(tt+c)}")
    k(f"buffer_store_dwordx2 {v(vs[0],2)}, {v(vso)}, s[{SST}:{SST+3}], 0 offen")
    k(f"buffer_store_dwordx2 {v(vs[1],2)}, {v(vso)}, s[{SST}:{SST+3}], 0 offen offset:64")
    k("s_cmp_lt_u32 s2, 224")
    k(f"s_cbranch_scc1 {name}_nz")
    srd(k, SZ, P_WS, WS_KV, 0x20000)
    vz = k.valloc(4); vzo = k.valloc()
    for i in range(4): k(f"v_mov_b32 {v(vz+i)}, 0")
    k("s_sub_u32 s47, s2, 224")
    k("s_lshl_b32 s47, s47, 12")
    k(f"v_lshlrev_b32 {v(vzo)}, 4, v0")
    k(f"v_add_u32 {v(vzo)}, s47, {v(vzo)}")
    k(f"buffer_store_dwordx4 {v(vz,4)}, {v(vzo)}, s[{SZ}:{SZ+3}], 0 offen")
    k.L(f"{name}_nz")
    k("s_cmp_ge_u32 s2, 52")
    k(f"s_cbranch_scc1 {name}_end")
    k("s_cmp_lt_u32 s2, 24")
    k(f"s_cbranch_scc1 {name}_cq")
    srd(k, SW, P_W1, 0, 512 * 1792 * 2)
    srd(k, SCS, P_WS, WS_CS + 0x2000, 1792 * 4)
    k("s_mov_b32 s49, 3584")
    k("s_sub_u32 s50, s2, 24")
    k(f"s_branch {name}_cgo")
    k.L(f"{name}_cq")
    srd(k, SW, P_WQKV, 0, 512 * 1536 * 2)
    srd(k, SCS, P_WS, WS_CS, 1536 * 4)
    k("s_mov_b32 s49, 3072")
    k("s_mov_b32 s50, s2")
    k.L(f"{name}_cgo")
    vr = k.valloc(); vc = k.valloc(); vw = k.valloc(64, 4); acc = k.valloc(8, 4); vla = k.valloc()
    k(f"v_lshrrev_b32 {v(vr)}, 3, v0")
    k(f"v_and_b32 {v(vc)}, 7, v0")
    k(f"v_mul_lo_u32 {v(vo)}, {v(vr)}, s49")
    k(f"v_lshlrev_b32 {v(vc)}, 4, {v(vc)}")
    k("s_lshl_b32 s51, s50, 7")
    k(f"v_add3_u32 {v(vo)}, {v(vo)}, {v(vc)}, s51")
    k("s_lshl_b32 s52, s49, 5")
    k("s_mov_b32 s53, 0")
    for p in range(16):
        k(f"buffer_load_dwordx4 {v(vw+4*p,4)}, {v(vo)}, s[{SW}:{SW+3}], s53 offen")
        k("s_add_u32 s53, s53, s52")
    for i in range(8): k(f"v_mov_b32 {v(acc+i)}, 0")
    for p in range(16):
        for i in range(4):
            k(f"v_dot2_f32_bf16 {v(acc+2*i)}, {v(vw+4*p+i)}, s45, {v(acc+2*i)}")
            k(f"v_dot2_f32_bf16 {v(acc+2*i+1)}, {v(vw+4*p+i)}, s46, {v(acc+2*i+1)}")
    k(f"v_lshlrev_b32 {v(vla)}, 5, v0")
    k(f"ds_write_b128 {v(vla)}, {v(acc,4)}")
    k(f"ds_write_b128 {v(vla)}, {v(acc+4,4)} offset:16")
    k("s_waitcnt lgkmcnt(0)")
    k("s_barrier")
    k("s_cmp_lg_u32 s3, 0")
    k(f"s_cbranch_scc1 {name}_end")
    k(f"v_lshlrev_b32 {v(vla)}, 2, v0")
    for i in range(32):
        k(f"ds_read_b32 {v(vw+i)}, {v(vla)} offset:{i*256}")
    for i in range(1, 32):
        k(f"v_add_f32 {v(vw)}, {v(vw)}, {v(vw+i)}")
    k("s_lshl_b32 s51, s50, 8")
    k(f"v_add_u32 {v(vla)}, s51, {v(vla)}")
    k(f"buffer_store_dword {v(vw)}, {v(vla)}, s[{SCS}:{SCS+3}], 0 offen")
    epilogue_end(k)
    k.lds = 8192
    return k

def phi(k, t, tmp):
    k(f"v_mul_f32 {v(tmp)}, {LOG2E:#x}, {v(t)}")
    k(f"v_min_f32 {v(tmp)}, 0, {v(tmp)}")
    k(f"v_exp_f32 {v(tmp)}, {v(tmp)}")
    k(f"v_max_f32 {v(t)}, 0, {v(t)}")
    k(f"v_add_f32 {v(t)}, {fbits(1e-6):#x}, {v(t)}")
    k(f"v_add_f32 {v(t)}, {v(t)}, {v(tmp)}")

def round_pair(k, x0, x1, p):
    k(f"v_cvt_pk_bf16_f32 {v(p)}, {v(x0)}, {v(x1)}")
    k(f"v_lshlrev_b32 {v(x0)}, 16, {v(p)}")
    k(f"v_and_b32 {v(x1)}, 0xffff0000, {v(p)}")

def gen_k1(name, xsrc, kv_off, st_off):
    k = Kern(name); prologue(k, 256)
    SX, SW, SPQ, SKV, SCS, SST = 24, 28, 32, 36, 40, 44
    if xsrc == "in": srd(k, SX, P_X, 0, XB)
    else: srd(k, SX, P_WS, xsrc, XB)
    srd(k, SW, P_WQKV, 0, 512 * 1536 * 2)
    srd(k, SPQ, P_WS, WS_PQ, XB)
    srd(k, SKV, P_WS, kv_off, 34816)
    srd(k, SCS, P_WS, WS_CS, 1536 * 4)
    srd(k, SST, P_WS, st_off, 2048 * 64)
    k("s_bfe_u32 s48, s2, 0x20001")
    k("s_lshl_b32 s48, s48, 2")
    k("s_lshr_b32 s49, s2, 6")
    k("s_add_u32 s22, s48, s49")
    k("s_and_b32 s48, s2, 1")
    k("s_lshl_b32 s48, s48, 3")
    k("s_bfe_u32 s49, s2, 0x30003")
    k("s_add_u32 s23, s48, s49")
    k("s_lshl_b32 s50, s22, 7")
    k("s_lshl_b32 s51, s3, 5")
    k("s_add_u32 s50, s50, s51")
    LDS_ST, LDS_KV, LDS_Z = 98304, 99328, 107520
    k.lds = 108032
    vRow = k.valloc()
    k(f"v_add_u32 {v(vRow)}, s50, {v(k.vR16)}")
    Wb = [k.valloc(24, 4), k.valloc(24, 4)]
    acc = k.valloc(48, 4)
    A = k.aalloc(128)
    vt = k.valloc(); vt2 = k.valloc(); vt3 = k.valloc()
    stt = [Wb[0], Wb[1]]
    k(f"v_lshlrev_b32 {v(vt)}, 6, {v(vRow)}")
    for rt in range(2):
        for i in range(4):
            k(f"buffer_load_dwordx4 {v(stt[rt]+4*i,4)}, {v(vt)}, s[{SST}:{SST+3}], 0 offen offset:{rt*1024+i*16}")
    csq = k.valloc(8, 4); cskv = k.valloc(4)
    k("s_lshl_b32 s52, s23, 7")
    k(f"v_lshlrev_b32 {v(vt2)}, 4, {v(k.vG)}")
    k(f"v_add_u32 {v(vt2)}, s52, {v(vt2)}")
    for h in range(2):
        k(f"buffer_load_dwordx4 {v(csq+4*h,4)}, {v(vt2)}, s[{SCS}:{SCS+3}], 0 offen offset:{h*64}")
    k(f"v_lshlrev_b32 {v(vt3)}, 2, {v(k.vR16)}")
    k(f"v_add_u32 {v(vt3)}, s52, {v(vt3)}")
    k("s_mov_b32 s53, 2048")
    for kv in range(2):
        for h in range(2):
            k(f"buffer_load_dword {v(cskv+2*kv+h)}, {v(vt3)}, s[{SCS}:{SCS+3}], s53 offen offset:{2048*kv+h*64}")
    voA = [k.valloc(), k.valloc()]
    k(f"v_lshlrev_b32 {v(voA[0])}, 10, {v(vRow)}")
    k(f"v_lshl_add_u32 {v(voA[0])}, {v(k.vG)}, 4, {v(voA[0])}")
    k(f"v_add_u32 {v(voA[1])}, 16384, {v(voA[0])}")
    voB = [k.valloc() for _ in range(3)]
    u, row, rem, t_, c_ = [k.valloc() for _ in range(5)]
    k("s_mul_i32 s53, s3, 192")
    k("s_lshl_b32 s54, s23, 6")
    for i in range(3):
        k(f"v_add_u32 {v(u)}, s53, {v(k.vL)}")
        if i: k(f"v_add_u32 {v(u)}, {64*i}, {v(u)}")
        k(f"v_mul_u32_u24 {v(row)}, 0xaaab, {v(u)}")
        k(f"v_lshrrev_b32 {v(row)}, 19, {v(row)}")
        k(f"v_mul_u32_u24 {v(rem)}, 12, {v(row)}")
        k(f"v_sub_u32 {v(rem)}, {v(u)}, {v(rem)}")
        k(f"v_lshrrev_b32 {v(t_)}, 1, {v(rem)}")
        k(f"v_bfe_u32 {v(c_)}, {v(row)}, 3, 1")
        k(f"v_sub_u32 {v(t_)}, {v(t_)}, {v(c_)}")
        k(f"v_add_u32 {v(c_)}, 6, {v(t_)}")
        k(f"v_min_u32 {v(t_)}, {v(t_)}, {v(c_)}")
        k(f"v_lshrrev_b32 {v(c_)}, 1, {v(t_)}")
        k(f"v_lshlrev_b32 {v(c_)}, 10, {v(c_)}")
        k(f"v_and_b32 {v(t_)}, 1, {v(t_)}")
        k(f"v_lshl_add_u32 {v(c_)}, {v(t_)}, 5, {v(c_)}")
        k(f"v_and_b32 {v(rem)}, 1, {v(rem)}")
        k(f"v_lshl_add_u32 {v(c_)}, {v(rem)}, 4, {v(c_)}")
        k(f"v_mul_u32_u24 {v(row)}, 3072, {v(row)}")
        k(f"v_add3_u32 {v(voB[i])}, {v(row)}, {v(c_)}, s54")
    k("s_mul_i32 s55, s3, 3072")
    def issue_chunk(c):
        for rt in range(2):
            for kk in range(2):
                ks = 2 * c + kk
                k.I(f"buffer_load_dwordx4 {a(A+(rt*16+ks)*4,4)}, {v(voA[rt])}, s[{SX}:{SX+3}], 0 offen offset:{ks*64}", tag=f"c{c}")
        k(f"s_mov_b32 s56, {c*64*3072}")
        for i in range(3):
            k(f"s_add_u32 m0, s55, {c*12288+i*1024}")
            k.I(f"buffer_load_dwordx4 {v(voB[i])}, s[{SW}:{SW+3}], s56 offen lds", tag=f"c{c}")
    for c in range(6): issue_chunk(c)
    va = [k.valloc(), k.valloc()]; vb = [k.valloc(), k.valloc()]
    for rt in range(2): ln_params(k, stt[rt], va[rt], vb[rt], vt, vt2)
    for c in range(6, 8): issue_chunk(c)
    abn = [k.valloc(8, 4), k.valloc(8, 4)]
    pr = k.valloc(2, 2)
    k("s_lshl_b32 s57, s3, 8")
    k(f"s_add_u32 s57, s57, {LDS_ST}")
    k(f"v_lshlrev_b32 {v(vt)}, 3, {v(k.vR16)}")
    k(f"v_add_u32 {v(vt)}, s57, {v(vt)}")
    k(f"v_lshlrev_b32 {v(vt2)}, 5, {v(k.vG)}")
    k(f"v_add_u32 {v(vt2)}, s57, {v(vt2)}")
    for rt in range(2):
        k(f"v_mov_b32 {v(pr)}, {v(va[rt])}")
        k(f"v_mov_b32 {v(pr+1)}, {v(vb[rt])}")
        k(f"ds_write_b64 {v(vt)}, {v(pr,2)} offset:{rt*128}")
        k("s_waitcnt lgkmcnt(0)")
    for rt in range(2):
        k(f"ds_read_b128 {v(abn[rt],4)}, {v(vt2)} offset:{rt*128}")
        k(f"ds_read_b128 {v(abn[rt]+4,4)}, {v(vt2)} offset:{rt*128+16}")
    tb = [k.valloc() for _ in range(6)]
    k(f"v_bfe_u32 {v(vt)}, {v(k.vL)}, 2, 2")
    k(f"v_lshl_add_u32 {v(vt)}, {v(k.vG)}, 3, {v(vt)}")
    k(f"v_mul_u32_u24 {v(vt)}, 192, {v(vt)}")
    k(f"v_and_b32 {v(vt2)}, 3, {v(k.vL)}")
    k(f"v_lshl_add_u32 {v(vt)}, {v(vt2)}, 3, {v(vt)}")
    k(f"v_and_b32 {v(vt2)}, 1, {v(k.vG)}")
    k(f"v_lshlrev_b32 {v(vt2)}, 5, {v(vt2)}")
    for t in range(6):
        if t < 5:
            k(f"v_add_u32 {v(tb[t])}, {v(vt)}, {v(vt2)}")
            if t: k(f"v_add_u32 {v(tb[t])}, {t*32}, {v(tb[t])}")
        else:
            k(f"v_mul_u32_u24 {v(vt3)}, 5, {v(vt2)}")
            k(f"v_sub_u32 {v(tb[t])}, {v(vt)}, {v(vt3)}")
            k(f"v_add_u32 {v(tb[t])}, 160, {v(tb[t])}")
    for i in range(48): k(f"v_mov_b32 {v(acc+i)}, 0")
    def reads(ks):
        if ks == 8:
            for t in range(6): k(f"v_add_u32 {v(tb[t])}, 49152, {v(tb[t])}")
        b = Wb[ks & 1]
        for t in range(6):
            for hh in range(2):
                k(f"ds_read_b64_tr_b16 {v(b+4*t+2*hh,2)}, {v(tb[t])} offset:{(ks&7)*6144+hh*768}")
    def mfmas(ks):
        b = Wb[ks & 1]
        for t in range(6):
            for rt in range(2):
                ac = acc + (rt * 6 + t) * 4; af = A + (rt * 16 + ks) * 4; wf = b + 4 * t
                if t < 2: k(f"v_mfma_f32_16x16x32_bf16 {v(ac,4)}, {v(wf,4)}, {a(af,4)}, {v(ac,4)}")
                else:     k(f"v_mfma_f32_16x16x32_bf16 {v(ac,4)}, {a(af,4)}, {v(wf,4)}, {v(ac,4)}")
    for c in range(8):
        k.wait_tag(f"c{c}")
        k("s_barrier")
        reads(2 * c)
        if c: mfmas(2 * c - 1)
        reads(2 * c + 1)
        mfmas(2 * c)
    mfmas(15)
    tmp = [k.valloc() for _ in range(4)]
    fr = {}
    for kv in range(2):
        for h in range(2):
            f = k.valloc(4); fr[(kv, h)] = f
            for rt in range(2):
                ac = acc + (rt * 6 + 2 + 2 * kv + h) * 4
                for j in range(4):
                    k(f"v_mul_f32 {v(tmp[j])}, {v(abn[rt]+2*j+1)}, {v(cskv+2*kv+h)}")
                for j in range(4):
                    k(f"v_fma_f32 {v(ac+j)}, {v(abn[rt]+2*j)}, {v(ac+j)}, {v(tmp[j])}")
                if kv == 0:
                    round_pair(k, ac, ac + 1, tmp[0]); round_pair(k, ac + 2, ac + 3, tmp[1])
                    for j in range(4): phi(k, ac + j, tmp[j])
                k(f"v_cvt_pk_bf16_f32 {v(f+2*rt)}, {v(ac)}, {v(ac+1)}")
                k(f"v_cvt_pk_bf16_f32 {v(f+2*rt+1)}, {v(ac+2)}, {v(ac+3)}")
    ones = k.valloc(4)
    for i in range(4): k(f"v_mov_b32 {v(ones+i)}, 0x3f803f80")
    kvp = [k.valloc(4), k.valloc(4)]; zp = [k.valloc(4), k.valloc(4)]
    for h in range(2):
        k(f"v_mfma_f32_16x16x32_bf16 {v(kvp[h],4)}, {v(fr[(0,h)],4)}, {v(fr[(1,h)],4)}, 0")
        k(f"v_mfma_f32_16x16x32_bf16 {v(zp[h],4)}, {v(fr[(0,h)],4)}, {v(ones,4)}, 0")
    voq = k.valloc()
    k(f"v_lshlrev_b32 {v(voq)}, 10, {v(vRow)}")
    k(f"v_lshl_add_u32 {v(voq)}, {v(k.vG)}, 3, {v(voq)}")
    k(f"v_add_u32 {v(voq)}, s54, {v(voq)}")
    k(f"v_add_u32 {v(vt3)}, 16384, {v(voq)}")
    for rt in range(2):
        for h in range(2):
            ac = acc + (rt * 6 + h) * 4
            for j in range(4):
                k(f"v_mul_f32 {v(tmp[j])}, {v(vb[rt])}, {v(csq+4*h+j)}")
            for j in range(4):
                k(f"v_fma_f32 {v(ac+j)}, {v(va[rt])}, {v(ac+j)}, {v(tmp[j])}")
            round_pair(k, ac, ac + 1, tmp[0]); round_pair(k, ac + 2, ac + 3, tmp[1])
            for j in range(4): phi(k, ac + j, tmp[j])
            k(f"v_cvt_pk_bf16_f32 {v(ac)}, {v(ac)}, {v(ac+1)}")
            k(f"v_cvt_pk_bf16_f32 {v(ac+1)}, {v(ac+2)}, {v(ac+3)}")
            k(f"buffer_store_dwordx2 {v(ac,2)}, {v(voq if rt == 0 else vt3)}, s[{SPQ}:{SPQ+3}], 0 offen offset:{h*32}")
    k("s_lshl_b32 s57, s3, 11")
    k(f"s_add_u32 s57, s57, {LDS_KV}")
    k(f"v_lshlrev_b32 {v(vt)}, 4, {v(k.vL)}")
    k(f"v_add_u32 {v(vt)}, s57, {v(vt)}")
    k("s_lshl_b32 s58, s3, 7")
    k(f"s_add_u32 s58, s58, {LDS_Z}")
    k(f"v_lshlrev_b32 {v(vt2)}, 4, {v(k.vG)}")
    k(f"v_add_u32 {v(vt2)}, s58, {v(vt2)}")
    for h in range(2):
        k(f"ds_write_b128 {v(vt)}, {v(kvp[h],4)} offset:{h*1024}")
        k(f"ds_write_b128 {v(vt2)}, {v(zp[h],4)} offset:{h*64}")
    k("s_waitcnt lgkmcnt(0)")
    k("s_barrier")
    k(f"v_bfe_u32 {v(vt)}, v0, 3, 4")
    k(f"v_lshlrev_b32 {v(vt)}, 4, {v(vt)}")
    k(f"v_lshrrev_b32 {v(vt2)}, 7, v0")
    k(f"v_lshl_add_u32 {v(vt)}, {v(vt2)}, 9, {v(vt)}")
    k(f"v_bfe_u32 {v(vt2)}, v0, 2, 1")
    k(f"v_lshl_add_u32 {v(vt)}, {v(vt2)}, 8, {v(vt)}")
    k(f"v_and_b32 {v(vt2)}, 3, v0")
    k(f"v_lshl_add_u32 {v(vt)}, {v(vt2)}, 2, {v(vt)}")
    k(f"v_add_u32 {v(vt)}, {LDS_KV}, {v(vt)}")
    rd = acc
    for h in range(2):
        for w in range(4):
            k(f"ds_read_b32 {v(rd+4*h+w)}, {v(vt)} offset:{w*2048+h*1024}")
    k("s_lshl_b32 s57, s23, 11")
    k(f"v_lshlrev_b32 {v(vt2)}, 2, v0")
    k(f"v_add_u32 {v(vt2)}, s57, {v(vt2)}")
    for h in range(2):
        k(f"v_add_f32 {v(rd+4*h)}, {v(rd+4*h)}, {v(rd+4*h+1)}")
        k(f"v_add_f32 {v(rd+4*h+2)}, {v(rd+4*h+2)}, {v(rd+4*h+3)}")
        k(f"v_add_f32 {v(rd+4*h)}, {v(rd+4*h)}, {v(rd+4*h+2)}")
        k(f"buffer_atomic_add_f32 {v(rd+4*h)}, {v(vt2)}, s[{SKV}:{SKV+3}], 0 offen offset:{h*1024}")
    k("s_cmp_lg_u32 s3, 0")
    k(f"s_cbranch_scc1 {name}_end")
    k("s_mov_b64 exec, 0xffffffff")
    k(f"v_lshlrev_b32 {v(vt)}, 2, v0")
    k(f"v_add_u32 {v(vt2)}, {LDS_Z}, {v(vt)}")
    for w in range(4):
        k(f"ds_read_b32 {v(rd+8+w)}, {v(vt2)} offset:{w*128}")
    k("s_lshl_b32 s57, s23, 7")
    k(f"s_add_u32 s57, s57, 32768")
    k(f"v_add_u32 {v(vt)}, s57, {v(vt)}")
    k(f"v_add_f32 {v(rd+8)}, {v(rd+8)}, {v(rd+9)}")
    k(f"v_add_f32 {v(rd+10)}, {v(rd+10)}, {v(rd+11)}")
    k(f"v_add_f32 {v(rd+8)}, {v(rd+8)}, {v(rd+10)}")
    k(f"buffer_atomic_add_f32 {v(rd+8)}, {v(vt)}, s[{SKV}:{SKV+3}], 0 offen")
    epilogue_end(k)
    return k

def resid_epilogue(k, acc, xr, vRow, SDST, SST, cbreg_bytes_s, tmp, do_stats):
    vo = k.valloc(); sm = k.valloc(2, 2); t0, t1, t2, t3, t4 = tmp[:5]
    k(f"v_lshlrev_b32 {v(vo)}, 10, {v(vRow)}")
    k(f"v_lshl_add_u32 {v(vo)}, {v(k.vG)}, 3, {v(vo)}")
    k(f"v_add_u32 {v(vo)}, s{cbreg_bytes_s}, {v(vo)}")
    if do_stats:
        k(f"v_mov_b32 {v(sm)}, 0"); k(f"v_mov_b32 {v(sm+1)}, 0")
        k("s_mov_b32 s60, 0x3f803f80")
    for t in range(4):
        for p in range(2):
            a0 = acc + 4 * t + 2 * p; x = xr + 2 * t + p
            k(f"v_cvt_pk_bf16_f32 {v(t0)}, {v(a0)}, {v(a0+1)}")
            k(f"v_lshlrev_b32 {v(t1)}, 16, {v(t0)}")
            k(f"v_and_b32 {v(t2)}, 0xffff0000, {v(t0)}")
            k(f"v_lshlrev_b32 {v(t3)}, 16, {v(x)}")
            k(f"v_and_b32 {v(t4)}, 0xffff0000, {v(x)}")
            k(f"v_add_f32 {v(t1)}, {v(t1)}, {v(t3)}")
            k(f"v_add_f32 {v(t2)}, {v(t2)}, {v(t4)}")
            k(f"v_cvt_pk_bf16_f32 {v(x)}, {v(t1)}, {v(t2)}")
            if do_stats:
                k(f"v_dot2_f32_bf16 {v(sm)}, {v(x)}, s60, {v(sm)}")
                k(f"v_dot2_f32_bf16 {v(sm+1)}, {v(x)}, {v(x)}, {v(sm+1)}")
        k(f"buffer_store_dwordx2 {v(xr+2*t,2)}, {v(vo)}, s[{SDST}:{SDST+3}], 0 offen offset:{t*32}")
    if do_stats:
        xlane_sum_g(k, sm, t0); xlane_sum_g(k, sm + 1, t1)
        k(f"s_lshr_b32 s61, s{cbreg_bytes_s}, 4")
        k(f"v_lshlrev_b32 {v(vo)}, 6, {v(vRow)}")
        k(f"v_add_u32 {v(vo)}, s61, {v(vo)}")
        k(f"buffer_store_dwordx2 {v(sm,2)}, {v(vo)}, s[{SST}:{SST+3}], 0 offen")

def tilemap64(k):
    k("s_and_b32 s48, s2, 7")
    k("s_lshl_b32 s48, s48, 2")
    k("s_lshr_b32 s49, s2, 6")
    k("s_add_u32 s22, s48, s49")
    k("s_bfe_u32 s23, s2, 0x30003")
    k("s_lshl_b32 s50, s22, 6")
    k("s_lshl_b32 s51, s3, 4")
    k("s_add_u32 s50, s50, s51")
    k("s_lshl_b32 s54, s23, 7")

def gen_k2(name, xsrc, kv_off, xdst, st_off):
    k = Kern(name); prologue(k, 256)
    SX, SW, SPQ, SKV, SD, SST = 24, 28, 32, 36, 40, 44
    if xsrc == "in": srd(k, SX, P_X, 0, XB)
    else: srd(k, SX, P_WS, xsrc, XB)
    srd(k, SW, P_WO, 0, 512 * 512 * 2)
    srd(k, SPQ, P_WS, WS_PQ, XB)
    srd(k, SKV, P_WS, kv_off, 34816)
    srd(k, SD, P_WS, xdst, XB)
    srd(k, SST, P_WS, st_off, 2048 * 64)
    tilemap64(k)
    LDS_F, LDS_Z, LDS_0 = 65536, 81920, 82944
    k.lds = 83200
    vRow = k.valloc(); vt = k.valloc(); vt2 = k.valloc(); vt3 = k.valloc()
    k(f"v_add_u32 {v(vRow)}, s50, {v(k.vR16)}")
    kvf = k.valloc(32, 4); zf = k.valloc(2, 2)
    k("s_lshl_b32 s52, s3, 13")
    k(f"v_lshlrev_b32 {v(vt)}, 5, {v(k.vL)}")
    k(f"v_add_u32 {v(vt)}, s52, {v(vt)}")
    k(f"v_add_u32 {v(vt2)}, 4096, {v(vt)}")
    for p in range(4):
        for hlf in range(2):
            k(f"buffer_load_dwordx4 {v(kvf+8*p+4*hlf,4)}, {v(vt if p < 2 else vt2)}, s[{SKV}:{SKV+3}], 0 offen offset:{(p&1)*2048+hlf*16}")
    k(f"v_lshlrev_b32 {v(vt3)}, 3, v0")
    k(f"v_add_u32 {v(vt3)}, 32768, {v(vt3)}")
    k(f"buffer_load_dwordx2 {v(zf,2)}, {v(vt3)}, s[{SKV}:{SKV+3}], 0 offen")
    P = k.valloc(64, 4); voP = k.valloc(); voB = k.valloc()
    k(f"v_lshlrev_b32 {v(voP)}, 10, {v(vRow)}")
    k(f"v_lshl_add_u32 {v(voP)}, {v(k.vG)}, 4, {v(voP)}")
    k(f"v_lshrrev_b32 {v(vt)}, 3, {v(k.vL)}")
    k(f"v_bfe_u32 {v(vt2)}, {v(k.vL)}, 4, 2")
    k(f"v_lshlrev_b32 {v(vt2)}, 1, {v(vt2)}")
    k(f"v_and_b32 {v(vt3)}, 7, {v(k.vL)}")
    k(f"v_xor_b32 {v(vt2)}, {v(vt2)}, {v(vt3)}")
    k(f"v_lshlrev_b32 {v(vt2)}, 4, {v(vt2)}")
    k(f"v_lshl_add_u32 {v(voB)}, {v(vt)}, 10, {v(vt2)}")
    k("s_lshl_b32 s52, s3, 13")
    k("s_add_u32 s52, s52, s54")
    k(f"v_add_u32 {v(voB)}, s52, {v(voB)}")
    k("s_lshl_b32 s55, s3, 10")
    CH = 2
    for p in range(16):
        k.I(f"buffer_load_dwordx4 {v(P+4*p,4)}, {v(voP)}, s[{SPQ}:{SPQ+3}], 0 offen offset:{p*64}", tag=f"c{p//CH}")
        k(f"s_mov_b32 s56, {p*32768}")
        k(f"s_add_u32 m0, s55, {p*4096}")
        k.I(f"buffer_load_dwordx4 {v(voB)}, s[{SW}:{SW+3}], s56 offen lds", tag=f"c{p//CH}")
    xr = k.valloc(8, 4); voX = k.valloc()
    k(f"v_lshlrev_b32 {v(voX)}, 10, {v(vRow)}")
    k(f"v_lshl_add_u32 {v(voX)}, {v(k.vG)}, 3, {v(voX)}")
    k(f"v_add_u32 {v(voX)}, s54, {v(voX)}")
    for t in range(4):
        k(f"buffer_load_dwordx2 {v(xr+2*t,2)}, {v(voX)}, s[{SX}:{SX+3}], 0 offen offset:{t*32}")
    k("s_lshl_b32 s52, s3, 12")
    k(f"s_add_u32 s52, s52, {LDS_F}")
    k(f"v_lshlrev_b32 {v(vt)}, 4, {v(k.vL)}")
    k(f"v_add_u32 {v(vt)}, s52, {v(vt)}")
    for p in range(4):
        for i in range(4):
            k(f"v_cvt_pk_bf16_f32 {v(kvf+8*p+i)}, {v(kvf+8*p+2*i)}, {v(kvf+8*p+2*i+1)}")
        k(f"ds_write_b128 {v(vt)}, {v(kvf+8*p,4)} offset:{p*1024}")
    k(f"v_cvt_pk_bf16_f32 {v(zf)}, {v(zf)}, {v(zf+1)}")
    k(f"v_lshlrev_b32 {v(vt2)}, 2, v0")
    k(f"v_add_u32 {v(vt2)}, {LDS_Z}, {v(vt2)}")
    k(f"ds_write_b32 {v(vt2)}, {v(zf)}")
    k(f"v_mov_b32 {v(zf)}, 0")
    k(f"v_and_b32 {v(vt2)}, 3, v0")
    k(f"v_lshlrev_b32 {v(vt2)}, 2, {v(vt2)}")
    k(f"v_add_u32 {v(vt2)}, {LDS_0}, {v(vt2)}")
    k(f"ds_write_b32 {v(vt2)}, {v(zf)}")
    aA0, aA1, aAz, sA0, sA1, sAz = [k.valloc() for _ in range(6)]
    k(f"v_lshlrev_b32 {v(vt)}, 4, {v(k.vL)}")
    k(f"v_add_u32 {v(vt)}, {LDS_F}, {v(vt)}")
    k(f"v_mov_b32 {v(vt2)}, {LDS_0}")
    k(f"v_cmp_gt_u32 vcc, 2, {v(k.vG)}")
    k(f"v_cndmask_b32 {v(aA0)}, {v(vt2)}, {v(vt)}, vcc")
    k(f"v_cndmask_b32 {v(aA1)}, {v(vt)}, {v(vt2)}, vcc")
    k(f"v_mov_b32 {v(vt3)}, 1024")
    k(f"v_cndmask_b32 {v(sA0)}, 0, {v(vt3)}, vcc")
    k(f"v_cndmask_b32 {v(sA1)}, {v(vt3)}, 0, vcc")
    k(f"v_and_b32 {v(vt)}, 3, {v(k.vL)}")
    k(f"v_lshrrev_b32 {v(vt3)}, 1, {v(k.vG)}")
    k(f"v_cmp_eq_u32 vcc, {v(vt)}, {v(vt3)}")
    k(f"v_lshlrev_b32 {v(vt)}, 4, {v(k.vG)}")
    k(f"v_add_u32 {v(vt)}, {LDS_Z}, {v(vt)}")
    k(f"v_cndmask_b32 {v(aAz)}, {v(vt2)}, {v(vt)}, vcc")
    k(f"v_cndmask_b32 {v(sAz)}, 0, 64, vcc")
    tb = [k.valloc() for _ in range(4)]
    k(f"v_bfe_u32 {v(vt)}, {v(k.vL)}, 2, 2")
    k(f"v_lshl_add_u32 {v(vt)}, {v(k.vG)}, 2, {v(vt)}")
    k(f"v_bfe_u32 {v(vt2)}, {v(vt)}, 1, 2")
    k(f"v_lshlrev_b32 {v(vt)}, 7, {v(vt)}")
    k(f"v_and_b32 {v(vt3)}, 3, {v(k.vL)}")
    k(f"v_lshl_add_u32 {v(vt)}, {v(vt3)}, 3, {v(vt)}")
    for t in range(4):
        k(f"v_xor_b32 {v(vt3)}, {t}, {v(vt2)}")
        k(f"v_lshl_add_u32 {v(tb[t])}, {v(vt3)}, 5, {v(vt)}")
    acc = k.valloc(16, 4)
    for i in range(16): k(f"v_mov_b32 {v(acc+i)}, 0")
    Wb = [k.valloc(16, 4), k.valloc(16, 4)]
    Fb = k.valloc(12, 4)
    N = [k.valloc(12, 4), k.valloc(12, 4)]
    O = k.valloc(4); rr = k.valloc(2)
    def freads():
        k(f"ds_read_b128 {v(Fb,4)}, {v(aA0)}")
        k(f"ds_read_b128 {v(Fb+4,4)}, {v(aA1)}")
        k(f"ds_read_b128 {v(Fb+8,4)}, {v(aAz)}")
        k(f"v_add_u32 {v(aA0)}, {v(aA0)}, {v(sA0)}")
        k(f"v_add_u32 {v(aA1)}, {v(aA1)}, {v(sA1)}")
        k(f"v_add_u32 {v(aAz)}, {v(aAz)}, {v(sAz)}")
    def amfma(p):
        n = N[p & 1]
        for i in range(3):
            k(f"v_mfma_f32_16x16x32_bf16 {v(n+4*i,4)}, {v(Fb+4*i,4)}, {v(P+4*p,4)}, 0")
    k("s_waitcnt lgkmcnt(0)")
    for p in range(16):
        if p % CH == 0:
            k.wait_tag(f"c{p//CH}")
            k("s_barrier")
        if p == 0:
            freads(); amfma(0)
        b = Wb[p & 1]
        for t in range(4):
            for hh in range(2):
                k(f"ds_read_b64_tr_b16 {v(b+4*t+2*hh,2)}, {v(tb[t])} offset:{p*4096+hh*2048}")
        if p < 15: freads()
        n = N[p & 1]
        k(f"v_add_f32 {v(rr)}, {fbits(1e-6):#x}, {v(n+8)}")
        k(f"v_add_f32 {v(rr+1)}, {fbits(1e-6):#x}, {v(n+9)}")
        k(f"v_rcp_f32 {v(rr)}, {v(rr)}")
        k(f"v_rcp_f32 {v(rr+1)}, {v(rr+1)}")
        for h in range(2):
            for j in range(4):
                k(f"v_mul_f32 {v(n+4*h+j)}, {v(n+4*h+j)}, {v(rr+h)}")
        for h in range(2):
            k(f"v_cvt_pk_bf16_f32 {v(O+2*h)}, {v(n+4*h)}, {v(n+4*h+1)}")
            k(f"v_cvt_pk_bf16_f32 {v(O+2*h+1)}, {v(n+4*h+2)}, {v(n+4*h+3)}")
        for t in range(4):
            k(f"v_mfma_f32_16x16x32_bf16 {v(acc+4*t,4)}, {v(b+4*t,4)}, {v(O,4)}, {v(acc+4*t,4)}")
        if p < 15: amfma(p + 1)
    tmp = [k.valloc() for _ in range(5)]
    resid_epilogue(k, acc, xr, vRow, SD, SST, 54, tmp, True)
    epilogue_end(k)
    return k

def gen_k3(name, xsrc, st_off, opt=()):
    k = Kern(name); prologue(k, 224)
    SX, SW, SH, SCS, SST = 24, 28, 32, 36, 40
    srd(k, SX, P_WS, xsrc, XB)
    srd(k, SW, P_W1, 0, 512 * 1792 * 2)
    srd(k, SH, P_WS, WS_H, S_ * F_ * 2)
    srd(k, SCS, P_WS, WS_CS + 0x2000, 1792 * 4)
    srd(k, SST, P_WS, st_off, 2048 * 64)
    k("s_lshr_b32 s48, s2, 3")
    k("s_mul_i32 s49, s48, 37")
    k("s_lshr_b32 s49, s49, 8")
    k("s_mul_i32 s51, s49, 7")
    k("s_sub_u32 s48, s48, s51")
    k("s_bfe_u32 s51, s2, 0x20001")
    k("s_lshl_b32 s51, s51, 2")
    k("s_add_u32 s22, s51, s49")
    k("s_and_b32 s51, s2, 1")
    k("s_mul_i32 s51, s51, 7")
    k("s_add_u32 s23, s51, s48")
    k("s_lshl_b32 s50, s22, 7")
    k("s_lshl_b32 s51, s3, 5")
    k("s_add_u32 s50, s50, s51")
    k("s_lshl_b32 s54, s23, 8")
    k.lds = 131072
    vRow = k.valloc(); vt = k.valloc(); vt2 = k.valloc(); vt3 = k.valloc()
    k(f"v_add_u32 {v(vRow)}, s50, {v(k.vR16)}")
    Wb = [k.valloc(32, 4), k.valloc(32, 4)]
    acc = k.valloc(64, 4)
    A = k.aalloc(128)
    stt = [Wb[0], Wb[1]]
    k(f"v_lshlrev_b32 {v(vt)}, 6, {v(vRow)}")
    for rt in range(2):
        for i in range(4):
            k(f"buffer_load_dwordx4 {v(stt[rt]+4*i,4)}, {v(vt)}, s[{SST}:{SST+3}], 0 offen offset:{rt*1024+i*16}")
    cs = k.valloc(32, 4)
    k("s_lshl_b32 s52, s23, 9")
    k(f"v_lshlrev_b32 {v(vt2)}, 4, {v(k.vG)}")
    k(f"v_add_u32 {v(vt2)}, s52, {v(vt2)}")
    for t in range(8):
        k(f"buffer_load_dwordx4 {v(cs+4*t,4)}, {v(vt2)}, s[{SCS}:{SCS+3}], 0 offen offset:{t*64}")
    voA = [k.valloc(), k.valloc()]
    k(f"v_lshlrev_b32 {v(voA[0])}, 10, {v(vRow)}")
    k(f"v_lshl_add_u32 {v(voA[0])}, {v(k.vG)}, 4, {v(voA[0])}")
    k(f"v_add_u32 {v(voA[1])}, 16384, {v(voA[0])}")
    voB = [k.valloc() for _ in range(4)]
    k("s_lshl_b32 s52, s3, 4")
    for i in range(4):
        k(f"v_lshlrev_b32 {v(vt)}, 1, {v(k.vG)}")
        if i >= 2: k(f"v_or_b32 {v(vt)}, 8, {v(vt)}")
        k(f"v_xor_b32 {v(vt)}, {v(vt)}, {v(k.vR16)}")
        k(f"v_lshlrev_b32 {v(vt)}, 4, {v(vt)}")
        k(f"v_add3_u32 {v(vt2)}, {v(k.vG)}, s52, {4*i}")
        k(f"v_mul_u32_u24 {v(vt2)}, 3584, {v(vt2)}")
        k(f"v_add3_u32 {v(voB[i])}, {v(vt2)}, {v(vt)}, s54")
    k("s_lshl_b32 s55, s3, 12")
    def issue_chunk(c):
        for rt in range(2):
            for kk in range(2):
                ks = 2 * c + kk
                if "noA" not in opt: k.I(f"buffer_load_dwordx4 {a(A+(rt*16+ks)*4,4)}, {v(voA[rt])}, s[{SX}:{SX+3}], 0 offen offset:{ks*64}", tag=f"c{c}")
        k(f"s_mov_b32 s56, {c*64*3584}")
        for i in range(4):
            k(f"s_add_u32 m0, s55, {c*16384+i*1024}")
            if "noB" not in opt: k.I(f"buffer_load_dwordx4 {v(voB[i])}, s[{SW}:{SW+3}], s56 offen lds", tag=f"c{c}")
    for c in range(5): issue_chunk(c)
    va = [k.valloc(), k.valloc()]; vb = [k.valloc(), k.valloc()]
    for rt in range(2): ln_params(k, stt[rt], va[rt], vb[rt], vt, vt2)
    issue_chunk(5)
    tb = [k.valloc() for _ in range(8)]
    k(f"v_bfe_u32 {v(vt)}, {v(k.vL)}, 2, 2")
    k(f"v_and_b32 {v(vt2)}, 1, {v(k.vG)}")
    k(f"v_lshl_add_u32 {v(vt2)}, {v(vt2)}, 2, {v(vt)}")
    k(f"v_lshl_add_u32 {v(vt)}, {v(k.vG)}, 3, {v(vt)}")
    k(f"v_lshlrev_b32 {v(vt)}, 8, {v(vt)}")
    k(f"v_and_b32 {v(vt3)}, 3, {v(k.vL)}")
    k(f"v_lshl_add_u32 {v(vt)}, {v(vt3)}, 3, {v(vt)}")
    for t in range(8):
        k(f"v_xor_b32 {v(vt3)}, {t}, {v(vt2)}")
        k(f"v_lshl_add_u32 {v(tb[t])}, {v(vt3)}, 5, {v(vt)}")
    for i in range(64): k(f"v_mov_b32 {v(acc+i)}, 0")
    def reads(ks):
        if ks == 8:
            for t in range(8): k(f"v_add_u32 {v(tb[t])}, 65536, {v(tb[t])}")
        b = Wb[ks & 1]
        for t in range(8):
            for hh in range(2):
                k(f"ds_read_b64_tr_b16 {v(b+4*t+2*hh,2)}, {v(tb[t])} offset:{(ks&7)*8192+hh*1024}")
    def mfmas(ks):
        b = Wb[ks & 1]
        for t in range(8):
            for rt in range(2):
                ac = acc + (rt * 8 + t) * 4
                k(f"v_mfma_f32_16x16x32_bf16 {v(ac,4)}, {v(b+4*t,4)}, {a(A+(rt*16+ks)*4,4)}, {v(ac,4)}")
    for c in range(8):
        k.wait_tag(f"c{c}")
        k("s_barrier")
        if c < 2: issue_chunk(6 + c)
        if "nocomp" in opt: continue
        reads(2 * c)
        if c: mfmas(2 * c - 1)
        reads(2 * c + 1)
        mfmas(2 * c)
    if "nocomp" not in opt: mfmas(15)
    if "noepi" in opt:
        epilogue_end(k); return k
    voH = [k.valloc(), k.valloc()]
    k("s_mov_b32 s57, 3584")
    k(f"v_mul_lo_u32 {v(voH[0])}, {v(vRow)}, s57")
    k(f"v_lshl_add_u32 {v(voH[0])}, {v(k.vG)}, 3, {v(voH[0])}")
    k(f"v_add_u32 {v(voH[0])}, s54, {v(voH[0])}")
    k(f"v_add_u32 {v(voH[1])}, {16*3584}, {v(voH[0])}")
    tmp = [k.valloc() for _ in range(8)]
    for rt in range(2):
        for t in range(8):
            ac = acc + (rt * 8 + t) * 4
            for j in range(4): k(f"v_mul_f32 {v(tmp[j])}, {v(vb[rt])}, {v(cs+4*t+j)}")
            for j in range(4): k(f"v_fma_f32 {v(ac+j)}, {v(va[rt])}, {v(ac+j)}, {v(tmp[j])}")
            round_pair(k, ac, ac + 1, tmp[0]); round_pair(k, ac + 2, ac + 3, tmp[1])
            for j in range(4): k(f"v_mul_f32 {v(tmp[j])}, {LOG2E | 0x80000000:#x}, {v(ac+j)}")
            for j in range(4): k(f"v_exp_f32 {v(tmp[j])}, {v(tmp[j])}")
            for j in range(4): k(f"v_add_f32 {v(tmp[j])}, 1.0, {v(tmp[j])}")
            for j in range(4): k(f"v_rcp_f32 {v(tmp[j])}, {v(tmp[j])}")
            for j in range(4): k(f"v_mul_f32 {v(ac+j)}, {v(ac+j)}, {v(tmp[j])}")
            k(f"v_cvt_pk_bf16_f32 {v(ac)}, {v(ac)}, {v(ac+1)}")
            k(f"v_cvt_pk_bf16_f32 {v(ac+1)}, {v(ac+2)}, {v(ac+3)}")
            if "nostore" not in opt or (rt == 1 and t == 7): k(f"buffer_store_dwordx2 {v(ac,2)}, {v(voH[rt])}, s[{SH}:{SH+3}], 0 offen offset:{t*32}")
    epilogue_end(k)
    return k

def gen_k4(name, xsrc, xdst, st_off):
    k = Kern(name); prologue(k, 256)
    SX, SW, SH, SD, SST = 24, 28, 32, 36, 40
    srd(k, SX, P_WS, xsrc, XB)
    srd(k, SW, P_W2, 0, 1792 * 512 * 2)
    srd(k, SH, P_WS, WS_H, S_ * F_ * 2)
    if xdst == "out": srd(k, SD, P_OUT, 0, XB)
    else: srd(k, SD, P_WS, xdst, XB)
    if st_off is not None: srd(k, SST, P_WS, st_off, 2048 * 64)
    tilemap64(k)
    NS, DEP, NC = 9, 7, 14
    k.lds = NS * 16384
    vRow = k.valloc(); vt = k.valloc(); vt2 = k.valloc(); vt3 = k.valloc()
    k(f"v_add_u32 {v(vRow)}, s50, {v(k.vR16)}")
    A = k.aalloc(224)
    voA = k.valloc()
    k("s_mov_b32 s57, 3584")
    k(f"v_mul_lo_u32 {v(voA)}, {v(vRow)}, s57")
    k(f"v_lshl_add_u32 {v(voA)}, {v(k.vG)}, 4, {v(voA)}")
    xr = k.valloc(8, 4); voX = k.valloc()
    k(f"v_lshlrev_b32 {v(voX)}, 10, {v(vRow)}")
    k(f"v_lshl_add_u32 {v(voX)}, {v(k.vG)}, 3, {v(voX)}")
    k(f"v_add_u32 {v(voX)}, s54, {v(voX)}")
    for t in range(4):
        k(f"buffer_load_dwordx2 {v(xr+2*t,2)}, {v(voX)}, s[{SX}:{SX+3}], 0 offen offset:{t*32}")
    voB = [k.valloc() for _ in range(4)]
    k("s_lshl_b32 s52, s3, 15")
    k("s_add_u32 s52, s52, s54")
    for i in range(4):
        k(f"v_bfe_u32 {v(vt)}, {v(k.vL)}, 4, 1")
        k(f"v_lshlrev_b32 {v(vt)}, 1, {v(vt)}")
        if i & 1: k(f"v_or_b32 {v(vt)}, 4, {v(vt)}")
        k(f"v_and_b32 {v(vt2)}, 7, {v(k.vL)}")
        k(f"v_xor_b32 {v(vt)}, {v(vt)}, {v(vt2)}")
        k(f"v_lshlrev_b32 {v(vt)}, 4, {v(vt)}")
        k(f"v_lshrrev_b32 {v(vt2)}, 3, {v(k.vL)}")
        k(f"v_add_u32 {v(vt2)}, {8*i}, {v(vt2)}")
        k(f"v_lshl_add_u32 {v(vt)}, {v(vt2)}, 10, {v(vt)}")
        k(f"v_add_u32 {v(voB[i])}, s52, {v(vt)}")
    k("s_lshl_b32 s55, s3, 12")
    def issue_chunk(c):
        for kk in range(4):
            ks = 4 * c + kk
            k.I(f"buffer_load_dwordx4 {a(A+ks*4,4)}, {v(voA)}, s[{SH}:{SH+3}], 0 offen offset:{ks*64}", tag=f"c{c}")
        k(f"s_mov_b32 s56, {c*131072}")
        for i in range(4):
            k(f"s_add_u32 m0, s55, {(c%NS)*16384+i*1024}")
            k.I(f"buffer_load_dwordx4 {v(voB[i])}, s[{SW}:{SW+3}], s56 offen lds", tag=f"c{c}")
    for c in range(DEP): issue_chunk(c)
    tb = [[k.valloc() for _ in range(4)] for _ in range(3)]
    k(f"v_bfe_u32 {v(vt)}, {v(k.vL)}, 2, 2")
    k(f"v_and_b32 {v(vt2)}, 1, {v(k.vG)}")
    k(f"v_lshlrev_b32 {v(vt2)}, 1, {v(vt2)}")
    k(f"v_bfe_u32 {v(vt3)}, {v(k.vL)}, 3, 1")
    k(f"v_or_b32 {v(vt2)}, {v(vt2)}, {v(vt3)}")
    k(f"v_lshl_add_u32 {v(vt)}, {v(k.vG)}, 3, {v(vt)}")
    k(f"v_lshlrev_b32 {v(vt)}, 7, {v(vt)}")
    k(f"v_and_b32 {v(vt3)}, 3, {v(k.vL)}")
    k(f"v_lshl_add_u32 {v(vt)}, {v(vt3)}, 3, {v(vt)}")
    for t in range(4):
        k(f"v_xor_b32 {v(vt3)}, {t}, {v(vt2)}")
        k(f"v_lshl_add_u32 {v(tb[0][t])}, {v(vt3)}, 5, {v(vt)}")
        k(f"v_add_u32 {v(tb[1][t])}, 65536, {v(tb[0][t])}")
        k(f"v_add_u32 {v(tb[2][t])}, 131072, {v(tb[0][t])}")
    acc = k.valloc(16, 4)
    for i in range(16): k(f"v_mov_b32 {v(acc+i)}, 0")
    Wb = [k.valloc(16, 4), k.valloc(16, 4)]
    def reads(ks):
        b = Wb[ks & 1]; sl = (ks // 4) % NS
        for t in range(4):
            for hh in range(2):
                k(f"ds_read_b64_tr_b16 {v(b+4*t+2*hh,2)}, {v(tb[sl//4][t])} offset:{(sl%4)*16384+(ks&3)*4096+hh*512}")
    def mfmas(ks):
        b = Wb[ks & 1]
        for t in range(4):
            k(f"v_mfma_f32_16x16x32_bf16 {v(acc+4*t,4)}, {v(b+4*t,4)}, {a(A+ks*4,4)}, {v(acc+4*t,4)}")
    for c in range(NC):
        k.wait_tag(f"c{c}")
        k("s_barrier")
        if c + DEP < NC: issue_chunk(c + DEP)
        for kk in range(4):
            ks = 4 * c + kk
            reads(ks)
            if ks: mfmas(ks - 1)
    mfmas(55)
    tmp = [k.valloc() for _ in range(5)]
    resid_epilogue(k, acc, xr, vRow, SD, SST, 54, tmp, st_off is not None)
    epilogue_end(k)
    return k

HEADER = """; Kernarg layout for this problem (72 bytes, ptrs only, base s[0:1]):
;   offset   0: d_in[0] A_x  shape=(1, 2048, 512) dtype=bfloat16
;   offset   8: d_in[1] A_wqkv  shape=(512, 1536) dtype=bfloat16
;   offset  16: d_in[2] A_wo  shape=(512, 512) dtype=bfloat16
;   offset  24: d_in[3] B_x  shape=(1, 2048, 512) dtype=bfloat16 (unused by the reference)
;   offset  32: d_in[4] B_w1  shape=(512, 1792) dtype=bfloat16
;   offset  40: d_in[5] B_w2  shape=(1792, 512) dtype=bfloat16
;   offset  48: d_out     shape=(1, 2048, 512) dtype=bfloat16
"""

def main(path):
    ks = [gen_k0("k0_kernel"),
          gen_k1("k1a_kernel", "in", WS_KV, WS_ST0),
          gen_k2("k2a_kernel", "in", WS_KV, WS_X1, WS_ST1),
          gen_k3("k3a_kernel", WS_X1, WS_ST1),
          gen_k4("k4a_kernel", WS_X1, WS_X2, WS_ST2),
          gen_k1("k1b_kernel", WS_X2, WS_KV + 0x10000, WS_ST2),
          gen_k2("k2b_kernel", WS_X2, WS_KV + 0x10000, WS_X1, WS_ST1),
          gen_k3("k3b_kernel", WS_X1, WS_ST1),
          gen_k4("k4b_kernel", WS_X1, "out", None)]
    grids = [256, 256, 256, 224, 256, 256, 256, 224, 256]
    launches = [(k.name, g, 256, k.lds) for k, g in zip(ks, grids)]
    open(path, "w").write(build_file(HEADER, launches, ks))
    for k in ks: print(k.name, "vgpr", k.maxv, "agpr", getattr(k, "na", 0), "lds", k.lds, "ninst", sum(1 for i in k.items if isinstance(i, Ins)))

if __name__ == "__main__":
    main(sys.argv[1] if len(sys.argv) > 1 else "interleave_layers__linear_attn_block__dense_activation_silu__prompt.s")
```

```python
import sys, struct
from asmlib import *
from gen import (S_, D_, F_, WS_PQ, WS_X1, WS_X2, WS_H, WS_KV, WS_CS, WS_ST0, WS_ST1, WS_ST2, XB, P_X, P_WQKV, P_WO, P_W1, P_W2, P_OUT, P_WS,
                 LOG2E, fbits, prologue, srd, epilogue_end, bf16_round, xlane_sum_g, gen_k0, HEADER, tilemap64)

class Bases:
    def __init__(self, k): self.k = k; self.m = {}
    def add(self, key, vreg, nreg):
        self.m[key] = [vreg]
        for r in range(1, nreg):
            n = self.k.valloc(); self.k(f"v_add_u32 {v(n)}, {r*65536}, {v(vreg)}"); self.m[key].append(n)
    def at(self, key, off): return f"{v(self.m[key][off >> 16])} offset:{off & 65535}"

def ln_params2(k, st, ab, t0):
    k(f"v_add_f32 {v(st)}, {v(st)}, {v(st+2)}")
    k(f"v_add_f32 {v(st+1)}, {v(st+1)}, {v(st+3)}")
    xlane_sum_g(k, st, t0); xlane_sum_g(k, st + 1, t0)
    m, q = st, st + 1
    k(f"v_mul_f32 {v(m)}, {fbits(1/512):#x}, {v(m)}")
    k(f"v_mul_f32 {v(q)}, {fbits(1/512):#x}, {v(q)}")
    k(f"v_fma_f32 {v(q)}, -{v(m)}, {v(m)}, {v(q)}")
    k(f"v_max_f32 {v(q)}, 0, {v(q)}")
    bf16_round(k, m, m); bf16_round(k, q, q)
    k(f"v_add_f32 {v(q)}, {fbits(1e-5):#x}, {v(q)}")
    bf16_round(k, q, q)
    k(f"v_sqrt_f32 {v(q)}, {v(q)}")
    bf16_round(k, q, q)
    k(f"v_rcp_f32 {v(ab)}, {v(q)}")
    k(f"v_mul_f32 {v(ab+1)}, {v(m)}, {v(ab)}")
    k(f"v_sub_f32 {v(ab+1)}, 0, {v(ab+1)}")

def interleave(k, mf, rd):
    n = max(len(mf), len(rd))
    for i in range(n):
        if i < len(mf): k(mf[i])
        if i < len(rd): k(rd[i])

def a_dma_offsets(k, nins, PA, rowpitch_s, rowbase_s, t0, t1):
    UA = PA // 16; RA = 64 // UA; sh = {8: 3, 16: 4}[UA]
    out = []
    k(f"s_mul_i32 s58, s59, {nins*RA}")
    k(f"s_add_u32 s58, s58, s{rowbase_s}")
    for i in range(nins):
        r = k.valloc(); out.append(r)
        k(f"v_lshrrev_b32 {v(t0)}, {sh}, {v(k.vL)}")
        if i: k(f"v_add_u32 {v(t0)}, {RA*i}, {v(t0)}")
        if PA == 128: k(f"v_bfe_u32 {v(t1)}, {v(t0)}, 1, 3")
        else: k(f"v_and_b32 {v(t1)}, 15, {v(t0)}")
        k(f"v_and_b32 {v(r)}, {UA-1}, {v(k.vL)}")
        k(f"v_xor_b32 {v(t1)}, {v(t1)}, {v(r)}")
        k(f"v_add_u32 {v(t0)}, s58, {v(t0)}")
        k(f"v_mul_lo_u32 {v(t0)}, {v(t0)}, s{rowpitch_s}")
        k(f"v_lshl_add_u32 {v(r)}, {v(t1)}, 4, {v(t0)}")
    assert (nins * RA) % 16 == 0
    return out

def a_read_bases(k, B, PA, rowoff_s, nreg, t0, t1):
    nkk = PA // 64
    k(f"v_add_u32 {v(t0)}, s{rowoff_s}, {v(k.vR16)}")
    k(f"v_mul_u32_u24 {v(t0)}, {PA}, {v(t0)}")
    if PA == 128: k(f"v_bfe_u32 {v(t1)}, {v(k.vR16)}, 1, 3")
    else: k(f"v_mov_b32 {v(t1)}, {v(k.vR16)}")
    k(f"v_xor_b32 {v(t1)}, {v(t1)}, {v(k.vG)}")
    for kk in range(nkk):
        r = k.valloc()
        k(f"v_xor_b32 {v(r)}, {4*kk}, {v(t1)}")
        k(f"v_lshl_add_u32 {v(r)}, {v(r)}, 4, {v(t0)}")
        B.add(("A", kk), r, nreg)

def prologue8(k, nwg):
    prologue(k, nwg, wait=False)
    k("s_sub_u32 s59, s3, 4")

def store_phase64(k, STG, xr, SD, SST, do_stats, tmp):
    vy = k.valloc(4); va_ = k.valloc(); vo = k.valloc(); sm = k.valloc(2, 2); tt = k.valloc(2, 2)
    t0, t1, t2, t3 = tmp[:4]
    k(f"v_lshrrev_b32 {v(t0)}, 3, v0")
    k(f"v_and_b32 {v(t1)}, 7, v0")
    k(f"v_mul_u32_u24 {v(va_)}, 144, {v(t0)}")
    k(f"v_lshl_add_u32 {v(va_)}, {v(t1)}, 4, {v(va_)}")
    k(f"ds_read_b128 {v(vy,4)}, {v(va_)} offset:{STG}")
    k(f"s_lshl_b32 s60, s22, 6")
    k(f"v_add_u32 {v(t0)}, s60, {v(t0)}")
    k(f"v_lshlrev_b32 {v(vo)}, 10, {v(t0)}")
    k(f"v_lshl_add_u32 {v(vo)}, {v(t1)}, 4, {v(vo)}")
    k(f"v_add_u32 {v(vo)}, s54, {v(vo)}")
    if do_stats:
        k(f"v_mov_b32 {v(sm)}, 0"); k(f"v_mov_b32 {v(sm+1)}, 0")
        k("s_mov_b32 s60, 0x3f803f80")
        k(f"v_lshlrev_b32 {v(va_)}, 6, {v(t0)}")
        k(f"s_lshr_b32 s61, s54, 4")
        k(f"v_add_u32 {v(va_)}, s61, {v(va_)}")
    for i in range(4):
        k(f"v_lshlrev_b32 {v(t0)}, 16, {v(vy+i)}")
        k(f"v_and_b32 {v(t1)}, 0xffff0000, {v(vy+i)}")
        k(f"v_lshlrev_b32 {v(t2)}, 16, {v(xr+i)}")
        k(f"v_and_b32 {v(t3)}, 0xffff0000, {v(xr+i)}")
        k(f"v_add_f32 {v(t0)}, {v(t0)}, {v(t2)}")
        k(f"v_add_f32 {v(t1)}, {v(t1)}, {v(t3)}")
        k(f"v_cvt_pk_bf16_f32 {v(vy+i)}, {v(t0)}, {v(t1)}")
        if do_stats:
            k(f"v_dot2_f32_bf16 {v(sm)}, {v(vy+i)}, s60, {v(sm)}")
            k(f"v_dot2_f32_bf16 {v(sm+1)}, {v(vy+i)}, {v(vy+i)}, {v(sm+1)}")
    k(f"buffer_store_dwordx4 {v(vy,4)}, {v(vo)}, s[{SD}:{SD+3}], 0 offen")
    if do_stats:
        for dpp in ("quad_perm:[1,0,3,2]", "quad_perm:[2,3,0,1]", "row_half_mirror"):
            for c in range(2):
                k(f"v_add_f32_dpp {v(tt+c)}, {v(sm+c)}, {v(sm+c)} {dpp} row_mask:0xf bank_mask:0xf")
            for c in range(2):
                k(f"v_mov_b32 {v(sm+c)}, {v(tt+c)}")
        k(f"buffer_store_dwordx2 {v(sm,2)}, {v(va_)}, s[{SST}:{SST+3}], 0 offen")

def resid_load64(k, SX, t0, t1, xr):
    k(f"v_lshrrev_b32 {v(t0)}, 3, v0")
    k(f"v_and_b32 {v(t1)}, 7, v0")
    k(f"s_lshl_b32 s60, s22, 6")
    k(f"v_add_u32 {v(t0)}, s60, {v(t0)}")
    k(f"v_lshlrev_b32 {v(t0)}, 10, {v(t0)}")
    k(f"v_lshl_add_u32 {v(t0)}, {v(t1)}, 4, {v(t0)}")
    k(f"v_add_u32 {v(t0)}, s54, {v(t0)}")
    k(f"buffer_load_dwordx4 {v(xr,4)}, {v(t0)}, s[{SX}:{SX+3}], 0 offen")
    return xr

def reorder(k):
    it = k.items; name = k.name
    ib = next(i for i, x in enumerate(it) if isinstance(x, Ins) and x.text == f"s_cbranch_scc1 {name}_loader")
    il = it.index(f"{name}_loader:"); is_ = it.index(f"{name}_store:")
    pre, comp, load, store = it[:ib], it[ib + 1:il], it[il:is_], it[is_:]
    assert isinstance(comp[-1], Ins) and comp[-1].text == f"s_branch {name}_store"
    comp = comp[:-1]
    def mk(t):
        x = Ins(t); x.tag = None; return x
    load = [x for j, x in enumerate(load) if not (j < 3 and (x == f"{name}_loader:" or x == ("RESET", None)))]
    k.items = pre + [mk(f"s_cbranch_scc0 {name}_compute")] + load + [mk(f"s_branch {name}_store")] + [f"{name}_compute:", ("RESET", None)] + comp + store

def loader_loop(k, NC, NS, issue_chunk, D=3):
    assert D <= NS - 1 or NS >= NC
    k.stamp()
    for c in range(min(D, NC)): issue_chunk(c)
    k.stamp()
    for c in range(NC):
        k.wait_tag(f"c{c}")
        k.stamp()
        k("s_barrier")
        if c + D < NC: issue_chunk(c + D)

def gen_k3(name, xsrc, st_off, opt=()):
    k = Kern(name); k.stamps_on = "stamp" in opt; prologue8(k, 224)
    k.stamp()
    SX, SW, SH, SCS, SST = 24, 28, 32, 36, 40
    k("s_lshr_b32 s48, s2, 3")
    k("s_mul_i32 s49, s48, 37")
    k("s_lshr_b32 s49, s49, 8")
    k("s_mul_i32 s51, s49, 7")
    k("s_sub_u32 s48, s48, s51")
    k("s_bfe_u32 s51, s2, 0x20001")
    k("s_lshl_b32 s51, s51, 2")
    k("s_add_u32 s22, s51, s49")
    k("s_and_b32 s51, s2, 1")
    k("s_mul_i32 s51, s51, 7")
    k("s_add_u32 s23, s51, s48")
    k("s_lshl_b32 s50, s22, 7")
    k("s_lshl_b32 s54, s23, 8")
    NS, NC, SLOT, BOFF = 5, 8, 32768, 16384
    STG, SP = 98304, 272
    k.lds = NS * SLOT
    vt, vt2, vt3 = k.valloc(), k.valloc(), k.valloc()
    mark = k.nv
    k("s_cmp_ge_u32 s3, 4")
    k(f"s_cbranch_scc1 {name}_loader")
    k("s_lshr_b32 s52, s3, 1")
    k("s_lshl_b32 s52, s52, 6")
    k("s_and_b32 s53, s3, 1")
    k("s_add_u32 s55, s50, s52")
    vRow = k.valloc()
    k(f"v_add_u32 {v(vRow)}, s55, {v(k.vR16)}")
    st = k.valloc(16, 4)
    k(f"v_lshlrev_b32 {v(vt)}, 6, {v(vRow)}")
    k(f"v_lshl_add_u32 {v(vt)}, {v(k.vG)}, 4, {v(vt)}")
    k("s_waitcnt lgkmcnt(0)")
    srd(k, SCS, P_WS, WS_CS + 0x2000, 1792 * 4)
    srd(k, SST, P_WS, st_off, 2048 * 64)
    for rt in range(4):
        k(f"buffer_load_dwordx4 {v(st+4*rt,4)}, {v(vt)}, s[{SST}:{SST+3}], 0 offen offset:{rt*1024}")
    cs = k.valloc(16, 4)
    k("s_lshl_b32 s56, s23, 9")
    k("s_lshl_b32 s57, s53, 8")
    k("s_add_u32 s56, s56, s57")
    k(f"v_lshlrev_b32 {v(vt2)}, 4, {v(k.vG)}")
    k(f"v_add_u32 {v(vt2)}, s56, {v(vt2)}")
    for t in range(4):
        k(f"buffer_load_dwordx4 {v(cs+4*t,4)}, {v(vt2)}, s[{SCS}:{SCS+3}], 0 offen offset:{t*64}")
    B = Bases(k)
    a_read_bases(k, B, 128, 52, 3, vt, vt2)
    k(f"v_bfe_u32 {v(vt)}, {v(k.vL)}, 2, 2")
    k(f"v_and_b32 {v(vt2)}, 1, {v(k.vG)}")
    k(f"v_lshl_add_u32 {v(vt2)}, {v(vt2)}, 2, {v(vt)}")
    k("s_lshl_b32 s57, s53, 2")
    k(f"v_xor_b32 {v(vt2)}, s57, {v(vt2)}")
    k(f"v_lshl_add_u32 {v(vt)}, {v(k.vG)}, 3, {v(vt)}")
    k(f"v_lshlrev_b32 {v(vt)}, 8, {v(vt)}")
    k(f"v_and_b32 {v(vt3)}, 3, {v(k.vL)}")
    k(f"v_lshl_add_u32 {v(vt)}, {v(vt3)}, 3, {v(vt)}")
    for t in range(4):
        r = k.valloc()
        k(f"v_xor_b32 {v(vt3)}, {t}, {v(vt2)}")
        k(f"v_lshl_add_u32 {v(r)}, {v(vt3)}, 5, {v(vt)}")
        B.add(("W", t), r, 3)
    acc = k.valloc(64, 4)
    for i in range(64): k(f"v_mov_b32 {v(acc+i)}, 0")
    Ab = [k.valloc(16, 4), k.valloc(16, 4)]; Wb = [k.valloc(16, 4), k.valloc(16, 4)]
    ab = [k.valloc(2, 2) for _ in range(4)]
    for rt in range(4): ln_params2(k, st + 4 * rt, ab[rt], vt)
    def reads(ks):
        sl = (ks // 2) % NS; kk = ks & 1; A_ = Ab[ks & 1]; W_ = Wb[ks & 1]
        ra = [f"ds_read_b128 {v(A_+4*rt,4)}, {B.at(('A',kk), sl*SLOT + rt*2048)}" for rt in range(4)]
        rw = [f"ds_read_b64_tr_b16 {v(W_+4*t+2*hh,2)}, {B.at(('W',t), sl*SLOT + BOFF + kk*8192 + hh*1024)}" for t in range(4) for hh in range(2)]
        return [ra[0]] + rw + ra[1:]
    def mfmas(ks):
        A_ = Ab[ks & 1]; W_ = Wb[ks & 1]
        return [f"v_mfma_f32_16x16x32_bf16 {v(acc+(rt*4+t)*4,4)}, {v(W_+4*t,4)}, {v(A_+4*rt,4)}, {v(acc+(rt*4+t)*4,4)}" for rt in range(4) for t in range(4)]
    k.stamp()
    k("s_barrier")
    k.stamp()
    for r in reads(0): k(r)
    for ks in range(16):
        if ks == 15:
            interleave(k, mfmas(ks), [])
        else:
            if (ks + 1) % 2 == 0:
                k("s_waitcnt lgkmcnt(0)")
                k("s_barrier")
                k.stamp()
            interleave(k, mfmas(ks), reads(ks + 1))
    k.stamp()
    vs = k.valloc()
    k(f"v_add_u32 {v(vs)}, s52, {v(k.vR16)}")
    k(f"v_mul_u32_u24 {v(vs)}, {SP}, {v(vs)}")
    k(f"v_lshl_add_u32 {v(vs)}, {v(k.vG)}, 3, {v(vs)}")
    k("s_lshl_b32 s57, s53, 7")
    k(f"s_add_u32 s57, s57, {STG}")
    k(f"v_add_u32 {v(vs)}, s57, {v(vs)}")
    tmp = k.valloc(8, 4)
    k(f"s_mov_b32 s62, {LOG2E | 0x80000000:#x}")
    k(f"s_mov_b32 s63, {LOG2E | 0x80000000:#x}")
    k("s_mov_b32 s64, 1.0"); k("s_mov_b32 s65, 1.0")
    for rt in range(4):
        for t in range(4):
            ac = acc + (rt * 4 + t) * 4; T = tmp + 4 * (t & 1)
            for p in range(2):
                k(f"v_pk_mul_f32 {v(T+2*p,2)}, {v(cs+4*t+2*p,2)}, {v(ab[rt],2)} op_sel:[0,1] op_sel_hi:[1,1]")
            for p in range(2):
                k(f"v_pk_fma_f32 {v(ac+2*p,2)}, {v(ac+2*p,2)}, {v(ab[rt],2)}, {v(T+2*p,2)} op_sel:[0,0,0] op_sel_hi:[1,0,1]")
            for p in range(2):
                k(f"v_pk_mul_f32 {v(T+2*p,2)}, {v(ac+2*p,2)}, s[62:63]")
            for j in range(4): k(f"v_exp_f32 {v(T+j)}, {v(T+j)}")
            for p in range(2):
                k(f"v_pk_add_f32 {v(T+2*p,2)}, {v(T+2*p,2)}, s[64:65]")
            for j in range(4): k(f"v_rcp_f32 {v(T+j)}, {v(T+j)}")
            for p in range(2):
                k(f"v_pk_mul_f32 {v(ac+2*p,2)}, {v(ac+2*p,2)}, {v(T+2*p,2)}")
            k(f"v_cvt_pk_bf16_f32 {v(ac)}, {v(ac)}, {v(ac+1)}")
            k(f"v_cvt_pk_bf16_f32 {v(ac+1)}, {v(ac+2)}, {v(ac+3)}")
            k(f"ds_write_b64 {v(vs)}, {v(ac,2)} offset:{rt*16*SP + t*32}")
    k("s_waitcnt lgkmcnt(0)")
    k.stamp()
    k(f"s_branch {name}_store")
    hi = k.nv; k.nv = mark
    k.L(f"{name}_loader"); k.reset(); k.stamp_set(1)
    k("s_mov_b32 s57, 1024")
    voA = a_dma_offsets(k, 4, 128, 57, 50, vt, vt2)
    voB = [k.valloc() for _ in range(4)]
    k("s_lshl_b32 s52, s59, 4")
    for i in range(4):
        k(f"v_lshlrev_b32 {v(vt)}, 1, {v(k.vG)}")
        if i >= 2: k(f"v_or_b32 {v(vt)}, 8, {v(vt)}")
        k(f"v_xor_b32 {v(vt)}, {v(vt)}, {v(k.vR16)}")
        k(f"v_lshlrev_b32 {v(vt)}, 4, {v(vt)}")
        k(f"v_add3_u32 {v(vt2)}, {v(k.vG)}, s52, {4*i}")
        k(f"v_mul_u32_u24 {v(vt2)}, 3584, {v(vt2)}")
        k(f"v_add3_u32 {v(voB[i])}, {v(vt2)}, {v(vt)}, s54")
    k("s_lshl_b32 s55, s59, 12")
    k("s_waitcnt lgkmcnt(0)")
    srd(k, SX, P_WS, xsrc, XB)
    srd(k, SW, P_W1, 0, 512 * 1792 * 2)
    def issue_chunk(c):
        k(f"s_mov_b32 s56, {c*128}")
        k(f"s_mov_b32 s57, {c*64*3584}")
        for i in range(4):
            k(f"s_add_u32 m0, s55, {(c%NS)*SLOT+i*1024}")
            k.I(f"buffer_load_dwordx4 {v(voA[i])}, s[{SX}:{SX+3}], s56 offen lds", tag=f"c{c}")
            k(f"s_add_u32 m0, s55, {(c%NS)*SLOT+BOFF+i*1024}")
            k.I(f"buffer_load_dwordx4 {v(voB[i])}, s[{SW}:{SW+3}], s57 offen lds", tag=f"c{c}")
    loader_loop(k, NC, NS, issue_chunk)
    k.L(f"{name}_store"); k.reset(); k.stamp_set(20)
    srd(k, SH, P_WS, WS_H, S_ * F_ * 2)
    k("s_barrier")
    k.stamp()
    k.nv = mark
    vy = k.valloc(16, 4); va_ = k.valloc(); vo = k.valloc()
    k(f"v_lshrrev_b32 {v(vt)}, 4, v0")
    k(f"v_and_b32 {v(vt2)}, 15, v0")
    k(f"v_mul_u32_u24 {v(va_)}, {SP}, {v(vt)}")
    k(f"v_lshl_add_u32 {v(va_)}, {v(vt2)}, 4, {v(va_)}")
    k(f"v_add_u32 {v(va_)}, {STG}, {v(va_)}")
    for p in range(4):
        k(f"ds_read_b128 {v(vy+4*p,4)}, {v(va_)} offset:{p*32*SP}")
    k(f"v_add_u32 {v(vt)}, s50, {v(vt)}")
    k(f"v_mul_u32_u24 {v(vo)}, 3584, {v(vt)}")
    k(f"v_lshl_add_u32 {v(vo)}, {v(vt2)}, 4, {v(vo)}")
    k(f"v_add_u32 {v(vo)}, s54, {v(vo)}")
    for p in range(4):
        k(f"s_mov_b32 s56, {p*32*3584}")
        k(f"buffer_store_dwordx4 {v(vy+4*p,4)}, {v(vo)}, s[{SH}:{SH+3}], s56 offen")
    k.stamp()
    if k.stamps_on:
        k("s_waitcnt vmcnt(0)"); k.stamp()
    k.stamp_flush(P_WS, vt, vt2)
    epilogue_end(k); reorder(k)
    return k

def gen_k4(name, xsrc, xdst, st_off, opt=()):
    k = Kern(name); k.stamps_on = "stamp" in opt; prologue8(k, 256)
    k.stamp()
    SX, SW, SH, SD, SST = 24, 28, 32, 36, 40
    tilemap64(k)
    k("s_lshl_b32 s50, s22, 6")
    NS, NC, SLOT, BOFF = 5, 14, 32768, 16384
    STG = 32768 * 2
    STG = 0
    k.lds = NS * SLOT
    vt, vt2, vt3 = k.valloc(), k.valloc(), k.valloc()
    xr = k.valloc(4)
    mark = k.nv
    k("s_cmp_ge_u32 s3, 4")
    k(f"s_cbranch_scc1 {name}_loader")
    k("s_waitcnt lgkmcnt(0)")
    srd(k, SX, P_WS, xsrc, XB)
    resid_load64(k, SX, vt, vt2, xr)
    k("s_lshr_b32 s52, s3, 1")
    k("s_lshl_b32 s52, s52, 5")
    k("s_and_b32 s53, s3, 1")
    B = Bases(k)
    a_read_bases(k, B, 256, 52, 3, vt, vt2)
    k(f"v_bfe_u32 {v(vt)}, {v(k.vL)}, 2, 2")
    k(f"v_and_b32 {v(vt2)}, 1, {v(k.vG)}")
    k(f"v_lshlrev_b32 {v(vt2)}, 1, {v(vt2)}")
    k(f"v_bfe_u32 {v(vt3)}, {v(k.vL)}, 3, 1")
    k(f"v_or_b32 {v(vt2)}, {v(vt2)}, {v(vt3)}")
    k("s_lshl_b32 s57, s53, 1")
    k(f"v_xor_b32 {v(vt2)}, s57, {v(vt2)}")
    k(f"v_lshl_add_u32 {v(vt)}, {v(k.vG)}, 3, {v(vt)}")
    k(f"v_lshlrev_b32 {v(vt)}, 7, {v(vt)}")
    k(f"v_and_b32 {v(vt3)}, 3, {v(k.vL)}")
    k(f"v_lshl_add_u32 {v(vt)}, {v(vt3)}, 3, {v(vt)}")
    for t in range(2):
        r = k.valloc()
        k(f"v_xor_b32 {v(vt3)}, {t}, {v(vt2)}")
        k(f"v_lshl_add_u32 {v(r)}, {v(vt3)}, 5, {v(vt)}")
        B.add(("W", t), r, 3)
    acc = k.valloc(16, 4)
    for i in range(16): k(f"v_mov_b32 {v(acc+i)}, 0")
    Ab = [k.valloc(8, 4), k.valloc(8, 4)]; Wb = [k.valloc(8, 4), k.valloc(8, 4)]
    def reads(ks):
        sl = (ks // 4) % NS; kk = ks & 3; A_ = Ab[ks & 1]; W_ = Wb[ks & 1]
        ra = [f"ds_read_b128 {v(A_+4*rt,4)}, {B.at(('A',kk), sl*SLOT + rt*4096)}" for rt in range(2)]
        rw = [f"ds_read_b64_tr_b16 {v(W_+4*t+2*hh,2)}, {B.at(('W',t), sl*SLOT + BOFF + kk*4096 + hh*512)}" for t in range(2) for hh in range(2)]
        return [ra[0]] + rw + ra[1:]
    def mfmas(ks):
        A_ = Ab[ks & 1]; W_ = Wb[ks & 1]
        return [f"v_mfma_f32_16x16x32_bf16 {v(acc+(rt*2+t)*4,4)}, {v(W_+4*t,4)}, {v(A_+4*rt,4)}, {v(acc+(rt*2+t)*4,4)}" for rt in range(2) for t in range(2)]
    k.stamp()
    k("s_barrier")
    k.stamp()
    for r in reads(0): k(r)
    for ks in range(56):
        if ks == 55: interleave(k, mfmas(ks), [])
        else:
            if (ks + 1) % 4 == 0:
                k("s_waitcnt lgkmcnt(0)")
                k("s_barrier")
                k.stamp()
            interleave(k, mfmas(ks), reads(ks + 1))
    k.stamp()
    vs = k.valloc()
    k(f"v_add_u32 {v(vs)}, s52, {v(k.vR16)}")
    k(f"v_mul_u32_u24 {v(vs)}, 144, {v(vs)}")
    k(f"v_lshl_add_u32 {v(vs)}, {v(k.vG)}, 3, {v(vs)}")
    k("s_lshl_b32 s57, s53, 6")
    k(f"v_add_u32 {v(vs)}, s57, {v(vs)}")
    for rt in range(2):
        for t in range(2):
            ac = acc + (rt * 2 + t) * 4
            k(f"v_cvt_pk_bf16_f32 {v(ac)}, {v(ac)}, {v(ac+1)}")
            k(f"v_cvt_pk_bf16_f32 {v(ac+1)}, {v(ac+2)}, {v(ac+3)}")
            k(f"ds_write_b64 {v(vs)}, {v(ac,2)} offset:{STG + rt*16*144 + t*32}")
    k("s_waitcnt lgkmcnt(0)")
    k(f"s_branch {name}_store")
    k.nv = mark
    k.L(f"{name}_loader"); k.reset(); k.stamp_set(1)
    k("s_mov_b32 s57, 3584")
    voA = a_dma_offsets(k, 4, 256, 57, 50, vt, vt2)
    voB = [k.valloc() for _ in range(4)]
    k("s_lshl_b32 s52, s59, 15")
    k("s_add_u32 s52, s52, s54")
    for i in range(4):
        k(f"v_bfe_u32 {v(vt)}, {v(k.vL)}, 4, 1")
        k(f"v_lshlrev_b32 {v(vt)}, 1, {v(vt)}")
        if i & 1: k(f"v_or_b32 {v(vt)}, 4, {v(vt)}")
        k(f"v_and_b32 {v(vt2)}, 7, {v(k.vL)}")
        k(f"v_xor_b32 {v(vt)}, {v(vt)}, {v(vt2)}")
        k(f"v_lshlrev_b32 {v(vt)}, 4, {v(vt)}")
        k(f"v_lshrrev_b32 {v(vt2)}, 3, {v(k.vL)}")
        k(f"v_add_u32 {v(vt2)}, {8*i}, {v(vt2)}")
        k(f"v_lshl_add_u32 {v(vt)}, {v(vt2)}, 10, {v(vt)}")
        k(f"v_add_u32 {v(voB[i])}, s52, {v(vt)}")
    k("s_lshl_b32 s55, s59, 12")
    k("s_waitcnt lgkmcnt(0)")
    srd(k, SW, P_W2, 0, 1792 * 512 * 2)
    srd(k, SH, P_WS, WS_H, S_ * F_ * 2)
    def issue_chunk(c):
        k(f"s_mov_b32 s56, {c*256}")
        k(f"s_mov_b32 s57, {c*131072}")
        for i in range(4):
            k(f"s_add_u32 m0, s55, {(c%NS)*SLOT+i*1024}")
            k.I(f"buffer_load_dwordx4 {v(voA[i])}, s[{SH}:{SH+3}], s56 offen lds", tag=f"c{c}")
            k(f"s_add_u32 m0, s55, {(c%NS)*SLOT+BOFF+i*1024}")
            k.I(f"buffer_load_dwordx4 {v(voB[i])}, s[{SW}:{SW+3}], s57 offen lds", tag=f"c{c}")
    loader_loop(k, NC, NS, issue_chunk)
    srd(k, SX, P_WS, xsrc, XB)
    resid_load64(k, SX, vt, vt2, xr)
    k.L(f"{name}_store"); k.reset(); k.stamp_set(20)
    if xdst == "out": srd(k, SD, P_OUT, 0, XB)
    else: srd(k, SD, P_WS, xdst, XB)
    if st_off is not None: srd(k, SST, P_WS, st_off, 2048 * 64)
    k("s_waitcnt vmcnt(0)")
    k("s_barrier")
    k.nv = mark
    tmp = [k.valloc() for _ in range(4)]
    k.stamp()
    store_phase64(k, STG, xr, SD, SST, st_off is not None, tmp)
    k.stamp()
    if k.stamps_on:
        k("s_waitcnt vmcnt(0)"); k.stamp()
    k.stamp_flush(P_WS, vt, vt2)
    epilogue_end(k); reorder(k)
    return k

def phi4(k, ac, T):
    for p in range(2): k(f"v_pk_mul_f32 {v(T+2*p,2)}, {v(ac+2*p,2)}, s[62:63]")
    for j in range(4): k(f"v_min_f32 {v(T+j)}, 0, {v(T+j)}")
    for j in range(4): k(f"v_exp_f32 {v(T+j)}, {v(T+j)}")
    for j in range(4): k(f"v_max_f32 {v(ac+j)}, 0, {v(ac+j)}")
    for p in range(2): k(f"v_pk_add_f32 {v(ac+2*p,2)}, {v(ac+2*p,2)}, s[64:65]")
    for p in range(2): k(f"v_pk_add_f32 {v(ac+2*p,2)}, {v(ac+2*p,2)}, {v(T+2*p,2)}")

def gen_k1(name, xsrc, kv_off, st_off):
    k = Kern(name); prologue8(k, 256)
    SX, SW, SPQ, SKV, SCS, SST = 24, 28, 32, 36, 40, 44
    k("s_bfe_u32 s48, s2, 0x20001")
    k("s_lshl_b32 s48, s48, 2")
    k("s_lshr_b32 s49, s2, 6")
    k("s_add_u32 s22, s48, s49")
    k("s_and_b32 s48, s2, 1")
    k("s_lshl_b32 s48, s48, 3")
    k("s_bfe_u32 s49, s2, 0x30003")
    k("s_add_u32 s23, s48, s49")
    k("s_lshl_b32 s50, s22, 7")
    k("s_lshl_b32 s54, s23, 6")
    NS, NC, SLOT, BOFF = 5, 8, 28672, 16384
    X0 = NS * SLOT
    LDS_ST, LDS_KV, LDS_Z, STG, SP = X0, X0 + 2048, X0 + 6144, X0 + 6400, 80
    k.lds = STG + 128 * SP
    assert k.lds <= 163840
    vt, vt2, vt3 = k.valloc(), k.valloc(), k.valloc()
    mark = k.nv
    k("s_cmp_ge_u32 s3, 4")
    k(f"s_cbranch_scc1 {name}_loader")
    k("s_lshr_b32 s52, s3, 1")
    k("s_lshl_b32 s52, s52, 6")
    k("s_and_b32 s53, s3, 1")
    k("s_add_u32 s55, s50, s52")
    vRow = k.valloc()
    k(f"v_add_u32 {v(vRow)}, s55, {v(k.vR16)}")
    st = k.valloc(16, 4)
    k(f"v_lshlrev_b32 {v(vt)}, 6, {v(vRow)}")
    k(f"v_lshl_add_u32 {v(vt)}, {v(k.vG)}, 4, {v(vt)}")
    k("s_waitcnt lgkmcnt(0)")
    srd(k, SCS, P_WS, WS_CS, 1536 * 4)
    srd(k, SST, P_WS, st_off, 2048 * 64)
    for rt in range(4):
        k(f"buffer_load_dwordx4 {v(st+4*rt,4)}, {v(vt)}, s[{SST}:{SST+3}], 0 offen offset:{rt*1024}")
    csq = k.valloc(4); cskv = k.valloc(2, 2)
    k("s_lshl_b32 s56, s23, 7")
    k("s_lshl_b32 s57, s53, 6")
    k("s_add_u32 s56, s56, s57")
    k(f"v_lshlrev_b32 {v(vt2)}, 4, {v(k.vG)}")
    k(f"v_add_u32 {v(vt2)}, s56, {v(vt2)}")
    k(f"buffer_load_dwordx4 {v(csq,4)}, {v(vt2)}, s[{SCS}:{SCS+3}], 0 offen")
    k(f"v_lshlrev_b32 {v(vt3)}, 2, {v(k.vR16)}")
    k(f"v_add_u32 {v(vt3)}, s56, {v(vt3)}")
    k("s_mov_b32 s57, 2048")
    for kv in range(2):
        k(f"buffer_load_dword {v(cskv+kv)}, {v(vt3)}, s[{SCS}:{SCS+3}], s57 offen offset:{2048*kv}")
    B = Bases(k)
    a_read_bases(k, B, 128, 52, 3, vt, vt2)
    k(f"v_bfe_u32 {v(vt)}, {v(k.vL)}, 2, 2")
    k(f"v_lshl_add_u32 {v(vt)}, {v(k.vG)}, 3, {v(vt)}")
    k(f"v_mul_u32_u24 {v(vt)}, 192, {v(vt)}")
    k(f"v_and_b32 {v(vt2)}, 3, {v(k.vL)}")
    k(f"v_lshl_add_u32 {v(vt)}, {v(vt2)}, 3, {v(vt)}")
    k(f"v_and_b32 {v(vt2)}, 1, {v(k.vG)}")
    k(f"v_add_u32 {v(vt2)}, s53, {v(vt2)}")
    for j in range(3):
        r = k.valloc()
        k(f"v_add_u32 {v(vt3)}, {2*j}, {v(vt2)}")
        if j == 2:
            k(f"v_subrev_u32 {v(r)}, 6, {v(vt3)}")
            k(f"v_min_u32 {v(vt3)}, {v(vt3)}, {v(r)}")
        k(f"v_lshl_add_u32 {v(r)}, {v(vt3)}, 5, {v(vt)}")
        B.add(("W", j), r, 3)
    acc = k.valloc(48, 4)
    for i in range(48): k(f"v_mov_b32 {v(acc+i)}, 0")
    Ab = [k.valloc(16, 4), k.valloc(16, 4)]; Wb = [k.valloc(12, 4), k.valloc(12, 4)]
    ab = [k.valloc(2, 2) for _ in range(4)]
    for rt in range(4): ln_params2(k, st + 4 * rt, ab[rt], vt)
    abn = [k.valloc(8, 4) for _ in range(4)]
    k("s_lshl_b32 s57, s3, 9")
    k(f"s_add_u32 s57, s57, {LDS_ST}")
    k(f"v_lshlrev_b32 {v(vt)}, 3, {v(k.vR16)}")
    k(f"v_add_u32 {v(vt)}, s57, {v(vt)}")
    k(f"v_lshlrev_b32 {v(vt2)}, 5, {v(k.vG)}")
    k(f"v_add_u32 {v(vt2)}, s57, {v(vt2)}")
    for rt in range(4): k(f"ds_write_b64 {v(vt)}, {v(ab[rt],2)} offset:{rt*128}")
    k("s_waitcnt lgkmcnt(0)")
    for rt in range(4):
        k(f"ds_read_b128 {v(abn[rt],4)}, {v(vt2)} offset:{rt*128}")
        k(f"ds_read_b128 {v(abn[rt]+4,4)}, {v(vt2)} offset:{rt*128+16}")
    def reads(ks):
        sl = (ks // 2) % NS; kk = ks & 1; A_ = Ab[ks & 1]; W_ = Wb[ks & 1]
        ra = [f"ds_read_b128 {v(A_+4*rt,4)}, {B.at(('A',kk), sl*SLOT + rt*2048)}" for rt in range(4)]
        rw = [f"ds_read_b64_tr_b16 {v(W_+4*j+2*hh,2)}, {B.at(('W',j), sl*SLOT + BOFF + kk*6144 + hh*768)}" for j in range(3) for hh in range(2)]
        return [ra[0]] + rw + ra[1:]
    def mfmas(ks):
        A_ = Ab[ks & 1]; W_ = Wb[ks & 1]; out = []
        for rt in range(4):
            for j in range(3):
                ac = acc + (rt * 3 + j) * 4
                if j == 0: out.append(f"v_mfma_f32_16x16x32_bf16 {v(ac,4)}, {v(W_,4)}, {v(A_+4*rt,4)}, {v(ac,4)}")
                else: out.append(f"v_mfma_f32_16x16x32_bf16 {v(ac,4)}, {v(A_+4*rt,4)}, {v(W_+4*j,4)}, {v(ac,4)}")
        return out
    k("s_waitcnt lgkmcnt(0)")
    k("s_barrier")
    for r in reads(0): k(r)
    for ks in range(16):
        if ks == 15: interleave(k, mfmas(ks), [])
        else:
            if (ks + 1) % 2 == 0:
                k("s_waitcnt lgkmcnt(0)")
                k("s_barrier")
            interleave(k, mfmas(ks), reads(ks + 1))
    k(f"s_mov_b32 s62, {LOG2E:#x}"); k(f"s_mov_b32 s63, {LOG2E:#x}")
    k(f"s_mov_b32 s64, {fbits(1e-6):#x}"); k(f"s_mov_b32 s65, {fbits(1e-6):#x}")
    T = k.valloc(4)
    fk = k.valloc(8, 4); fv = k.valloc(8, 4)
    for rt in range(4):
        for j in (1, 2):
            ac = acc + (rt * 3 + j) * 4; f = (fk, fv)[j - 1] + 2 * rt
            for jj in range(4): k(f"v_mul_f32 {v(T+jj)}, {v(abn[rt]+2*jj+1)}, {v(cskv+j-1)}")
            for jj in range(4): k(f"v_fma_f32 {v(ac+jj)}, {v(abn[rt]+2*jj)}, {v(ac+jj)}, {v(T+jj)}")
            if j == 1: phi4(k, ac, T)
            k(f"v_cvt_pk_bf16_f32 {v(f)}, {v(ac)}, {v(ac+1)}")
            k(f"v_cvt_pk_bf16_f32 {v(f+1)}, {v(ac+2)}, {v(ac+3)}")
    ones = k.valloc(4)
    for i in range(4): k(f"v_mov_b32 {v(ones+i)}, 0x3f803f80")
    kvp = k.valloc(4); zp = k.valloc(4)
    k(f"v_mfma_f32_16x16x32_bf16 {v(kvp,4)}, {v(fk,4)}, {v(fv,4)}, 0")
    k(f"v_mfma_f32_16x16x32_bf16 {v(zp,4)}, {v(fk,4)}, {v(ones,4)}, 0")
    k(f"v_mfma_f32_16x16x32_bf16 {v(kvp,4)}, {v(fk+4,4)}, {v(fv+4,4)}, {v(kvp,4)}")
    k(f"v_mfma_f32_16x16x32_bf16 {v(zp,4)}, {v(fk+4,4)}, {v(ones,4)}, {v(zp,4)}")
    vs = k.valloc()
    k(f"v_add_u32 {v(vs)}, s52, {v(k.vR16)}")
    k(f"v_mul_u32_u24 {v(vs)}, {SP}, {v(vs)}")
    k(f"v_lshl_add_u32 {v(vs)}, {v(k.vG)}, 3, {v(vs)}")
    k("s_lshl_b32 s57, s53, 5")
    k(f"s_add_u32 s57, s57, {STG}")
    k(f"v_add_u32 {v(vs)}, s57, {v(vs)}")
    for rt in range(4):
        ac = acc + rt * 12
        for p in range(2):
            k(f"v_pk_mul_f32 {v(T+2*p,2)}, {v(csq+2*p,2)}, {v(ab[rt],2)} op_sel:[0,1] op_sel_hi:[1,1]")
        for p in range(2):
            k(f"v_pk_fma_f32 {v(ac+2*p,2)}, {v(ac+2*p,2)}, {v(ab[rt],2)}, {v(T+2*p,2)} op_sel:[0,0,0] op_sel_hi:[1,0,1]")
        phi4(k, ac, T)
        k(f"v_cvt_pk_bf16_f32 {v(ac)}, {v(ac)}, {v(ac+1)}")
        k(f"v_cvt_pk_bf16_f32 {v(ac+1)}, {v(ac+2)}, {v(ac+3)}")
        k(f"ds_write_b64 {v(vs)}, {v(ac,2)} offset:{rt*16*SP}")
    k("s_lshl_b32 s57, s3, 10")
    k(f"s_add_u32 s57, s57, {LDS_KV}")
    k(f"v_lshlrev_b32 {v(vt)}, 4, {v(k.vL)}")
    k(f"v_add_u32 {v(vt)}, s57, {v(vt)}")
    k("s_lshl_b32 s58, s3, 6")
    k(f"s_add_u32 s58, s58, {LDS_Z}")
    k(f"v_lshlrev_b32 {v(vt2)}, 4, {v(k.vG)}")
    k(f"v_add_u32 {v(vt2)}, s58, {v(vt2)}")
    k(f"ds_write_b128 {v(vt)}, {v(kvp,4)}")
    k(f"ds_write_b128 {v(vt2)}, {v(zp,4)}")
    k("s_waitcnt lgkmcnt(0)")
    k(f"s_branch {name}_store")
    k.nv = mark
    k.L(f"{name}_loader"); k.reset()
    k("s_mov_b32 s57, 1024")
    voA = a_dma_offsets(k, 4, 128, 57, 50, vt, vt2)
    voB = [k.valloc() for _ in range(3)]
    u, row, rem, t_, c_ = [k.valloc() for _ in range(5)]
    k("s_mul_i32 s53, s59, 192")
    for i in range(3):
        k(f"v_add_u32 {v(u)}, s53, {v(k.vL)}")
        if i: k(f"v_add_u32 {v(u)}, {64*i}, {v(u)}")
        k(f"v_mul_u32_u24 {v(row)}, 0xaaab, {v(u)}")
        k(f"v_lshrrev_b32 {v(row)}, 19, {v(row)}")
        k(f"v_mul_u32_u24 {v(rem)}, 12, {v(row)}")
        k(f"v_sub_u32 {v(rem)}, {v(u)}, {v(rem)}")
        k(f"v_lshrrev_b32 {v(t_)}, 1, {v(rem)}")
        k(f"v_bfe_u32 {v(c_)}, {v(row)}, 3, 1")
        k(f"v_sub_u32 {v(t_)}, {v(t_)}, {v(c_)}")
        k(f"v_add_u32 {v(c_)}, 6, {v(t_)}")
        k(f"v_min_u32 {v(t_)}, {v(t_)}, {v(c_)}")
        k(f"v_lshrrev_b32 {v(c_)}, 1, {v(t_)}")
        k(f"v_lshlrev_b32 {v(c_)}, 10, {v(c_)}")
        k(f"v_and_b32 {v(t_)}, 1, {v(t_)}")
        k(f"v_lshl_add_u32 {v(c_)}, {v(t_)}, 5, {v(c_)}")
        k(f"v_and_b32 {v(rem)}, 1, {v(rem)}")
        k(f"v_lshl_add_u32 {v(c_)}, {v(rem)}, 4, {v(c_)}")
        k(f"v_mul_u32_u24 {v(row)}, 3072, {v(row)}")
        k(f"v_add3_u32 {v(voB[i])}, {v(row)}, {v(c_)}, s54")
    k("s_lshl_b32 s55, s59, 12")
    k("s_mul_i32 s53, s59, 3072")
    k("s_waitcnt lgkmcnt(0)")
    if xsrc == "in": srd(k, SX, P_X, 0, XB)
    else: srd(k, SX, P_WS, xsrc, XB)
    srd(k, SW, P_WQKV, 0, 512 * 1536 * 2)
    def issue_chunk(c):
        k(f"s_mov_b32 s56, {c*128}")
        k(f"s_mov_b32 s57, {c*64*3072}")
        for i in range(4):
            k(f"s_add_u32 m0, s55, {(c%NS)*SLOT+i*1024}")
            k.I(f"buffer_load_dwordx4 {v(voA[i])}, s[{SX}:{SX+3}], s56 offen lds", tag=f"c{c}")
            if i < 3:
                k(f"s_add_u32 m0, s53, {(c%NS)*SLOT+BOFF+i*1024}")
                k.I(f"buffer_load_dwordx4 {v(voB[i])}, s[{SW}:{SW+3}], s57 offen lds", tag=f"c{c}")
    loader_loop(k, NC, NS, issue_chunk)
    k.L(f"{name}_store"); k.reset()
    srd(k, SPQ, P_WS, WS_PQ, XB)
    srd(k, SKV, P_WS, kv_off, 34816)
    k("s_barrier")
    k.nv = mark
    vy = k.valloc(4); va_ = k.valloc(); vo = k.valloc(); rd = k.valloc(4)
    k(f"v_lshrrev_b32 {v(vt)}, 2, v0")
    k(f"v_and_b32 {v(vt2)}, 3, v0")
    k(f"v_mul_u32_u24 {v(va_)}, {SP}, {v(vt)}")
    k(f"v_lshl_add_u32 {v(va_)}, {v(vt2)}, 4, {v(va_)}")
    k(f"v_add_u32 {v(va_)}, {STG}, {v(va_)}")
    k(f"ds_read_b128 {v(vy,4)}, {v(va_)}")
    k(f"v_add_u32 {v(vt)}, s50, {v(vt)}")
    k(f"v_lshlrev_b32 {v(vo)}, 10, {v(vt)}")
    k(f"v_lshl_add_u32 {v(vo)}, {v(vt2)}, 4, {v(vo)}")
    k(f"v_add_u32 {v(vo)}, s54, {v(vo)}")
    k(f"v_bfe_u32 {v(vt)}, v0, 3, 4")
    k(f"v_lshlrev_b32 {v(vt)}, 4, {v(vt)}")
    k(f"v_bfe_u32 {v(vt2)}, v0, 7, 1")
    k(f"v_lshl_add_u32 {v(vt)}, {v(vt2)}, 9, {v(vt)}")
    k(f"v_bfe_u32 {v(vt2)}, v0, 2, 1")
    k(f"v_lshl_add_u32 {v(vt)}, {v(vt2)}, 8, {v(vt)}")
    k(f"v_and_b32 {v(vt2)}, 3, v0")
    k(f"v_lshl_add_u32 {v(vt)}, {v(vt2)}, 2, {v(vt)}")
    k(f"v_lshrrev_b32 {v(vt2)}, 8, v0")
    k(f"v_lshl_add_u32 {v(vt)}, {v(vt2)}, 10, {v(vt)}")
    k(f"v_add_u32 {v(vt)}, {LDS_KV}, {v(vt)}")
    k(f"ds_read_b32 {v(rd)}, {v(vt)}")
    k(f"ds_read_b32 {v(rd+1)}, {v(vt)} offset:2048")
    k(f"buffer_store_dwordx4 {v(vy,4)}, {v(vo)}, s[{SPQ}:{SPQ+3}], 0 offen")
    k("s_lshl_b32 s57, s23, 11")
    k(f"v_lshlrev_b32 {v(vt2)}, 2, v0")
    k(f"v_add_u32 {v(vt2)}, s57, {v(vt2)}")
    k(f"v_add_f32 {v(rd)}, {v(rd)}, {v(rd+1)}")
    k(f"buffer_atomic_add_f32 {v(rd)}, {v(vt2)}, s[{SKV}:{SKV+3}], 0 offen")
    k("s_cmp_lg_u32 s3, 0")
    k(f"s_cbranch_scc1 {name}_end")
    k("s_mov_b64 exec, 0xffffffff")
    k(f"v_lshlrev_b32 {v(vt)}, 2, v0")
    k(f"v_add_u32 {v(vt2)}, {LDS_Z}, {v(vt)}")
    k(f"ds_read_b32 {v(rd+2)}, {v(vt2)}")
    k(f"ds_read_b32 {v(rd+3)}, {v(vt2)} offset:128")
    k("s_lshl_b32 s57, s23, 7")
    k(f"s_add_u32 s57, s57, 32768")
    k(f"v_add_u32 {v(vt)}, s57, {v(vt)}")
    k(f"v_add_f32 {v(rd+2)}, {v(rd+2)}, {v(rd+3)}")
    k(f"buffer_atomic_add_f32 {v(rd+2)}, {v(vt)}, s[{SKV}:{SKV+3}], 0 offen")
    epilogue_end(k); reorder(k)
    return k

def gen_k2(name, xsrc, kv_off, xdst, st_off):
    k = Kern(name); prologue8(k, 256)
    SX, SW, SPQ, SKV, SD, SST = 24, 28, 32, 36, 40, 44
    def srdx():
        if xsrc == "in": srd(k, SX, P_X, 0, XB)
        else: srd(k, SX, P_WS, xsrc, XB)
    tilemap64(k)
    k("s_lshl_b32 s50, s22, 6")
    NS, NC, SLOT, BOFF = 8, 8, 16384, 8192
    LDS_F, LDS_Z, LDS_0, STG = 131072, 147456, 148480, 148736
    k.lds = STG + 64 * 144
    vt, vt2, vt3 = k.valloc(), k.valloc(), k.valloc()
    xr = k.valloc(4)
    mark = k.nv
    k("s_cmp_ge_u32 s3, 4")
    k(f"s_cbranch_scc1 {name}_loader")
    kvf = k.valloc(32, 4); zf = k.valloc(2, 2)
    k("s_lshl_b32 s52, s3, 13")
    k(f"v_lshlrev_b32 {v(vt)}, 5, {v(k.vL)}")
    k(f"v_add_u32 {v(vt)}, s52, {v(vt)}")
    k(f"v_add_u32 {v(vt2)}, 4096, {v(vt)}")
    k("s_waitcnt lgkmcnt(0)")
    srd(k, SKV, P_WS, kv_off, 34816)
    for p in range(4):
        for hlf in range(2):
            k(f"buffer_load_dwordx4 {v(kvf+8*p+4*hlf,4)}, {v(vt if p < 2 else vt2)}, s[{SKV}:{SKV+3}], 0 offen offset:{(p&1)*2048+hlf*16}")
    k(f"v_lshlrev_b32 {v(vt3)}, 3, v0")
    k(f"v_add_u32 {v(vt3)}, 32768, {v(vt3)}")
    k(f"buffer_load_dwordx2 {v(zf,2)}, {v(vt3)}, s[{SKV}:{SKV+3}], 0 offen")
    srdx()
    resid_load64(k, SX, vt, vt2, xr)
    k("s_lshl_b32 s52, s3, 4")
    B = Bases(k)
    a_read_bases(k, B, 128, 52, 2, vt, vt2)
    aA0, aA1, aAz, sA0, sA1, sAz = [k.valloc() for _ in range(6)]
    k(f"v_lshlrev_b32 {v(vt)}, 4, {v(k.vL)}")
    k(f"v_add_u32 {v(vt)}, {LDS_F}, {v(vt)}")
    k(f"v_mov_b32 {v(vt2)}, {LDS_0}")
    k(f"v_cmp_gt_u32 vcc, 2, {v(k.vG)}")
    k(f"v_cndmask_b32 {v(aA0)}, {v(vt2)}, {v(vt)}, vcc")
    k(f"v_cndmask_b32 {v(aA1)}, {v(vt)}, {v(vt2)}, vcc")
    k(f"v_mov_b32 {v(vt3)}, 1024")
    k(f"v_cndmask_b32 {v(sA0)}, 0, {v(vt3)}, vcc")
    k(f"v_cndmask_b32 {v(sA1)}, {v(vt3)}, 0, vcc")
    k(f"v_and_b32 {v(vt)}, 3, {v(k.vL)}")
    k(f"v_lshrrev_b32 {v(vt3)}, 1, {v(k.vG)}")
    k(f"v_cmp_eq_u32 vcc, {v(vt)}, {v(vt3)}")
    k(f"v_lshlrev_b32 {v(vt)}, 4, {v(k.vG)}")
    k(f"v_add_u32 {v(vt)}, {LDS_Z}, {v(vt)}")
    k(f"v_cndmask_b32 {v(aAz)}, {v(vt2)}, {v(vt)}, vcc")
    k(f"v_cndmask_b32 {v(sAz)}, 0, 64, vcc")
    k(f"v_bfe_u32 {v(vt)}, {v(k.vL)}, 2, 2")
    k(f"v_lshl_add_u32 {v(vt)}, {v(k.vG)}, 2, {v(vt)}")
    k(f"v_bfe_u32 {v(vt2)}, {v(vt)}, 1, 2")
    k(f"v_lshlrev_b32 {v(vt)}, 7, {v(vt)}")
    k(f"v_and_b32 {v(vt3)}, 3, {v(k.vL)}")
    k(f"v_lshl_add_u32 {v(vt)}, {v(vt3)}, 3, {v(vt)}")
    for t in range(4):
        r = k.valloc()
        k(f"v_xor_b32 {v(vt3)}, {t}, {v(vt2)}")
        k(f"v_lshl_add_u32 {v(r)}, {v(vt3)}, 5, {v(vt)}")
        B.add(("W", t), r, 2)
    acc = k.valloc(16, 4)
    for i in range(16): k(f"v_mov_b32 {v(acc+i)}, 0")
    k("s_lshl_b32 s57, s3, 12")
    k(f"s_add_u32 s57, s57, {LDS_F}")
    k(f"v_lshlrev_b32 {v(vt)}, 4, {v(k.vL)}")
    k(f"v_add_u32 {v(vt)}, s57, {v(vt)}")
    for p in range(4):
        for i in range(4):
            k(f"v_cvt_pk_bf16_f32 {v(kvf+8*p+i)}, {v(kvf+8*p+2*i)}, {v(kvf+8*p+2*i+1)}")
        k(f"ds_write_b128 {v(vt)}, {v(kvf+8*p,4)} offset:{p*1024}")
    k(f"v_cvt_pk_bf16_f32 {v(zf)}, {v(zf)}, {v(zf+1)}")
    k(f"v_lshlrev_b32 {v(vt2)}, 2, v0")
    k(f"v_add_u32 {v(vt2)}, {LDS_Z}, {v(vt2)}")
    k(f"ds_write_b32 {v(vt2)}, {v(zf)}")
    k(f"v_mov_b32 {v(zf)}, 0")
    k(f"v_and_b32 {v(vt2)}, 3, v0")
    k(f"v_lshlrev_b32 {v(vt2)}, 2, {v(vt2)}")
    k(f"v_add_u32 {v(vt2)}, {LDS_0}, {v(vt2)}")
    k(f"ds_write_b32 {v(vt2)}, {v(zf)}")
    Wb = [k.valloc(16, 4), k.valloc(16, 4)]
    Fb = k.valloc(12, 4); Pb = k.valloc(4)
    N = [k.valloc(12, 4), k.valloc(12, 4)]
    O = k.valloc(4); rr = k.valloc(2, 2)
    k(f"s_mov_b32 s62, {fbits(1e-6):#x}"); k(f"s_mov_b32 s63, {fbits(1e-6):#x}")
    def freads(p):
        return [f"ds_read_b128 {v(Pb,4)}, {B.at(('A',p&1), (p//2)*SLOT)}",
                f"ds_read_b128 {v(Fb,4)}, {v(aA0)}", f"ds_read_b128 {v(Fb+4,4)}, {v(aA1)}", f"ds_read_b128 {v(Fb+8,4)}, {v(aAz)}",
                f"v_add_u32 {v(aA0)}, {v(aA0)}, {v(sA0)}", f"v_add_u32 {v(aA1)}, {v(aA1)}, {v(sA1)}", f"v_add_u32 {v(aAz)}, {v(aAz)}, {v(sAz)}"]
    def wreads(p):
        b = Wb[p & 1]
        return [f"ds_read_b64_tr_b16 {v(b+4*t+2*hh,2)}, {B.at(('W',t), (p//2)*SLOT + BOFF + (p&1)*4096 + hh*2048)}" for t in range(4) for hh in range(2)]
    def amfma(p):
        n = N[p & 1]
        return [f"v_mfma_f32_16x16x32_bf16 {v(n+4*i,4)}, {v(Fb+4*i,4)}, {v(Pb,4)}, 0" for i in range(3)]
    def cmfma(p):
        b = Wb[p & 1]
        return [f"v_mfma_f32_16x16x32_bf16 {v(acc+4*t,4)}, {v(b+4*t,4)}, {v(O,4)}, {v(acc+4*t,4)}" for t in range(4)]
    def ovalu(p):
        n = N[p & 1]; o = []
        o.append(f"v_pk_add_f32 {v(rr,2)}, {v(n+8,2)}, s[62:63]")
        o.append(f"v_rcp_f32 {v(rr)}, {v(rr)}"); o.append(f"v_rcp_f32 {v(rr+1)}, {v(rr+1)}")
        for q in range(2): o.append(f"v_pk_mul_f32 {v(n+2*q,2)}, {v(n+2*q,2)}, {v(rr,2)} op_sel_hi:[1,0]")
        for q in range(2): o.append(f"v_pk_mul_f32 {v(n+4+2*q,2)}, {v(n+4+2*q,2)}, {v(rr,2)} op_sel:[0,1] op_sel_hi:[1,1]")
        for h in range(2):
            o.append(f"v_cvt_pk_bf16_f32 {v(O+2*h)}, {v(n+4*h)}, {v(n+4*h+1)}")
            o.append(f"v_cvt_pk_bf16_f32 {v(O+2*h+1)}, {v(n+4*h+2)}, {v(n+4*h+3)}")
        return o
    k("s_waitcnt lgkmcnt(0)")
    k("s_barrier")
    for r in freads(0) + wreads(0): k(r)
    for r in amfma(0): k(r)
    for p in range(16):
        if p < 15:
            if (p + 1) % 2 == 0:
                k("s_barrier")
            for r in freads(p + 1): k(r)
        for r in ovalu(p): k(r)
        interleave(k, cmfma(p) + (amfma(p + 1) if p < 15 else []), wreads(p + 1) if p < 15 else [])
    vs = k.valloc()
    k(f"v_add_u32 {v(vs)}, s52, {v(k.vR16)}")
    k(f"v_mul_u32_u24 {v(vs)}, 144, {v(vs)}")
    k(f"v_lshl_add_u32 {v(vs)}, {v(k.vG)}, 3, {v(vs)}")
    k(f"v_add_u32 {v(vs)}, {STG}, {v(vs)}")
    for t in range(4):
        ac = acc + 4 * t
        k(f"v_cvt_pk_bf16_f32 {v(ac)}, {v(ac)}, {v(ac+1)}")
        k(f"v_cvt_pk_bf16_f32 {v(ac+1)}, {v(ac+2)}, {v(ac+3)}")
        k(f"ds_write_b64 {v(vs)}, {v(ac,2)} offset:{t*32}")
    k("s_waitcnt lgkmcnt(0)")
    k(f"s_branch {name}_store")
    k.nv = mark
    k.L(f"{name}_loader"); k.reset()
    k("s_mov_b32 s57, 1024")
    voA = a_dma_offsets(k, 2, 128, 57, 50, vt, vt2)
    voB = [k.valloc() for _ in range(2)]
    k(f"v_lshrrev_b32 {v(vt)}, 3, {v(k.vL)}")
    k(f"v_bfe_u32 {v(vt2)}, {v(k.vL)}, 4, 2")
    k(f"v_lshlrev_b32 {v(vt2)}, 1, {v(vt2)}")
    k(f"v_and_b32 {v(vt3)}, 7, {v(k.vL)}")
    k(f"v_xor_b32 {v(vt2)}, {v(vt2)}, {v(vt3)}")
    k(f"v_lshlrev_b32 {v(vt2)}, 4, {v(vt2)}")
    k(f"v_lshl_add_u32 {v(vt)}, {v(vt)}, 10, {v(vt2)}")
    k("s_lshl_b32 s52, s59, 14")
    k("s_add_u32 s52, s52, s54")
    k(f"v_add_u32 {v(voB[0])}, s52, {v(vt)}")
    k(f"v_add_u32 {v(voB[1])}, 8192, {v(voB[0])}")
    k("s_lshl_b32 s55, s59, 11")
    k("s_waitcnt lgkmcnt(0)")
    srd(k, SW, P_WO, 0, 512 * 512 * 2)
    srd(k, SPQ, P_WS, WS_PQ, XB)
    def issue_chunk(c):
        k(f"s_mov_b32 s56, {c*128}")
        k(f"s_mov_b32 s57, {c*65536}")
        for i in range(2):
            k(f"s_add_u32 m0, s55, {c*SLOT+i*1024}")
            k.I(f"buffer_load_dwordx4 {v(voA[i])}, s[{SPQ}:{SPQ+3}], s56 offen lds", tag=f"c{c}")
            k(f"s_add_u32 m0, s55, {c*SLOT+BOFF+i*1024}")
            k.I(f"buffer_load_dwordx4 {v(voB[i])}, s[{SW}:{SW+3}], s57 offen lds", tag=f"c{c}")
    loader_loop(k, NC, NS, issue_chunk, D=4)
    srdx()
    resid_load64(k, SX, vt, vt2, xr)
    k.L(f"{name}_store"); k.reset()
    srd(k, SD, P_WS, xdst, XB)
    srd(k, SST, P_WS, st_off, 2048 * 64)
    k("s_waitcnt vmcnt(0)")
    k("s_barrier")
    k.nv = mark
    tmp = [k.valloc() for _ in range(4)]
    store_phase64_far(k, STG, xr, SD, SST, True, tmp)
    epilogue_end(k); reorder(k)
    return k

def store_phase64_far(k, STG, xr, SD, SST, do_stats, tmp):
    n0 = len(k.items)
    store_phase64(k, 0, xr, SD, SST, do_stats, tmp)
    for i in range(n0, len(k.items)):
        it = k.items[i]
        if isinstance(it, Ins) and it.op == "ds_read_b128":
            addr = it.ops[1]
            k.items.insert(i, Ins(f"v_add_u32 {addr}, {STG}, {addr}")); k.items[i].tag = None
            break

def build(path, extra=None):
    ks = [gen_k0("k0_kernel"),
          gen_k1("k1a_kernel", "in", WS_KV, WS_ST0),
          gen_k2("k2a_kernel", "in", WS_KV, WS_X1, WS_ST1),
          gen_k3("k3a_kernel", WS_X1, WS_ST1),
          gen_k4("k4a_kernel", WS_X1, WS_X2, WS_ST2),
          gen_k1("k1b_kernel", WS_X2, WS_KV + 0x10000, WS_ST2),
          gen_k2("k2b_kernel", WS_X2, WS_KV + 0x10000, WS_X1, WS_ST1),
          gen_k3("k3b_kernel", WS_X1, WS_ST1),
          gen_k4("k4b_kernel", WS_X1, "out", None)]
    grids = [256, 256, 256, 224, 256, 256, 256, 224, 256]
    blocks = [256] + [512] * 8
    launches = [(k.name, g, b, k.lds) for k, g, b in zip(ks, grids, blocks)]
    open(path, "w").write(build_file(HEADER, launches, ks))
    for k in ks: print(k.name, "vgpr", k.maxv, "agpr", getattr(k, "na", 0), "lds", k.lds, "ninst", sum(1 for i in k.items if isinstance(i, Ins)))

if __name__ == "__main__":
    build(sys.argv[1] if len(sys.argv) > 1 else "interleave_layers__linear_attn_block__dense_activation_silu__prompt.s")
```

```python
import sys, struct, os
from asmlib import *
from gen import (S_, D_, F_, WS_PQ, WS_X1, WS_X2, WS_H, WS_KV, WS_CS, WS_ST0, WS_ST1, WS_ST2, XB, P_X, P_WQKV, P_WO, P_W1, P_W2, P_OUT, P_WS,
                 LOG2E, fbits, prologue, srd, epilogue_end, HEADER)
from gen2 import Bases, interleave, a_read_bases, phi4
import gen

WS_FLAG = 0xE18800
WS_XT = 0xE1E800
SC_, SM_ = 96, 97
NA = int(os.environ.get("G_NA", "4")); NB = 9 - NA
ARING, BRING, EX = 0, NA * 16384, 147456
LDS_AB, LDS_MODE = EX, EX + 1024
SFL = 92
FORCE = os.environ.get("G_MODE", "")

def a_dma_offsets(k, nins, PA, rowpitch, rowbase_s, t0, t1):
    UA = PA // 16; RA = 64 // UA; sh = {8: 3, 16: 4}[UA]
    out = []
    k(f"s_mul_i32 s58, s59, {nins*RA}")
    k(f"s_add_u32 s58, s58, s{rowbase_s}")
    for i in range(nins):
        r = k.valloc(); out.append(r)
        k(f"v_lshrrev_b32 {v(t0)}, {sh}, {v(k.vL)}")
        if i: k(f"v_add_u32 {v(t0)}, {RA*i}, {v(t0)}")
        if PA == 128: k(f"v_bfe_u32 {v(t1)}, {v(t0)}, 1, 3")
        else: k(f"v_and_b32 {v(t1)}, 15, {v(t0)}")
        k(f"v_and_b32 {v(r)}, {UA-1}, {v(k.vL)}")
        k(f"v_xor_b32 {v(t1)}, {v(t1)}, {v(r)}")
        k(f"v_add_u32 {v(t0)}, s58, {v(t0)}")
        k(f"v_mul_u32_u24 {v(t0)}, {rowpitch}, {v(t0)}")
        k(f"v_lshl_add_u32 {v(r)}, {v(t1)}, 4, {v(t0)}")
    assert (nins * RA) % 16 == 0
    return out

def ln_finish(k, m, q, ab):
    k(f"v_mul_f32 {v(m)}, {fbits(1/512):#x}, {v(m)}")
    k(f"v_mul_f32 {v(q)}, {fbits(1/512):#x}, {v(q)}")
    k(f"v_fma_f32 {v(q)}, -{v(m)}, {v(m)}, {v(q)}")
    k(f"v_max_f32 {v(q)}, 0, {v(q)}")
    gen.bf16_round(k, m, m); gen.bf16_round(k, q, q)
    k(f"v_add_f32 {v(q)}, {fbits(1e-5):#x}, {v(q)}")
    gen.bf16_round(k, q, q)
    k(f"v_sqrt_f32 {v(q)}, {v(q)}")
    gen.bf16_round(k, q, q)
    k(f"v_rcp_f32 {v(ab)}, {v(q)}")
    k(f"v_mul_f32 {v(ab+1)}, {v(m)}, {v(ab)}")
    k(f"v_sub_f32 {v(ab+1)}, 0, {v(ab+1)}")

def tile64(k):
    k(f"s_lshr_b32 s48, s{SM_}, 3")
    k(f"s_lshl_b32 s22, s{SC_}, 1")
    k("s_add_u32 s22, s22, s48")
    k(f"s_and_b32 s23, s{SM_}, 7")
    k("s_lshl_b32 s50, s22, 6")
    k("s_lshl_b32 s54, s23, 7")

def resid_load64(k, SX, t0, t1, xr):
    k(f"v_lshrrev_b32 {v(t0)}, 3, v0")
    k(f"v_and_b32 {v(t1)}, 7, v0")
    k(f"v_add_u32 {v(t0)}, s50, {v(t0)}")
    k(f"v_lshlrev_b32 {v(t0)}, 10, {v(t0)}")
    k(f"v_lshl_add_u32 {v(t0)}, {v(t1)}, 4, {v(t0)}")
    k(f"v_add_u32 {v(t0)}, s54, {v(t0)}")
    k("s_mov_b32 s60, 32768")
    k(f"buffer_load_dwordx4 {v(xr,4)}, {v(t0)}, s[{SX}:{SX+3}], 0 offen")
    k(f"buffer_load_dwordx4 {v(xr+4,4)}, {v(t0)}, s[{SX}:{SX+3}], s60 offen")

def store64_prep(k, xr, do_stats):
    vy = k.valloc(8, 4); va_ = k.valloc(); vo = k.valloc(); sm = k.valloc(4, 4); tt = k.valloc(2, 2)
    t0, t1, t2, t3 = [k.valloc() for _ in range(4)]
    k(f"v_lshrrev_b32 {v(t0)}, 3, v0")
    k(f"v_and_b32 {v(t1)}, 7, v0")
    k(f"v_mul_u32_u24 {v(va_)}, 144, {v(t0)}")
    k(f"v_lshl_add_u32 {v(va_)}, {v(t1)}, 4, {v(va_)}")
    k(f"ds_read_b128 {v(vy,4)}, {v(va_)}")
    k(f"ds_read_b128 {v(vy+4,4)}, {v(va_)} offset:{32*144}")
    k(f"v_add_u32 {v(t0)}, s50, {v(t0)}")
    k(f"v_lshlrev_b32 {v(vo)}, 10, {v(t0)}")
    k(f"v_lshl_add_u32 {v(vo)}, {v(t1)}, 4, {v(vo)}")
    k(f"v_add_u32 {v(vo)}, s54, {v(vo)}")
    if do_stats:
        for i in range(4): k(f"v_mov_b32 {v(sm+i)}, 0")
        k("s_mov_b32 s60, 0x3f803f80")
        k(f"v_lshlrev_b32 {v(va_)}, 6, {v(t0)}")
        k(f"s_lshr_b32 s61, s54, 4")
        k(f"v_add_u32 {v(va_)}, s61, {v(va_)}")
    for i in range(8):
        k(f"v_lshlrev_b32 {v(t0)}, 16, {v(vy+i)}")
        k(f"v_and_b32 {v(t1)}, 0xffff0000, {v(vy+i)}")
        k(f"v_lshlrev_b32 {v(t2)}, 16, {v(xr+i)}")
        k(f"v_and_b32 {v(t3)}, 0xffff0000, {v(xr+i)}")
        k(f"v_add_f32 {v(t0)}, {v(t0)}, {v(t2)}")
        k(f"v_add_f32 {v(t1)}, {v(t1)}, {v(t3)}")
        k(f"v_cvt_pk_bf16_f32 {v(vy+i)}, {v(t0)}, {v(t1)}")
        if do_stats:
            s_ = sm + 2 * (i // 4)
            k(f"v_dot2_f32_bf16 {v(s_)}, {v(vy+i)}, s60, {v(s_)}")
            k(f"v_dot2_f32_bf16 {v(s_+1)}, {v(vy+i)}, {v(vy+i)}, {v(s_+1)}")
    if do_stats:
        for dpp in ("quad_perm:[1,0,3,2]", "quad_perm:[2,3,0,1]", "row_half_mirror"):
            for h in range(2):
                for c in range(2):
                    k(f"v_add_f32_dpp {v(tt+c)}, {v(sm+2*h+c)}, {v(sm+2*h+c)} {dpp} row_mask:0xf bank_mask:0xf")
                for c in range(2):
                    k(f"v_mov_b32 {v(sm+2*h+c)}, {v(tt+c)}")
    return vy, vo, sm, va_

def main_loop(k, nks, kpc, reads, mfmas, last=()):
    k.dstamp()
    k("s_barrier"); k.stamp()
    for r in reads(0): k(r)
    for ks in range(nks):
        if ks == nks - 1: interleave(k, mfmas(ks), list(last))
        else:
            if (ks + 1) % kpc == 0:
                k("s_waitcnt lgkmcnt(0)")
                k.dstamp()
                k("s_barrier")
            interleave(k, mfmas(ks), reads(ks + 1))
    k.stamp()

class Phase:
    D = NA - 1; has_ln = False; pseudo = 0
    def __init__(self, tag): self.tag = tag; self.bslot = {}
    def aslot(self, c): return ARING + (c % NA) * 16384
    def issue_A(self, k, c):
        k(f"s_mov_b32 s56, {c*self.PA}")
        for i in range(8):
            k(f"s_add_u32 m0, s55, {self.aslot(c)+i*1024}")
            k.I(f"buffer_load_dwordx4 {v(self.voA[i])}, s[24:27], s56 offen lds", tag=f"{self.tag}a{c}")
    def issue_B(self, k, c):
        k(f"s_mov_b32 s57, {c*self.BSTEP}")
        for i in range(self.NBI):
            k(f"s_add_u32 m0, s{self.sBW}, {self.bslot[c]+i*1024}")
            k.I(f"buffer_load_dwordx4 {v(self.voB[i])}, s[{self.SWB}:{self.SWB+3}], s57 offen lds", tag=f"{self.tag}b{c}")
    def issue_Bv(self, k, c, vs):
        k(f"s_mov_b32 s57, {c*self.BSTEP}")
        for i in range(self.NBI):
            k.I(f"buffer_load_dwordx4 {v(vs+4*i,4)}, {v(self.voB[i])}, s[{self.SWB}:{self.SWB+3}], s57 offen", tag=f"{self.tag}b{c}")
    def place_Bv(self, k, c, vs, vl16, vtmp):
        k(f"s_add_u32 s58, s{self.sBW}, {self.bslot[c]}")
        k(f"v_add_u32 {v(vtmp)}, s58, {v(vl16)}")
        for i in range(self.NBI):
            k(f"ds_write_b128 {v(vtmp)}, {v(vs+4*i,4)} offset:{i*1024}")
    Qe = 1
    def spare(self, c): return 1 if c >= self.NC - self.D else 0

class P1(Phase):
    Qe = 5
    def spare(self, c): return 1 if (c >= self.NC - self.D or c % 2 == 1) else 0
    NC = 8; PA = 128; NBI = 6; BSTEP = 64 * 3072; has_ln = True; nprod = 16
    LDS_KV, LDS_Z, SP = EX + 2048, EX + 6144, 80
    def __init__(self, tag, xsrc, kv_off, st_off):
        super().__init__(tag); self.xsrc, self.kv_off, self.st_off = xsrc, kv_off, st_off
        self.instat = st_off is None
        self.has_ln = not self.instat
    def tile(self, k):
        k(f"s_mov_b32 s22, s{SC_}"); k(f"s_mov_b32 s23, s{SM_}")
        k("s_lshl_b32 s50, s22, 7"); k("s_lshl_b32 s54, s23, 6")
    def setup_A(self, k, vt, vt2):
        self.voA = a_dma_offsets(k, 8, 128, 1024, 50, vt, vt2)
        k("s_waitcnt lgkmcnt(0)")
        if self.xsrc == "in": srd(k, 24, P_X, 0, XB)
        else: srd(k, 24, P_WS, self.xsrc, XB)
    def setup_B(self, k, vt, vt2, vt3, tmp):
        self.voB = [k.valloc() for _ in range(6)]
        u, row, rem, t_, c_ = tmp
        k("s_mul_i32 s53, s59, 384")
        k(f"s_lshl_b32 s54, s{SM_}, 6")
        for i in range(6):
            k(f"v_add_u32 {v(u)}, s53, {v(k.vL)}")
            if i: k(f"v_add_u32 {v(u)}, {64*i}, {v(u)}")
            k(f"v_mul_u32_u24 {v(row)}, 0xaaab, {v(u)}")
            k(f"v_lshrrev_b32 {v(row)}, 19, {v(row)}")
            k(f"v_mul_u32_u24 {v(rem)}, 12, {v(row)}")
            k(f"v_sub_u32 {v(rem)}, {v(u)}, {v(rem)}")
            k(f"v_lshrrev_b32 {v(t_)}, 1, {v(rem)}")
            k(f"v_bfe_u32 {v(c_)}, {v(row)}, 3, 1")
            k(f"v_sub_u32 {v(t_)}, {v(t_)}, {v(c_)}")
            k(f"v_add_u32 {v(c_)}, 6, {v(t_)}")
            k(f"v_min_u32 {v(t_)}, {v(t_)}, {v(c_)}")
            k(f"v_lshrrev_b32 {v(c_)}, 1, {v(t_)}")
            k(f"v_lshlrev_b32 {v(c_)}, 10, {v(c_)}")
            k(f"v_and_b32 {v(t_)}, 1, {v(t_)}")
            k(f"v_lshl_add_u32 {v(c_)}, {v(t_)}, 5, {v(c_)}")
            k(f"v_and_b32 {v(rem)}, 1, {v(rem)}")
            k(f"v_lshl_add_u32 {v(c_)}, {v(rem)}, 4, {v(c_)}")
            k(f"v_mul_u32_u24 {v(row)}, 3072, {v(row)}")
            k(f"v_add3_u32 {v(self.voB[i])}, {v(row)}, {v(c_)}, s54")
        k(f"s_mul_i32 s{self.sBW}, s59, 6144")
        k("s_waitcnt lgkmcnt(0)")
        srd(k, self.SWB, P_WQKV, 0, 512 * 1536 * 2)
    def compute(self, k, vt, vt2, vt3):
        SP = self.SP; SCS = 40
        k("s_lshr_b32 s52, s3, 1")
        k("s_lshl_b32 s52, s52, 6")
        k("s_and_b32 s53, s3, 1")
        cs3 = k.valloc(12, 4)
        csq = cs3
        vcq = k.valloc(); vck = k.valloc()
        k("s_lshl_b32 s56, s23, 7")
        k("s_lshl_b32 s57, s53, 6")
        k("s_add_u32 s56, s56, s57")
        k(f"v_lshlrev_b32 {v(vcq)}, 4, {v(k.vG)}")
        k(f"v_add_u32 {v(vcq)}, s56, {v(vcq)}")
        k(f"v_lshlrev_b32 {v(vck)}, 2, {v(k.vR16)}")
        k(f"v_add_u32 {v(vck)}, s56, {v(vck)}")
        k(f"v_add_u32 {v(vck)}, 2048, {v(vck)}")
        if self.instat:
            for i in range(12): k(f"v_mov_b32 {v(cs3+i)}, 0")
        else:
            k("s_waitcnt lgkmcnt(0)")
            srd(k, SCS, P_WS, WS_CS, 1536 * 4)
            k(f"buffer_load_dwordx4 {v(cs3,4)}, {v(vcq)}, s[{SCS}:{SCS+3}], 0 offen")
            for kv in range(2):
                k(f"buffer_load_dword {v(cs3+4+4*kv)}, {v(vck)}, s[{SCS}:{SCS+3}], 0 offen offset:{2048*kv}")
        ones = k.valloc(4)
        for i in range(4): k(f"v_mov_b32 {v(ones+i)}, 0x3f803f80")
        k("s_lshl_b32 s57, s53, 5")
        k("s_add_u32 s66, s52, s57")
        k("s_xor_b32 s57, s57, 32")
        k("s_add_u32 s67, s52, s57")
        B = Bases(k)
        a_read_bases(k, B, 128, 66, 2, vt, vt2)
        B2 = Bases(k)
        a_read_bases(k, B2, 128, 67, 2, vt, vt2)
        k(f"v_bfe_u32 {v(vt)}, {v(k.vL)}, 2, 2")
        k(f"v_lshl_add_u32 {v(vt)}, {v(k.vG)}, 3, {v(vt)}")
        k(f"v_mul_u32_u24 {v(vt)}, 192, {v(vt)}")
        k(f"v_and_b32 {v(vt2)}, 3, {v(k.vL)}")
        k(f"v_lshl_add_u32 {v(vt)}, {v(vt2)}, 3, {v(vt)}")
        k(f"v_and_b32 {v(vt2)}, 1, {v(k.vG)}")
        k(f"v_add_u32 {v(vt2)}, s53, {v(vt2)}")
        for j in range(3):
            r = k.valloc()
            k(f"v_add_u32 {v(vt3)}, {2*j}, {v(vt2)}")
            if j == 2:
                k(f"v_subrev_u32 {v(r)}, 6, {v(vt3)}")
                k(f"v_min_u32 {v(vt3)}, {v(vt3)}, {v(r)}")
            k(f"v_lshl_add_u32 {v(r)}, {v(vt3)}, 5, {v(vt)}")
            B.add(("W", j), r, 3)
        acc = k.valloc(48, 4)
        for i in range(48): k(f"v_mov_b32 {v(acc+i)}, 0")
        Ab = [k.valloc(16, 4), k.valloc(16, 4)]; Wb = [k.valloc(12, 4), k.valloc(12, 4)]
        ab = [k.valloc(2, 2) for _ in range(4)]
        abn = [k.valloc(8, 4) for _ in range(4)]
        vab = [k.valloc(), k.valloc()]; vabn = [k.valloc(), k.valloc()]
        for h in range(2):
            k(f"v_add_u32 {v(vab[h])}, s{66+h}, {v(k.vR16)}")
            k(f"v_lshlrev_b32 {v(vab[h])}, 3, {v(vab[h])}")
            k(f"v_add_u32 {v(vab[h])}, {LDS_AB}, {v(vab[h])}")
            k(f"v_lshlrev_b32 {v(vabn[h])}, 2, {v(k.vG)}")
            k(f"v_add_u32 {v(vabn[h])}, s{66+h}, {v(vabn[h])}")
            k(f"v_lshlrev_b32 {v(vabn[h])}, 3, {v(vabn[h])}")
            k(f"v_add_u32 {v(vabn[h])}, {LDS_AB}, {v(vabn[h])}")
        if self.instat:
            sta = k.valloc(16, 4)
            for i in range(16): k(f"v_mov_b32 {v(sta+i)}, 0")
        def reads(ks):
            c = ks // 2; kk = ks & 1; A_ = Ab[ks & 1]; W_ = Wb[ks & 1]
            ra = [f"ds_read_b128 {v(A_+4*rt,4)}, {(B if rt < 2 else B2).at(('A',kk), self.aslot(c) + (rt&1)*2048)}" for rt in range(4)]
            rw = [f"ds_read_b64_tr_b16 {v(W_+4*j+2*hh,2)}, {B.at(('W',j), self.bslot[c] + kk*6144 + hh*768)}" for j in range(3) for hh in range(2)]
            return [ra[0]] + rw + ra[1:]
        def mfmas(ks):
            A_ = Ab[ks & 1]; W_ = Wb[ks & 1]; out = []
            for rt in range(4):
                for j in range(3):
                    ac = acc + (rt * 3 + j) * 4
                    if j == 0: out.append(f"v_mfma_f32_16x16x32_bf16 {v(ac,4)}, {v(W_,4)}, {v(A_+4*rt,4)}, {v(ac,4)}")
                    else: out.append(f"v_mfma_f32_16x16x32_bf16 {v(ac,4)}, {v(A_+4*rt,4)}, {v(W_+4*j,4)}, {v(ac,4)}")
            if self.instat:
                out.append(f"v_mfma_f32_16x16x32_bf16 {v(cs3,4)}, {v(W_,4)}, {v(ones,4)}, {v(cs3,4)}")
                for j in (1, 2): out.append(f"v_mfma_f32_16x16x32_bf16 {v(cs3+4*j,4)}, {v(ones,4)}, {v(W_+4*j,4)}, {v(cs3+4*j,4)}")
                for rt in range(2):
                    out.append(f"v_mfma_f32_16x16x32_bf16 {v(sta+8*rt,4)}, {v(ones,4)}, {v(A_+4*rt,4)}, {v(sta+8*rt,4)}")
                    out.append(f"v_mfma_f32_16x16x32_bf16 {v(sta+8*rt+4,4)}, {v(A_+4*rt,4)}, {v(A_+4*rt,4)}, {v(sta+8*rt+4,4)}")
            return out
        o = []
        for rt in range(4):
            o.append(f"ds_read_b128 {v(abn[rt],4)}, {v(vabn[rt>>1])} offset:{(rt&1)*128}")
            o.append(f"ds_read_b128 {v(abn[rt]+4,4)}, {v(vabn[rt>>1])} offset:{(rt&1)*128+16}")
            o.append(f"ds_read_b64 {v(ab[rt],2)}, {v(vab[rt>>1])} offset:{(rt&1)*128}")
        main_loop(k, 16, 2, reads, mfmas, [] if self.instat else o)
        if self.instat:
            k(f"v_and_b32 {v(vt)}, 3, {v(k.vL)}")
            k(f"v_lshrrev_b32 {v(vt2)}, 2, {v(k.vR16)}")
            k(f"v_cmp_eq_u32 s[60:61], {v(vt2)}, {v(k.vG)}")
            for rt in range(2):
                g_ = sta + 8 * rt + 4; q = sta + 8 * rt + 1; m = sta + 8 * rt
                for j in range(1, 4):
                    k(f"v_cmp_eq_u32 vcc, {j}, {v(vt)}")
                    k(f"v_cndmask_b32 {v(g_)}, {v(g_)}, {v(g_+j)}, vcc")
                k(f"v_cndmask_b32 {v(q)}, 0, {v(g_)}, s[60:61]")
                gen.xlane_sum_g(k, q, vt3)
                ln_finish(k, m, q, ab[rt])
                k(f"ds_write_b64 {v(vab[0])}, {v(ab[rt],2)} offset:{rt*128}")
            k("s_waitcnt lgkmcnt(0)")
        k("s_barrier")
        if self.instat:
            for x in o: k(x)
            srd(k, SCS, P_WS, WS_CS, 1536 * 4)
            k(f"s_or_b32 s57, s{SC_}, s52")
            k("s_cmp_eq_u32 s57, 0")
            k(f"s_cselect_b32 s{SCS+2}, s{SCS+2}, 0")
            k(f"buffer_store_dwordx4 {v(cs3,4)}, {v(vcq)}, s[{SCS}:{SCS+3}], 0 offen")
            for kv in range(2):
                k(f"buffer_store_dword {v(cs3+4+4*kv)}, {v(vck)}, s[{SCS}:{SCS+3}], 0 offen offset:{2048*kv}")
        k(f"s_mov_b32 s62, {LOG2E:#x}"); k(f"s_mov_b32 s63, {LOG2E:#x}")
        k(f"s_mov_b32 s64, {fbits(1e-6):#x}"); k(f"s_mov_b32 s65, {fbits(1e-6):#x}")
        T = k.valloc(4)
        fk = k.valloc(8, 4); fv = k.valloc(8, 4)
        for rt in range(4):
            for j in (1, 2):
                ac = acc + (rt * 3 + j) * 4; f = (fk, fv)[j - 1] + 2 * rt
                for jj in range(4): k(f"v_mul_f32 {v(T+jj)}, {v(abn[rt]+2*jj+1)}, {v(cs3+4*j)}")
                for jj in range(4): k(f"v_fma_f32 {v(ac+jj)}, {v(abn[rt]+2*jj)}, {v(ac+jj)}, {v(T+jj)}")
                if j == 1: phi4(k, ac, T)
                k(f"v_cvt_pk_bf16_f32 {v(f)}, {v(ac)}, {v(ac+1)}")
                k(f"v_cvt_pk_bf16_f32 {v(f+1)}, {v(ac+2)}, {v(ac+3)}")
        kvp = k.valloc(4); zp = k.valloc(4)
        k(f"v_mfma_f32_16x16x32_bf16 {v(kvp,4)}, {v(fk,4)}, {v(fv,4)}, 0")
        k(f"v_mfma_f32_16x16x32_bf16 {v(zp,4)}, {v(fk,4)}, {v(ones,4)}, 0")
        k(f"v_mfma_f32_16x16x32_bf16 {v(kvp,4)}, {v(fk+4,4)}, {v(fv+4,4)}, {v(kvp,4)}")
        k(f"v_mfma_f32_16x16x32_bf16 {v(zp,4)}, {v(fk+4,4)}, {v(ones,4)}, {v(zp,4)}")
        vs = [k.valloc(), k.valloc()]
        k("s_lshl_b32 s57, s53, 5")
        for h in range(2):
            k(f"v_add_u32 {v(vs[h])}, s{66+h}, {v(k.vR16)}")
            k(f"v_mul_u32_u24 {v(vs[h])}, {SP}, {v(vs[h])}")
            k(f"v_lshl_add_u32 {v(vs[h])}, {v(k.vG)}, 3, {v(vs[h])}")
            k(f"v_add_u32 {v(vs[h])}, s57, {v(vs[h])}")
        for rt in range(4):
            ac = acc + rt * 12
            for p in range(2):
                k(f"v_pk_mul_f32 {v(T+2*p,2)}, {v(csq+2*p,2)}, {v(ab[rt],2)} op_sel:[0,1] op_sel_hi:[1,1]")
            for p in range(2):
                k(f"v_pk_fma_f32 {v(ac+2*p,2)}, {v(ac+2*p,2)}, {v(ab[rt],2)}, {v(T+2*p,2)} op_sel:[0,0,0] op_sel_hi:[1,0,1]")
            phi4(k, ac, T)
            k(f"v_cvt_pk_bf16_f32 {v(ac)}, {v(ac)}, {v(ac+1)}")
            k(f"v_cvt_pk_bf16_f32 {v(ac+1)}, {v(ac+2)}, {v(ac+3)}")
            k(f"ds_write_b64 {v(vs[rt>>1])}, {v(ac,2)} offset:{(rt&1)*16*SP}")
        k("s_lshl_b32 s57, s3, 10")
        k(f"s_add_u32 s57, s57, {self.LDS_KV}")
        k(f"v_lshlrev_b32 {v(vt)}, 4, {v(k.vL)}")
        k(f"v_add_u32 {v(vt)}, s57, {v(vt)}")
        k("s_lshl_b32 s58, s3, 6")
        k(f"s_add_u32 s58, s58, {self.LDS_Z}")
        k(f"v_lshlrev_b32 {v(vt2)}, 4, {v(k.vG)}")
        k(f"v_add_u32 {v(vt2)}, s58, {v(vt2)}")
        k(f"ds_write_b128 {v(vt)}, {v(kvp,4)}")
        k(f"ds_write_b128 {v(vt2)}, {v(zp,4)}")
        k("s_waitcnt lgkmcnt(0)")
    def store(self, k, vt, vt2, vt3, emit_stores):
        SPQ, SKV, SP = 32, 36, self.SP
        srd(k, SPQ, P_WS, WS_PQ, XB)
        srd(k, SKV, P_WS, self.kv_off, 34816)
        k("s_barrier")
        vy = k.valloc(8, 4); va_ = k.valloc(); vo = k.valloc(); rd = k.valloc(8, 4)
        k(f"v_lshrrev_b32 {v(vt)}, 2, v0")
        k(f"v_and_b32 {v(vt2)}, 3, v0")
        k(f"v_mul_u32_u24 {v(va_)}, {SP}, {v(vt)}")
        k(f"v_lshl_add_u32 {v(va_)}, {v(vt2)}, 4, {v(va_)}")
        k(f"ds_read_b128 {v(vy,4)}, {v(va_)}")
        k(f"ds_read_b128 {v(vy+4,4)}, {v(va_)} offset:{64*SP}")
        k(f"v_add_u32 {v(vt)}, s50, {v(vt)}")
        k(f"v_lshlrev_b32 {v(vo)}, 10, {v(vt)}")
        k(f"v_lshl_add_u32 {v(vo)}, {v(vt2)}, 4, {v(vo)}")
        k(f"v_add_u32 {v(vo)}, s54, {v(vo)}")
        k(f"v_bfe_u32 {v(vt)}, v0, 3, 4")
        k(f"v_lshlrev_b32 {v(vt)}, 4, {v(vt)}")
        k(f"v_bfe_u32 {v(vt2)}, v0, 7, 1")
        k(f"v_lshl_add_u32 {v(vt)}, {v(vt2)}, 9, {v(vt)}")
        k(f"v_bfe_u32 {v(vt2)}, v0, 2, 1")
        k(f"v_lshl_add_u32 {v(vt)}, {v(vt2)}, 8, {v(vt)}")
        k(f"v_and_b32 {v(vt2)}, 3, v0")
        k(f"v_lshl_add_u32 {v(vt)}, {v(vt2)}, 2, {v(vt)}")
        k(f"v_add_u32 {v(vt)}, {self.LDS_KV}, {v(vt)}")
        for h in range(2):
            k(f"ds_read_b32 {v(rd+2*h)}, {v(vt)} offset:{h*1024}")
            k(f"ds_read_b32 {v(rd+2*h+1)}, {v(vt)} offset:{h*1024+2048}")
        k(f"v_and_b32 {v(vt3)}, 31, v0")
        k(f"v_lshlrev_b32 {v(vt3)}, 2, {v(vt3)}")
        k(f"v_add_u32 {v(vt2)}, {self.LDS_Z}, {v(vt3)}")
        k(f"ds_read_b32 {v(rd+4)}, {v(vt2)}")
        k(f"ds_read_b32 {v(rd+5)}, {v(vt2)} offset:128")
        k("s_mov_b32 s60, 65536")
        emit_stores([f"buffer_store_dwordx4 {v(vy,4)}, {v(vo)}, s[{SPQ}:{SPQ+3}], 0 offen",
                     f"buffer_store_dwordx4 {v(vy+4,4)}, {v(vo)}, s[{SPQ}:{SPQ+3}], s60 offen"])
        k("s_lshl_b32 s57, s23, 11")
        k(f"v_lshlrev_b32 {v(vt2)}, 2, v0")
        k(f"v_add_u32 {v(vt2)}, s57, {v(vt2)}")
        for h in range(2):
            k(f"v_add_f32 {v(rd+2*h)}, {v(rd+2*h)}, {v(rd+2*h+1)}")
            k(f"buffer_atomic_add_f32 {v(rd+2*h)}, {v(vt2)}, s[{SKV}:{SKV+3}], 0 offen offset:{h*1024}")
        k("s_lshl_b32 s57, s23, 7")
        k(f"s_add_u32 s57, s57, 32768")
        k(f"v_add_u32 {v(vt3)}, s57, {v(vt3)}")
        k(f"v_mov_b32 {v(vt2)}, 0x7ffffff0")
        k(f"v_cmp_gt_u32 vcc, 32, v0")
        k(f"v_cndmask_b32 {v(vt3)}, {v(vt2)}, {v(vt3)}, vcc")
        k(f"v_add_f32 {v(rd+4)}, {v(rd+4)}, {v(rd+5)}")
        k(f"buffer_atomic_add_f32 {v(rd+4)}, {v(vt3)}, s[{SKV}:{SKV+3}], 0 offen")

class P2(Phase):
    NC = 4; PA = 256; NBI = 8; BSTEP = 131072; nprod = 16; pseudo = 1
    LDS_Z, LDS_0 = EX + 2048, EX + 3072
    def __init__(self, tag, xsrc, kv_off, xdst, st_off): super().__init__(tag); self.xsrc, self.kv_off, self.xdst, self.st_off = xsrc, kv_off, xdst, st_off
    def tile(self, k): tile64(k)
    def setup_A(self, k, vt, vt2):
        self.voA = a_dma_offsets(k, 8, 256, 1024, 50, vt, vt2)
        k("s_waitcnt lgkmcnt(0)")
        srd(k, 24, P_WS, WS_PQ, XB)
    def setup_B(self, k, vt, vt2, vt3, tmp):
        self.voB = [k.valloc() for _ in range(8)]
        k(f"v_lshrrev_b32 {v(vt)}, 3, {v(k.vL)}")
        k(f"v_bfe_u32 {v(vt2)}, {v(k.vL)}, 4, 2")
        k(f"v_lshlrev_b32 {v(vt2)}, 1, {v(vt2)}")
        k(f"v_and_b32 {v(vt3)}, 7, {v(k.vL)}")
        k(f"v_xor_b32 {v(vt2)}, {v(vt2)}, {v(vt3)}")
        k(f"v_lshlrev_b32 {v(vt2)}, 4, {v(vt2)}")
        k(f"v_lshl_add_u32 {v(vt)}, {v(vt)}, 10, {v(vt2)}")
        k("s_lshl_b32 s52, s59, 16")
        k(f"s_and_b32 s54, s{SM_}, 7"); k("s_lshl_b32 s54, s54, 7")
        k("s_add_u32 s52, s52, s54")
        k(f"v_add_u32 {v(self.voB[0])}, s52, {v(vt)}")
        for i in range(1, 8): k(f"v_add_u32 {v(self.voB[i])}, {8192*i}, {v(self.voB[0])}")
        k(f"s_lshl_b32 s{self.sBW}, s59, 13")
        k("s_waitcnt lgkmcnt(0)")
        srd(k, self.SWB, P_WO, 0, 512 * 512 * 2)
    def compute(self, k, vt, vt2, vt3):
        SKV, SX = 36, 24
        LDS_F, LDS_Z, LDS_0 = self.bslot[self.NC], self.LDS_Z, self.LDS_0
        self.xr = k.valloc(8, 4)
        kvf = k.valloc(32, 4); zf = k.valloc(2, 2)
        k("s_lshl_b32 s52, s3, 13")
        k(f"v_lshlrev_b32 {v(vt)}, 5, {v(k.vL)}")
        k(f"v_add_u32 {v(vt)}, s52, {v(vt)}")
        k(f"v_add_u32 {v(vt2)}, 4096, {v(vt)}")
        k("s_waitcnt lgkmcnt(0)")
        srd(k, SKV, P_WS, self.kv_off, 34816)
        for p in range(4):
            for hlf in range(2):
                k(f"buffer_load_dwordx4 {v(kvf+8*p+4*hlf,4)}, {v(vt if p < 2 else vt2)}, s[{SKV}:{SKV+3}], 0 offen offset:{(p&1)*2048+hlf*16}")
        k(f"v_lshlrev_b32 {v(vt3)}, 3, v0")
        k(f"v_add_u32 {v(vt3)}, 32768, {v(vt3)}")
        k(f"buffer_load_dwordx2 {v(zf,2)}, {v(vt3)}, s[{SKV}:{SKV+3}], 0 offen")
        if self.xsrc == "in": srd(k, SX, P_X, 0, XB)
        else: srd(k, SX, P_WS, self.xsrc, XB)
        resid_load64(k, SX, vt, vt2, self.xr)
        k("s_lshl_b32 s52, s3, 4")
        B = Bases(k)
        a_read_bases(k, B, 256, 52, 2, vt, vt2)
        aA0, aA1, aAz, sA0, sA1, sAz = [k.valloc() for _ in range(6)]
        k(f"v_lshlrev_b32 {v(vt)}, 4, {v(k.vL)}")
        k(f"v_add_u32 {v(vt)}, {LDS_F}, {v(vt)}")
        k(f"v_mov_b32 {v(vt2)}, {LDS_0}")
        k(f"v_cmp_gt_u32 vcc, 2, {v(k.vG)}")
        k(f"v_cndmask_b32 {v(aA0)}, {v(vt2)}, {v(vt)}, vcc")
        k(f"v_cndmask_b32 {v(aA1)}, {v(vt)}, {v(vt2)}, vcc")
        k(f"v_mov_b32 {v(vt3)}, 1024")
        k(f"v_cndmask_b32 {v(sA0)}, 0, {v(vt3)}, vcc")
        k(f"v_cndmask_b32 {v(sA1)}, {v(vt3)}, 0, vcc")
        k(f"v_and_b32 {v(vt)}, 3, {v(k.vL)}")
        k(f"v_lshrrev_b32 {v(vt3)}, 1, {v(k.vG)}")
        k(f"v_cmp_eq_u32 vcc, {v(vt)}, {v(vt3)}")
        k(f"v_lshlrev_b32 {v(vt)}, 4, {v(k.vG)}")
        k(f"v_add_u32 {v(vt)}, {LDS_Z}, {v(vt)}")
        k(f"v_cndmask_b32 {v(aAz)}, {v(vt2)}, {v(vt)}, vcc")
        k(f"v_cndmask_b32 {v(sAz)}, 0, 64, vcc")
        k(f"v_bfe_u32 {v(vt)}, {v(k.vL)}, 2, 2")
        k(f"v_lshl_add_u32 {v(vt)}, {v(k.vG)}, 2, {v(vt)}")
        k(f"v_bfe_u32 {v(vt2)}, {v(vt)}, 1, 2")
        k(f"v_lshlrev_b32 {v(vt)}, 7, {v(vt)}")
        k(f"v_and_b32 {v(vt3)}, 3, {v(k.vL)}")
        k(f"v_lshl_add_u32 {v(vt)}, {v(vt3)}, 3, {v(vt)}")
        for t in range(4):
            r = k.valloc()
            k(f"v_xor_b32 {v(vt3)}, {t}, {v(vt2)}")
            k(f"v_lshl_add_u32 {v(r)}, {v(vt3)}, 5, {v(vt)}")
            B.add(("W", t), r, 3)
        acc = k.valloc(16, 4)
        for i in range(16): k(f"v_mov_b32 {v(acc+i)}, 0")
        k("s_lshl_b32 s57, s3, 12")
        k(f"s_add_u32 s57, s57, {LDS_F}")
        k(f"v_lshlrev_b32 {v(vt)}, 4, {v(k.vL)}")
        k(f"v_add_u32 {v(vt)}, s57, {v(vt)}")
        for p in range(4):
            for i in range(4):
                k(f"v_cvt_pk_bf16_f32 {v(kvf+8*p+i)}, {v(kvf+8*p+2*i)}, {v(kvf+8*p+2*i+1)}")
            k(f"ds_write_b128 {v(vt)}, {v(kvf+8*p,4)} offset:{p*1024}")
        k(f"v_cvt_pk_bf16_f32 {v(zf)}, {v(zf)}, {v(zf+1)}")
        k(f"v_lshlrev_b32 {v(vt2)}, 2, v0")
        k(f"v_add_u32 {v(vt2)}, {LDS_Z}, {v(vt2)}")
        k(f"ds_write_b32 {v(vt2)}, {v(zf)}")
        k(f"v_mov_b32 {v(zf)}, 0")
        k(f"v_and_b32 {v(vt2)}, 3, v0")
        k(f"v_lshlrev_b32 {v(vt2)}, 2, {v(vt2)}")
        k(f"v_add_u32 {v(vt2)}, {LDS_0}, {v(vt2)}")
        k(f"ds_write_b32 {v(vt2)}, {v(zf)}")
        Wb = [kvf, k.valloc(32, 4)]
        Fb = k.valloc(24, 4); Pb = k.valloc(8, 4)
        N = [k.valloc(24, 4), k.valloc(24, 4)]
        O = [k.valloc(8, 4), k.valloc(8, 4)]; rr = k.valloc(4, 4)
        k(f"s_mov_b32 s62, {fbits(1e-6):#x}"); k(f"s_mov_b32 s63, {fbits(1e-6):#x}")
        def freads(hc):
            o = []
            for q in range(2):
                o += [f"ds_read_b128 {v(Pb+4*q,4)}, {B.at(('A',(hc&1)*2+q), self.aslot(hc//2))}",
                      f"ds_read_b128 {v(Fb+12*q,4)}, {v(aA0)}", f"ds_read_b128 {v(Fb+12*q+4,4)}, {v(aA1)}", f"ds_read_b128 {v(Fb+12*q+8,4)}, {v(aAz)}",
                      f"v_add_u32 {v(aA0)}, {v(aA0)}, {v(sA0)}", f"v_add_u32 {v(aA1)}, {v(aA1)}, {v(sA1)}", f"v_add_u32 {v(aAz)}, {v(aAz)}, {v(sAz)}"]
            return o
        def wreads(hc):
            b = Wb[hc & 1]
            return [f"ds_read_b64_tr_b16 {v(b+16*q+4*t+2*hh,2)}, {B.at(('W',t), self.bslot[hc//2] + ((hc&1)*2+q)*4096 + hh*2048)}" for q in range(2) for t in range(4) for hh in range(2)]
        def amfma(c):
            n = N[c & 1]
            return [f"v_mfma_f32_16x16x32_bf16 {v(n+12*q+4*i,4)}, {v(Fb+12*q+4*i,4)}, {v(Pb+4*q,4)}, 0" for q in range(2) for i in range(3)]
        def cmfma(c):
            b = Wb[c & 1]; o = O[c & 1]
            return [f"v_mfma_f32_16x16x32_bf16 {v(acc+4*t,4)}, {v(b+16*q+4*t,4)}, {v(o+4*q,4)}, {v(acc+4*t,4)}" for q in range(2) for t in range(4)]
        def ovalu(c):
            n0 = N[c & 1]; Oo = O[c & 1]; o = []
            for q in range(2): o.append(f"v_pk_add_f32 {v(rr+2*q,2)}, {v(n0+12*q+8,2)}, s[62:63]")
            for i in range(4): o.append(f"v_rcp_f32 {v(rr+i)}, {v(rr+i)}")
            for q in range(2):
                n = n0 + 12 * q
                for x in range(2): o.append(f"v_pk_mul_f32 {v(n+2*x,2)}, {v(n+2*x,2)}, {v(rr+2*q,2)} op_sel_hi:[1,0]")
                for x in range(2): o.append(f"v_pk_mul_f32 {v(n+4+2*x,2)}, {v(n+4+2*x,2)}, {v(rr+2*q,2)} op_sel:[0,1] op_sel_hi:[1,1]")
            for q in range(2):
                n = n0 + 12 * q
                for h in range(2):
                    o.append(f"v_cvt_pk_bf16_f32 {v(Oo+4*q+2*h)}, {v(n+4*h)}, {v(n+4*h+1)}")
                    o.append(f"v_cvt_pk_bf16_f32 {v(Oo+4*q+2*h+1)}, {v(n+4*h+2)}, {v(n+4*h+3)}")
            return o
        k("s_waitcnt lgkmcnt(0)")
        k("s_barrier"); k.stamp()
        for r in freads(0) + wreads(0): k(r)
        for r in amfma(0): k(r)
        for c in range(9):
            if c + 1 < 8:
                if (c + 1) % 2 == 0:
                    k("s_waitcnt lgkmcnt(0)")
                    k("s_barrier")
                for r in freads(c + 1): k(r)
            interleave(k, cmfma(c - 1) if c >= 1 else [], ovalu(c) if c < 8 else [])
            if c + 1 < 8: interleave(k, amfma(c + 1), wreads(c + 1))
        k.stamp()
        k("s_barrier")
        vs = k.valloc()
        k(f"v_add_u32 {v(vs)}, s52, {v(k.vR16)}")
        k(f"v_mul_u32_u24 {v(vs)}, 144, {v(vs)}")
        k(f"v_lshl_add_u32 {v(vs)}, {v(k.vG)}, 3, {v(vs)}")
        for t in range(4):
            ac = acc + 4 * t
            k(f"v_cvt_pk_bf16_f32 {v(ac)}, {v(ac)}, {v(ac+1)}")
            k(f"v_cvt_pk_bf16_f32 {v(ac+1)}, {v(ac+2)}, {v(ac+3)}")
            k(f"ds_write_b64 {v(vs)}, {v(ac,2)} offset:{t*32}")
        k("s_waitcnt lgkmcnt(0)")
    def store(self, k, vt, vt2, vt3, emit_stores):
        store64(self, k, emit_stores)

def store64(p, k, emit_stores):
    SD, SST = 40, 44
    if p.xdst == "out": srd(k, SD, P_OUT, 0, XB)
    else: srd(k, SD, P_WS, p.xdst, XB)
    if p.st_off is not None: srd(k, SST, P_WS, p.st_off, 2048 * 64)
    k("s_barrier")
    vy, vo, sm, va_ = store64_prep(k, p.xr, p.st_off is not None)
    k("s_mov_b32 s60, 32768")
    st = [f"buffer_store_dwordx4 {v(vy,4)}, {v(vo)}, s[{SD}:{SD+3}], 0 offen", f"buffer_store_dwordx4 {v(vy+4,4)}, {v(vo)}, s[{SD}:{SD+3}], s60 offen"]
    if p.st_off is not None:
        st += [f"buffer_store_dwordx2 {v(sm,2)}, {v(va_)}, s[{SST}:{SST+3}], 0 offen", f"buffer_store_dwordx2 {v(sm+2,2)}, {v(va_)}, s[{SST}:{SST+3}], 0 offen offset:2048"]
    emit_stores(st)

class P3(Phase):
    Qe = 6
    def spare(self, c): return 1 if (c >= self.NC - self.D or c % 2 == 1) else 0
    NC = 8; PA = 128; NBI = 8; BSTEP = 64 * 3584; has_ln = True; nprod = 16
    SP = 272
    def __init__(self, tag, xsrc, st_off, hoff): super().__init__(tag); self.xsrc, self.st_off, self.hoff = xsrc, st_off, hoff
    def tile(self, k):
        k(f"s_mov_b32 s22, s{SC_}"); k(f"s_min_u32 s23, s{SM_}, 13")
        k("s_lshl_b32 s50, s22, 7"); k("s_lshl_b32 s54, s23, 8")
    def setup_A(self, k, vt, vt2):
        self.voA = a_dma_offsets(k, 8, 128, 1024, 50, vt, vt2)
        k("s_waitcnt lgkmcnt(0)")
        srd(k, 24, P_WS, self.xsrc, XB)
    def setup_B(self, k, vt, vt2, vt3, tmp):
        self.voB = [k.valloc() for _ in range(8)]
        k("s_lshl_b32 s52, s59, 5")
        k(f"s_min_u32 s54, s{SM_}, 13"); k("s_lshl_b32 s54, s54, 8")
        for i in range(8):
            k(f"v_lshlrev_b32 {v(vt)}, 1, {v(k.vG)}")
            if (i >> 1) & 1: k(f"v_or_b32 {v(vt)}, 8, {v(vt)}")
            k(f"v_xor_b32 {v(vt)}, {v(vt)}, {v(k.vR16)}")
            k(f"v_lshlrev_b32 {v(vt)}, 4, {v(vt)}")
            k(f"v_add3_u32 {v(vt2)}, {v(k.vG)}, s52, {4*i}")
            k(f"v_mul_u32_u24 {v(vt2)}, 3584, {v(vt2)}")
            k(f"v_add3_u32 {v(self.voB[i])}, {v(vt2)}, {v(vt)}, s54")
        k(f"s_lshl_b32 s{self.sBW}, s59, 13")
        k("s_waitcnt lgkmcnt(0)")
        srd(k, self.SWB, P_W1, 0, 512 * 1792 * 2)
    def compute(self, k, vt, vt2, vt3):
        SP = self.SP; SCS = 36
        k("s_lshr_b32 s52, s3, 1")
        k("s_lshl_b32 s52, s52, 6")
        k("s_and_b32 s53, s3, 1")
        k("s_waitcnt lgkmcnt(0)")
        srd(k, SCS, P_WS, WS_CS + 0x2000, 8 * 1792 * 4)
        cs = k.valloc(16, 4)
        k("s_lshl_b32 s56, s23, 9")
        k("s_lshl_b32 s57, s53, 8")
        k("s_add_u32 s56, s56, s57")
        k(f"v_lshlrev_b32 {v(vt2)}, 4, {v(k.vG)}")
        k(f"v_add_u32 {v(vt2)}, s56, {v(vt2)}")
        for t in range(4):
            k(f"buffer_load_dwordx4 {v(cs+4*t,4)}, {v(vt2)}, s[{SCS}:{SCS+3}], 0 offen offset:{t*64}")
        csmark = k.nv
        csp = k.valloc(112, 4)
        for g_ in range(1, 8):
            k(f"s_mov_b32 s57, {g_*7168}")
            for t in range(4):
                k(f"buffer_load_dwordx4 {v(csp+16*(g_-1)+4*t,4)}, {v(vt2)}, s[{SCS}:{SCS+3}], s57 offen offset:{t*64}")
        for g_ in range(7):
            for x in range(8):
                k(f"v_pk_add_f32 {v(cs+2*x,2)}, {v(cs+2*x,2)}, {v(csp+16*g_+2*x,2)}")
        k.nv = csmark
        B = Bases(k)
        a_read_bases(k, B, 128, 52, 2, vt, vt2)
        k(f"v_bfe_u32 {v(vt)}, {v(k.vL)}, 2, 2")
        k(f"v_and_b32 {v(vt2)}, 1, {v(k.vG)}")
        k(f"v_lshl_add_u32 {v(vt2)}, {v(vt2)}, 2, {v(vt)}")
        k("s_lshl_b32 s57, s53, 2")
        k(f"v_xor_b32 {v(vt2)}, s57, {v(vt2)}")
        k(f"v_lshl_add_u32 {v(vt)}, {v(k.vG)}, 3, {v(vt)}")
        k(f"v_lshlrev_b32 {v(vt)}, 8, {v(vt)}")
        k(f"v_and_b32 {v(vt3)}, 3, {v(k.vL)}")
        k(f"v_lshl_add_u32 {v(vt)}, {v(vt3)}, 3, {v(vt)}")
        for t in range(4):
            r = k.valloc()
            k(f"v_xor_b32 {v(vt3)}, {t}, {v(vt2)}")
            k(f"v_lshl_add_u32 {v(r)}, {v(vt3)}, 5, {v(vt)}")
            B.add(("W", t), r, 3)
        acc = k.valloc(64, 4)
        for i in range(64): k(f"v_mov_b32 {v(acc+i)}, 0")
        Ab = [k.valloc(16, 4), k.valloc(16, 4)]; Wb = [k.valloc(16, 4), k.valloc(16, 4)]
        ab = [k.valloc(2, 2) for _ in range(4)]
        vab = k.valloc()
        k(f"v_add_u32 {v(vab)}, s52, {v(k.vR16)}")
        k(f"v_lshlrev_b32 {v(vab)}, 3, {v(vab)}")
        k(f"v_add_u32 {v(vab)}, {LDS_AB}, {v(vab)}")
        def reads(ks):
            c = ks // 2; kk = ks & 1; A_ = Ab[ks & 1]; W_ = Wb[ks & 1]
            ra = [f"ds_read_b128 {v(A_+4*rt,4)}, {B.at(('A',kk), self.aslot(c) + rt*2048)}" for rt in range(4)]
            rw = [f"ds_read_b64_tr_b16 {v(W_+4*t+2*hh,2)}, {B.at(('W',t), self.bslot[c] + kk*8192 + hh*1024)}" for t in range(4) for hh in range(2)]
            return [ra[0]] + rw + ra[1:]
        def mfmas(ks):
            A_ = Ab[ks & 1]; W_ = Wb[ks & 1]
            return [f"v_mfma_f32_16x16x32_bf16 {v(acc+(rt*4+t)*4,4)}, {v(W_+4*t,4)}, {v(A_+4*rt,4)}, {v(acc+(rt*4+t)*4,4)}" for rt in range(4) for t in range(4)]
        main_loop(k, 16, 2, reads, mfmas, [f"ds_read_b64 {v(ab[rt],2)}, {v(vab)} offset:{rt*128}" for rt in range(4)])
        k("s_barrier")
        vs = k.valloc()
        k(f"v_add_u32 {v(vs)}, s52, {v(k.vR16)}")
        k(f"v_mul_u32_u24 {v(vs)}, {SP}, {v(vs)}")
        k(f"v_lshl_add_u32 {v(vs)}, {v(k.vG)}, 3, {v(vs)}")
        k("s_lshl_b32 s57, s53, 7")
        k(f"v_add_u32 {v(vs)}, s57, {v(vs)}")
        tmp = k.valloc(8, 4)
        k(f"s_mov_b32 s62, {LOG2E | 0x80000000:#x}")
        k(f"s_mov_b32 s63, {LOG2E | 0x80000000:#x}")
        k("s_mov_b32 s64, 1.0"); k("s_mov_b32 s65, 1.0")
        for rt in range(4):
            for t in range(4):
                ac = acc + (rt * 4 + t) * 4; T = tmp + 4 * (t & 1)
                for p in range(2):
                    k(f"v_pk_mul_f32 {v(T+2*p,2)}, {v(cs+4*t+2*p,2)}, {v(ab[rt],2)} op_sel:[0,1] op_sel_hi:[1,1]")
                for p in range(2):
                    k(f"v_pk_fma_f32 {v(ac+2*p,2)}, {v(ac+2*p,2)}, {v(ab[rt],2)}, {v(T+2*p,2)} op_sel:[0,0,0] op_sel_hi:[1,0,1]")
                for p in range(2):
                    k(f"v_pk_mul_f32 {v(T+2*p,2)}, {v(ac+2*p,2)}, s[62:63]")
                for j in range(4): k(f"v_exp_f32 {v(T+j)}, {v(T+j)}")
                for p in range(2):
                    k(f"v_pk_add_f32 {v(T+2*p,2)}, {v(T+2*p,2)}, s[64:65]")
                for j in range(4): k(f"v_rcp_f32 {v(T+j)}, {v(T+j)}")
                for p in range(2):
                    k(f"v_pk_mul_f32 {v(ac+2*p,2)}, {v(ac+2*p,2)}, {v(T+2*p,2)}")
                k(f"v_cvt_pk_bf16_f32 {v(ac)}, {v(ac)}, {v(ac+1)}")
                k(f"v_cvt_pk_bf16_f32 {v(ac+1)}, {v(ac+2)}, {v(ac+3)}")
                k(f"ds_write_b64 {v(vs)}, {v(ac,2)} offset:{rt*16*SP + t*32}")
        k("s_waitcnt lgkmcnt(0)")
    def store(self, k, vt, vt2, vt3, emit_stores):
        SH, SP = 32, self.SP
        srd(k, SH, P_WS, self.hoff, S_ * F_ * 2)
        k(f"s_cmp_lt_u32 s{SM_}, 14")
        k(f"s_cselect_b32 s{SH+2}, s{SH+2}, 0")
        k("s_barrier")
        vy = k.valloc(32, 4); va_ = k.valloc(); vo = k.valloc()
        k(f"v_lshrrev_b32 {v(vt)}, 4, v0")
        k(f"v_and_b32 {v(vt2)}, 15, v0")
        k(f"v_mul_u32_u24 {v(va_)}, {SP}, {v(vt)}")
        k(f"v_lshl_add_u32 {v(va_)}, {v(vt2)}, 4, {v(va_)}")
        for p in range(8):
            k(f"ds_read_b128 {v(vy+4*p,4)}, {v(va_)} offset:{p*16*SP}")
        k(f"v_add_u32 {v(vt)}, s50, {v(vt)}")
        k(f"v_mul_u32_u24 {v(vo)}, 3584, {v(vt)}")
        k(f"v_lshl_add_u32 {v(vo)}, {v(vt2)}, 4, {v(vo)}")
        k(f"v_add_u32 {v(vo)}, s54, {v(vo)}")
        st = []
        for p in range(8):
            st.append(f"s_mov_b32 s56, {p*16*3584}")
            st.append(f"buffer_store_dwordx4 {v(vy+4*p,4)}, {v(vo)}, s[{SH}:{SH+3}], s56 offen")
        emit_stores(st)

class P4(Phase):
    NC = 14; PA = 256; NBI = 8; BSTEP = 131072; nprod = 16
    def __init__(self, tag, xsrc, xdst, st_off, hoff): super().__init__(tag); self.xsrc, self.xdst, self.st_off, self.hoff = xsrc, xdst, st_off, hoff
    def tile(self, k): tile64(k)
    def setup_A(self, k, vt, vt2):
        self.voA = a_dma_offsets(k, 8, 256, 3584, 50, vt, vt2)
        k("s_waitcnt lgkmcnt(0)")
        srd(k, 24, P_WS, self.hoff, S_ * F_ * 2)
    def setup_B(self, k, vt, vt2, vt3, tmp):
        self.voB = [k.valloc() for _ in range(8)]
        k("s_lshl_b32 s52, s59, 16")
        k(f"s_and_b32 s54, s{SM_}, 7"); k("s_lshl_b32 s54, s54, 7")
        k("s_add_u32 s52, s52, s54")
        for i in range(8):
            k(f"v_bfe_u32 {v(vt)}, {v(k.vL)}, 4, 1")
            k(f"v_lshlrev_b32 {v(vt)}, 1, {v(vt)}")
            if i & 1: k(f"v_or_b32 {v(vt)}, 4, {v(vt)}")
            k(f"v_and_b32 {v(vt2)}, 7, {v(k.vL)}")
            k(f"v_xor_b32 {v(vt)}, {v(vt)}, {v(vt2)}")
            k(f"v_lshlrev_b32 {v(vt)}, 4, {v(vt)}")
            k(f"v_lshrrev_b32 {v(vt2)}, 3, {v(k.vL)}")
            k(f"v_add_u32 {v(vt2)}, {8*i}, {v(vt2)}")
            k(f"v_lshl_add_u32 {v(vt)}, {v(vt2)}, 10, {v(vt)}")
            k(f"v_add_u32 {v(self.voB[i])}, s52, {v(vt)}")
        k(f"s_lshl_b32 s{self.sBW}, s59, 13")
        k("s_waitcnt lgkmcnt(0)")
        srd(k, self.SWB, P_W2, 0, 1792 * 512 * 2)
    def compute(self, k, vt, vt2, vt3):
        SX = 24
        self.xr = k.valloc(8, 4)
        k("s_waitcnt lgkmcnt(0)")
        srd(k, SX, P_WS, self.xsrc, XB)
        resid_load64(k, SX, vt, vt2, self.xr)
        k("s_lshr_b32 s52, s3, 1")
        k("s_lshl_b32 s52, s52, 5")
        k("s_and_b32 s53, s3, 1")
        B = Bases(k)
        a_read_bases(k, B, 256, 52, 2, vt, vt2)
        k(f"v_bfe_u32 {v(vt)}, {v(k.vL)}, 2, 2")
        k(f"v_and_b32 {v(vt2)}, 1, {v(k.vG)}")
        k(f"v_lshlrev_b32 {v(vt2)}, 1, {v(vt2)}")
        k(f"v_bfe_u32 {v(vt3)}, {v(k.vL)}, 3, 1")
        k(f"v_or_b32 {v(vt2)}, {v(vt2)}, {v(vt3)}")
        k("s_lshl_b32 s57, s53, 1")
        k(f"v_xor_b32 {v(vt2)}, s57, {v(vt2)}")
        k(f"v_lshl_add_u32 {v(vt)}, {v(k.vG)}, 3, {v(vt)}")
        k(f"v_lshlrev_b32 {v(vt)}, 7, {v(vt)}")
        k(f"v_and_b32 {v(vt3)}, 3, {v(k.vL)}")
        k(f"v_lshl_add_u32 {v(vt)}, {v(vt3)}, 3, {v(vt)}")
        for t in range(2):
            r = k.valloc()
            k(f"v_xor_b32 {v(vt3)}, {t}, {v(vt2)}")
            k(f"v_lshl_add_u32 {v(r)}, {v(vt3)}, 5, {v(vt)}")
            B.add(("W", t), r, 3)
        acc = k.valloc(16, 4)
        for i in range(16): k(f"v_mov_b32 {v(acc+i)}, 0")
        Ab = [k.valloc(32, 4), k.valloc(32, 4)]; Wb = [k.valloc(32, 4), k.valloc(32, 4)]
        def reads(c):
            A_ = Ab[c & 1]; W_ = Wb[c & 1]; o = []
            for kk in range(4):
                ra = [f"ds_read_b128 {v(A_+8*kk+4*rt,4)}, {B.at(('A',kk), self.aslot(c) + rt*4096)}" for rt in range(2)]
                rw = [f"ds_read_b64_tr_b16 {v(W_+8*kk+4*t+2*hh,2)}, {B.at(('W',t), self.bslot[c] + kk*4096 + hh*512)}" for t in range(2) for hh in range(2)]
                o += [ra[0]] + rw + ra[1:]
            if os.environ.get("G_NOREAD"): return o[:int(os.environ["G_NOREAD"])]
            return o
        def mfmas(c):
            A_ = Ab[c & 1]; W_ = Wb[c & 1]
            return [f"v_mfma_f32_16x16x32_bf16 {v(acc+(rt*2+t)*4,4)}, {v(W_+8*kk+4*t,4)}, {v(A_+8*kk+4*rt,4)}, {v(acc+(rt*2+t)*4,4)}" for kk in range(4) for rt in range(2) for t in range(2)]
        for c in range(self.NC + 1):
            if c < self.NC:
                if c: k("s_waitcnt lgkmcnt(0)")
                k.dstamp()
                k("s_barrier")
                if c == 0: k.stamp()
            rd = reads(c) if c < self.NC else []
            mf = mfmas(c - 1) if c else []
            i = j = 0
            while i < len(mf) or j < len(rd):
                for _ in range(2):
                    if j < len(rd): k(rd[j]); j += 1
                if i < len(mf): k(mf[i]); i += 1
                if j < len(rd): k(rd[j]); j += 1
                if i < len(mf): k(mf[i]); i += 1
        k.stamp()
        k("s_barrier")
        vs = k.valloc()
        k(f"v_add_u32 {v(vs)}, s52, {v(k.vR16)}")
        k(f"v_mul_u32_u24 {v(vs)}, 144, {v(vs)}")
        k(f"v_lshl_add_u32 {v(vs)}, {v(k.vG)}, 3, {v(vs)}")
        k("s_lshl_b32 s57, s53, 6")
        k(f"v_add_u32 {v(vs)}, s57, {v(vs)}")
        for rt in range(2):
            for t in range(2):
                ac = acc + (rt * 2 + t) * 4
                k(f"v_cvt_pk_bf16_f32 {v(ac)}, {v(ac)}, {v(ac+1)}")
                k(f"v_cvt_pk_bf16_f32 {v(ac+1)}, {v(ac+2)}, {v(ac+3)}")
                k(f"ds_write_b64 {v(vs)}, {v(ac,2)} offset:{rt*16*144 + t*32}")
        k("s_waitcnt lgkmcnt(0)")
    def store(self, k, vt, vt2, vt3, emit_stores):
        store64(self, k, emit_stores)

def gen_fused(name, phases, flagbase, xtidx, stamps=False, first=False):
    k = Kern(name); k.stamps_on = stamps
    if os.environ.get("G_DET"): k.det = int(os.environ["G_DET"])
    prologue(k, 256, wait=False)
    k("s_sub_u32 s59, s3, 4")
    k("s_and_b32 s48, s2, 7"); k("s_lshl_b32 s48, s48, 1"); k("s_lshr_b32 s49, s2, 7")
    k(f"s_add_u32 s{SC_}, s48, s49"); k(f"s_bfe_u32 s{SM_}, s2, 0x40003")
    vt, vt2, vt3 = k.valloc(), k.valloc(), k.valloc()
    vfl = k.valloc(); vfd = k.valloc()
    mark = k.nv
    k.lds = 163840
    n = len(phases)
    bars = []
    for i, p in enumerate(phases):
        bars += [(i, "b", c) for c in range(p.NC)] + [(i, "e", 0), (i, "s", 0)] + ([(i, "u", 0)] if i < n - 1 else [])
    bidx = {b: j for j, b in enumerate(bars)}
    chunks = []
    for i, p in enumerate(phases):
        for c in range(p.NC):
            rel = bidx[(i, "b", c + 1)] if c + 1 < p.NC else bidx[(i, "e", 0)]
            chunks.append((i, c, bidx[(i, "b", c)], rel, True))
        for x in range(p.pseudo):
            chunks.append((i, p.NC + x, None, bidx[(i, "e", 0)], False))
    for j, (i, c, _, _, _) in enumerate(chunks): phases[i].bslot[c] = BRING + (j % NB) * 16384
    for i, p in enumerate(phases): p.SWB = 24 + 4 * i; p.sBW = 44 + i
    k("s_cmp_lt_u32 s3, 4")
    k(f"s_cbranch_scc1 {name}_compute")
    k("s_cmp_lt_u32 s3, 6")
    k(f"s_cbranch_scc1 {name}_aload")
    k("s_sub_u32 s59, s3, 6")
    k.stamp_set(0); k.stamp()
    tmp5 = [k.valloc() for _ in range(5)]
    NV = int(os.environ.get("G_NV", "0"))
    vl16 = k.valloc()
    k(f"v_lshlrev_b32 {v(vl16)}, 4, {v(k.vL)}")
    for p in phases: p._vo = None
    vslots = [256 - 32 * (x + 1) for x in range(NV)]
    k.maxv = 256 if NV else k.maxv
    freev = list(vslots); vq = []
    setup_done = set(); nxt = [0]; placed = set(); pend = []
    def slot_free(j, after_bar): return j < NB or chunks[j - NB][3] <= after_bar
    def b_step(after_bar, maxn, curphase=None, spare=0):
        if pend:
            k("s_waitcnt lgkmcnt(0)")
            for (j, vs) in pend: placed.add(j); freev.append(vs)
            pend.clear()
        while vq and slot_free(vq[0][0], after_bar):
            j, vs = vq.pop(0); i, c = chunks[j][0], chunks[j][1]
            phases[i].place_Bv(k, c, vs, vl16, vt); pend.append((j, vs))
        cnt = 0
        while nxt[0] < len(chunks) and cnt < maxn:
            j = nxt[0]; i, c, need, rel, real = chunks[j]
            if not real:
                if not slot_free(j, after_bar): break
                placed.add(j); nxt[0] += 1; continue
            direct = (not vq) and slot_free(j, after_bar)
            if not direct and not freev: break
            if curphase is not None and i != curphase:
                if spare <= 0: break
                spare -= 1
            if i not in setup_done:
                phases[i].setup_B(k, vt, vt2, vt3, tmp5); setup_done.add(i)
                assert k.nv <= 256 - 32 * NV
            k.vm_limit(int(os.environ.get("G_VML", "24")))
            if direct:
                phases[i].issue_B(k, c); placed.add(j)
            else:
                vs = freev.pop(0); phases[i].issue_Bv(k, c, vs); vq.append((j, vs))
            cnt += 1; nxt[0] += 1
    b_step(-1, 2)
    for j, (i, kind, c) in enumerate(bars):
        if kind == "b":
            jj = next(x for x, ch in enumerate(chunks) if ch[0] == i and ch[1] == c)
            if jj not in placed:
                assert any(x[0] == jj for x in pend), (i, c)
                k("s_waitcnt lgkmcnt(0)")
                for (j_, vs) in pend: placed.add(j_); freev.append(vs)
                pend.clear()
            k.wait_tag(f"{phases[i].tag}b{c}")
        k.cur = i; k.dstamp()
        k("s_barrier")
        if first and kind == "b" and c == 2:
            sw = k.valloc(16, 4); sacc = k.valloc(8, 4); svo = k.valloc()
            srd(k, 28, P_W1, 0, 512 * 1792 * 2)
            k("s_min_u32 s40, s2, 223")
            k("s_mul_i32 s41, s40, 2341"); k("s_lshr_b32 s41, s41, 16")
            k("s_mul_i32 s48, s41, 28"); k("s_sub_u32 s40, s40, s48")
            k("s_lshl_b32 s48, s41, 6"); k("s_lshl_b32 s49, s59, 5"); k("s_add_u32 s48, s48, s49")
            k(f"v_lshrrev_b32 {v(svo)}, 3, {v(k.vL)}")
            k(f"v_add_u32 {v(svo)}, s48, {v(svo)}")
            k(f"v_mul_u32_u24 {v(svo)}, 3584, {v(svo)}")
            k(f"v_and_b32 {v(vt)}, 7, {v(k.vL)}")
            k(f"v_lshl_add_u32 {v(svo)}, {v(vt)}, 4, {v(svo)}")
            k("s_lshl_b32 s48, s40, 7")
            k(f"v_add_u32 {v(svo)}, s48, {v(svo)}")
            for x in range(4):
                k(f"s_mov_b32 s49, {x*8*3584}")
                k(f"buffer_load_dwordx4 {v(sw+4*x,4)}, {v(svo)}, s[28:31], s49 offen")
        if first and kind == "b" and c == 5:
            k("s_mov_b32 s60, 0x00003f80"); k("s_mov_b32 s61, 0x3f800000")
            for x in range(8): k(f"v_mov_b32 {v(sacc+x)}, 0")
            for x in range(4):
                for y in range(4):
                    k(f"v_dot2_f32_bf16 {v(sacc+2*y)}, {v(sw+4*x+y)}, s60, {v(sacc+2*y)}")
                    k(f"v_dot2_f32_bf16 {v(sacc+2*y+1)}, {v(sw+4*x+y)}, s61, {v(sacc+2*y+1)}")
        if first and kind == "b" and c == 6:
            for x in range(8):
                k(f"v_add_f32_dpp {v(sw+x)}, {v(sacc+x)}, {v(sacc+x)} row_ror:8 row_mask:0xf bank_mask:0xf")
            for x in range(8): gen.xlane_sum_g(k, sw + x, sacc + x)
            k("s_lshl_b32 s48, s59, 8"); k(f"s_add_u32 s48, s48, {EX+8192}")
            k(f"v_and_b32 {v(vt)}, 7, {v(k.vL)}")
            k(f"v_lshlrev_b32 {v(svo)}, 5, {v(vt)}")
            k(f"v_add_u32 {v(vt)}, s48, {v(svo)}")
            k(f"ds_write_b128 {v(vt)}, {v(sw,4)}"); k(f"ds_write_b128 {v(vt)}, {v(sw+4,4)} offset:16")
            k("s_waitcnt lgkmcnt(0)")
        if first and kind == "b" and c == 7:
            k(f"v_add_u32 {v(vt)}, {EX+8192}, {v(svo)}")
            for x in range(2):
                k(f"ds_read_b128 {v(sw+4*x,4)}, {v(vt)} offset:{16*x}")
                k(f"ds_read_b128 {v(sw+8+4*x,4)}, {v(vt)} offset:{256+16*x}")
            for x in range(8): k(f"v_add_f32 {v(sw+x)}, {v(sw+x)}, {v(sw+8+x)}")
            srd(k, 28, P_WS, WS_CS + 0x2000, 8 * 1792 * 4)
            k("s_mul_i32 s48, s41, 7168"); k("s_lshl_b32 s49, s40, 8"); k("s_add_u32 s48, s48, s49")
            k(f"v_add_u32 {v(vt)}, s48, {v(svo)}")
            k("s_mov_b64 exec, 0xff")
            k(f"buffer_store_dwordx4 {v(sw,4)}, {v(vt)}, s[28:31], 0 offen")
            k(f"buffer_store_dwordx4 {v(sw+4,4)}, {v(vt)}, s[28:31], 0 offen offset:16")
            k("s_mov_b64 exec, -1")
        if kind in ("e", "u"): k.stamp()
        if kind == "b":
            b_step(j, 2 if i == 0 else 1, i, phases[i].spare(c))
        else:
            b_step(j, {"e": phases[i].Qe, "s": 3, "u": 7}[kind])
    assert nxt[0] == len(chunks) and not vq
    if stamps: k.stamp(); k.stamp_flush(P_WS, vt, vt2)
    k("s_endpgm")
    k.L(f"{name}_aload"); k.reset()
    k.stamp_set(0); k.stamp()
    k("s_lshl_b32 s55, s59, 13")
    for i, p in enumerate(phases):
        k.nv = mark
        p.tile(k)
        p.setup_A(k, vt, vt2)
        if first:
            vz = k.valloc(4)
            for x in range(4): k(f"v_mov_b32 {v(vz+x)}, 0")
            srd(k, 28, P_WS, WS_KV, 0x20000)
            srd(k, 32, 18, 0, 256)
            l1 = f"{name}_tk"; l2 = f"{name}_tkd"
            k("s_cmp_eq_u32 s59, 0")
            k(f"s_cbranch_scc1 {l1}")
            k("s_lshl_b32 s48, s2, 8"); k("s_add_u32 s48, s48, 0x10000")
            k(f"v_lshlrev_b32 {v(vfl)}, 4, {v(k.vL)}"); k(f"v_add_u32 {v(vfl)}, s48, {v(vfl)}")
            k("s_mov_b64 exec, 0xffff")
            k(f"buffer_store_dwordx4 {v(vz,4)}, {v(vfl)}, s[28:31], 0 offen")
            k("s_mov_b64 exec, -1")
            k(f"s_branch {l2}")
            k.L(l1)
            k(f"s_lshl_b32 s48, s{SM_}, 2")
            k(f"v_mov_b32 {v(vfl)}, s48"); k(f"v_mov_b32 {v(vfd)}, 1")
            k("s_mov_b64 exec, 1")
            k(f"buffer_atomic_add {v(vfd)}, {v(vfl)}, s[32:35], 0 offen sc0")
            k("s_mov_b64 exec, -1")
            k.L(l2)
        if i == 0 and n > 1:
            srd(k, SFL, P_WS, WS_FLAG, 0x7000)
            k("s_getreg_b32 s98, hwreg(HW_REG_XCC_ID)")
            k("s_and_b32 s98, s98, 15"); k("s_add_u32 s98, s98, 1")
            k(f"s_lshl_b32 s48, s{SC_}, 6"); k(f"s_lshl_b32 s49, s{SM_}, 2"); k("s_add_u32 s48, s48, s49")
            k(f"s_add_u32 s48, s48, {WS_XT - WS_FLAG + xtidx*1024}")
            k(f"v_mov_b32 {v(vfl)}, s48"); k(f"v_mov_b32 {v(vfd)}, s98")
            k("s_mov_b64 exec, 1")
            k(f"buffer_store_dword {v(vfd)}, {v(vfl)}, s[{SFL}:{SFL+3}], 0 offen sc0 sc1")
            k("s_mov_b64 exec, -1")
        if i > 0:
            lab = f"{name}_poll{i}"; done = f"{name}_polld{i}"
            k(f"s_lshl_b32 s48, s{SC_}, 8"); k(f"s_add_u32 s48, s48, {(flagbase+i-1)*4096}")
            k(f"v_lshlrev_b32 {v(vfl)}, 2, {v(k.vL)}"); k(f"v_add_u32 {v(vfl)}, s48, {v(vfl)}")
            k(f"s_mov_b64 exec, {(1<<phases[i-1].nprod)-1:#x}")
            k("s_mov_b32 s49, 0")
            k.L(lab)
            k(f"buffer_load_dword {v(vfd)}, {v(vfl)}, s[{SFL}:{SFL+3}], 0 offen sc1")
            k("s_add_u32 s49, s49, 1")
            k("s_waitcnt vmcnt(0)")
            k(f"v_cmp_ne_u32 vcc, 1, {v(vfd)}")
            k("s_cmp_gt_u32 s49, 200000")
            k(f"s_cbranch_scc1 {done}")
            k(f"s_cbranch_vccnz {lab}")
            k.L(done)
            k("s_mov_b64 exec, -1")
        k.stamp()
        if p.has_ln:
            stv = k.valloc(16, 4)
            srd(k, 28, P_WS, p.st_off, 2048 * 64)
            k("s_lshl_b32 s48, s59, 6")
            k("s_add_u32 s48, s48, s50")
            k(f"v_add_u32 {v(vt)}, s48, {v(k.vL)}")
            k(f"v_lshlrev_b32 {v(vt)}, 6, {v(vt)}")
            for x in range(4):
                k(f"buffer_load_dwordx4 {v(stv+4*x,4)}, {v(vt)}, s[28:31], 0 offen offset:{16*x}")
        for c in range(min(p.D, p.NC)): p.issue_A(k, c)
        for c in range(p.NC):
            k.wait_tag(f"{p.tag}a{c}")
            k.cur = i; k.dstamp()
            k("s_barrier")
            if c + p.D < p.NC: p.issue_A(k, c + p.D)
            if first and c == 0:
                l3 = f"{name}_zk"
                k.vm_save()
                k("s_cmp_lg_u32 s59, 0")
                k(f"s_cbranch_scc1 {l3}")
                k(f"v_readfirstlane_b32 s48, {v(vfd)}")
                k("s_nop 3")
                k("s_cmp_lg_u32 s48, 0")
                k(f"s_cbranch_scc1 {l3}")
                k(f"s_lshl_b32 s48, s{SM_}, 11")
                k(f"v_lshlrev_b32 {v(vfl)}, 4, {v(k.vL)}"); k(f"v_add_u32 {v(vt)}, s48, {v(vfl)}")
                k(f"buffer_store_dwordx4 {v(vz,4)}, {v(vt)}, s[28:31], 0 offen sc0 sc1")
                k(f"buffer_store_dwordx4 {v(vz,4)}, {v(vt)}, s[28:31], 0 offen offset:1024 sc0 sc1")
                k(f"s_lshl_b32 s48, s{SM_}, 7"); k("s_add_u32 s48, s48, 32768")
                k(f"v_add_u32 {v(vt)}, s48, {v(vfl)}")
                k("s_mov_b64 exec, 0xff")
                k(f"buffer_store_dwordx4 {v(vz,4)}, {v(vt)}, s[28:31], 0 offen sc0 sc1")
                k("s_waitcnt vmcnt(0)")
                k(f"s_lshl_b32 s48, s{SM_}, 2"); k("s_add_u32 s48, s48, 64")
                k(f"v_mov_b32 {v(vfl)}, s48"); k(f"v_mov_b32 {v(vfd)}, 1")
                k("s_mov_b64 exec, 1")
                k(f"buffer_store_dword {v(vfd)}, {v(vfl)}, s[32:35], 0 offen sc0 sc1")
                k("s_mov_b64 exec, -1")
                k.L(l3)
                k.vm_restore()
            if first and c == p.NC - 1:
                lab = f"{name}_rp"; done = f"{name}_rpd"
                k(f"s_lshl_b32 s48, s{SM_}, 2"); k("s_add_u32 s48, s48, 64")
                k(f"v_mov_b32 {v(vfl)}, s48")
                k("s_mov_b64 exec, 1")
                k("s_mov_b32 s49, 0")
                k.L(lab)
                k(f"buffer_load_dword {v(vfd)}, {v(vfl)}, s[32:35], 0 offen sc0 sc1")
                k("s_add_u32 s49, s49, 1")
                k("s_waitcnt vmcnt(0)")
                k(f"v_cmp_ne_u32 vcc, 1, {v(vfd)}")
                k("s_cmp_gt_u32 s49, 200000")
                k(f"s_cbranch_scc1 {done}")
                k(f"s_cbranch_vccnz {lab}")
                k.L(done)
                k("s_mov_b64 exec, -1")
            if c == 1 and p.has_ln:
                ab = k.valloc(2, 2)
                gen.ln_params(k, stv, ab, ab + 1, vt, vt2)
                k("s_lshl_b32 s48, s59, 9")
                k(f"s_add_u32 s48, s48, {LDS_AB}")
                k(f"v_lshlrev_b32 {v(vt)}, 3, {v(k.vL)}")
                k(f"v_add_u32 {v(vt)}, s48, {v(vt)}")
                k(f"ds_write_b64 {v(vt)}, {v(ab,2)}")
                k("s_waitcnt lgkmcnt(0)")
            if i == 0 and n > 1 and c == p.NC - 1:
                k(f"s_lshl_b32 s48, s{SC_}, 6"); k(f"s_add_u32 s48, s48, {WS_XT - WS_FLAG + xtidx*1024}")
                k(f"v_and_b32 {v(vfl)}, 15, {v(k.vL)}")
                k(f"v_lshlrev_b32 {v(vfl)}, 2, {v(vfl)}"); k(f"v_add_u32 {v(vfl)}, s48, {v(vfl)}")
                k(f"buffer_load_dword {v(vfd)}, {v(vfl)}, s[{SFL}:{SFL+3}], 0 offen sc0 sc1")
                k(f"v_cmp_ne_u32 vcc, s98, {v(vfd)}")
                k("s_cmp_eq_u64 vcc, 0")
                k("s_cselect_b32 s99, 1, 0")
                if FORCE == "fast": k("s_mov_b32 s99, 1")
                if FORCE == "slow": k("s_mov_b32 s99, 0")
                k(f"v_mov_b32 {v(vfd)}, s99"); k(f"v_mov_b32 {v(vfl)}, {LDS_MODE}")
                k(f"s_lshl_b32 s48, s59, 2"); k(f"v_add_u32 {v(vfl)}, s48, {v(vfl)}")
                k(f"ds_write_b32 {v(vfl)}, {v(vfd)}")
                k("s_waitcnt lgkmcnt(0)")
        k.stamp()
        k("s_barrier")
        k("s_barrier")
        if i < n - 1:
            k("s_barrier")
            k.stamp()
            lab = f"{name}_pub{i}"; lab2 = f"{name}_pubs{i}"
            k("s_cmp_lg_u32 s59, 0")
            k(f"s_cbranch_scc1 {lab}")
            k(f"s_lshl_b32 s48, s{SC_}, 8"); k(f"s_lshl_b32 s49, s{SM_}, 2"); k("s_add_u32 s48, s48, s49")
            k(f"s_add_u32 s48, s48, {(flagbase+i)*4096}")
            k(f"v_mov_b32 {v(vfl)}, s48"); k(f"v_mov_b32 {v(vfd)}, 1")
            k("s_mov_b64 exec, 1")
            k("s_cmp_eq_u32 s99, 1")
            k(f"s_cbranch_scc0 {lab2}")
            k(f"buffer_store_dword {v(vfd)}, {v(vfl)}, s[{SFL}:{SFL+3}], 0 offen")
            k(f"s_branch {lab}")
            k.L(lab2)
            k(f"buffer_store_dword {v(vfd)}, {v(vfl)}, s[{SFL}:{SFL+3}], 0 offen sc0 sc1")
            k.L(lab)
            k("s_mov_b64 exec, -1")
    if stamps: k.stamp(); k.stamp_flush(P_WS, vt, vt2)
    k("s_endpgm")
    k.L(f"{name}_compute"); k.reset()
    k.stamp_set(0); k.stamp()
    for i, p in enumerate(phases):
        k.nv = mark; k.cur = i
        p.tile(k)
        p.compute(k, vt, vt2, vt3)
        if os.environ.get("G_BND"): k.stamp()
        k.nv = mark + 12
        def emit_stores(lst, i=i):
            if i == n - 1:
                for x in lst: k(x)
                return
            if i == 0:
                k(f"v_mov_b32 {v(vfl)}, {LDS_MODE}")
                k(f"ds_read_b32 {v(vfd)}, {v(vfl)}")
                k(f"v_readfirstlane_b32 s99, {v(vfd)}")
            l1 = f"{name}_st{i}_slow"; l2 = f"{name}_st{i}_done"
            k("s_waitcnt vmcnt(0) lgkmcnt(0)")
            k("s_nop 4")
            k("s_cmp_eq_u32 s99, 1")
            k(f"s_cbranch_scc0 {l1}")
            for x in lst: k(x)
            k(f"s_branch {l2}")
            k.L(l1)
            for x in lst: k(x + (" sc0 sc1" if x.startswith("buffer_store") else ""))
            k.L(l2)
        p.store(k, vt, vt2, vt3, emit_stores)
        if os.environ.get("G_BND"): k.stamp()
        if i < n - 1:
            k("s_waitcnt vmcnt(0)")
            if os.environ.get("G_BND"): k.stamp()
            k("s_barrier")
    if stamps:
        k("s_waitcnt vmcnt(0)"); k.stamp(); k.stamp_flush(P_WS, vt, vt2)
    epilogue_end(k)
    return k

def build(path, stamps=False):
    kA = gen_fused("kA_kernel", [P1("p1a", "in", WS_KV, None)], 0, 0, stamps and os.environ.get("G_STA") == "1", True)
    kB = gen_fused("kB_kernel", [P2("p2a", "in", WS_KV, WS_X1, WS_ST1), P3("p3a", WS_X1, WS_ST1, WS_H), P4("p4a", WS_X1, WS_X2, WS_ST2, WS_H),
                                 P1("p1b", WS_X2, WS_KV + 0x10000, WS_ST2)], 0, 0, stamps and os.environ.get("G_STA") != "1")
    kC = gen_fused("kC_kernel", [P2("p2b", WS_X2, WS_KV + 0x10000, WS_X1, WS_ST1), P3("p3b", WS_X1, WS_ST1, WS_H), P4("p4b", WS_X1, "out", None, WS_H)], 3, 1)
    ks = [kA, kB, kC]
    launches = [(k.name, 256, 512, k.lds) for i, k in enumerate(ks)]
    open(path, "w").write(build_file(HEADER, launches, ks))
    for k in ks: print(k.name, "vgpr", k.maxv, "lds", k.lds, "ninst", sum(1 for i in k.items if isinstance(i, Ins)))

if __name__ == "__main__":
    build(sys.argv[1] if len(sys.argv) > 1 else "interleave_layers__linear_attn_block__dense_activation_silu__prompt.s")
    build(sys.argv[2] if len(sys.argv) > 2 else "fused_stamps.s", True)
```

```python
import re

TRANS = ("v_exp_f32", "v_log_f32", "v_rcp_f32", "v_rsq_f32", "v_sqrt_f32", "v_sin_f32", "v_cos_f32")

def regs_of(tok):
    tok = tok.strip()
    tok = tok.lstrip('-')
    m = re.fullmatch(r"abs\((.*)\)", tok)
    if m: tok = m.group(1)
    m = re.fullmatch(r"([vsa])\[(\d+):(\d+)\]", tok)
    if m:
        return {f"{m.group(1)}{i}" for i in range(int(m.group(2)), int(m.group(3)) + 1)}
    m = re.fullmatch(r"([vsa])(\d+)", tok)
    if m: return {tok}
    if tok in ("vcc", "vcc_lo", "vcc_hi"): return {"vcc"}
    if tok in ("exec", "exec_lo", "exec_hi"): return {"exec"}
    if tok == "m0": return {"m0"}
    return set()

class Ins:
    __slots__ = ("text", "op", "ops", "mods", "dst", "src", "kind", "srcA", "srcB", "srcC", "lds_dma", "wide_store", "dpp", "tag")
    def __init__(self, text):
        self.text = text
        t = text.split(";")[0].strip()
        parts = t.split(None, 1)
        self.op = parts[0]
        rest = parts[1] if len(parts) > 1 else ""
        toks = []; depth = 0; cur = ""
        for ch in rest:
            if ch == "[": depth += 1
            if ch == "]": depth -= 1
            if ch == "," and depth == 0:
                toks.append(cur.strip()); cur = ""
            else: cur += ch
        if cur.strip(): toks.append(cur.strip())
        ops = []; mods = []
        for i, tk in enumerate(toks):
            sp = tk.split()
            if not sp: continue
            ops.append(sp[0]); mods += sp[1:]
        self.ops = ops; self.mods = mods
        self.dst = set(); self.src = set(); self.srcA = set(); self.srcB = set(); self.srcC = set()
        self.lds_dma = False; self.wide_store = False
        for m_ in mods:
            if m_.startswith("offset:"):
                o_ = int(m_[7:], 0)
                lim = 65535 if self.op.startswith("ds_") else 4095
                assert 0 <= o_ <= lim, "offset out of range: " + text
        self.dpp = any(m.startswith(("row_", "quad_perm", "wave_")) for m in mods) or self.op.endswith("_dpp")
        op = self.op
        R = lambda i: regs_of(ops[i]) if i < len(ops) else set()
        allsrc = lambda a: set().union(*[regs_of(o) for o in ops[a:]]) if len(ops) > a else set()
        if op.startswith("v_mfma"):
            self.kind = "mfma"; self.dst = R(0); self.srcA = R(1); self.srcB = R(2); self.srcC = R(3)
            self.src = self.srcA | self.srcB | self.srcC
        elif op.startswith("v_permlane") and "swap" in op:
            self.kind = "valu"; self.dst = R(0) | R(1); self.src = R(0) | R(1)
        elif op.startswith("v_"):
            self.kind = "trans" if op.replace("_e32", "").replace("_e64", "") in TRANS else "valu"
            self.dst = R(0); self.src = allsrc(1)
            if op.startswith(("v_fmac", "v_dot2c", "v_pk_fmac")): self.src |= R(0)
            if op.startswith("v_cndmask") and len(ops) == 3: self.src |= {"vcc"}
            if op.startswith(("v_add_co", "v_sub_co", "v_addc_co", "v_subb_co")): self.dst |= R(1); self.src = allsrc(2)
            if op.startswith("v_cmpx"): self.dst |= {"exec"}
            if self.dpp: self.src |= R(0)
        elif op.startswith("ds_"):
            self.kind = "ds"
            if op.startswith(("ds_read", "ds_bpermute", "ds_permute", "ds_swizzle")) : self.dst = R(0); self.src = allsrc(1)
            else: self.src = allsrc(0)
        elif op.startswith(("buffer_", "global_")):
            self.kind = "vm"
            if op in ("buffer_wbl2", "buffer_inv"):
                pass
            elif "lds" in mods or "_lds_" in op:
                self.lds_dma = True; self.src = allsrc(0) | {"m0"}
            elif "_load" in op:
                self.dst = R(0); self.src = allsrc(1)
            elif "atomic" in op and "sc0" in mods:
                self.dst = R(0); self.src = allsrc(0)
            else:
                self.src = allsrc(0)
                if op.endswith(("x3", "x4")): self.wide_store = True
        elif op.startswith(("s_load", "s_buffer_load", "s_atomic", "s_memtime", "s_memrealtime")):
            self.kind = "smem"; self.dst = R(0); self.src = allsrc(1)
        elif op in ("s_waitcnt", "s_barrier", "s_nop", "s_endpgm", "s_sleep", "s_setprio") or op.startswith(("s_cbranch", "s_branch")):
            self.kind = "sctl"
        elif op.startswith("s_cmp"):
            self.kind = "salu"; self.src = allsrc(0)
        elif op.startswith("s_"):
            self.kind = "salu"; self.dst = R(0); self.src = allsrc(1)
            if "saveexec" in op: self.dst |= {"exec"}; self.src |= {"exec"}
        else:
            raise ValueError("unknown instruction: " + text)

class Kern:
    def __init__(self, name):
        self.name = name
        self.items = []
        self.nv = 0
        self.maxv = 0
        self.lds = 0
    def valloc(self, n=1, align=None):
        if align is None: align = 1 if n == 1 else (2 if n < 4 else 4)
        self.nv = (self.nv + align - 1) // align * align
        r = self.nv; self.nv += n; self.maxv = max(self.maxv, self.nv)
        return r
    def aalloc(self, n=1, align=4):
        self.na = (getattr(self, "na", 0) + align - 1) // align * align
        r = self.na; self.na += n
        return r
    def I(self, text, tag=None):
        ins = Ins(text); ins.tag = tag; self.items.append(ins)
    def wait_tag(self, tag): self.items.append(("WAITTAG", tag))
    def reset(self): self.items.append(("RESET", None))
    def reset_vm(self): self.items.append(("RESETVM", None))
    def vm_limit(self, n): self.items.append(("VMLIMIT", n))
    stamps_on = False
    det = None; cur = None
    def dstamp(self):
        if self.det is not None and self.det == self.cur: self.stamp(True)
    def stamp(self, force=False):
        if not self.stamps_on: return
        if self.det is not None and not force and getattr(self, "nstamp", 0) > 0: return
        n = getattr(self, "nstamp", 0); self.nstamp = n + 1
        self("s_memrealtime s[68:69]"); self("s_waitcnt lgkmcnt(0)"); self(f"s_mov_b32 s{70+n}, s68")
    def stamp_set(self, n): self.nstamp = n
    def stamp_flush(self, wsptr, vt, vt2):
        if not self.stamps_on: return
        self(f"s_add_u32 s64, s{wsptr}, 0xF00000"); self(f"s_addc_u32 s65, s{wsptr+1}, 0"); self("s_and_b32 s65, s65, 0xffff")
        self("s_mov_b32 s66, 0x100000"); self("s_mov_b32 s67, 0x20000")
        self("s_lshl_b32 s68, s2, 3"); self("s_add_u32 s68, s68, s3"); self("s_lshl_b32 s68, s68, 7")
        self("s_mov_b64 exec, 1")
        self(f"v_mov_b32 v{vt}, s68")
        for i in range(22):
            self(f"v_mov_b32 v{vt2}, s{70+i}")
            self(f"buffer_store_dword v{vt2}, v{vt}, s[64:67], 0 offen offset:{4*i}")
            self("s_nop 1")
    def L(self, label): self.items.append(label + ":")
    def C(self, text): self.items.append("; " + text)
    def __call__(self, text):
        for line in text.strip().split("\n"):
            line = line.strip()
            if not line: continue
            if line.startswith(";"): self.items.append(line)
            elif line.endswith(":"): self.items.append(line)
            else: self.I(line)

    def finalize(self):
        out = []
        vm = []
        lg = []
        hist = []
        pos = 0
        def emit_txt(t): out.append("    " + t)
        for it in self.items:
            if isinstance(it, tuple) and it[0] == "RESETVM":
                continue
            if isinstance(it, tuple) and it[0] == "VMLIMIT":
                if len(vm) > it[1]:
                    emit_txt(f"s_waitcnt vmcnt({it[1]})"); pos += 1
                    vm = vm[len(vm) - it[1]:] if it[1] else []
                continue
            if isinstance(it, tuple) and it[0] == "RESET":
                vm = []; lg = []; hist = []
                emit_txt("s_nop 7"); emit_txt("s_nop 7"); pos += 16
                continue
            if isinstance(it, tuple):
                idx = [i for i, (d, tg) in enumerate(vm) if tg == it[1]]
                if idx:
                    n = min(len(vm) - 1 - idx[-1], 63)
                    emit_txt(f"s_waitcnt vmcnt({n})"); pos += 1
                    vm = vm[len(vm) - n:] if n else []
                continue
            if isinstance(it, str):
                out.append(it if it.endswith(":") else "    " + it)
                if it.endswith(":"):
                    pass
                continue
            ins = it
            touched = ins.src | ins.dst
            if ins.op == "s_waitcnt":
                m = re.search(r"vmcnt\((\d+)\)", ins.text)
                if m:
                    n = int(m.group(1)); vm = vm[len(vm) - n:] if n < len(vm) else vm
                    if n == 0: vm = []
                m = re.search(r"lgkmcnt\((\d+)\)", ins.text)
                if m:
                    n = int(m.group(1)); lg = lg[len(lg) - n:] if n < len(lg) else lg
                    if n == 0: lg = []
            else:
                need_vm = None
                for i, (d, tg) in enumerate(vm):
                    if d & touched: need_vm = len(vm) - 1 - i
                need_lg = None
                for i, (d, sm) in enumerate(lg):
                    if d & touched:
                        need_lg = len(lg) - 1 - i
                        if any(s for _, s in lg): need_lg = 0
                w = []
                if need_vm is not None:
                    n = min(need_vm, 63); w.append(f"vmcnt({n})"); vm = vm[len(vm) - n:] if n else []
                if need_lg is not None:
                    n = min(need_lg, 15); w.append(f"lgkmcnt({n})"); lg = lg[len(lg) - n:] if n else []
                if w:
                    emit_txt("s_waitcnt " + " ".join(w)); pos += 1
            need = 0
            for (p, ppos) in reversed(hist):
                dist = pos - ppos - 1
                if dist >= 20: break
                req = 0
                pv = p.kind in ("valu", "trans")
                cv = ins.kind in ("valu", "trans")
                if p.kind == "mfma":
                    passes = 8 if "32x32" in p.op else 4
                    big = {4: 8, 8: 12}[passes]
                    if ins.kind == "mfma":
                        if p.dst & (ins.srcA | ins.srcB): req = max(req, big)
                        if p.dst & ins.srcC and not (p.dst == ins.srcC and p.op == ins.op): req = max(req, {4: 6, 8: 10}[passes])
                    elif ins.kind in ("valu", "trans", "vm", "ds"):
                        if p.dst & touched: req = max(req, big)
                        if cv and (p.srcC & ins.dst): req = max(req, {4: 3, 8: 7}[passes])
                if pv:
                    pvd = {r for r in p.dst if r[0] in "va" and r != "vcc"}
                    psd = {r for r in p.dst if r[0] == "s" or r == "vcc"}
                    if ins.kind == "mfma" and (pvd & ins.src): req = max(req, 2)
                    if ins.kind == "mfma" and "exec" in p.dst: req = max(req, 4)
                    if p.kind == "trans" and ins.kind == "valu" and (pvd & ins.src): req = max(req, 1)
                    if cv and (psd & ins.src): req = max(req, 4 if ins.op.startswith(("v_readlane", "v_writelane")) else 2)
                    if ins.kind == "vm" and (psd & ins.src): req = max(req, 5)
                    if ins.op.startswith(("v_readfirstlane", "v_readlane")) and (pvd & ins.src): req = max(req, 1)
                    if ins.op.startswith("v_permlane") and (pvd & ins.src): req = max(req, 2)
                    if ins.dpp and (pvd & ins.src): req = max(req, 2)
                    if ins.dpp and "exec" in p.dst: req = max(req, 5)
                    if "exec" in p.dst and ins.op.startswith(("v_readfirstlane", "v_readlane", "v_writelane", "v_permlane")): req = max(req, 4)
                    if ins.kind == "salu" and (psd & ins.src): req = max(req, 1)
                if p.kind == "salu" and "m0" in p.dst and ins.lds_dma: req = max(req, 1)
                if p.wide_store and (p.src & ins.dst) and ins.kind != "salu": req = max(req, 2)
                if req > dist: need = max(need, req - dist)
            while need > 0:
                n = min(need, 16); emit_txt(f"s_nop {n - 1}"); pos += n; need -= n
            emit_txt(ins.text)
            hist.append((ins, pos));
            if len(hist) > 40: hist = hist[-40:]
            if len(vm) > 62 and ins.kind == "vm": print("WARNING: >63 vm ops outstanding in", self.name)
            if ins.op == "s_nop": pos += int(ins.ops[0]) + 1
            else: pos += 1
            if ins.kind == "vm" and ins.op not in ("buffer_wbl2", "buffer_inv"): vm.append((set(ins.dst), ins.tag))
            if ins.kind == "vm" and ins.op in ("buffer_wbl2", "buffer_inv"): vm.append((set(), None))
            if ins.kind == "ds": lg.append((set(ins.dst), False))
            if ins.kind == "smem": lg.append((set(ins.dst), True))
        return out

    def text(self, nsgpr=100):
        body = self.finalize()
        assert self.maxv <= 256, self.maxv
        na = getattr(self, "na", 0)
        assert na <= 256
        acc_off = max(4, (self.maxv + 3) // 4 * 4)
        nv = max(8, (acc_off + na + 7) // 8 * 8)
        code = [f".globl {self.name}", ".p2align 8", f".type {self.name},@function", f"{self.name}:"] + body
        desc = [f".amdhsa_kernel {self.name}",
                f"  .amdhsa_next_free_vgpr {nv}",
                f"  .amdhsa_next_free_sgpr {nsgpr}",
                f"  .amdhsa_accum_offset {acc_off}",
                "  .amdhsa_group_segment_fixed_size 0",
                "  .amdhsa_kernarg_size 72",
                "  .amdhsa_user_sgpr_count 2",
                "  .amdhsa_user_sgpr_kernarg_segment_ptr 1",
                "  .amdhsa_system_sgpr_workgroup_id_x 1",
                "  .amdhsa_float_denorm_mode_32 3",
                ".end_amdhsa_kernel"]
        return "\n".join(code), "\n".join(desc)

def v(r, n=1): return f"v{r}" if n == 1 else f"v[{r}:{r + n - 1}]"
def a(r, n=1): return f"a{r}" if n == 1 else f"a[{r}:{r + n - 1}]"
def s(r, n=1): return f"s{r}" if n == 1 else f"s[{r}:{r + n - 1}]"

def build_file(header, launches, kerns):
    out = [header.rstrip()]
    for (k, g, b, l) in launches:
        out.append(f"; @launch kernel={k} grid=({g},1,1) block=({b},1,1) lds={l}")
    out.append('.amdgcn_target "amdgcn-amd-amdhsa--gfx950"')
    out.append(".text")
    descs = []
    for k in kerns:
        c, d = k.text(); out.append(c); descs.append(d)
    out.append('.section .rodata,"a"')
    for d in descs:
        out.append(".p2align 6"); out.append(d)
    return "\n".join(out) + "\n"
```

```python
import sys, struct, os
from asmlib import *
from gen import (S_, D_, F_, WS_PQ, WS_X1, WS_X2, WS_H, WS_KV, WS_CS, WS_ST0, WS_ST1, WS_ST2, XB, P_X, P_WQKV, P_WO, P_W1, P_W2, P_OUT, P_WS,
                 LOG2E, fbits, prologue, srd, epilogue_end, HEADER)
from gen2 import Bases, interleave, a_read_bases, phi4
import gen

WS_FLAG = 0xE18800
WS_XT = 0xE1E800
SC_, SM_ = 96, 97
NA = int(os.environ.get("G_NA", "4")); NB = 9 - NA
ARING, BRING, EX = 0, NA * 16384, 147456
LDS_AB, LDS_MODE = EX, EX + 1024
SFL = 92
FORCE = os.environ.get("G_MODE", "")

def a_dma_offsets(k, nins, PA, rowpitch, rowbase_s, t0, t1):
    UA = PA // 16; RA = 64 // UA; sh = {8: 3, 16: 4}[UA]
    out = []
    k(f"s_mul_i32 s58, s59, {nins*RA}")
    k(f"s_add_u32 s58, s58, s{rowbase_s}")
    for i in range(nins):
        r = k.valloc(); out.append(r)
        k(f"v_lshrrev_b32 {v(t0)}, {sh}, {v(k.vL)}")
        if i: k(f"v_add_u32 {v(t0)}, {RA*i}, {v(t0)}")
        if PA == 128: k(f"v_bfe_u32 {v(t1)}, {v(t0)}, 1, 3")
        else: k(f"v_and_b32 {v(t1)}, 15, {v(t0)}")
        k(f"v_and_b32 {v(r)}, {UA-1}, {v(k.vL)}")
        k(f"v_xor_b32 {v(t1)}, {v(t1)}, {v(r)}")
        k(f"v_add_u32 {v(t0)}, s58, {v(t0)}")
        k(f"v_mul_u32_u24 {v(t0)}, {rowpitch}, {v(t0)}")
        k(f"v_lshl_add_u32 {v(r)}, {v(t1)}, 4, {v(t0)}")
    assert (nins * RA) % 16 == 0
    return out

def tile64(k):
    k(f"s_lshr_b32 s48, s{SM_}, 3")
    k(f"s_lshl_b32 s22, s{SC_}, 1")
    k("s_add_u32 s22, s22, s48")
    k(f"s_and_b32 s23, s{SM_}, 7")
    k("s_lshl_b32 s50, s22, 6")
    k("s_lshl_b32 s54, s23, 7")

def resid_load64(k, SX, t0, t1, xr):
    k(f"v_lshrrev_b32 {v(t0)}, 3, v0")
    k(f"v_and_b32 {v(t1)}, 7, v0")
    k(f"v_add_u32 {v(t0)}, s50, {v(t0)}")
    k(f"v_lshlrev_b32 {v(t0)}, 10, {v(t0)}")
    k(f"v_lshl_add_u32 {v(t0)}, {v(t1)}, 4, {v(t0)}")
    k(f"v_add_u32 {v(t0)}, s54, {v(t0)}")
    k("s_mov_b32 s60, 32768")
    k(f"buffer_load_dwordx4 {v(xr,4)}, {v(t0)}, s[{SX}:{SX+3}], 0 offen")
    k(f"buffer_load_dwordx4 {v(xr+4,4)}, {v(t0)}, s[{SX}:{SX+3}], s60 offen")

def store64_prep(k, xr, do_stats):
    vy = k.valloc(8, 4); va_ = k.valloc(); vo = k.valloc(); sm = k.valloc(4, 4); tt = k.valloc(2, 2)
    t0, t1, t2, t3 = [k.valloc() for _ in range(4)]
    k(f"v_lshrrev_b32 {v(t0)}, 3, v0")
    k(f"v_and_b32 {v(t1)}, 7, v0")
    k(f"v_mul_u32_u24 {v(va_)}, 144, {v(t0)}")
    k(f"v_lshl_add_u32 {v(va_)}, {v(t1)}, 4, {v(va_)}")
    k(f"ds_read_b128 {v(vy,4)}, {v(va_)}")
    k(f"ds_read_b128 {v(vy+4,4)}, {v(va_)} offset:{32*144}")
    k(f"v_add_u32 {v(t0)}, s50, {v(t0)}")
    k(f"v_lshlrev_b32 {v(vo)}, 10, {v(t0)}")
    k(f"v_lshl_add_u32 {v(vo)}, {v(t1)}, 4, {v(vo)}")
    k(f"v_add_u32 {v(vo)}, s54, {v(vo)}")
    if do_stats:
        for i in range(4): k(f"v_mov_b32 {v(sm+i)}, 0")
        k("s_mov_b32 s60, 0x3f803f80")
        k(f"v_lshlrev_b32 {v(va_)}, 6, {v(t0)}")
        k(f"s_lshr_b32 s61, s54, 4")
        k(f"v_add_u32 {v(va_)}, s61, {v(va_)}")
    for i in range(8):
        k(f"v_lshlrev_b32 {v(t0)}, 16, {v(vy+i)}")
        k(f"v_and_b32 {v(t1)}, 0xffff0000, {v(vy+i)}")
        k(f"v_lshlrev_b32 {v(t2)}, 16, {v(xr+i)}")
        k(f"v_and_b32 {v(t3)}, 0xffff0000, {v(xr+i)}")
        k(f"v_add_f32 {v(t0)}, {v(t0)}, {v(t2)}")
        k(f"v_add_f32 {v(t1)}, {v(t1)}, {v(t3)}")
        k(f"v_cvt_pk_bf16_f32 {v(vy+i)}, {v(t0)}, {v(t1)}")
        if do_stats:
            s_ = sm + 2 * (i // 4)
            k(f"v_dot2_f32_bf16 {v(s_)}, {v(vy+i)}, s60, {v(s_)}")
            k(f"v_dot2_f32_bf16 {v(s_+1)}, {v(vy+i)}, {v(vy+i)}, {v(s_+1)}")
    if do_stats:
        for dpp in ("quad_perm:[1,0,3,2]", "quad_perm:[2,3,0,1]", "row_half_mirror"):
            for h in range(2):
                for c in range(2):
                    k(f"v_add_f32_dpp {v(tt+c)}, {v(sm+2*h+c)}, {v(sm+2*h+c)} {dpp} row_mask:0xf bank_mask:0xf")
                for c in range(2):
                    k(f"v_mov_b32 {v(sm+2*h+c)}, {v(tt+c)}")
    return vy, vo, sm, va_

def main_loop(k, nks, kpc, reads, mfmas, last=()):
    k.dstamp()
    k("s_barrier"); k.stamp()
    for r in reads(0): k(r)
    for ks in range(nks):
        if ks == nks - 1: interleave(k, mfmas(ks), list(last))
        else:
            if (ks + 1) % kpc == 0:
                k("s_waitcnt lgkmcnt(0)")
                k.dstamp()
                k("s_barrier")
            interleave(k, mfmas(ks), reads(ks + 1))
    k.stamp()

class Phase:
    D = NA - 1; has_ln = False; pseudo = 0
    def __init__(self, tag): self.tag = tag; self.bslot = {}
    def aslot(self, c): return ARING + (c % NA) * 16384
    def issue_A(self, k, c):
        k(f"s_mov_b32 s56, {c*self.PA}")
        for i in range(8):
            k(f"s_add_u32 m0, s55, {self.aslot(c)+i*1024}")
            k.I(f"buffer_load_dwordx4 {v(self.voA[i])}, s[24:27], s56 offen lds", tag=f"{self.tag}a{c}")
    def issue_B(self, k, c):
        k(f"s_mov_b32 s57, {c*self.BSTEP}")
        for i in range(self.NBI):
            k(f"s_add_u32 m0, s{self.sBW}, {self.bslot[c]+i*1024}")
            k.I(f"buffer_load_dwordx4 {v(self.voB[i])}, s[{self.SWB}:{self.SWB+3}], s57 offen lds", tag=f"{self.tag}b{c}")
    def issue_Bv(self, k, c, vs):
        k(f"s_mov_b32 s57, {c*self.BSTEP}")
        for i in range(self.NBI):
            k.I(f"buffer_load_dwordx4 {v(vs+4*i,4)}, {v(self.voB[i])}, s[{self.SWB}:{self.SWB+3}], s57 offen", tag=f"{self.tag}b{c}")
    def place_Bv(self, k, c, vs, vl16, vtmp):
        k(f"s_add_u32 s58, s{self.sBW}, {self.bslot[c]}")
        k(f"v_add_u32 {v(vtmp)}, s58, {v(vl16)}")
        for i in range(self.NBI):
            k(f"ds_write_b128 {v(vtmp)}, {v(vs+4*i,4)} offset:{i*1024}")
    Qe = 1
    def spare(self, c): return 1 if c >= self.NC - self.D else 0

class P1(Phase):
    Qe = 5
    def spare(self, c): return 1 if (c >= self.NC - self.D or c % 2 == 1) else 0
    NC = 8; PA = 128; NBI = 6; BSTEP = 64 * 3072; has_ln = True; nprod = 16
    LDS_KV, LDS_Z, SP = EX + 2048, EX + 6144, 80
    def __init__(self, tag, xsrc, kv_off, st_off): super().__init__(tag); self.xsrc, self.kv_off, self.st_off = xsrc, kv_off, st_off
    def tile(self, k):
        k(f"s_mov_b32 s22, s{SC_}"); k(f"s_mov_b32 s23, s{SM_}")
        k("s_lshl_b32 s50, s22, 7"); k("s_lshl_b32 s54, s23, 6")
    def setup_A(self, k, vt, vt2):
        self.voA = a_dma_offsets(k, 8, 128, 1024, 50, vt, vt2)
        k("s_waitcnt lgkmcnt(0)")
        if self.xsrc == "in": srd(k, 24, P_X, 0, XB)
        else: srd(k, 24, P_WS, self.xsrc, XB)
    def setup_B(self, k, vt, vt2, vt3, tmp):
        self.voB = [k.valloc() for _ in range(6)]
        u, row, rem, t_, c_ = tmp
        k("s_mul_i32 s53, s59, 384")
        k(f"s_lshl_b32 s54, s{SM_}, 6")
        for i in range(6):
            k(f"v_add_u32 {v(u)}, s53, {v(k.vL)}")
            if i: k(f"v_add_u32 {v(u)}, {64*i}, {v(u)}")
            k(f"v_mul_u32_u24 {v(row)}, 0xaaab, {v(u)}")
            k(f"v_lshrrev_b32 {v(row)}, 19, {v(row)}")
            k(f"v_mul_u32_u24 {v(rem)}, 12, {v(row)}")
            k(f"v_sub_u32 {v(rem)}, {v(u)}, {v(rem)}")
            k(f"v_lshrrev_b32 {v(t_)}, 1, {v(rem)}")
            k(f"v_bfe_u32 {v(c_)}, {v(row)}, 3, 1")
            k(f"v_sub_u32 {v(t_)}, {v(t_)}, {v(c_)}")
            k(f"v_add_u32 {v(c_)}, 6, {v(t_)}")
            k(f"v_min_u32 {v(t_)}, {v(t_)}, {v(c_)}")
            k(f"v_lshrrev_b32 {v(c_)}, 1, {v(t_)}")
            k(f"v_lshlrev_b32 {v(c_)}, 10, {v(c_)}")
            k(f"v_and_b32 {v(t_)}, 1, {v(t_)}")
            k(f"v_lshl_add_u32 {v(c_)}, {v(t_)}, 5, {v(c_)}")
            k(f"v_and_b32 {v(rem)}, 1, {v(rem)}")
            k(f"v_lshl_add_u32 {v(c_)}, {v(rem)}, 4, {v(c_)}")
            k(f"v_mul_u32_u24 {v(row)}, 3072, {v(row)}")
            k(f"v_add3_u32 {v(self.voB[i])}, {v(row)}, {v(c_)}, s54")
        k(f"s_mul_i32 s{self.sBW}, s59, 6144")
        k("s_waitcnt lgkmcnt(0)")
        srd(k, self.SWB, P_WQKV, 0, 512 * 1536 * 2)
    def compute(self, k, vt, vt2, vt3):
        SP = self.SP; SCS = 40
        k("s_lshr_b32 s52, s3, 1")
        k("s_lshl_b32 s52, s52, 6")
        k("s_and_b32 s53, s3, 1")
        k("s_waitcnt lgkmcnt(0)")
        srd(k, SCS, P_WS, WS_CS, 1536 * 4)
        csq = k.valloc(4); cskv = k.valloc(2, 2)
        k("s_lshl_b32 s56, s23, 7")
        k("s_lshl_b32 s57, s53, 6")
        k("s_add_u32 s56, s56, s57")
        k(f"v_lshlrev_b32 {v(vt2)}, 4, {v(k.vG)}")
        k(f"v_add_u32 {v(vt2)}, s56, {v(vt2)}")
        k(f"buffer_load_dwordx4 {v(csq,4)}, {v(vt2)}, s[{SCS}:{SCS+3}], 0 offen")
        k(f"v_lshlrev_b32 {v(vt3)}, 2, {v(k.vR16)}")
        k(f"v_add_u32 {v(vt3)}, s56, {v(vt3)}")
        k("s_mov_b32 s57, 2048")
        for kv in range(2):
            k(f"buffer_load_dword {v(cskv+kv)}, {v(vt3)}, s[{SCS}:{SCS+3}], s57 offen offset:{2048*kv}")
        B = Bases(k)
        a_read_bases(k, B, 128, 52, 2, vt, vt2)
        k(f"v_bfe_u32 {v(vt)}, {v(k.vL)}, 2, 2")
        k(f"v_lshl_add_u32 {v(vt)}, {v(k.vG)}, 3, {v(vt)}")
        k(f"v_mul_u32_u24 {v(vt)}, 192, {v(vt)}")
        k(f"v_and_b32 {v(vt2)}, 3, {v(k.vL)}")
        k(f"v_lshl_add_u32 {v(vt)}, {v(vt2)}, 3, {v(vt)}")
        k(f"v_and_b32 {v(vt2)}, 1, {v(k.vG)}")
        k(f"v_add_u32 {v(vt2)}, s53, {v(vt2)}")
        for j in range(3):
            r = k.valloc()
            k(f"v_add_u32 {v(vt3)}, {2*j}, {v(vt2)}")
            if j == 2:
                k(f"v_subrev_u32 {v(r)}, 6, {v(vt3)}")
                k(f"v_min_u32 {v(vt3)}, {v(vt3)}, {v(r)}")
            k(f"v_lshl_add_u32 {v(r)}, {v(vt3)}, 5, {v(vt)}")
            B.add(("W", j), r, 3)
        acc = k.valloc(48, 4)
        for i in range(48): k(f"v_mov_b32 {v(acc+i)}, 0")
        Ab = [k.valloc(16, 4), k.valloc(16, 4)]; Wb = [k.valloc(12, 4), k.valloc(12, 4)]
        ab = [k.valloc(2, 2) for _ in range(4)]
        abn = [k.valloc(8, 4) for _ in range(4)]
        vab = k.valloc(); vabn = k.valloc()
        k(f"v_add_u32 {v(vab)}, s52, {v(k.vR16)}")
        k(f"v_lshlrev_b32 {v(vab)}, 3, {v(vab)}")
        k(f"v_add_u32 {v(vab)}, {LDS_AB}, {v(vab)}")
        k(f"v_lshlrev_b32 {v(vabn)}, 2, {v(k.vG)}")
        k(f"v_add_u32 {v(vabn)}, s52, {v(vabn)}")
        k(f"v_lshlrev_b32 {v(vabn)}, 3, {v(vabn)}")
        k(f"v_add_u32 {v(vabn)}, {LDS_AB}, {v(vabn)}")
        def reads(ks):
            c = ks // 2; kk = ks & 1; A_ = Ab[ks & 1]; W_ = Wb[ks & 1]
            ra = [f"ds_read_b128 {v(A_+4*rt,4)}, {B.at(('A',kk), self.aslot(c) + rt*2048)}" for rt in range(4)]
            rw = [f"ds_read_b64_tr_b16 {v(W_+4*j+2*hh,2)}, {B.at(('W',j), self.bslot[c] + kk*6144 + hh*768)}" for j in range(3) for hh in range(2)]
            return [ra[0]] + rw + ra[1:]
        def mfmas(ks):
            A_ = Ab[ks & 1]; W_ = Wb[ks & 1]; out = []
            for rt in range(4):
                for j in range(3):
                    ac = acc + (rt * 3 + j) * 4
                    if j == 0: out.append(f"v_mfma_f32_16x16x32_bf16 {v(ac,4)}, {v(W_,4)}, {v(A_+4*rt,4)}, {v(ac,4)}")
                    else: out.append(f"v_mfma_f32_16x16x32_bf16 {v(ac,4)}, {v(A_+4*rt,4)}, {v(W_+4*j,4)}, {v(ac,4)}")
            return out
        o = []
        for rt in range(4):
            o.append(f"ds_read_b128 {v(abn[rt],4)}, {v(vabn)} offset:{rt*128}")
            o.append(f"ds_read_b128 {v(abn[rt]+4,4)}, {v(vabn)} offset:{rt*128+16}")
            o.append(f"ds_read_b64 {v(ab[rt],2)}, {v(vab)} offset:{rt*128}")
        main_loop(k, 16, 2, reads, mfmas, o)
        k("s_barrier")
        k(f"s_mov_b32 s62, {LOG2E:#x}"); k(f"s_mov_b32 s63, {LOG2E:#x}")
        k(f"s_mov_b32 s64, {fbits(1e-6):#x}"); k(f"s_mov_b32 s65, {fbits(1e-6):#x}")
        T = k.valloc(4)
        fk = k.valloc(8, 4); fv = k.valloc(8, 4)
        for rt in range(4):
            for j in (1, 2):
                ac = acc + (rt * 3 + j) * 4; f = (fk, fv)[j - 1] + 2 * rt
                for jj in range(4): k(f"v_mul_f32 {v(T+jj)}, {v(abn[rt]+2*jj+1)}, {v(cskv+j-1)}")
                for jj in range(4): k(f"v_fma_f32 {v(ac+jj)}, {v(abn[rt]+2*jj)}, {v(ac+jj)}, {v(T+jj)}")
                if j == 1: phi4(k, ac, T)
                k(f"v_cvt_pk_bf16_f32 {v(f)}, {v(ac)}, {v(ac+1)}")
                k(f"v_cvt_pk_bf16_f32 {v(f+1)}, {v(ac+2)}, {v(ac+3)}")
        ones = k.valloc(4)
        for i in range(4): k(f"v_mov_b32 {v(ones+i)}, 0x3f803f80")
        kvp = k.valloc(4); zp = k.valloc(4)
        k(f"v_mfma_f32_16x16x32_bf16 {v(kvp,4)}, {v(fk,4)}, {v(fv,4)}, 0")
        k(f"v_mfma_f32_16x16x32_bf16 {v(zp,4)}, {v(fk,4)}, {v(ones,4)}, 0")
        k(f"v_mfma_f32_16x16x32_bf16 {v(kvp,4)}, {v(fk+4,4)}, {v(fv+4,4)}, {v(kvp,4)}")
        k(f"v_mfma_f32_16x16x32_bf16 {v(zp,4)}, {v(fk+4,4)}, {v(ones,4)}, {v(zp,4)}")
        vs = k.valloc()
        k(f"v_add_u32 {v(vs)}, s52, {v(k.vR16)}")
        k(f"v_mul_u32_u24 {v(vs)}, {SP}, {v(vs)}")
        k(f"v_lshl_add_u32 {v(vs)}, {v(k.vG)}, 3, {v(vs)}")
        k("s_lshl_b32 s57, s53, 5")
        k(f"v_add_u32 {v(vs)}, s57, {v(vs)}")
        for rt in range(4):
            ac = acc + rt * 12
            for p in range(2):
                k(f"v_pk_mul_f32 {v(T+2*p,2)}, {v(csq+2*p,2)}, {v(ab[rt],2)} op_sel:[0,1] op_sel_hi:[1,1]")
            for p in range(2):
                k(f"v_pk_fma_f32 {v(ac+2*p,2)}, {v(ac+2*p,2)}, {v(ab[rt],2)}, {v(T+2*p,2)} op_sel:[0,0,0] op_sel_hi:[1,0,1]")
            phi4(k, ac, T)
            k(f"v_cvt_pk_bf16_f32 {v(ac)}, {v(ac)}, {v(ac+1)}")
            k(f"v_cvt_pk_bf16_f32 {v(ac+1)}, {v(ac+2)}, {v(ac+3)}")
            k(f"ds_write_b64 {v(vs)}, {v(ac,2)} offset:{rt*16*SP}")
        k("s_lshl_b32 s57, s3, 10")
        k(f"s_add_u32 s57, s57, {self.LDS_KV}")
        k(f"v_lshlrev_b32 {v(vt)}, 4, {v(k.vL)}")
        k(f"v_add_u32 {v(vt)}, s57, {v(vt)}")
        k("s_lshl_b32 s58, s3, 6")
        k(f"s_add_u32 s58, s58, {self.LDS_Z}")
        k(f"v_lshlrev_b32 {v(vt2)}, 4, {v(k.vG)}")
        k(f"v_add_u32 {v(vt2)}, s58, {v(vt2)}")
        k(f"ds_write_b128 {v(vt)}, {v(kvp,4)}")
        k(f"ds_write_b128 {v(vt2)}, {v(zp,4)}")
        k("s_waitcnt lgkmcnt(0)")
    def store(self, k, vt, vt2, vt3, emit_stores):
        SPQ, SKV, SP = 32, 36, self.SP
        srd(k, SPQ, P_WS, WS_PQ, XB)
        srd(k, SKV, P_WS, self.kv_off, 34816)
        k("s_barrier")
        vy = k.valloc(8, 4); va_ = k.valloc(); vo = k.valloc(); rd = k.valloc(8, 4)
        k(f"v_lshrrev_b32 {v(vt)}, 2, v0")
        k(f"v_and_b32 {v(vt2)}, 3, v0")
        k(f"v_mul_u32_u24 {v(va_)}, {SP}, {v(vt)}")
        k(f"v_lshl_add_u32 {v(va_)}, {v(vt2)}, 4, {v(va_)}")
        k(f"ds_read_b128 {v(vy,4)}, {v(va_)}")
        k(f"ds_read_b128 {v(vy+4,4)}, {v(va_)} offset:{64*SP}")
        k(f"v_add_u32 {v(vt)}, s50, {v(vt)}")
        k(f"v_lshlrev_b32 {v(vo)}, 10, {v(vt)}")
        k(f"v_lshl_add_u32 {v(vo)}, {v(vt2)}, 4, {v(vo)}")
        k(f"v_add_u32 {v(vo)}, s54, {v(vo)}")
        k(f"v_bfe_u32 {v(vt)}, v0, 3, 4")
        k(f"v_lshlrev_b32 {v(vt)}, 4, {v(vt)}")
        k(f"v_bfe_u32 {v(vt2)}, v0, 7, 1")
        k(f"v_lshl_add_u32 {v(vt)}, {v(vt2)}, 9, {v(vt)}")
        k(f"v_bfe_u32 {v(vt2)}, v0, 2, 1")
        k(f"v_lshl_add_u32 {v(vt)}, {v(vt2)}, 8, {v(vt)}")
        k(f"v_and_b32 {v(vt2)}, 3, v0")
        k(f"v_lshl_add_u32 {v(vt)}, {v(vt2)}, 2, {v(vt)}")
        k(f"v_add_u32 {v(vt)}, {self.LDS_KV}, {v(vt)}")
        for h in range(2):
            k(f"ds_read_b32 {v(rd+2*h)}, {v(vt)} offset:{h*1024}")
            k(f"ds_read_b32 {v(rd+2*h+1)}, {v(vt)} offset:{h*1024+2048}")
        k(f"v_and_b32 {v(vt3)}, 31, v0")
        k(f"v_lshlrev_b32 {v(vt3)}, 2, {v(vt3)}")
        k(f"v_add_u32 {v(vt2)}, {self.LDS_Z}, {v(vt3)}")
        k(f"ds_read_b32 {v(rd+4)}, {v(vt2)}")
        k(f"ds_read_b32 {v(rd+5)}, {v(vt2)} offset:128")
        k("s_mov_b32 s60, 65536")
        emit_stores([f"buffer_store_dwordx4 {v(vy,4)}, {v(vo)}, s[{SPQ}:{SPQ+3}], 0 offen",
                     f"buffer_store_dwordx4 {v(vy+4,4)}, {v(vo)}, s[{SPQ}:{SPQ+3}], s60 offen"])
        k("s_lshl_b32 s57, s23, 11")
        k(f"v_lshlrev_b32 {v(vt2)}, 2, v0")
        k(f"v_add_u32 {v(vt2)}, s57, {v(vt2)}")
        for h in range(2):
            k(f"v_add_f32 {v(rd+2*h)}, {v(rd+2*h)}, {v(rd+2*h+1)}")
            k(f"buffer_atomic_add_f32 {v(rd+2*h)}, {v(vt2)}, s[{SKV}:{SKV+3}], 0 offen offset:{h*1024}")
        k("s_lshl_b32 s57, s23, 7")
        k(f"s_add_u32 s57, s57, 32768")
        k(f"v_add_u32 {v(vt3)}, s57, {v(vt3)}")
        k(f"v_mov_b32 {v(vt2)}, 0x7ffffff0")
        k(f"v_cmp_gt_u32 vcc, 32, v0")
        k(f"v_cndmask_b32 {v(vt3)}, {v(vt2)}, {v(vt3)}, vcc")
        k(f"v_add_f32 {v(rd+4)}, {v(rd+4)}, {v(rd+5)}")
        k(f"buffer_atomic_add_f32 {v(rd+4)}, {v(vt3)}, s[{SKV}:{SKV+3}], 0 offen")

class P2(Phase):
    NC = 4; PA = 256; NBI = 8; BSTEP = 131072; nprod = 16; pseudo = 1
    LDS_Z, LDS_0 = EX + 2048, EX + 3072
    def __init__(self, tag, xsrc, kv_off, xdst, st_off): super().__init__(tag); self.xsrc, self.kv_off, self.xdst, self.st_off = xsrc, kv_off, xdst, st_off
    def tile(self, k): tile64(k)
    def setup_A(self, k, vt, vt2):
        self.voA = a_dma_offsets(k, 8, 256, 1024, 50, vt, vt2)
        k("s_waitcnt lgkmcnt(0)")
        srd(k, 24, P_WS, WS_PQ, XB)
    def setup_B(self, k, vt, vt2, vt3, tmp):
        self.voB = [k.valloc() for _ in range(8)]
        k(f"v_lshrrev_b32 {v(vt)}, 3, {v(k.vL)}")
        k(f"v_bfe_u32 {v(vt2)}, {v(k.vL)}, 4, 2")
        k(f"v_lshlrev_b32 {v(vt2)}, 1, {v(vt2)}")
        k(f"v_and_b32 {v(vt3)}, 7, {v(k.vL)}")
        k(f"v_xor_b32 {v(vt2)}, {v(vt2)}, {v(vt3)}")
        k(f"v_lshlrev_b32 {v(vt2)}, 4, {v(vt2)}")
        k(f"v_lshl_add_u32 {v(vt)}, {v(vt)}, 10, {v(vt2)}")
        k("s_lshl_b32 s52, s59, 16")
        k(f"s_and_b32 s54, s{SM_}, 7"); k("s_lshl_b32 s54, s54, 7")
        k("s_add_u32 s52, s52, s54")
        k(f"v_add_u32 {v(self.voB[0])}, s52, {v(vt)}")
        for i in range(1, 8): k(f"v_add_u32 {v(self.voB[i])}, {8192*i}, {v(self.voB[0])}")
        k(f"s_lshl_b32 s{self.sBW}, s59, 13")
        k("s_waitcnt lgkmcnt(0)")
        srd(k, self.SWB, P_WO, 0, 512 * 512 * 2)
    def compute(self, k, vt, vt2, vt3):
        SKV, SX = 36, 24
        LDS_F, LDS_Z, LDS_0 = self.bslot[self.NC], self.LDS_Z, self.LDS_0
        self.xr = k.valloc(8, 4)
        kvf = k.valloc(32, 4); zf = k.valloc(2, 2)
        k("s_lshl_b32 s52, s3, 13")
        k(f"v_lshlrev_b32 {v(vt)}, 5, {v(k.vL)}")
        k(f"v_add_u32 {v(vt)}, s52, {v(vt)}")
        k(f"v_add_u32 {v(vt2)}, 4096, {v(vt)}")
        k("s_waitcnt lgkmcnt(0)")
        srd(k, SKV, P_WS, self.kv_off, 34816)
        for p in range(4):
            for hlf in range(2):
                k(f"buffer_load_dwordx4 {v(kvf+8*p+4*hlf,4)}, {v(vt if p < 2 else vt2)}, s[{SKV}:{SKV+3}], 0 offen offset:{(p&1)*2048+hlf*16}")
        k(f"v_lshlrev_b32 {v(vt3)}, 3, v0")
        k(f"v_add_u32 {v(vt3)}, 32768, {v(vt3)}")
        k(f"buffer_load_dwordx2 {v(zf,2)}, {v(vt3)}, s[{SKV}:{SKV+3}], 0 offen")
        if self.xsrc == "in": srd(k, SX, P_X, 0, XB)
        else: srd(k, SX, P_WS, self.xsrc, XB)
        resid_load64(k, SX, vt, vt2, self.xr)
        k("s_lshl_b32 s52, s3, 4")
        B = Bases(k)
        a_read_bases(k, B, 256, 52, 2, vt, vt2)
        aA0, aA1, aAz, sA0, sA1, sAz = [k.valloc() for _ in range(6)]
        k(f"v_lshlrev_b32 {v(vt)}, 4, {v(k.vL)}")
        k(f"v_add_u32 {v(vt)}, {LDS_F}, {v(vt)}")
        k(f"v_mov_b32 {v(vt2)}, {LDS_0}")
        k(f"v_cmp_gt_u32 vcc, 2, {v(k.vG)}")
        k(f"v_cndmask_b32 {v(aA0)}, {v(vt2)}, {v(vt)}, vcc")
        k(f"v_cndmask_b32 {v(aA1)}, {v(vt)}, {v(vt2)}, vcc")
        k(f"v_mov_b32 {v(vt3)}, 1024")
        k(f"v_cndmask_b32 {v(sA0)}, 0, {v(vt3)}, vcc")
        k(f"v_cndmask_b32 {v(sA1)}, {v(vt3)}, 0, vcc")
        k(f"v_and_b32 {v(vt)}, 3, {v(k.vL)}")
        k(f"v_lshrrev_b32 {v(vt3)}, 1, {v(k.vG)}")
        k(f"v_cmp_eq_u32 vcc, {v(vt)}, {v(vt3)}")
        k(f"v_lshlrev_b32 {v(vt)}, 4, {v(k.vG)}")
        k(f"v_add_u32 {v(vt)}, {LDS_Z}, {v(vt)}")
        k(f"v_cndmask_b32 {v(aAz)}, {v(vt2)}, {v(vt)}, vcc")
        k(f"v_cndmask_b32 {v(sAz)}, 0, 64, vcc")
        k(f"v_bfe_u32 {v(vt)}, {v(k.vL)}, 2, 2")
        k(f"v_lshl_add_u32 {v(vt)}, {v(k.vG)}, 2, {v(vt)}")
        k(f"v_bfe_u32 {v(vt2)}, {v(vt)}, 1, 2")
        k(f"v_lshlrev_b32 {v(vt)}, 7, {v(vt)}")
        k(f"v_and_b32 {v(vt3)}, 3, {v(k.vL)}")
        k(f"v_lshl_add_u32 {v(vt)}, {v(vt3)}, 3, {v(vt)}")
        for t in range(4):
            r = k.valloc()
            k(f"v_xor_b32 {v(vt3)}, {t}, {v(vt2)}")
            k(f"v_lshl_add_u32 {v(r)}, {v(vt3)}, 5, {v(vt)}")
            B.add(("W", t), r, 3)
        acc = k.valloc(16, 4)
        for i in range(16): k(f"v_mov_b32 {v(acc+i)}, 0")
        k("s_lshl_b32 s57, s3, 12")
        k(f"s_add_u32 s57, s57, {LDS_F}")
        k(f"v_lshlrev_b32 {v(vt)}, 4, {v(k.vL)}")
        k(f"v_add_u32 {v(vt)}, s57, {v(vt)}")
        for p in range(4):
            for i in range(4):
                k(f"v_cvt_pk_bf16_f32 {v(kvf+8*p+i)}, {v(kvf+8*p+2*i)}, {v(kvf+8*p+2*i+1)}")
            k(f"ds_write_b128 {v(vt)}, {v(kvf+8*p,4)} offset:{p*1024}")
        k(f"v_cvt_pk_bf16_f32 {v(zf)}, {v(zf)}, {v(zf+1)}")
        k(f"v_lshlrev_b32 {v(vt2)}, 2, v0")
        k(f"v_add_u32 {v(vt2)}, {LDS_Z}, {v(vt2)}")
        k(f"ds_write_b32 {v(vt2)}, {v(zf)}")
        k(f"v_mov_b32 {v(zf)}, 0")
        k(f"v_and_b32 {v(vt2)}, 3, v0")
        k(f"v_lshlrev_b32 {v(vt2)}, 2, {v(vt2)}")
        k(f"v_add_u32 {v(vt2)}, {LDS_0}, {v(vt2)}")
        k(f"ds_write_b32 {v(vt2)}, {v(zf)}")
        Wb = [kvf, k.valloc(32, 4)]
        Fb = k.valloc(24, 4); Pb = k.valloc(8, 4)
        N = [k.valloc(24, 4), k.valloc(24, 4)]
        O = [k.valloc(8, 4), k.valloc(8, 4)]; rr = k.valloc(4, 4)
        k(f"s_mov_b32 s62, {fbits(1e-6):#x}"); k(f"s_mov_b32 s63, {fbits(1e-6):#x}")
        def freads(hc):
            o = []
            for q in range(2):
                o += [f"ds_read_b128 {v(Pb+4*q,4)}, {B.at(('A',(hc&1)*2+q), self.aslot(hc//2))}",
                      f"ds_read_b128 {v(Fb+12*q,4)}, {v(aA0)}", f"ds_read_b128 {v(Fb+12*q+4,4)}, {v(aA1)}", f"ds_read_b128 {v(Fb+12*q+8,4)}, {v(aAz)}",
                      f"v_add_u32 {v(aA0)}, {v(aA0)}, {v(sA0)}", f"v_add_u32 {v(aA1)}, {v(aA1)}, {v(sA1)}", f"v_add_u32 {v(aAz)}, {v(aAz)}, {v(sAz)}"]
            return o
        def wreads(hc):
            b = Wb[hc & 1]
            return [f"ds_read_b64_tr_b16 {v(b+16*q+4*t+2*hh,2)}, {B.at(('W',t), self.bslot[hc//2] + ((hc&1)*2+q)*4096 + hh*2048)}" for q in range(2) for t in range(4) for hh in range(2)]
        def amfma(c):
            n = N[c & 1]
            return [f"v_mfma_f32_16x16x32_bf16 {v(n+12*q+4*i,4)}, {v(Fb+12*q+4*i,4)}, {v(Pb+4*q,4)}, 0" for q in range(2) for i in range(3)]
        def cmfma(c):
            b = Wb[c & 1]; o = O[c & 1]
            return [f"v_mfma_f32_16x16x32_bf16 {v(acc+4*t,4)}, {v(b+16*q+4*t,4)}, {v(o+4*q,4)}, {v(acc+4*t,4)}" for q in range(2) for t in range(4)]
        def ovalu(c):
            n0 = N[c & 1]; Oo = O[c & 1]; o = []
            for q in range(2): o.append(f"v_pk_add_f32 {v(rr+2*q,2)}, {v(n0+12*q+8,2)}, s[62:63]")
            for i in range(4): o.append(f"v_rcp_f32 {v(rr+i)}, {v(rr+i)}")
            for q in range(2):
                n = n0 + 12 * q
                for x in range(2): o.append(f"v_pk_mul_f32 {v(n+2*x,2)}, {v(n+2*x,2)}, {v(rr+2*q,2)} op_sel_hi:[1,0]")
                for x in range(2): o.append(f"v_pk_mul_f32 {v(n+4+2*x,2)}, {v(n+4+2*x,2)}, {v(rr+2*q,2)} op_sel:[0,1] op_sel_hi:[1,1]")
            for q in range(2):
                n = n0 + 12 * q
                for h in range(2):
                    o.append(f"v_cvt_pk_bf16_f32 {v(Oo+4*q+2*h)}, {v(n+4*h)}, {v(n+4*h+1)}")
                    o.append(f"v_cvt_pk_bf16_f32 {v(Oo+4*q+2*h+1)}, {v(n+4*h+2)}, {v(n+4*h+3)}")
            return o
        k("s_waitcnt lgkmcnt(0)")
        k("s_barrier"); k.stamp()
        for r in freads(0) + wreads(0): k(r)
        for r in amfma(0): k(r)
        for c in range(9):
            if c + 1 < 8:
                if (c + 1) % 2 == 0:
                    k("s_waitcnt lgkmcnt(0)")
                    k("s_barrier")
                for r in freads(c + 1): k(r)
            interleave(k, cmfma(c - 1) if c >= 1 else [], ovalu(c) if c < 8 else [])
            if c + 1 < 8: interleave(k, amfma(c + 1), wreads(c + 1))
        k.stamp()
        k("s_barrier")
        vs = k.valloc()
        k(f"v_add_u32 {v(vs)}, s52, {v(k.vR16)}")
        k(f"v_mul_u32_u24 {v(vs)}, 144, {v(vs)}")
        k(f"v_lshl_add_u32 {v(vs)}, {v(k.vG)}, 3, {v(vs)}")
        for t in range(4):
            ac = acc + 4 * t
            k(f"v_cvt_pk_bf16_f32 {v(ac)}, {v(ac)}, {v(ac+1)}")
            k(f"v_cvt_pk_bf16_f32 {v(ac+1)}, {v(ac+2)}, {v(ac+3)}")
            k(f"ds_write_b64 {v(vs)}, {v(ac,2)} offset:{t*32}")
        k("s_waitcnt lgkmcnt(0)")
    def store(self, k, vt, vt2, vt3, emit_stores):
        store64(self, k, emit_stores)

def store64(p, k, emit_stores):
    SD, SST = 40, 44
    if p.xdst == "out": srd(k, SD, P_OUT, 0, XB)
    else: srd(k, SD, P_WS, p.xdst, XB)
    if p.st_off is not None: srd(k, SST, P_WS, p.st_off, 2048 * 64)
    k("s_barrier")
    vy, vo, sm, va_ = store64_prep(k, p.xr, p.st_off is not None)
    k("s_mov_b32 s60, 32768")
    st = [f"buffer_store_dwordx4 {v(vy,4)}, {v(vo)}, s[{SD}:{SD+3}], 0 offen", f"buffer_store_dwordx4 {v(vy+4,4)}, {v(vo)}, s[{SD}:{SD+3}], s60 offen"]
    if p.st_off is not None:
        st += [f"buffer_store_dwordx2 {v(sm,2)}, {v(va_)}, s[{SST}:{SST+3}], 0 offen", f"buffer_store_dwordx2 {v(sm+2,2)}, {v(va_)}, s[{SST}:{SST+3}], 0 offen offset:2048"]
    emit_stores(st)

class P3(Phase):
    Qe = 6
    def spare(self, c): return 1 if (c >= self.NC - self.D or c % 2 == 1) else 0
    NC = 8; PA = 128; NBI = 8; BSTEP = 64 * 3584; has_ln = True; nprod = 16
    SP = 272
    def __init__(self, tag, xsrc, st_off, hoff): super().__init__(tag); self.xsrc, self.st_off, self.hoff = xsrc, st_off, hoff
    def tile(self, k):
        k(f"s_mov_b32 s22, s{SC_}"); k(f"s_min_u32 s23, s{SM_}, 13")
        k("s_lshl_b32 s50, s22, 7"); k("s_lshl_b32 s54, s23, 8")
    def setup_A(self, k, vt, vt2):
        self.voA = a_dma_offsets(k, 8, 128, 1024, 50, vt, vt2)
        k("s_waitcnt lgkmcnt(0)")
        srd(k, 24, P_WS, self.xsrc, XB)
    def setup_B(self, k, vt, vt2, vt3, tmp):
        self.voB = [k.valloc() for _ in range(8)]
        k("s_lshl_b32 s52, s59, 5")
        k(f"s_min_u32 s54, s{SM_}, 13"); k("s_lshl_b32 s54, s54, 8")
        for i in range(8):
            k(f"v_lshlrev_b32 {v(vt)}, 1, {v(k.vG)}")
            if (i >> 1) & 1: k(f"v_or_b32 {v(vt)}, 8, {v(vt)}")
            k(f"v_xor_b32 {v(vt)}, {v(vt)}, {v(k.vR16)}")
            k(f"v_lshlrev_b32 {v(vt)}, 4, {v(vt)}")
            k(f"v_add3_u32 {v(vt2)}, {v(k.vG)}, s52, {4*i}")
            k(f"v_mul_u32_u24 {v(vt2)}, 3584, {v(vt2)}")
            k(f"v_add3_u32 {v(self.voB[i])}, {v(vt2)}, {v(vt)}, s54")
        k(f"s_lshl_b32 s{self.sBW}, s59, 13")
        k("s_waitcnt lgkmcnt(0)")
        srd(k, self.SWB, P_W1, 0, 512 * 1792 * 2)
    def compute(self, k, vt, vt2, vt3):
        SP = self.SP; SCS = 36
        k("s_lshr_b32 s52, s3, 1")
        k("s_lshl_b32 s52, s52, 6")
        k("s_and_b32 s53, s3, 1")
        k("s_waitcnt lgkmcnt(0)")
        srd(k, SCS, P_WS, WS_CS + 0x2000, 1792 * 4)
        cs = k.valloc(16, 4)
        k("s_lshl_b32 s56, s23, 9")
        k("s_lshl_b32 s57, s53, 8")
        k("s_add_u32 s56, s56, s57")
        k(f"v_lshlrev_b32 {v(vt2)}, 4, {v(k.vG)}")
        k(f"v_add_u32 {v(vt2)}, s56, {v(vt2)}")
        for t in range(4):
            k(f"buffer_load_dwordx4 {v(cs+4*t,4)}, {v(vt2)}, s[{SCS}:{SCS+3}], 0 offen offset:{t*64}")
        B = Bases(k)
        a_read_bases(k, B, 128, 52, 2, vt, vt2)
        k(f"v_bfe_u32 {v(vt)}, {v(k.vL)}, 2, 2")
        k(f"v_and_b32 {v(vt2)}, 1, {v(k.vG)}")
        k(f"v_lshl_add_u32 {v(vt2)}, {v(vt2)}, 2, {v(vt)}")
        k("s_lshl_b32 s57, s53, 2")
        k(f"v_xor_b32 {v(vt2)}, s57, {v(vt2)}")
        k(f"v_lshl_add_u32 {v(vt)}, {v(k.vG)}, 3, {v(vt)}")
        k(f"v_lshlrev_b32 {v(vt)}, 8, {v(vt)}")
        k(f"v_and_b32 {v(vt3)}, 3, {v(k.vL)}")
        k(f"v_lshl_add_u32 {v(vt)}, {v(vt3)}, 3, {v(vt)}")
        for t in range(4):
            r = k.valloc()
            k(f"v_xor_b32 {v(vt3)}, {t}, {v(vt2)}")
            k(f"v_lshl_add_u32 {v(r)}, {v(vt3)}, 5, {v(vt)}")
            B.add(("W", t), r, 3)
        acc = k.valloc(64, 4)
        for i in range(64): k(f"v_mov_b32 {v(acc+i)}, 0")
        Ab = [k.valloc(16, 4), k.valloc(16, 4)]; Wb = [k.valloc(16, 4), k.valloc(16, 4)]
        ab = [k.valloc(2, 2) for _ in range(4)]
        vab = k.valloc()
        k(f"v_add_u32 {v(vab)}, s52, {v(k.vR16)}")
        k(f"v_lshlrev_b32 {v(vab)}, 3, {v(vab)}")
        k(f"v_add_u32 {v(vab)}, {LDS_AB}, {v(vab)}")
        def reads(ks):
            c = ks // 2; kk = ks & 1; A_ = Ab[ks & 1]; W_ = Wb[ks & 1]
            ra = [f"ds_read_b128 {v(A_+4*rt,4)}, {B.at(('A',kk), self.aslot(c) + rt*2048)}" for rt in range(4)]
            rw = [f"ds_read_b64_tr_b16 {v(W_+4*t+2*hh,2)}, {B.at(('W',t), self.bslot[c] + kk*8192 + hh*1024)}" for t in range(4) for hh in range(2)]
            return [ra[0]] + rw + ra[1:]
        def mfmas(ks):
            A_ = Ab[ks & 1]; W_ = Wb[ks & 1]
            return [f"v_mfma_f32_16x16x32_bf16 {v(acc+(rt*4+t)*4,4)}, {v(W_+4*t,4)}, {v(A_+4*rt,4)}, {v(acc+(rt*4+t)*4,4)}" for rt in range(4) for t in range(4)]
        main_loop(k, 16, 2, reads, mfmas, [f"ds_read_b64 {v(ab[rt],2)}, {v(vab)} offset:{rt*128}" for rt in range(4)])
        k("s_barrier")
        vs = k.valloc()
        k(f"v_add_u32 {v(vs)}, s52, {v(k.vR16)}")
        k(f"v_mul_u32_u24 {v(vs)}, {SP}, {v(vs)}")
        k(f"v_lshl_add_u32 {v(vs)}, {v(k.vG)}, 3, {v(vs)}")
        k("s_lshl_b32 s57, s53, 7")
        k(f"v_add_u32 {v(vs)}, s57, {v(vs)}")
        tmp = k.valloc(8, 4)
        k(f"s_mov_b32 s62, {LOG2E | 0x80000000:#x}")
        k(f"s_mov_b32 s63, {LOG2E | 0x80000000:#x}")
        k("s_mov_b32 s64, 1.0"); k("s_mov_b32 s65, 1.0")
        for rt in range(4):
            for t in range(4):
                ac = acc + (rt * 4 + t) * 4; T = tmp + 4 * (t & 1)
                for p in range(2):
                    k(f"v_pk_mul_f32 {v(T+2*p,2)}, {v(cs+4*t+2*p,2)}, {v(ab[rt],2)} op_sel:[0,1] op_sel_hi:[1,1]")
                for p in range(2):
                    k(f"v_pk_fma_f32 {v(ac+2*p,2)}, {v(ac+2*p,2)}, {v(ab[rt],2)}, {v(T+2*p,2)} op_sel:[0,0,0] op_sel_hi:[1,0,1]")
                for p in range(2):
                    k(f"v_pk_mul_f32 {v(T+2*p,2)}, {v(ac+2*p,2)}, s[62:63]")
                for j in range(4): k(f"v_exp_f32 {v(T+j)}, {v(T+j)}")
                for p in range(2):
                    k(f"v_pk_add_f32 {v(T+2*p,2)}, {v(T+2*p,2)}, s[64:65]")
                for j in range(4): k(f"v_rcp_f32 {v(T+j)}, {v(T+j)}")
                for p in range(2):
                    k(f"v_pk_mul_f32 {v(ac+2*p,2)}, {v(ac+2*p,2)}, {v(T+2*p,2)}")
                k(f"v_cvt_pk_bf16_f32 {v(ac)}, {v(ac)}, {v(ac+1)}")
                k(f"v_cvt_pk_bf16_f32 {v(ac+1)}, {v(ac+2)}, {v(ac+3)}")
                k(f"ds_write_b64 {v(vs)}, {v(ac,2)} offset:{rt*16*SP + t*32}")
        k("s_waitcnt lgkmcnt(0)")
    def store(self, k, vt, vt2, vt3, emit_stores):
        SH, SP = 32, self.SP
        srd(k, SH, P_WS, self.hoff, S_ * F_ * 2)
        k(f"s_cmp_lt_u32 s{SM_}, 14")
        k(f"s_cselect_b32 s{SH+2}, s{SH+2}, 0")
        k("s_barrier")
        vy = k.valloc(32, 4); va_ = k.valloc(); vo = k.valloc()
        k(f"v_lshrrev_b32 {v(vt)}, 4, v0")
        k(f"v_and_b32 {v(vt2)}, 15, v0")
        k(f"v_mul_u32_u24 {v(va_)}, {SP}, {v(vt)}")
        k(f"v_lshl_add_u32 {v(va_)}, {v(vt2)}, 4, {v(va_)}")
        for p in range(8):
            k(f"ds_read_b128 {v(vy+4*p,4)}, {v(va_)} offset:{p*16*SP}")
        k(f"v_add_u32 {v(vt)}, s50, {v(vt)}")
        k(f"v_mul_u32_u24 {v(vo)}, 3584, {v(vt)}")
        k(f"v_lshl_add_u32 {v(vo)}, {v(vt2)}, 4, {v(vo)}")
        k(f"v_add_u32 {v(vo)}, s54, {v(vo)}")
        st = []
        for p in range(8):
            st.append(f"s_mov_b32 s56, {p*16*3584}")
            st.append(f"buffer_store_dwordx4 {v(vy+4*p,4)}, {v(vo)}, s[{SH}:{SH+3}], s56 offen")
        emit_stores(st)

class P4(Phase):
    NC = 14; PA = 256; NBI = 8; BSTEP = 131072; nprod = 16
    def __init__(self, tag, xsrc, xdst, st_off, hoff): super().__init__(tag); self.xsrc, self.xdst, self.st_off, self.hoff = xsrc, xdst, st_off, hoff
    def tile(self, k): tile64(k)
    def setup_A(self, k, vt, vt2):
        self.voA = a_dma_offsets(k, 8, 256, 3584, 50, vt, vt2)
        k("s_waitcnt lgkmcnt(0)")
        srd(k, 24, P_WS, self.hoff, S_ * F_ * 2)
    def setup_B(self, k, vt, vt2, vt3, tmp):
        self.voB = [k.valloc() for _ in range(8)]
        k("s_lshl_b32 s52, s59, 16")
        k(f"s_and_b32 s54, s{SM_}, 7"); k("s_lshl_b32 s54, s54, 7")
        k("s_add_u32 s52, s52, s54")
        for i in range(8):
            k(f"v_bfe_u32 {v(vt)}, {v(k.vL)}, 4, 1")
            k(f"v_lshlrev_b32 {v(vt)}, 1, {v(vt)}")
            if i & 1: k(f"v_or_b32 {v(vt)}, 4, {v(vt)}")
            k(f"v_and_b32 {v(vt2)}, 7, {v(k.vL)}")
            k(f"v_xor_b32 {v(vt)}, {v(vt)}, {v(vt2)}")
            k(f"v_lshlrev_b32 {v(vt)}, 4, {v(vt)}")
            k(f"v_lshrrev_b32 {v(vt2)}, 3, {v(k.vL)}")
            k(f"v_add_u32 {v(vt2)}, {8*i}, {v(vt2)}")
            k(f"v_lshl_add_u32 {v(vt)}, {v(vt2)}, 10, {v(vt)}")
            k(f"v_add_u32 {v(self.voB[i])}, s52, {v(vt)}")
        k(f"s_lshl_b32 s{self.sBW}, s59, 13")
        k("s_waitcnt lgkmcnt(0)")
        srd(k, self.SWB, P_W2, 0, 1792 * 512 * 2)
    def compute(self, k, vt, vt2, vt3):
        SX = 24
        self.xr = k.valloc(8, 4)
        k("s_waitcnt lgkmcnt(0)")
        srd(k, SX, P_WS, self.xsrc, XB)
        resid_load64(k, SX, vt, vt2, self.xr)
        k("s_lshr_b32 s52, s3, 1")
        k("s_lshl_b32 s52, s52, 5")
        k("s_and_b32 s53, s3, 1")
        B = Bases(k)
        a_read_bases(k, B, 256, 52, 2, vt, vt2)
        k(f"v_bfe_u32 {v(vt)}, {v(k.vL)}, 2, 2")
        k(f"v_and_b32 {v(vt2)}, 1, {v(k.vG)}")
        k(f"v_lshlrev_b32 {v(vt2)}, 1, {v(vt2)}")
        k(f"v_bfe_u32 {v(vt3)}, {v(k.vL)}, 3, 1")
        k(f"v_or_b32 {v(vt2)}, {v(vt2)}, {v(vt3)}")
        k("s_lshl_b32 s57, s53, 1")
        k(f"v_xor_b32 {v(vt2)}, s57, {v(vt2)}")
        k(f"v_lshl_add_u32 {v(vt)}, {v(k.vG)}, 3, {v(vt)}")
        k(f"v_lshlrev_b32 {v(vt)}, 7, {v(vt)}")
        k(f"v_and_b32 {v(vt3)}, 3, {v(k.vL)}")
        k(f"v_lshl_add_u32 {v(vt)}, {v(vt3)}, 3, {v(vt)}")
        for t in range(2):
            r = k.valloc()
            k(f"v_xor_b32 {v(vt3)}, {t}, {v(vt2)}")
            k(f"v_lshl_add_u32 {v(r)}, {v(vt3)}, 5, {v(vt)}")
            B.add(("W", t), r, 3)
        acc = k.valloc(16, 4)
        for i in range(16): k(f"v_mov_b32 {v(acc+i)}, 0")
        Ab = [k.valloc(32, 4), k.valloc(32, 4)]; Wb = [k.valloc(32, 4), k.valloc(32, 4)]
        def reads(c):
            A_ = Ab[c & 1]; W_ = Wb[c & 1]; o = []
            for kk in range(4):
                ra = [f"ds_read_b128 {v(A_+8*kk+4*rt,4)}, {B.at(('A',kk), self.aslot(c) + rt*4096)}" for rt in range(2)]
                rw = [f"ds_read_b64_tr_b16 {v(W_+8*kk+4*t+2*hh,2)}, {B.at(('W',t), self.bslot[c] + kk*4096 + hh*512)}" for t in range(2) for hh in range(2)]
                o += [ra[0]] + rw + ra[1:]
            if os.environ.get("G_NOREAD"): return o[:int(os.environ["G_NOREAD"])]
            return o
        def mfmas(c):
            A_ = Ab[c & 1]; W_ = Wb[c & 1]
            return [f"v_mfma_f32_16x16x32_bf16 {v(acc+(rt*2+t)*4,4)}, {v(W_+8*kk+4*t,4)}, {v(A_+8*kk+4*rt,4)}, {v(acc+(rt*2+t)*4,4)}" for kk in range(4) for rt in range(2) for t in range(2)]
        for c in range(self.NC + 1):
            if c < self.NC:
                if c: k("s_waitcnt lgkmcnt(0)")
                k.dstamp()
                k("s_barrier")
                if c == 0: k.stamp()
            rd = reads(c) if c < self.NC else []
            mf = mfmas(c - 1) if c else []
            i = j = 0
            while i < len(mf) or j < len(rd):
                for _ in range(2):
                    if j < len(rd): k(rd[j]); j += 1
                if i < len(mf): k(mf[i]); i += 1
                if j < len(rd): k(rd[j]); j += 1
                if i < len(mf): k(mf[i]); i += 1
        k.stamp()
        k("s_barrier")
        vs = k.valloc()
        k(f"v_add_u32 {v(vs)}, s52, {v(k.vR16)}")
        k(f"v_mul_u32_u24 {v(vs)}, 144, {v(vs)}")
        k(f"v_lshl_add_u32 {v(vs)}, {v(k.vG)}, 3, {v(vs)}")
        k("s_lshl_b32 s57, s53, 6")
        k(f"v_add_u32 {v(vs)}, s57, {v(vs)}")
        for rt in range(2):
            for t in range(2):
                ac = acc + (rt * 2 + t) * 4
                k(f"v_cvt_pk_bf16_f32 {v(ac)}, {v(ac)}, {v(ac+1)}")
                k(f"v_cvt_pk_bf16_f32 {v(ac+1)}, {v(ac+2)}, {v(ac+3)}")
                k(f"ds_write_b64 {v(vs)}, {v(ac,2)} offset:{rt*16*144 + t*32}")
        k("s_waitcnt lgkmcnt(0)")
    def store(self, k, vt, vt2, vt3, emit_stores):
        store64(self, k, emit_stores)

def gen_fused(name, phases, flagbase, xtidx, stamps=False):
    k = Kern(name); k.stamps_on = stamps
    if os.environ.get("G_DET"): k.det = int(os.environ["G_DET"])
    prologue(k, 256, wait=False)
    k("s_sub_u32 s59, s3, 4")
    k("s_and_b32 s48, s2, 7"); k("s_lshl_b32 s48, s48, 1"); k("s_lshr_b32 s49, s2, 7")
    k(f"s_add_u32 s{SC_}, s48, s49"); k(f"s_bfe_u32 s{SM_}, s2, 0x40003")
    vt, vt2, vt3 = k.valloc(), k.valloc(), k.valloc()
    vfl = k.valloc(); vfd = k.valloc()
    mark = k.nv
    k.lds = 163840
    n = len(phases)
    bars = []
    for i, p in enumerate(phases):
        bars += [(i, "b", c) for c in range(p.NC)] + [(i, "e", 0), (i, "s", 0)] + ([(i, "u", 0)] if i < n - 1 else [])
    bidx = {b: j for j, b in enumerate(bars)}
    chunks = []
    for i, p in enumerate(phases):
        for c in range(p.NC):
            rel = bidx[(i, "b", c + 1)] if c + 1 < p.NC else bidx[(i, "e", 0)]
            chunks.append((i, c, bidx[(i, "b", c)], rel, True))
        for x in range(p.pseudo):
            chunks.append((i, p.NC + x, None, bidx[(i, "e", 0)], False))
    for j, (i, c, _, _, _) in enumerate(chunks): phases[i].bslot[c] = BRING + (j % NB) * 16384
    for i, p in enumerate(phases): p.SWB = 24 + 4 * i; p.sBW = 44 + i
    k("s_cmp_lt_u32 s3, 4")
    k(f"s_cbranch_scc1 {name}_compute")
    k("s_cmp_lt_u32 s3, 6")
    k(f"s_cbranch_scc1 {name}_aload")
    k("s_sub_u32 s59, s3, 6")
    k.stamp_set(0); k.stamp()
    tmp5 = [k.valloc() for _ in range(5)]
    NV = int(os.environ.get("G_NV", "6"))
    vl16 = k.valloc()
    k(f"v_lshlrev_b32 {v(vl16)}, 4, {v(k.vL)}")
    for p in phases: p._vo = None
    vslots = [256 - 32 * (x + 1) for x in range(NV)]
    k.maxv = 256 if NV else k.maxv
    freev = list(vslots); vq = []
    setup_done = set(); nxt = [0]; placed = set(); pend = []
    def slot_free(j, after_bar): return j < NB or chunks[j - NB][3] <= after_bar
    def b_step(after_bar, maxn, curphase=None, spare=0):
        if pend:
            k("s_waitcnt lgkmcnt(0)")
            for (j, vs) in pend: placed.add(j); freev.append(vs)
            pend.clear()
        while vq and slot_free(vq[0][0], after_bar):
            j, vs = vq.pop(0); i, c = chunks[j][0], chunks[j][1]
            phases[i].place_Bv(k, c, vs, vl16, vt); pend.append((j, vs))
        cnt = 0
        while nxt[0] < len(chunks) and cnt < maxn:
            j = nxt[0]; i, c, need, rel, real = chunks[j]
            if not real:
                if not slot_free(j, after_bar): break
                placed.add(j); nxt[0] += 1; continue
            direct = (not vq) and slot_free(j, after_bar)
            if not direct and not freev: break
            if curphase is not None and i != curphase:
                if spare <= 0: break
                spare -= 1
            if i not in setup_done:
                phases[i].setup_B(k, vt, vt2, vt3, tmp5); setup_done.add(i)
                assert k.nv <= 256 - 32 * NV
            k.vm_limit(int(os.environ.get("G_VML", "24")))
            if direct:
                phases[i].issue_B(k, c); placed.add(j)
            else:
                vs = freev.pop(0); phases[i].issue_Bv(k, c, vs); vq.append((j, vs))
            cnt += 1; nxt[0] += 1
    b_step(-1, 2)
    for j, (i, kind, c) in enumerate(bars):
        if kind == "b":
            jj = next(x for x, ch in enumerate(chunks) if ch[0] == i and ch[1] == c)
            if jj not in placed:
                assert any(x[0] == jj for x in pend), (i, c)
                k("s_waitcnt lgkmcnt(0)")
                for (j_, vs) in pend: placed.add(j_); freev.append(vs)
                pend.clear()
            k.wait_tag(f"{phases[i].tag}b{c}")
        k.cur = i; k.dstamp()
        k("s_barrier")
        if kind in ("e", "u"): k.stamp()
        if kind == "b":
            b_step(j, 2 if i == 0 else 1, i, phases[i].spare(c))
        else:
            b_step(j, {"e": phases[i].Qe, "s": 3, "u": 7}[kind])
    assert nxt[0] == len(chunks) and not vq
    if stamps: k.stamp(); k.stamp_flush(P_WS, vt, vt2)
    k("s_endpgm")
    k.L(f"{name}_aload"); k.reset()
    k.stamp_set(0); k.stamp()
    k("s_lshl_b32 s55, s59, 13")
    for i, p in enumerate(phases):
        k.nv = mark
        p.tile(k)
        p.setup_A(k, vt, vt2)
        if i == 0 and n > 1:
            srd(k, SFL, P_WS, WS_FLAG, 0x7000)
            k("s_getreg_b32 s98, hwreg(HW_REG_XCC_ID)")
            k("s_and_b32 s98, s98, 15"); k("s_add_u32 s98, s98, 1")
            k(f"s_lshl_b32 s48, s{SC_}, 6"); k(f"s_lshl_b32 s49, s{SM_}, 2"); k("s_add_u32 s48, s48, s49")
            k(f"s_add_u32 s48, s48, {WS_XT - WS_FLAG + xtidx*1024}")
            k(f"v_mov_b32 {v(vfl)}, s48"); k(f"v_mov_b32 {v(vfd)}, s98")
            k("s_mov_b64 exec, 1")
            k(f"buffer_store_dword {v(vfd)}, {v(vfl)}, s[{SFL}:{SFL+3}], 0 offen sc0 sc1")
            k("s_mov_b64 exec, -1")
        if i > 0:
            lab = f"{name}_poll{i}"; done = f"{name}_polld{i}"
            k(f"s_lshl_b32 s48, s{SC_}, 8"); k(f"s_add_u32 s48, s48, {(flagbase+i-1)*4096}")
            k(f"v_lshlrev_b32 {v(vfl)}, 2, {v(k.vL)}"); k(f"v_add_u32 {v(vfl)}, s48, {v(vfl)}")
            k(f"s_mov_b64 exec, {(1<<phases[i-1].nprod)-1:#x}")
            k("s_mov_b32 s49, 0")
            k.L(lab)
            k(f"buffer_load_dword {v(vfd)}, {v(vfl)}, s[{SFL}:{SFL+3}], 0 offen sc1")
            k("s_add_u32 s49, s49, 1")
            k("s_waitcnt vmcnt(0)")
            k(f"v_cmp_ne_u32 vcc, 1, {v(vfd)}")
            k("s_cmp_gt_u32 s49, 200000")
            k(f"s_cbranch_scc1 {done}")
            k(f"s_cbranch_vccnz {lab}")
            k.L(done)
            k("s_mov_b64 exec, -1")
        k.stamp()
        if p.has_ln:
            stv = k.valloc(16, 4)
            srd(k, 28, P_WS, p.st_off, 2048 * 64)
            k("s_lshl_b32 s48, s59, 6")
            k("s_add_u32 s48, s48, s50")
            k(f"v_add_u32 {v(vt)}, s48, {v(k.vL)}")
            k(f"v_lshlrev_b32 {v(vt)}, 6, {v(vt)}")
            for x in range(4):
                k(f"buffer_load_dwordx4 {v(stv+4*x,4)}, {v(vt)}, s[28:31], 0 offen offset:{16*x}")
        for c in range(min(p.D, p.NC)): p.issue_A(k, c)
        for c in range(p.NC):
            k.wait_tag(f"{p.tag}a{c}")
            k.cur = i; k.dstamp()
            k("s_barrier")
            if c + p.D < p.NC: p.issue_A(k, c + p.D)
            if c == 1 and p.has_ln:
                ab = k.valloc(2, 2)
                gen.ln_params(k, stv, ab, ab + 1, vt, vt2)
                k("s_lshl_b32 s48, s59, 9")
                k(f"s_add_u32 s48, s48, {LDS_AB}")
                k(f"v_lshlrev_b32 {v(vt)}, 3, {v(k.vL)}")
                k(f"v_add_u32 {v(vt)}, s48, {v(vt)}")
                k(f"ds_write_b64 {v(vt)}, {v(ab,2)}")
                k("s_waitcnt lgkmcnt(0)")
            if i == 0 and n > 1 and c == p.NC - 1:
                k(f"s_lshl_b32 s48, s{SC_}, 6"); k(f"s_add_u32 s48, s48, {WS_XT - WS_FLAG + xtidx*1024}")
                k(f"v_and_b32 {v(vfl)}, 15, {v(k.vL)}")
                k(f"v_lshlrev_b32 {v(vfl)}, 2, {v(vfl)}"); k(f"v_add_u32 {v(vfl)}, s48, {v(vfl)}")
                k(f"buffer_load_dword {v(vfd)}, {v(vfl)}, s[{SFL}:{SFL+3}], 0 offen sc0 sc1")
                k(f"v_cmp_ne_u32 vcc, s98, {v(vfd)}")
                k("s_cmp_eq_u64 vcc, 0")
                k("s_cselect_b32 s99, 1, 0")
                if FORCE == "fast": k("s_mov_b32 s99, 1")
                if FORCE == "slow": k("s_mov_b32 s99, 0")
                k(f"v_mov_b32 {v(vfd)}, s99"); k(f"v_mov_b32 {v(vfl)}, {LDS_MODE}")
                k(f"s_lshl_b32 s48, s59, 2"); k(f"v_add_u32 {v(vfl)}, s48, {v(vfl)}")
                k(f"ds_write_b32 {v(vfl)}, {v(vfd)}")
                k("s_waitcnt lgkmcnt(0)")
        k.stamp()
        k("s_barrier")
        k("s_barrier")
        if i < n - 1:
            k("s_barrier")
            k.stamp()
            lab = f"{name}_pub{i}"; lab2 = f"{name}_pubs{i}"
            k("s_cmp_lg_u32 s59, 0")
            k(f"s_cbranch_scc1 {lab}")
            k(f"s_lshl_b32 s48, s{SC_}, 8"); k(f"s_lshl_b32 s49, s{SM_}, 2"); k("s_add_u32 s48, s48, s49")
            k(f"s_add_u32 s48, s48, {(flagbase+i)*4096}")
            k(f"v_mov_b32 {v(vfl)}, s48"); k(f"v_mov_b32 {v(vfd)}, 1")
            k("s_mov_b64 exec, 1")
            k("s_cmp_eq_u32 s99, 1")
            k(f"s_cbranch_scc0 {lab2}")
            k(f"buffer_store_dword {v(vfd)}, {v(vfl)}, s[{SFL}:{SFL+3}], 0 offen")
            k(f"s_branch {lab}")
            k.L(lab2)
            k(f"buffer_store_dword {v(vfd)}, {v(vfl)}, s[{SFL}:{SFL+3}], 0 offen sc0 sc1")
            k.L(lab)
            k("s_mov_b64 exec, -1")
    if stamps: k.stamp(); k.stamp_flush(P_WS, vt, vt2)
    k("s_endpgm")
    k.L(f"{name}_compute"); k.reset()
    k.stamp_set(0); k.stamp()
    for i, p in enumerate(phases):
        k.nv = mark; k.cur = i
        p.tile(k)
        p.compute(k, vt, vt2, vt3)
        k.nv = mark + 12
        def emit_stores(lst, i=i):
            if i == n - 1:
                for x in lst: k(x)
                return
            if i == 0:
                k(f"v_mov_b32 {v(vfl)}, {LDS_MODE}")
                k(f"ds_read_b32 {v(vfd)}, {v(vfl)}")
                k(f"v_readfirstlane_b32 s99, {v(vfd)}")
            l1 = f"{name}_st{i}_slow"; l2 = f"{name}_st{i}_done"
            k("s_waitcnt vmcnt(0) lgkmcnt(0)")
            k("s_nop 4")
            k("s_cmp_eq_u32 s99, 1")
            k(f"s_cbranch_scc0 {l1}")
            for x in lst: k(x)
            k(f"s_branch {l2}")
            k.L(l1)
            for x in lst: k(x + (" sc0 sc1" if x.startswith("buffer_store") else ""))
            k.L(l2)
        p.store(k, vt, vt2, vt3, emit_stores)
        if i < n - 1:
            k("s_waitcnt vmcnt(0)")
            k("s_barrier")
    if stamps:
        k("s_waitcnt vmcnt(0)"); k.stamp(); k.stamp_flush(P_WS, vt, vt2)
    epilogue_end(k)
    return k

def build(path, stamps=False):
    k0 = gen.gen_k0("k0_kernel")
    kA = gen_fused("kA_kernel", [P1("p1a", "in", WS_KV, WS_ST0)], 0, 0)
    kB = gen_fused("kB_kernel", [P2("p2a", "in", WS_KV, WS_X1, WS_ST1), P3("p3a", WS_X1, WS_ST1, WS_H), P4("p4a", WS_X1, WS_X2, WS_ST2, WS_H),
                                 P1("p1b", WS_X2, WS_KV + 0x10000, WS_ST2)], 0, 0, stamps)
    kC = gen_fused("kC_kernel", [P2("p2b", WS_X2, WS_KV + 0x10000, WS_X1, WS_ST1), P3("p3b", WS_X1, WS_ST1, WS_H), P4("p4b", WS_X1, "out", None, WS_H)], 3, 1)
    ks = [k0, kA, kB, kC]
    launches = [(k.name, 256, 256 if i == 0 else 512, k.lds) for i, k in enumerate(ks)]
    open(path, "w").write(build_file(HEADER, launches, ks))
    for k in ks: print(k.name, "vgpr", k.maxv, "lds", k.lds, "ninst", sum(1 for i in k.items if isinstance(i, Ins)))

if __name__ == "__main__":
    build(sys.argv[1] if len(sys.argv) > 1 else "interleave_layers__linear_attn_block__dense_activation_silu__prompt.s")
    build(sys.argv[2] if len(sys.argv) > 2 else "fused_stamps.s", True)
```

```python
import sys, struct, os
from asmlib import *
from gen import (S_, D_, F_, WS_PQ, WS_X1, WS_X2, WS_H, WS_KV, WS_CS, WS_ST0, WS_ST1, WS_ST2, XB, P_X, P_WQKV, P_WO, P_W1, P_W2, P_OUT, P_WS,
                 LOG2E, fbits, prologue, srd, epilogue_end, HEADER)
from gen2 import Bases, interleave, a_read_bases, phi4
import gen

WS_FLAG = 0xE18800
WS_XT = 0xE1E800
SC_, SM_ = 96, 97
NA = int(os.environ.get("G_NA", "4")); NB = 9 - NA
ARING, BRING, EX = 0, NA * 16384, 147456
LDS_AB, LDS_MODE = EX, EX + 1024
SFL = 92
FORCE = os.environ.get("G_MODE", "")

def a_dma_offsets(k, nins, PA, rowpitch, rowbase_s, t0, t1):
    UA = PA // 16; RA = 64 // UA; sh = {8: 3, 16: 4}[UA]
    out = []
    k(f"s_mul_i32 s58, s59, {nins*RA}")
    k(f"s_add_u32 s58, s58, s{rowbase_s}")
    for i in range(nins):
        r = k.valloc(); out.append(r)
        k(f"v_lshrrev_b32 {v(t0)}, {sh}, {v(k.vL)}")
        if i: k(f"v_add_u32 {v(t0)}, {RA*i}, {v(t0)}")
        if PA == 128: k(f"v_bfe_u32 {v(t1)}, {v(t0)}, 1, 3")
        else: k(f"v_and_b32 {v(t1)}, 15, {v(t0)}")
        k(f"v_and_b32 {v(r)}, {UA-1}, {v(k.vL)}")
        k(f"v_xor_b32 {v(t1)}, {v(t1)}, {v(r)}")
        k(f"v_add_u32 {v(t0)}, s58, {v(t0)}")
        k(f"v_mul_u32_u24 {v(t0)}, {rowpitch}, {v(t0)}")
        k(f"v_lshl_add_u32 {v(r)}, {v(t1)}, 4, {v(t0)}")
    assert (nins * RA) % 16 == 0
    return out

def ln_finish(k, m, q, ab):
    k(f"v_mul_f32 {v(m)}, {fbits(1/512):#x}, {v(m)}")
    k(f"v_mul_f32 {v(q)}, {fbits(1/512):#x}, {v(q)}")
    k(f"v_fma_f32 {v(q)}, -{v(m)}, {v(m)}, {v(q)}")
    k(f"v_max_f32 {v(q)}, 0, {v(q)}")
    gen.bf16_round(k, m, m); gen.bf16_round(k, q, q)
    k(f"v_add_f32 {v(q)}, {fbits(1e-5):#x}, {v(q)}")
    gen.bf16_round(k, q, q)
    k(f"v_sqrt_f32 {v(q)}, {v(q)}")
    gen.bf16_round(k, q, q)
    k(f"v_rcp_f32 {v(ab)}, {v(q)}")
    k(f"v_mul_f32 {v(ab+1)}, {v(m)}, {v(ab)}")
    k(f"v_sub_f32 {v(ab+1)}, 0, {v(ab+1)}")

def tile64(k):
    k(f"s_lshr_b32 s48, s{SM_}, 3")
    k(f"s_lshl_b32 s22, s{SC_}, 1")
    k("s_add_u32 s22, s22, s48")
    k(f"s_and_b32 s23, s{SM_}, 7")
    k("s_lshl_b32 s50, s22, 6")
    k("s_lshl_b32 s54, s23, 7")

def resid_load64(k, SX, t0, t1, xr):
    k(f"v_lshrrev_b32 {v(t0)}, 3, v0")
    k(f"v_and_b32 {v(t1)}, 7, v0")
    k(f"v_add_u32 {v(t0)}, s50, {v(t0)}")
    k(f"v_lshlrev_b32 {v(t0)}, 10, {v(t0)}")
    k(f"v_lshl_add_u32 {v(t0)}, {v(t1)}, 4, {v(t0)}")
    k(f"v_add_u32 {v(t0)}, s54, {v(t0)}")
    k("s_mov_b32 s60, 32768")
    k(f"buffer_load_dwordx4 {v(xr,4)}, {v(t0)}, s[{SX}:{SX+3}], 0 offen")
    k(f"buffer_load_dwordx4 {v(xr+4,4)}, {v(t0)}, s[{SX}:{SX+3}], s60 offen")

def store64_prep(k, xr, do_stats):
    vy = k.valloc(8, 4); va_ = k.valloc(); vo = k.valloc(); sm = k.valloc(4, 4); tt = k.valloc(2, 2)
    t0, t1, t2, t3 = [k.valloc() for _ in range(4)]
    k(f"v_lshrrev_b32 {v(t0)}, 3, v0")
    k(f"v_and_b32 {v(t1)}, 7, v0")
    k(f"v_mul_u32_u24 {v(va_)}, 144, {v(t0)}")
    k(f"v_lshl_add_u32 {v(va_)}, {v(t1)}, 4, {v(va_)}")
    k(f"ds_read_b128 {v(vy,4)}, {v(va_)}")
    k(f"ds_read_b128 {v(vy+4,4)}, {v(va_)} offset:{32*144}")
    k(f"v_add_u32 {v(t0)}, s50, {v(t0)}")
    k(f"v_lshlrev_b32 {v(vo)}, 10, {v(t0)}")
    k(f"v_lshl_add_u32 {v(vo)}, {v(t1)}, 4, {v(vo)}")
    k(f"v_add_u32 {v(vo)}, s54, {v(vo)}")
    if do_stats:
        for i in range(4): k(f"v_mov_b32 {v(sm+i)}, 0")
        k("s_mov_b32 s60, 0x3f803f80")
        k(f"v_lshlrev_b32 {v(va_)}, 6, {v(t0)}")
        k(f"s_lshr_b32 s61, s54, 4")
        k(f"v_add_u32 {v(va_)}, s61, {v(va_)}")
    for i in range(8):
        k(f"v_lshlrev_b32 {v(t0)}, 16, {v(vy+i)}")
        k(f"v_and_b32 {v(t1)}, 0xffff0000, {v(vy+i)}")
        k(f"v_lshlrev_b32 {v(t2)}, 16, {v(xr+i)}")
        k(f"v_and_b32 {v(t3)}, 0xffff0000, {v(xr+i)}")
        k(f"v_add_f32 {v(t0)}, {v(t0)}, {v(t2)}")
        k(f"v_add_f32 {v(t1)}, {v(t1)}, {v(t3)}")
        k(f"v_cvt_pk_bf16_f32 {v(vy+i)}, {v(t0)}, {v(t1)}")
        if do_stats:
            s_ = sm + 2 * (i // 4)
            k(f"v_dot2_f32_bf16 {v(s_)}, {v(vy+i)}, s60, {v(s_)}")
            k(f"v_dot2_f32_bf16 {v(s_+1)}, {v(vy+i)}, {v(vy+i)}, {v(s_+1)}")
    if do_stats:
        for dpp in ("quad_perm:[1,0,3,2]", "quad_perm:[2,3,0,1]", "row_half_mirror"):
            for h in range(2):
                for c in range(2):
                    k(f"v_add_f32_dpp {v(tt+c)}, {v(sm+2*h+c)}, {v(sm+2*h+c)} {dpp} row_mask:0xf bank_mask:0xf")
                for c in range(2):
                    k(f"v_mov_b32 {v(sm+2*h+c)}, {v(tt+c)}")
    return vy, vo, sm, va_

def main_loop(k, nks, kpc, reads, mfmas, last=()):
    k.dstamp()
    k("s_barrier"); k.stamp()
    for r in reads(0): k(r)
    for ks in range(nks):
        if ks == nks - 1: interleave(k, mfmas(ks), list(last))
        else:
            if (ks + 1) % kpc == 0:
                k("s_waitcnt lgkmcnt(0)")
                k.dstamp()
                k("s_barrier")
            interleave(k, mfmas(ks), reads(ks + 1))
    k.stamp()

class Phase:
    D = NA - 1; has_ln = False; pseudo = 0
    def __init__(self, tag): self.tag = tag; self.bslot = {}
    def aslot(self, c): return ARING + (c % NA) * 16384
    def issue_A(self, k, c):
        k(f"s_mov_b32 s56, {c*self.PA}")
        for i in range(8):
            k(f"s_add_u32 m0, s55, {self.aslot(c)+i*1024}")
            k.I(f"buffer_load_dwordx4 {v(self.voA[i])}, s[24:27], s56 offen lds", tag=f"{self.tag}a{c}")
    def issue_B(self, k, c):
        k(f"s_mov_b32 s57, {c*self.BSTEP}")
        for i in range(self.NBI):
            k(f"s_add_u32 m0, s{self.sBW}, {self.bslot[c]+i*1024}")
            k.I(f"buffer_load_dwordx4 {v(self.voB[i])}, s[{self.SWB}:{self.SWB+3}], s57 offen lds", tag=f"{self.tag}b{c}")
    def issue_Bv(self, k, c, vs):
        k(f"s_mov_b32 s57, {c*self.BSTEP}")
        for i in range(self.NBI):
            k.I(f"buffer_load_dwordx4 {v(vs+4*i,4)}, {v(self.voB[i])}, s[{self.SWB}:{self.SWB+3}], s57 offen", tag=f"{self.tag}b{c}")
    def place_Bv(self, k, c, vs, vl16, vtmp):
        k(f"s_add_u32 s58, s{self.sBW}, {self.bslot[c]}")
        k(f"v_add_u32 {v(vtmp)}, s58, {v(vl16)}")
        for i in range(self.NBI):
            k(f"ds_write_b128 {v(vtmp)}, {v(vs+4*i,4)} offset:{i*1024}")
    Qe = 1
    def spare(self, c): return 1 if c >= self.NC - self.D else 0

class P1(Phase):
    Qe = 5
    def spare(self, c): return 1 if (c >= self.NC - self.D or c % 2 == 1) else 0
    NC = 8; PA = 128; NBI = 6; BSTEP = 64 * 3072; has_ln = True; nprod = 16
    LDS_KV, LDS_Z, SP = EX + 2048, EX + 6144, 80
    def __init__(self, tag, xsrc, kv_off, st_off):
        super().__init__(tag); self.xsrc, self.kv_off, self.st_off = xsrc, kv_off, st_off
        self.instat = st_off is None
        self.has_ln = not self.instat
    def tile(self, k):
        k(f"s_mov_b32 s22, s{SC_}"); k(f"s_mov_b32 s23, s{SM_}")
        k("s_lshl_b32 s50, s22, 7"); k("s_lshl_b32 s54, s23, 6")
    def setup_A(self, k, vt, vt2):
        self.voA = a_dma_offsets(k, 8, 128, 1024, 50, vt, vt2)
        k("s_waitcnt lgkmcnt(0)")
        if self.xsrc == "in": srd(k, 24, P_X, 0, XB)
        else: srd(k, 24, P_WS, self.xsrc, XB)
    def setup_B(self, k, vt, vt2, vt3, tmp):
        self.voB = [k.valloc() for _ in range(6)]
        u, row, rem, t_, c_ = tmp
        k("s_mul_i32 s53, s59, 384")
        k(f"s_lshl_b32 s54, s{SM_}, 6")
        for i in range(6):
            k(f"v_add_u32 {v(u)}, s53, {v(k.vL)}")
            if i: k(f"v_add_u32 {v(u)}, {64*i}, {v(u)}")
            k(f"v_mul_u32_u24 {v(row)}, 0xaaab, {v(u)}")
            k(f"v_lshrrev_b32 {v(row)}, 19, {v(row)}")
            k(f"v_mul_u32_u24 {v(rem)}, 12, {v(row)}")
            k(f"v_sub_u32 {v(rem)}, {v(u)}, {v(rem)}")
            k(f"v_lshrrev_b32 {v(t_)}, 1, {v(rem)}")
            k(f"v_bfe_u32 {v(c_)}, {v(row)}, 3, 1")
            k(f"v_sub_u32 {v(t_)}, {v(t_)}, {v(c_)}")
            k(f"v_add_u32 {v(c_)}, 6, {v(t_)}")
            k(f"v_min_u32 {v(t_)}, {v(t_)}, {v(c_)}")
            k(f"v_lshrrev_b32 {v(c_)}, 1, {v(t_)}")
            k(f"v_lshlrev_b32 {v(c_)}, 10, {v(c_)}")
            k(f"v_and_b32 {v(t_)}, 1, {v(t_)}")
            k(f"v_lshl_add_u32 {v(c_)}, {v(t_)}, 5, {v(c_)}")
            k(f"v_and_b32 {v(rem)}, 1, {v(rem)}")
            k(f"v_lshl_add_u32 {v(c_)}, {v(rem)}, 4, {v(c_)}")
            k(f"v_mul_u32_u24 {v(row)}, 3072, {v(row)}")
            k(f"v_add3_u32 {v(self.voB[i])}, {v(row)}, {v(c_)}, s54")
        k(f"s_mul_i32 s{self.sBW}, s59, 6144")
        k("s_waitcnt lgkmcnt(0)")
        srd(k, self.SWB, P_WQKV, 0, 512 * 1536 * 2)
    def compute(self, k, vt, vt2, vt3):
        SP = self.SP; SCS = 40
        k("s_lshr_b32 s52, s3, 1")
        k("s_lshl_b32 s52, s52, 6")
        k("s_and_b32 s53, s3, 1")
        cs3 = k.valloc(12, 4)
        csq = cs3
        vcq = k.valloc(); vck = k.valloc()
        k("s_lshl_b32 s56, s23, 7")
        k("s_lshl_b32 s57, s53, 6")
        k("s_add_u32 s56, s56, s57")
        k(f"v_lshlrev_b32 {v(vcq)}, 4, {v(k.vG)}")
        k(f"v_add_u32 {v(vcq)}, s56, {v(vcq)}")
        k(f"v_lshlrev_b32 {v(vck)}, 2, {v(k.vR16)}")
        k(f"v_add_u32 {v(vck)}, s56, {v(vck)}")
        k(f"v_add_u32 {v(vck)}, 2048, {v(vck)}")
        if self.instat:
            for i in range(12): k(f"v_mov_b32 {v(cs3+i)}, 0")
        else:
            k("s_waitcnt lgkmcnt(0)")
            srd(k, SCS, P_WS, WS_CS, 1536 * 4)
            k(f"buffer_load_dwordx4 {v(cs3,4)}, {v(vcq)}, s[{SCS}:{SCS+3}], 0 offen")
            for kv in range(2):
                k(f"buffer_load_dword {v(cs3+4+4*kv)}, {v(vck)}, s[{SCS}:{SCS+3}], 0 offen offset:{2048*kv}")
        ones = k.valloc(4)
        for i in range(4): k(f"v_mov_b32 {v(ones+i)}, 0x3f803f80")
        k("s_lshl_b32 s57, s53, 5")
        k("s_add_u32 s66, s52, s57")
        k("s_xor_b32 s57, s57, 32")
        k("s_add_u32 s67, s52, s57")
        B = Bases(k)
        a_read_bases(k, B, 128, 66, 2, vt, vt2)
        B2 = Bases(k)
        a_read_bases(k, B2, 128, 67, 2, vt, vt2)
        k(f"v_bfe_u32 {v(vt)}, {v(k.vL)}, 2, 2")
        k(f"v_lshl_add_u32 {v(vt)}, {v(k.vG)}, 3, {v(vt)}")
        k(f"v_mul_u32_u24 {v(vt)}, 192, {v(vt)}")
        k(f"v_and_b32 {v(vt2)}, 3, {v(k.vL)}")
        k(f"v_lshl_add_u32 {v(vt)}, {v(vt2)}, 3, {v(vt)}")
        k(f"v_and_b32 {v(vt2)}, 1, {v(k.vG)}")
        k(f"v_add_u32 {v(vt2)}, s53, {v(vt2)}")
        for j in range(3):
            r = k.valloc()
            k(f"v_add_u32 {v(vt3)}, {2*j}, {v(vt2)}")
            if j == 2:
                k(f"v_subrev_u32 {v(r)}, 6, {v(vt3)}")
                k(f"v_min_u32 {v(vt3)}, {v(vt3)}, {v(r)}")
            k(f"v_lshl_add_u32 {v(r)}, {v(vt3)}, 5, {v(vt)}")
            B.add(("W", j), r, 3)
        acc = k.valloc(48, 4)
        for i in range(48): k(f"v_mov_b32 {v(acc+i)}, 0")
        Ab = [k.valloc(16, 4), k.valloc(16, 4)]; Wb = [k.valloc(12, 4), k.valloc(12, 4)]
        ab = [k.valloc(2, 2) for _ in range(4)]
        abn = [k.valloc(8, 4) for _ in range(4)]
        vab = [k.valloc(), k.valloc()]; vabn = [k.valloc(), k.valloc()]
        for h in range(2):
            k(f"v_add_u32 {v(vab[h])}, s{66+h}, {v(k.vR16)}")
            k(f"v_lshlrev_b32 {v(vab[h])}, 3, {v(vab[h])}")
            k(f"v_add_u32 {v(vab[h])}, {LDS_AB}, {v(vab[h])}")
            k(f"v_lshlrev_b32 {v(vabn[h])}, 2, {v(k.vG)}")
            k(f"v_add_u32 {v(vabn[h])}, s{66+h}, {v(vabn[h])}")
            k(f"v_lshlrev_b32 {v(vabn[h])}, 3, {v(vabn[h])}")
            k(f"v_add_u32 {v(vabn[h])}, {LDS_AB}, {v(vabn[h])}")
        if self.instat:
            sta = k.valloc(16, 4)
            for i in range(16): k(f"v_mov_b32 {v(sta+i)}, 0")
        def reads(ks):
            c = ks // 2; kk = ks & 1; A_ = Ab[ks & 1]; W_ = Wb[ks & 1]
            ra = [f"ds_read_b128 {v(A_+4*rt,4)}, {(B if rt < 2 else B2).at(('A',kk), self.aslot(c) + (rt&1)*2048)}" for rt in range(4)]
            rw = [f"ds_read_b64_tr_b16 {v(W_+4*j+2*hh,2)}, {B.at(('W',j), self.bslot[c] + kk*6144 + hh*768)}" for j in range(3) for hh in range(2)]
            return [ra[0]] + rw + ra[1:]
        def mfmas(ks):
            A_ = Ab[ks & 1]; W_ = Wb[ks & 1]; out = []
            for rt in range(4):
                for j in range(3):
                    ac = acc + (rt * 3 + j) * 4
                    if j == 0: out.append(f"v_mfma_f32_16x16x32_bf16 {v(ac,4)}, {v(W_,4)}, {v(A_+4*rt,4)}, {v(ac,4)}")
                    else: out.append(f"v_mfma_f32_16x16x32_bf16 {v(ac,4)}, {v(A_+4*rt,4)}, {v(W_+4*j,4)}, {v(ac,4)}")
            if self.instat:
                out.append(f"v_mfma_f32_16x16x32_bf16 {v(cs3,4)}, {v(W_,4)}, {v(ones,4)}, {v(cs3,4)}")
                for j in (1, 2): out.append(f"v_mfma_f32_16x16x32_bf16 {v(cs3+4*j,4)}, {v(ones,4)}, {v(W_+4*j,4)}, {v(cs3+4*j,4)}")
                for rt in range(2):
                    out.append(f"v_mfma_f32_16x16x32_bf16 {v(sta+8*rt,4)}, {v(ones,4)}, {v(A_+4*rt,4)}, {v(sta+8*rt,4)}")
                    out.append(f"v_mfma_f32_16x16x32_bf16 {v(sta+8*rt+4,4)}, {v(A_+4*rt,4)}, {v(A_+4*rt,4)}, {v(sta+8*rt+4,4)}")
            return out
        o = []
        for rt in range(4):
            o.append(f"ds_read_b128 {v(abn[rt],4)}, {v(vabn[rt>>1])} offset:{(rt&1)*128}")
            o.append(f"ds_read_b128 {v(abn[rt]+4,4)}, {v(vabn[rt>>1])} offset:{(rt&1)*128+16}")
            o.append(f"ds_read_b64 {v(ab[rt],2)}, {v(vab[rt>>1])} offset:{(rt&1)*128}")
        main_loop(k, 16, 2, reads, mfmas, [] if self.instat else o)
        if self.instat:
            k(f"v_and_b32 {v(vt)}, 3, {v(k.vL)}")
            k(f"v_lshrrev_b32 {v(vt2)}, 2, {v(k.vR16)}")
            k(f"v_cmp_eq_u32 s[60:61], {v(vt2)}, {v(k.vG)}")
            for rt in range(2):
                g_ = sta + 8 * rt + 4; q = sta + 8 * rt + 1; m = sta + 8 * rt
                for j in range(1, 4):
                    k(f"v_cmp_eq_u32 vcc, {j}, {v(vt)}")
                    k(f"v_cndmask_b32 {v(g_)}, {v(g_)}, {v(g_+j)}, vcc")
                k(f"v_cndmask_b32 {v(q)}, 0, {v(g_)}, s[60:61]")
                gen.xlane_sum_g(k, q, vt3)
                ln_finish(k, m, q, ab[rt])
                k(f"ds_write_b64 {v(vab[0])}, {v(ab[rt],2)} offset:{rt*128}")
            k("s_waitcnt lgkmcnt(0)")
        k("s_barrier")
        if self.instat:
            for x in o: k(x)
            srd(k, SCS, P_WS, WS_CS, 1536 * 4)
            k(f"s_or_b32 s57, s{SC_}, s52")
            k("s_cmp_eq_u32 s57, 0")
            k(f"s_cselect_b32 s{SCS+2}, s{SCS+2}, 0")
            k(f"buffer_store_dwordx4 {v(cs3,4)}, {v(vcq)}, s[{SCS}:{SCS+3}], 0 offen")
            for kv in range(2):
                k(f"buffer_store_dword {v(cs3+4+4*kv)}, {v(vck)}, s[{SCS}:{SCS+3}], 0 offen offset:{2048*kv}")
        k(f"s_mov_b32 s62, {LOG2E:#x}"); k(f"s_mov_b32 s63, {LOG2E:#x}")
        k(f"s_mov_b32 s64, {fbits(1e-6):#x}"); k(f"s_mov_b32 s65, {fbits(1e-6):#x}")
        T = k.valloc(4)
        fk = k.valloc(8, 4); fv = k.valloc(8, 4)
        for rt in range(4):
            for j in (1, 2):
                ac = acc + (rt * 3 + j) * 4; f = (fk, fv)[j - 1] + 2 * rt
                for jj in range(4): k(f"v_mul_f32 {v(T+jj)}, {v(abn[rt]+2*jj+1)}, {v(cs3+4*j)}")
                for jj in range(4): k(f"v_fma_f32 {v(ac+jj)}, {v(abn[rt]+2*jj)}, {v(ac+jj)}, {v(T+jj)}")
                if j == 1: phi4(k, ac, T)
                k(f"v_cvt_pk_bf16_f32 {v(f)}, {v(ac)}, {v(ac+1)}")
                k(f"v_cvt_pk_bf16_f32 {v(f+1)}, {v(ac+2)}, {v(ac+3)}")
        kvp = k.valloc(4); zp = k.valloc(4)
        k(f"v_mfma_f32_16x16x32_bf16 {v(kvp,4)}, {v(fk,4)}, {v(fv,4)}, 0")
        k(f"v_mfma_f32_16x16x32_bf16 {v(zp,4)}, {v(fk,4)}, {v(ones,4)}, 0")
        k(f"v_mfma_f32_16x16x32_bf16 {v(kvp,4)}, {v(fk+4,4)}, {v(fv+4,4)}, {v(kvp,4)}")
        k(f"v_mfma_f32_16x16x32_bf16 {v(zp,4)}, {v(fk+4,4)}, {v(ones,4)}, {v(zp,4)}")
        vs = [k.valloc(), k.valloc()]
        k("s_lshl_b32 s57, s53, 5")
        for h in range(2):
            k(f"v_add_u32 {v(vs[h])}, s{66+h}, {v(k.vR16)}")
            k(f"v_mul_u32_u24 {v(vs[h])}, {SP}, {v(vs[h])}")
            k(f"v_lshl_add_u32 {v(vs[h])}, {v(k.vG)}, 3, {v(vs[h])}")
            k(f"v_add_u32 {v(vs[h])}, s57, {v(vs[h])}")
        for rt in range(4):
            ac = acc + rt * 12
            for p in range(2):
                k(f"v_pk_mul_f32 {v(T+2*p,2)}, {v(csq+2*p,2)}, {v(ab[rt],2)} op_sel:[0,1] op_sel_hi:[1,1]")
            for p in range(2):
                k(f"v_pk_fma_f32 {v(ac+2*p,2)}, {v(ac+2*p,2)}, {v(ab[rt],2)}, {v(T+2*p,2)} op_sel:[0,0,0] op_sel_hi:[1,0,1]")
            phi4(k, ac, T)
            k(f"v_cvt_pk_bf16_f32 {v(ac)}, {v(ac)}, {v(ac+1)}")
            k(f"v_cvt_pk_bf16_f32 {v(ac+1)}, {v(ac+2)}, {v(ac+3)}")
            k(f"ds_write_b64 {v(vs[rt>>1])}, {v(ac,2)} offset:{(rt&1)*16*SP}")
        k("s_lshl_b32 s57, s3, 10")
        k(f"s_add_u32 s57, s57, {self.LDS_KV}")
        k(f"v_lshlrev_b32 {v(vt)}, 4, {v(k.vL)}")
        k(f"v_add_u32 {v(vt)}, s57, {v(vt)}")
        k("s_lshl_b32 s58, s3, 6")
        k(f"s_add_u32 s58, s58, {self.LDS_Z}")
        k(f"v_lshlrev_b32 {v(vt2)}, 4, {v(k.vG)}")
        k(f"v_add_u32 {v(vt2)}, s58, {v(vt2)}")
        k(f"ds_write_b128 {v(vt)}, {v(kvp,4)}")
        k(f"ds_write_b128 {v(vt2)}, {v(zp,4)}")
        k("s_waitcnt lgkmcnt(0)")
    def store(self, k, vt, vt2, vt3, emit_stores):
        SPQ, SKV, SP = 32, 36, self.SP
        srd(k, SPQ, P_WS, WS_PQ, XB)
        srd(k, SKV, P_WS, self.kv_off, 34816)
        k("s_barrier")
        vy = k.valloc(8, 4); va_ = k.valloc(); vo = k.valloc(); rd = k.valloc(8, 4)
        k(f"v_lshrrev_b32 {v(vt)}, 2, v0")
        k(f"v_and_b32 {v(vt2)}, 3, v0")
        k(f"v_mul_u32_u24 {v(va_)}, {SP}, {v(vt)}")
        k(f"v_lshl_add_u32 {v(va_)}, {v(vt2)}, 4, {v(va_)}")
        k(f"ds_read_b128 {v(vy,4)}, {v(va_)}")
        k(f"ds_read_b128 {v(vy+4,4)}, {v(va_)} offset:{64*SP}")
        k(f"v_add_u32 {v(vt)}, s50, {v(vt)}")
        k(f"v_lshlrev_b32 {v(vo)}, 10, {v(vt)}")
        k(f"v_lshl_add_u32 {v(vo)}, {v(vt2)}, 4, {v(vo)}")
        k(f"v_add_u32 {v(vo)}, s54, {v(vo)}")
        k(f"v_bfe_u32 {v(vt)}, v0, 3, 4")
        k(f"v_lshlrev_b32 {v(vt)}, 4, {v(vt)}")
        k(f"v_bfe_u32 {v(vt2)}, v0, 7, 1")
        k(f"v_lshl_add_u32 {v(vt)}, {v(vt2)}, 9, {v(vt)}")
        k(f"v_bfe_u32 {v(vt2)}, v0, 2, 1")
        k(f"v_lshl_add_u32 {v(vt)}, {v(vt2)}, 8, {v(vt)}")
        k(f"v_and_b32 {v(vt2)}, 3, v0")
        k(f"v_lshl_add_u32 {v(vt)}, {v(vt2)}, 2, {v(vt)}")
        k(f"v_add_u32 {v(vt)}, {self.LDS_KV}, {v(vt)}")
        for h in range(2):
            k(f"ds_read_b32 {v(rd+2*h)}, {v(vt)} offset:{h*1024}")
            k(f"ds_read_b32 {v(rd+2*h+1)}, {v(vt)} offset:{h*1024+2048}")
        k(f"v_and_b32 {v(vt3)}, 31, v0")
        k(f"v_lshlrev_b32 {v(vt3)}, 2, {v(vt3)}")
        k(f"v_add_u32 {v(vt2)}, {self.LDS_Z}, {v(vt3)}")
        k(f"ds_read_b32 {v(rd+4)}, {v(vt2)}")
        k(f"ds_read_b32 {v(rd+5)}, {v(vt2)} offset:128")
        k("s_mov_b32 s60, 65536")
        emit_stores([f"buffer_store_dwordx4 {v(vy,4)}, {v(vo)}, s[{SPQ}:{SPQ+3}], 0 offen",
                     f"buffer_store_dwordx4 {v(vy+4,4)}, {v(vo)}, s[{SPQ}:{SPQ+3}], s60 offen"])
        k("s_lshl_b32 s57, s23, 11")
        k(f"v_lshlrev_b32 {v(vt2)}, 2, v0")
        k(f"v_add_u32 {v(vt2)}, s57, {v(vt2)}")
        for h in range(2):
            k(f"v_add_f32 {v(rd+2*h)}, {v(rd+2*h)}, {v(rd+2*h+1)}")
            k(f"buffer_atomic_add_f32 {v(rd+2*h)}, {v(vt2)}, s[{SKV}:{SKV+3}], 0 offen offset:{h*1024}")
        k("s_lshl_b32 s57, s23, 7")
        k(f"s_add_u32 s57, s57, 32768")
        k(f"v_add_u32 {v(vt3)}, s57, {v(vt3)}")
        k(f"v_mov_b32 {v(vt2)}, 0x7ffffff0")
        k(f"v_cmp_gt_u32 vcc, 32, v0")
        k(f"v_cndmask_b32 {v(vt3)}, {v(vt2)}, {v(vt3)}, vcc")
        k(f"v_add_f32 {v(rd+4)}, {v(rd+4)}, {v(rd+5)}")
        k(f"buffer_atomic_add_f32 {v(rd+4)}, {v(vt3)}, s[{SKV}:{SKV+3}], 0 offen")

class P2(Phase):
    NC = 4; PA = 256; NBI = 8; BSTEP = 131072; nprod = 16; pseudo = 1
    LDS_Z, LDS_0 = EX + 2048, EX + 3072
    def __init__(self, tag, xsrc, kv_off, xdst, st_off): super().__init__(tag); self.xsrc, self.kv_off, self.xdst, self.st_off = xsrc, kv_off, xdst, st_off
    def tile(self, k): tile64(k)
    def setup_A(self, k, vt, vt2):
        self.voA = a_dma_offsets(k, 8, 256, 1024, 50, vt, vt2)
        k("s_waitcnt lgkmcnt(0)")
        srd(k, 24, P_WS, WS_PQ, XB)
    def setup_B(self, k, vt, vt2, vt3, tmp):
        self.voB = [k.valloc() for _ in range(8)]
        k(f"v_lshrrev_b32 {v(vt)}, 3, {v(k.vL)}")
        k(f"v_bfe_u32 {v(vt2)}, {v(k.vL)}, 4, 2")
        k(f"v_lshlrev_b32 {v(vt2)}, 1, {v(vt2)}")
        k(f"v_and_b32 {v(vt3)}, 7, {v(k.vL)}")
        k(f"v_xor_b32 {v(vt2)}, {v(vt2)}, {v(vt3)}")
        k(f"v_lshlrev_b32 {v(vt2)}, 4, {v(vt2)}")
        k(f"v_lshl_add_u32 {v(vt)}, {v(vt)}, 10, {v(vt2)}")
        k("s_lshl_b32 s52, s59, 16")
        k(f"s_and_b32 s54, s{SM_}, 7"); k("s_lshl_b32 s54, s54, 7")
        k("s_add_u32 s52, s52, s54")
        k(f"v_add_u32 {v(self.voB[0])}, s52, {v(vt)}")
        for i in range(1, 8): k(f"v_add_u32 {v(self.voB[i])}, {8192*i}, {v(self.voB[0])}")
        k(f"s_lshl_b32 s{self.sBW}, s59, 13")
        k("s_waitcnt lgkmcnt(0)")
        srd(k, self.SWB, P_WO, 0, 512 * 512 * 2)
    def compute(self, k, vt, vt2, vt3):
        SKV, SX = 36, 24
        LDS_F, LDS_Z, LDS_0 = self.bslot[self.NC], self.LDS_Z, self.LDS_0
        self.xr = k.valloc(8, 4)
        kvf = k.valloc(32, 4); zf = k.valloc(2, 2)
        k("s_lshl_b32 s52, s3, 13")
        k(f"v_lshlrev_b32 {v(vt)}, 5, {v(k.vL)}")
        k(f"v_add_u32 {v(vt)}, s52, {v(vt)}")
        k(f"v_add_u32 {v(vt2)}, 4096, {v(vt)}")
        k("s_waitcnt lgkmcnt(0)")
        srd(k, SKV, P_WS, self.kv_off, 34816)
        for p in range(4):
            for hlf in range(2):
                k(f"buffer_load_dwordx4 {v(kvf+8*p+4*hlf,4)}, {v(vt if p < 2 else vt2)}, s[{SKV}:{SKV+3}], 0 offen offset:{(p&1)*2048+hlf*16}")
        k(f"v_lshlrev_b32 {v(vt3)}, 3, v0")
        k(f"v_add_u32 {v(vt3)}, 32768, {v(vt3)}")
        k(f"buffer_load_dwordx2 {v(zf,2)}, {v(vt3)}, s[{SKV}:{SKV+3}], 0 offen")
        if self.xsrc == "in": srd(k, SX, P_X, 0, XB)
        else: srd(k, SX, P_WS, self.xsrc, XB)
        resid_load64(k, SX, vt, vt2, self.xr)
        k("s_lshl_b32 s52, s3, 4")
        B = Bases(k)
        a_read_bases(k, B, 256, 52, 2, vt, vt2)
        aA0, aA1, aAz, sA0, sA1, sAz = [k.valloc() for _ in range(6)]
        k(f"v_lshlrev_b32 {v(vt)}, 4, {v(k.vL)}")
        k(f"v_add_u32 {v(vt)}, {LDS_F}, {v(vt)}")
        k(f"v_mov_b32 {v(vt2)}, {LDS_0}")
        k(f"v_cmp_gt_u32 vcc, 2, {v(k.vG)}")
        k(f"v_cndmask_b32 {v(aA0)}, {v(vt2)}, {v(vt)}, vcc")
        k(f"v_cndmask_b32 {v(aA1)}, {v(vt)}, {v(vt2)}, vcc")
        k(f"v_mov_b32 {v(vt3)}, 1024")
        k(f"v_cndmask_b32 {v(sA0)}, 0, {v(vt3)}, vcc")
        k(f"v_cndmask_b32 {v(sA1)}, {v(vt3)}, 0, vcc")
        k(f"v_and_b32 {v(vt)}, 3, {v(k.vL)}")
        k(f"v_lshrrev_b32 {v(vt3)}, 1, {v(k.vG)}")
        k(f"v_cmp_eq_u32 vcc, {v(vt)}, {v(vt3)}")
        k(f"v_lshlrev_b32 {v(vt)}, 4, {v(k.vG)}")
        k(f"v_add_u32 {v(vt)}, {LDS_Z}, {v(vt)}")
        k(f"v_cndmask_b32 {v(aAz)}, {v(vt2)}, {v(vt)}, vcc")
        k(f"v_cndmask_b32 {v(sAz)}, 0, 64, vcc")
        k(f"v_bfe_u32 {v(vt)}, {v(k.vL)}, 2, 2")
        k(f"v_lshl_add_u32 {v(vt)}, {v(k.vG)}, 2, {v(vt)}")
        k(f"v_bfe_u32 {v(vt2)}, {v(vt)}, 1, 2")
        k(f"v_lshlrev_b32 {v(vt)}, 7, {v(vt)}")
        k(f"v_and_b32 {v(vt3)}, 3, {v(k.vL)}")
        k(f"v_lshl_add_u32 {v(vt)}, {v(vt3)}, 3, {v(vt)}")
        for t in range(4):
            r = k.valloc()
            k(f"v_xor_b32 {v(vt3)}, {t}, {v(vt2)}")
            k(f"v_lshl_add_u32 {v(r)}, {v(vt3)}, 5, {v(vt)}")
            B.add(("W", t), r, 3)
        acc = k.valloc(16, 4)
        for i in range(16): k(f"v_mov_b32 {v(acc+i)}, 0")
        k("s_lshl_b32 s57, s3, 12")
        k(f"s_add_u32 s57, s57, {LDS_F}")
        k(f"v_lshlrev_b32 {v(vt)}, 4, {v(k.vL)}")
        k(f"v_add_u32 {v(vt)}, s57, {v(vt)}")
        for p in range(4):
            for i in range(4):
                k(f"v_cvt_pk_bf16_f32 {v(kvf+8*p+i)}, {v(kvf+8*p+2*i)}, {v(kvf+8*p+2*i+1)}")
            k(f"ds_write_b128 {v(vt)}, {v(kvf+8*p,4)} offset:{p*1024}")
        k(f"v_cvt_pk_bf16_f32 {v(zf)}, {v(zf)}, {v(zf+1)}")
        k(f"v_lshlrev_b32 {v(vt2)}, 2, v0")
        k(f"v_add_u32 {v(vt2)}, {LDS_Z}, {v(vt2)}")
        k(f"ds_write_b32 {v(vt2)}, {v(zf)}")
        k(f"v_mov_b32 {v(zf)}, 0")
        k(f"v_and_b32 {v(vt2)}, 3, v0")
        k(f"v_lshlrev_b32 {v(vt2)}, 2, {v(vt2)}")
        k(f"v_add_u32 {v(vt2)}, {LDS_0}, {v(vt2)}")
        k(f"ds_write_b32 {v(vt2)}, {v(zf)}")
        Wb = [kvf, k.valloc(32, 4)]
        Fb = k.valloc(24, 4); Pb = k.valloc(8, 4)
        N = [k.valloc(24, 4), k.valloc(24, 4)]
        O = [k.valloc(8, 4), k.valloc(8, 4)]; rr = k.valloc(4, 4)
        k(f"s_mov_b32 s62, {fbits(1e-6):#x}"); k(f"s_mov_b32 s63, {fbits(1e-6):#x}")
        def freads(hc):
            o = []
            for q in range(2):
                o += [f"ds_read_b128 {v(Pb+4*q,4)}, {B.at(('A',(hc&1)*2+q), self.aslot(hc//2))}",
                      f"ds_read_b128 {v(Fb+12*q,4)}, {v(aA0)}", f"ds_read_b128 {v(Fb+12*q+4,4)}, {v(aA1)}", f"ds_read_b128 {v(Fb+12*q+8,4)}, {v(aAz)}",
                      f"v_add_u32 {v(aA0)}, {v(aA0)}, {v(sA0)}", f"v_add_u32 {v(aA1)}, {v(aA1)}, {v(sA1)}", f"v_add_u32 {v(aAz)}, {v(aAz)}, {v(sAz)}"]
            return o
        def wreads(hc):
            b = Wb[hc & 1]
            return [f"ds_read_b64_tr_b16 {v(b+16*q+4*t+2*hh,2)}, {B.at(('W',t), self.bslot[hc//2] + ((hc&1)*2+q)*4096 + hh*2048)}" for q in range(2) for t in range(4) for hh in range(2)]
        def amfma(c):
            n = N[c & 1]
            return [f"v_mfma_f32_16x16x32_bf16 {v(n+12*q+4*i,4)}, {v(Fb+12*q+4*i,4)}, {v(Pb+4*q,4)}, 0" for q in range(2) for i in range(3)]
        def cmfma(c):
            b = Wb[c & 1]; o = O[c & 1]
            return [f"v_mfma_f32_16x16x32_bf16 {v(acc+4*t,4)}, {v(b+16*q+4*t,4)}, {v(o+4*q,4)}, {v(acc+4*t,4)}" for q in range(2) for t in range(4)]
        def ovalu(c):
            n0 = N[c & 1]; Oo = O[c & 1]; o = []
            for q in range(2): o.append(f"v_pk_add_f32 {v(rr+2*q,2)}, {v(n0+12*q+8,2)}, s[62:63]")
            for i in range(4): o.append(f"v_rcp_f32 {v(rr+i)}, {v(rr+i)}")
            for q in range(2):
                n = n0 + 12 * q
                for x in range(2): o.append(f"v_pk_mul_f32 {v(n+2*x,2)}, {v(n+2*x,2)}, {v(rr+2*q,2)} op_sel_hi:[1,0]")
                for x in range(2): o.append(f"v_pk_mul_f32 {v(n+4+2*x,2)}, {v(n+4+2*x,2)}, {v(rr+2*q,2)} op_sel:[0,1] op_sel_hi:[1,1]")
            for q in range(2):
                n = n0 + 12 * q
                for h in range(2):
                    o.append(f"v_cvt_pk_bf16_f32 {v(Oo+4*q+2*h)}, {v(n+4*h)}, {v(n+4*h+1)}")
                    o.append(f"v_cvt_pk_bf16_f32 {v(Oo+4*q+2*h+1)}, {v(n+4*h+2)}, {v(n+4*h+3)}")
            return o
        k("s_waitcnt lgkmcnt(0)")
        k("s_barrier"); k.stamp()
        for r in freads(0) + wreads(0): k(r)
        for r in amfma(0): k(r)
        for c in range(9):
            if c + 1 < 8:
                if (c + 1) % 2 == 0:
                    k("s_waitcnt lgkmcnt(0)")
                    k("s_barrier")
                for r in freads(c + 1): k(r)
            interleave(k, cmfma(c - 1) if c >= 1 else [], ovalu(c) if c < 8 else [])
            if c + 1 < 8: interleave(k, amfma(c + 1), wreads(c + 1))
        k.stamp()
        k("s_barrier")
        vs = k.valloc()
        k(f"v_add_u32 {v(vs)}, s52, {v(k.vR16)}")
        k(f"v_mul_u32_u24 {v(vs)}, 144, {v(vs)}")
        k(f"v_lshl_add_u32 {v(vs)}, {v(k.vG)}, 3, {v(vs)}")
        for t in range(4):
            ac = acc + 4 * t
            k(f"v_cvt_pk_bf16_f32 {v(ac)}, {v(ac)}, {v(ac+1)}")
            k(f"v_cvt_pk_bf16_f32 {v(ac+1)}, {v(ac+2)}, {v(ac+3)}")
            k(f"ds_write_b64 {v(vs)}, {v(ac,2)} offset:{t*32}")
        k("s_waitcnt lgkmcnt(0)")
    def store(self, k, vt, vt2, vt3, emit_stores):
        store64(self, k, emit_stores)

def store64(p, k, emit_stores):
    SD, SST = 40, 44
    if p.xdst == "out": srd(k, SD, P_OUT, 0, XB)
    else: srd(k, SD, P_WS, p.xdst, XB)
    if p.st_off is not None: srd(k, SST, P_WS, p.st_off, 2048 * 64)
    k("s_barrier")
    vy, vo, sm, va_ = store64_prep(k, p.xr, p.st_off is not None)
    k("s_mov_b32 s60, 32768")
    st = [f"buffer_store_dwordx4 {v(vy,4)}, {v(vo)}, s[{SD}:{SD+3}], 0 offen", f"buffer_store_dwordx4 {v(vy+4,4)}, {v(vo)}, s[{SD}:{SD+3}], s60 offen"]
    if p.st_off is not None:
        st += [f"buffer_store_dwordx2 {v(sm,2)}, {v(va_)}, s[{SST}:{SST+3}], 0 offen", f"buffer_store_dwordx2 {v(sm+2,2)}, {v(va_)}, s[{SST}:{SST+3}], 0 offen offset:2048"]
    emit_stores(st)

class P3(Phase):
    Qe = 6
    def spare(self, c): return 1 if (c >= self.NC - self.D or c % 2 == 1) else 0
    NC = 8; PA = 128; NBI = 8; BSTEP = 64 * 3584; has_ln = True; nprod = 16
    SP = 272
    def __init__(self, tag, xsrc, st_off, hoff): super().__init__(tag); self.xsrc, self.st_off, self.hoff = xsrc, st_off, hoff
    def tile(self, k):
        k(f"s_mov_b32 s22, s{SC_}"); k(f"s_min_u32 s23, s{SM_}, 13")
        k("s_lshl_b32 s50, s22, 7"); k("s_lshl_b32 s54, s23, 8")
    def setup_A(self, k, vt, vt2):
        self.voA = a_dma_offsets(k, 8, 128, 1024, 50, vt, vt2)
        k("s_waitcnt lgkmcnt(0)")
        srd(k, 24, P_WS, self.xsrc, XB)
    def setup_B(self, k, vt, vt2, vt3, tmp):
        self.voB = [k.valloc() for _ in range(8)]
        k("s_lshl_b32 s52, s59, 5")
        k(f"s_min_u32 s54, s{SM_}, 13"); k("s_lshl_b32 s54, s54, 8")
        for i in range(8):
            k(f"v_lshlrev_b32 {v(vt)}, 1, {v(k.vG)}")
            if (i >> 1) & 1: k(f"v_or_b32 {v(vt)}, 8, {v(vt)}")
            k(f"v_xor_b32 {v(vt)}, {v(vt)}, {v(k.vR16)}")
            k(f"v_lshlrev_b32 {v(vt)}, 4, {v(vt)}")
            k(f"v_add3_u32 {v(vt2)}, {v(k.vG)}, s52, {4*i}")
            k(f"v_mul_u32_u24 {v(vt2)}, 3584, {v(vt2)}")
            k(f"v_add3_u32 {v(self.voB[i])}, {v(vt2)}, {v(vt)}, s54")
        k(f"s_lshl_b32 s{self.sBW}, s59, 13")
        k("s_waitcnt lgkmcnt(0)")
        srd(k, self.SWB, P_W1, 0, 512 * 1792 * 2)
    def compute(self, k, vt, vt2, vt3):
        SP = self.SP; SCS = 36
        k("s_lshr_b32 s52, s3, 1")
        k("s_lshl_b32 s52, s52, 6")
        k("s_and_b32 s53, s3, 1")
        k("s_waitcnt lgkmcnt(0)")
        srd(k, SCS, P_WS, WS_CS + 0x2000, 8 * 1792 * 4)
        cs = k.valloc(16, 4)
        k("s_lshl_b32 s56, s23, 9")
        k("s_lshl_b32 s57, s53, 8")
        k("s_add_u32 s56, s56, s57")
        k(f"v_lshlrev_b32 {v(vt2)}, 4, {v(k.vG)}")
        k(f"v_add_u32 {v(vt2)}, s56, {v(vt2)}")
        for t in range(4):
            k(f"buffer_load_dwordx4 {v(cs+4*t,4)}, {v(vt2)}, s[{SCS}:{SCS+3}], 0 offen offset:{t*64}")
        csmark = k.nv
        csp = k.valloc(112, 4)
        for g_ in range(1, 8):
            k(f"s_mov_b32 s57, {g_*7168}")
            for t in range(4):
                k(f"buffer_load_dwordx4 {v(csp+16*(g_-1)+4*t,4)}, {v(vt2)}, s[{SCS}:{SCS+3}], s57 offen offset:{t*64}")
        for g_ in range(7):
            for x in range(8):
                k(f"v_pk_add_f32 {v(cs+2*x,2)}, {v(cs+2*x,2)}, {v(csp+16*g_+2*x,2)}")
        k.nv = csmark
        B = Bases(k)
        a_read_bases(k, B, 128, 52, 2, vt, vt2)
        k(f"v_bfe_u32 {v(vt)}, {v(k.vL)}, 2, 2")
        k(f"v_and_b32 {v(vt2)}, 1, {v(k.vG)}")
        k(f"v_lshl_add_u32 {v(vt2)}, {v(vt2)}, 2, {v(vt)}")
        k("s_lshl_b32 s57, s53, 2")
        k(f"v_xor_b32 {v(vt2)}, s57, {v(vt2)}")
        k(f"v_lshl_add_u32 {v(vt)}, {v(k.vG)}, 3, {v(vt)}")
        k(f"v_lshlrev_b32 {v(vt)}, 8, {v(vt)}")
        k(f"v_and_b32 {v(vt3)}, 3, {v(k.vL)}")
        k(f"v_lshl_add_u32 {v(vt)}, {v(vt3)}, 3, {v(vt)}")
        for t in range(4):
            r = k.valloc()
            k(f"v_xor_b32 {v(vt3)}, {t}, {v(vt2)}")
            k(f"v_lshl_add_u32 {v(r)}, {v(vt3)}, 5, {v(vt)}")
            B.add(("W", t), r, 3)
        acc = k.valloc(64, 4)
        for i in range(64): k(f"v_mov_b32 {v(acc+i)}, 0")
        Ab = [k.valloc(16, 4), k.valloc(16, 4)]; Wb = [k.valloc(16, 4), k.valloc(16, 4)]
        ab = [k.valloc(2, 2) for _ in range(4)]
        vab = k.valloc()
        k(f"v_add_u32 {v(vab)}, s52, {v(k.vR16)}")
        k(f"v_lshlrev_b32 {v(vab)}, 3, {v(vab)}")
        k(f"v_add_u32 {v(vab)}, {LDS_AB}, {v(vab)}")
        def reads(ks):
            c = ks // 2; kk = ks & 1; A_ = Ab[ks & 1]; W_ = Wb[ks & 1]
            ra = [f"ds_read_b128 {v(A_+4*rt,4)}, {B.at(('A',kk), self.aslot(c) + rt*2048)}" for rt in range(4)]
            rw = [f"ds_read_b64_tr_b16 {v(W_+4*t+2*hh,2)}, {B.at(('W',t), self.bslot[c] + kk*8192 + hh*1024)}" for t in range(4) for hh in range(2)]
            return [ra[0]] + rw + ra[1:]
        def mfmas(ks):
            A_ = Ab[ks & 1]; W_ = Wb[ks & 1]
            return [f"v_mfma_f32_16x16x32_bf16 {v(acc+(rt*4+t)*4,4)}, {v(W_+4*t,4)}, {v(A_+4*rt,4)}, {v(acc+(rt*4+t)*4,4)}" for rt in range(4) for t in range(4)]
        main_loop(k, 16, 2, reads, mfmas, [f"ds_read_b64 {v(ab[rt],2)}, {v(vab)} offset:{rt*128}" for rt in range(4)])
        k("s_barrier")
        vs = k.valloc()
        k(f"v_add_u32 {v(vs)}, s52, {v(k.vR16)}")
        k(f"v_mul_u32_u24 {v(vs)}, {SP}, {v(vs)}")
        k(f"v_lshl_add_u32 {v(vs)}, {v(k.vG)}, 3, {v(vs)}")
        k("s_lshl_b32 s57, s53, 7")
        k(f"v_add_u32 {v(vs)}, s57, {v(vs)}")
        tmp = k.valloc(8, 4)
        k(f"s_mov_b32 s62, {LOG2E | 0x80000000:#x}")
        k(f"s_mov_b32 s63, {LOG2E | 0x80000000:#x}")
        k("s_mov_b32 s64, 1.0"); k("s_mov_b32 s65, 1.0")
        for rt in range(4):
            for t in range(4):
                ac = acc + (rt * 4 + t) * 4; T = tmp + 4 * (t & 1)
                for p in range(2):
                    k(f"v_pk_mul_f32 {v(T+2*p,2)}, {v(cs+4*t+2*p,2)}, {v(ab[rt],2)} op_sel:[0,1] op_sel_hi:[1,1]")
                for p in range(2):
                    k(f"v_pk_fma_f32 {v(ac+2*p,2)}, {v(ac+2*p,2)}, {v(ab[rt],2)}, {v(T+2*p,2)} op_sel:[0,0,0] op_sel_hi:[1,0,1]")
                for p in range(2):
                    k(f"v_pk_mul_f32 {v(T+2*p,2)}, {v(ac+2*p,2)}, s[62:63]")
                for j in range(4): k(f"v_exp_f32 {v(T+j)}, {v(T+j)}")
                for p in range(2):
                    k(f"v_pk_add_f32 {v(T+2*p,2)}, {v(T+2*p,2)}, s[64:65]")
                for j in range(4): k(f"v_rcp_f32 {v(T+j)}, {v(T+j)}")
                for p in range(2):
                    k(f"v_pk_mul_f32 {v(ac+2*p,2)}, {v(ac+2*p,2)}, {v(T+2*p,2)}")
                k(f"v_cvt_pk_bf16_f32 {v(ac)}, {v(ac)}, {v(ac+1)}")
                k(f"v_cvt_pk_bf16_f32 {v(ac+1)}, {v(ac+2)}, {v(ac+3)}")
                k(f"ds_write_b64 {v(vs)}, {v(ac,2)} offset:{rt*16*SP + t*32}")
        k("s_waitcnt lgkmcnt(0)")
    def store(self, k, vt, vt2, vt3, emit_stores):
        SH, SP = 32, self.SP
        srd(k, SH, P_WS, self.hoff, S_ * F_ * 2)
        k(f"s_cmp_lt_u32 s{SM_}, 14")
        k(f"s_cselect_b32 s{SH+2}, s{SH+2}, 0")
        k("s_barrier")
        vy = k.valloc(32, 4); va_ = k.valloc(); vo = k.valloc()
        k(f"v_lshrrev_b32 {v(vt)}, 4, v0")
        k(f"v_and_b32 {v(vt2)}, 15, v0")
        k(f"v_mul_u32_u24 {v(va_)}, {SP}, {v(vt)}")
        k(f"v_lshl_add_u32 {v(va_)}, {v(vt2)}, 4, {v(va_)}")
        for p in range(8):
            k(f"ds_read_b128 {v(vy+4*p,4)}, {v(va_)} offset:{p*16*SP}")
        k(f"v_add_u32 {v(vt)}, s50, {v(vt)}")
        k(f"v_mul_u32_u24 {v(vo)}, 3584, {v(vt)}")
        k(f"v_lshl_add_u32 {v(vo)}, {v(vt2)}, 4, {v(vo)}")
        k(f"v_add_u32 {v(vo)}, s54, {v(vo)}")
        st = []
        for p in range(8):
            st.append(f"s_mov_b32 s56, {p*16*3584}")
            st.append(f"buffer_store_dwordx4 {v(vy+4*p,4)}, {v(vo)}, s[{SH}:{SH+3}], s56 offen")
        emit_stores(st)

class P4(Phase):
    NC = 14; PA = 256; NBI = 8; BSTEP = 131072; nprod = 16
    def __init__(self, tag, xsrc, xdst, st_off, hoff): super().__init__(tag); self.xsrc, self.xdst, self.st_off, self.hoff = xsrc, xdst, st_off, hoff
    def tile(self, k): tile64(k)
    def setup_A(self, k, vt, vt2):
        self.voA = a_dma_offsets(k, 8, 256, 3584, 50, vt, vt2)
        k("s_waitcnt lgkmcnt(0)")
        srd(k, 24, P_WS, self.hoff, S_ * F_ * 2)
    def setup_B(self, k, vt, vt2, vt3, tmp):
        self.voB = [k.valloc() for _ in range(8)]
        k("s_lshl_b32 s52, s59, 16")
        k(f"s_and_b32 s54, s{SM_}, 7"); k("s_lshl_b32 s54, s54, 7")
        k("s_add_u32 s52, s52, s54")
        for i in range(8):
            k(f"v_bfe_u32 {v(vt)}, {v(k.vL)}, 4, 1")
            k(f"v_lshlrev_b32 {v(vt)}, 1, {v(vt)}")
            if i & 1: k(f"v_or_b32 {v(vt)}, 4, {v(vt)}")
            k(f"v_and_b32 {v(vt2)}, 7, {v(k.vL)}")
            k(f"v_xor_b32 {v(vt)}, {v(vt)}, {v(vt2)}")
            k(f"v_lshlrev_b32 {v(vt)}, 4, {v(vt)}")
            k(f"v_lshrrev_b32 {v(vt2)}, 3, {v(k.vL)}")
            k(f"v_add_u32 {v(vt2)}, {8*i}, {v(vt2)}")
            k(f"v_lshl_add_u32 {v(vt)}, {v(vt2)}, 10, {v(vt)}")
            k(f"v_add_u32 {v(self.voB[i])}, s52, {v(vt)}")
        k(f"s_lshl_b32 s{self.sBW}, s59, 13")
        k("s_waitcnt lgkmcnt(0)")
        srd(k, self.SWB, P_W2, 0, 1792 * 512 * 2)
    def compute(self, k, vt, vt2, vt3):
        SX = 24
        self.xr = k.valloc(8, 4)
        k("s_waitcnt lgkmcnt(0)")
        srd(k, SX, P_WS, self.xsrc, XB)
        resid_load64(k, SX, vt, vt2, self.xr)
        k("s_lshr_b32 s52, s3, 1")
        k("s_lshl_b32 s52, s52, 5")
        k("s_and_b32 s53, s3, 1")
        B = Bases(k)
        a_read_bases(k, B, 256, 52, 2, vt, vt2)
        k(f"v_bfe_u32 {v(vt)}, {v(k.vL)}, 2, 2")
        k(f"v_and_b32 {v(vt2)}, 1, {v(k.vG)}")
        k(f"v_lshlrev_b32 {v(vt2)}, 1, {v(vt2)}")
        k(f"v_bfe_u32 {v(vt3)}, {v(k.vL)}, 3, 1")
        k(f"v_or_b32 {v(vt2)}, {v(vt2)}, {v(vt3)}")
        k("s_lshl_b32 s57, s53, 1")
        k(f"v_xor_b32 {v(vt2)}, s57, {v(vt2)}")
        k(f"v_lshl_add_u32 {v(vt)}, {v(k.vG)}, 3, {v(vt)}")
        k(f"v_lshlrev_b32 {v(vt)}, 7, {v(vt)}")
        k(f"v_and_b32 {v(vt3)}, 3, {v(k.vL)}")
        k(f"v_lshl_add_u32 {v(vt)}, {v(vt3)}, 3, {v(vt)}")
        for t in range(2):
            r = k.valloc()
            k(f"v_xor_b32 {v(vt3)}, {t}, {v(vt2)}")
            k(f"v_lshl_add_u32 {v(r)}, {v(vt3)}, 5, {v(vt)}")
            B.add(("W", t), r, 3)
        acc = k.valloc(16, 4)
        for i in range(16): k(f"v_mov_b32 {v(acc+i)}, 0")
        Ab = [k.valloc(32, 4), k.valloc(32, 4)]; Wb = [k.valloc(32, 4), k.valloc(32, 4)]
        def reads(c):
            A_ = Ab[c & 1]; W_ = Wb[c & 1]; o = []
            for kk in range(4):
                ra = [f"ds_read_b128 {v(A_+8*kk+4*rt,4)}, {B.at(('A',kk), self.aslot(c) + rt*4096)}" for rt in range(2)]
                rw = [f"ds_read_b64_tr_b16 {v(W_+8*kk+4*t+2*hh,2)}, {B.at(('W',t), self.bslot[c] + kk*4096 + hh*512)}" for t in range(2) for hh in range(2)]
                o += [ra[0]] + rw + ra[1:]
            if os.environ.get("G_NOREAD"): return o[:int(os.environ["G_NOREAD"])]
            return o
        def mfmas(c):
            A_ = Ab[c & 1]; W_ = Wb[c & 1]
            return [f"v_mfma_f32_16x16x32_bf16 {v(acc+(rt*2+t)*4,4)}, {v(W_+8*kk+4*t,4)}, {v(A_+8*kk+4*rt,4)}, {v(acc+(rt*2+t)*4,4)}" for kk in range(4) for rt in range(2) for t in range(2)]
        for c in range(self.NC + 1):
            if c < self.NC:
                if c: k("s_waitcnt lgkmcnt(0)")
                k.dstamp()
                k("s_barrier")
                if c == 0: k.stamp()
            rd = reads(c) if c < self.NC else []
            mf = mfmas(c - 1) if c else []
            i = j = 0
            while i < len(mf) or j < len(rd):
                for _ in range(2):
                    if j < len(rd): k(rd[j]); j += 1
                if i < len(mf): k(mf[i]); i += 1
                if j < len(rd): k(rd[j]); j += 1
                if i < len(mf): k(mf[i]); i += 1
        k.stamp()
        k("s_barrier")
        vs = k.valloc()
        k(f"v_add_u32 {v(vs)}, s52, {v(k.vR16)}")
        k(f"v_mul_u32_u24 {v(vs)}, 144, {v(vs)}")
        k(f"v_lshl_add_u32 {v(vs)}, {v(k.vG)}, 3, {v(vs)}")
        k("s_lshl_b32 s57, s53, 6")
        k(f"v_add_u32 {v(vs)}, s57, {v(vs)}")
        for rt in range(2):
            for t in range(2):
                ac = acc + (rt * 2 + t) * 4
                k(f"v_cvt_pk_bf16_f32 {v(ac)}, {v(ac)}, {v(ac+1)}")
                k(f"v_cvt_pk_bf16_f32 {v(ac+1)}, {v(ac+2)}, {v(ac+3)}")
                k(f"ds_write_b64 {v(vs)}, {v(ac,2)} offset:{rt*16*144 + t*32}")
        k("s_waitcnt lgkmcnt(0)")
    def store(self, k, vt, vt2, vt3, emit_stores):
        store64(self, k, emit_stores)

def gen_fused(name, phases, flagbase, xtidx, stamps=False, first=False):
    k = Kern(name); k.stamps_on = stamps
    if os.environ.get("G_DET"): k.det = int(os.environ["G_DET"])
    prologue(k, 256, wait=False)
    k("s_sub_u32 s59, s3, 4")
    k("s_and_b32 s48, s2, 7"); k("s_lshl_b32 s48, s48, 1"); k("s_lshr_b32 s49, s2, 7")
    k(f"s_add_u32 s{SC_}, s48, s49"); k(f"s_bfe_u32 s{SM_}, s2, 0x40003")
    vt, vt2, vt3 = k.valloc(), k.valloc(), k.valloc()
    vfl = k.valloc(); vfd = k.valloc()
    mark = k.nv
    k.lds = 163840
    n = len(phases)
    bars = []
    for i, p in enumerate(phases):
        bars += [(i, "b", c) for c in range(p.NC)] + [(i, "e", 0), (i, "s", 0)] + ([(i, "u", 0)] if i < n - 1 else [])
    bidx = {b: j for j, b in enumerate(bars)}
    chunks = []
    for i, p in enumerate(phases):
        for c in range(p.NC):
            rel = bidx[(i, "b", c + 1)] if c + 1 < p.NC else bidx[(i, "e", 0)]
            chunks.append((i, c, bidx[(i, "b", c)], rel, True))
        for x in range(p.pseudo):
            chunks.append((i, p.NC + x, None, bidx[(i, "e", 0)], False))
    for j, (i, c, _, _, _) in enumerate(chunks): phases[i].bslot[c] = BRING + (j % NB) * 16384
    for i, p in enumerate(phases): p.SWB = 24 + 4 * i; p.sBW = 44 + i
    k("s_cmp_lt_u32 s3, 4")
    k(f"s_cbranch_scc1 {name}_compute")
    k("s_cmp_lt_u32 s3, 6")
    k(f"s_cbranch_scc1 {name}_aload")
    k("s_sub_u32 s59, s3, 6")
    k.stamp_set(0); k.stamp()
    tmp5 = [k.valloc() for _ in range(5)]
    NV = int(os.environ.get("G_NV", "0"))
    vl16 = k.valloc()
    k(f"v_lshlrev_b32 {v(vl16)}, 4, {v(k.vL)}")
    for p in phases: p._vo = None
    vslots = [256 - 32 * (x + 1) for x in range(NV)]
    k.maxv = 256 if NV else k.maxv
    freev = list(vslots); vq = []
    setup_done = set(); nxt = [0]; placed = set(); pend = []
    def slot_free(j, after_bar): return j < NB or chunks[j - NB][3] <= after_bar
    def b_step(after_bar, maxn, curphase=None, spare=0):
        if pend:
            k("s_waitcnt lgkmcnt(0)")
            for (j, vs) in pend: placed.add(j); freev.append(vs)
            pend.clear()
        while vq and slot_free(vq[0][0], after_bar):
            j, vs = vq.pop(0); i, c = chunks[j][0], chunks[j][1]
            phases[i].place_Bv(k, c, vs, vl16, vt); pend.append((j, vs))
        cnt = 0
        while nxt[0] < len(chunks) and cnt < maxn:
            j = nxt[0]; i, c, need, rel, real = chunks[j]
            if not real:
                if not slot_free(j, after_bar): break
                placed.add(j); nxt[0] += 1; continue
            direct = (not vq) and slot_free(j, after_bar)
            if not direct and not freev: break
            if curphase is not None and i != curphase:
                if spare <= 0: break
                spare -= 1
            if i not in setup_done:
                phases[i].setup_B(k, vt, vt2, vt3, tmp5); setup_done.add(i)
                assert k.nv <= 256 - 32 * NV
            k.vm_limit(int(os.environ.get("G_VML", "24")))
            if direct:
                phases[i].issue_B(k, c); placed.add(j)
            else:
                vs = freev.pop(0); phases[i].issue_Bv(k, c, vs); vq.append((j, vs))
            cnt += 1; nxt[0] += 1
    b_step(-1, 2)
    for j, (i, kind, c) in enumerate(bars):
        if kind == "b":
            jj = next(x for x, ch in enumerate(chunks) if ch[0] == i and ch[1] == c)
            if jj not in placed:
                assert any(x[0] == jj for x in pend), (i, c)
                k("s_waitcnt lgkmcnt(0)")
                for (j_, vs) in pend: placed.add(j_); freev.append(vs)
                pend.clear()
            k.wait_tag(f"{phases[i].tag}b{c}")
        k.cur = i; k.dstamp()
        k("s_barrier")
        if first and kind == "b" and c == 2:
            sw = k.valloc(16, 4); sacc = k.valloc(8, 4); svo = k.valloc()
            srd(k, 28, P_W1, 0, 512 * 1792 * 2)
            k("s_min_u32 s40, s2, 223")
            k("s_mul_i32 s41, s40, 2341"); k("s_lshr_b32 s41, s41, 16")
            k("s_mul_i32 s48, s41, 28"); k("s_sub_u32 s40, s40, s48")
            k("s_lshl_b32 s48, s41, 6"); k("s_lshl_b32 s49, s59, 5"); k("s_add_u32 s48, s48, s49")
            k(f"v_lshrrev_b32 {v(svo)}, 3, {v(k.vL)}")
            k(f"v_add_u32 {v(svo)}, s48, {v(svo)}")
            k(f"v_mul_u32_u24 {v(svo)}, 3584, {v(svo)}")
            k(f"v_and_b32 {v(vt)}, 7, {v(k.vL)}")
            k(f"v_lshl_add_u32 {v(svo)}, {v(vt)}, 4, {v(svo)}")
            k("s_lshl_b32 s48, s40, 7")
            k(f"v_add_u32 {v(svo)}, s48, {v(svo)}")
            for x in range(4):
                k(f"s_mov_b32 s49, {x*8*3584}")
                k(f"buffer_load_dwordx4 {v(sw+4*x,4)}, {v(svo)}, s[28:31], s49 offen")
        if first and kind == "b" and c == 4 and os.environ.get("G_TOUCH"):
            tw = k.valloc(20, 4)
            srd(k, 32, P_W2, 0, 1792 * 512 * 2)
            srd(k, 36, P_WO, 0, 512 * 512 * 2)
            k("s_mul_i32 s48, s2, 7168"); k("s_mul_i32 s49, s59, 3584"); k("s_add_u32 s48, s48, s49")
            k(f"v_add_u32 {v(vt)}, s48, {v(vl16)}")
            for x in range(4):
                k(f"buffer_load_dwordx4 {v(tw+4*x,4)}, {v(vt)}, s[32:35], 0 offen offset:{x*1024 if x < 3 else 2560}")
            k("s_lshl_b32 s48, s2, 11"); k("s_lshl_b32 s49, s59, 10"); k("s_add_u32 s48, s48, s49")
            k(f"v_add_u32 {v(vt)}, s48, {v(vl16)}")
            k(f"buffer_load_dwordx4 {v(tw+16,4)}, {v(vt)}, s[36:39], 0 offen")
        if first and kind == "b" and c == 5:
            k("s_mov_b32 s60, 0x00003f80"); k("s_mov_b32 s61, 0x3f800000")
            for x in range(8): k(f"v_mov_b32 {v(sacc+x)}, 0")
            for x in range(4):
                for y in range(4):
                    k(f"v_dot2_f32_bf16 {v(sacc+2*y)}, {v(sw+4*x+y)}, s60, {v(sacc+2*y)}")
                    k(f"v_dot2_f32_bf16 {v(sacc+2*y+1)}, {v(sw+4*x+y)}, s61, {v(sacc+2*y+1)}")
        if first and kind == "b" and c == 6:
            for x in range(8):
                k(f"v_add_f32_dpp {v(sw+x)}, {v(sacc+x)}, {v(sacc+x)} row_ror:8 row_mask:0xf bank_mask:0xf")
            for x in range(8): gen.xlane_sum_g(k, sw + x, sacc + x)
            k("s_lshl_b32 s48, s59, 8"); k(f"s_add_u32 s48, s48, {EX+8192}")
            k(f"v_and_b32 {v(vt)}, 7, {v(k.vL)}")
            k(f"v_lshlrev_b32 {v(svo)}, 5, {v(vt)}")
            k(f"v_add_u32 {v(vt)}, s48, {v(svo)}")
            k(f"ds_write_b128 {v(vt)}, {v(sw,4)}"); k(f"ds_write_b128 {v(vt)}, {v(sw+4,4)} offset:16")
            k("s_waitcnt lgkmcnt(0)")
        if first and kind == "b" and c == 7:
            k(f"v_add_u32 {v(vt)}, {EX+8192}, {v(svo)}")
            for x in range(2):
                k(f"ds_read_b128 {v(sw+4*x,4)}, {v(vt)} offset:{16*x}")
                k(f"ds_read_b128 {v(sw+8+4*x,4)}, {v(vt)} offset:{256+16*x}")
            for x in range(8): k(f"v_add_f32 {v(sw+x)}, {v(sw+x)}, {v(sw+8+x)}")
            srd(k, 28, P_WS, WS_CS + 0x2000, 8 * 1792 * 4)
            k("s_mul_i32 s48, s41, 7168"); k("s_lshl_b32 s49, s40, 8"); k("s_add_u32 s48, s48, s49")
            k(f"v_add_u32 {v(vt)}, s48, {v(svo)}")
            k("s_mov_b64 exec, 0xff")
            k(f"buffer_store_dwordx4 {v(sw,4)}, {v(vt)}, s[28:31], 0 offen")
            k(f"buffer_store_dwordx4 {v(sw+4,4)}, {v(vt)}, s[28:31], 0 offen offset:16")
            k("s_mov_b64 exec, -1")
        if kind in ("e", "u"): k.stamp()
        if kind == "b":
            b_step(j, 2 if i == 0 else 1, i, phases[i].spare(c))
        else:
            b_step(j, {"e": phases[i].Qe, "s": 3, "u": 7}[kind])
    assert nxt[0] == len(chunks) and not vq
    if stamps: k.stamp(); k.stamp_flush(P_WS, vt, vt2)
    k("s_endpgm")
    k.L(f"{name}_aload"); k.reset()
    k.stamp_set(0); k.stamp()
    k("s_lshl_b32 s55, s59, 13")
    for i, p in enumerate(phases):
        k.nv = mark
        p.tile(k)
        p.setup_A(k, vt, vt2)
        if first:
            vz = k.valloc(4)
            for x in range(4): k(f"v_mov_b32 {v(vz+x)}, 0")
            srd(k, 28, P_WS, WS_KV, 0x20000)
            srd(k, 32, 18, 0, 256)
            l1 = f"{name}_tk"; l2 = f"{name}_tkd"
            k("s_cmp_eq_u32 s59, 0")
            k(f"s_cbranch_scc1 {l1}")
            k("s_lshl_b32 s48, s2, 8"); k("s_add_u32 s48, s48, 0x10000")
            k(f"v_lshlrev_b32 {v(vfl)}, 4, {v(k.vL)}"); k(f"v_add_u32 {v(vfl)}, s48, {v(vfl)}")
            k("s_mov_b64 exec, 0xffff")
            k(f"buffer_store_dwordx4 {v(vz,4)}, {v(vfl)}, s[28:31], 0 offen")
            k("s_mov_b64 exec, -1")
            k(f"s_branch {l2}")
            k.L(l1)
            k(f"s_lshl_b32 s48, s{SM_}, 2")
            k(f"v_mov_b32 {v(vfl)}, s48"); k(f"v_mov_b32 {v(vfd)}, 1")
            k("s_mov_b64 exec, 1")
            k(f"buffer_atomic_add {v(vfd)}, {v(vfl)}, s[32:35], 0 offen sc0")
            k("s_mov_b64 exec, -1")
            k.L(l2)
        if i == 0 and n > 1:
            srd(k, SFL, P_WS, WS_FLAG, 0x7000)
            k("s_getreg_b32 s98, hwreg(HW_REG_XCC_ID)")
            k("s_and_b32 s98, s98, 15"); k("s_add_u32 s98, s98, 1")
            k(f"s_lshl_b32 s48, s{SC_}, 6"); k(f"s_lshl_b32 s49, s{SM_}, 2"); k("s_add_u32 s48, s48, s49")
            k(f"s_add_u32 s48, s48, {WS_XT - WS_FLAG + xtidx*1024}")
            k(f"v_mov_b32 {v(vfl)}, s48"); k(f"v_mov_b32 {v(vfd)}, s98")
            k("s_mov_b64 exec, 1")
            k(f"buffer_store_dword {v(vfd)}, {v(vfl)}, s[{SFL}:{SFL+3}], 0 offen sc0 sc1")
            k("s_mov_b64 exec, -1")
        if i > 0:
            lab = f"{name}_poll{i}"; done = f"{name}_polld{i}"
            k(f"s_lshl_b32 s48, s{SC_}, 8"); k(f"s_add_u32 s48, s48, {(flagbase+i-1)*4096}")
            k(f"v_lshlrev_b32 {v(vfl)}, 2, {v(k.vL)}"); k(f"v_add_u32 {v(vfl)}, s48, {v(vfl)}")
            k(f"s_mov_b64 exec, {(1<<phases[i-1].nprod)-1:#x}")
            k("s_mov_b32 s49, 0")
            k.L(lab)
            k(f"buffer_load_dword {v(vfd)}, {v(vfl)}, s[{SFL}:{SFL+3}], 0 offen sc1")
            k("s_add_u32 s49, s49, 1")
            k("s_waitcnt vmcnt(0)")
            k(f"v_cmp_ne_u32 vcc, 1, {v(vfd)}")
            k("s_cmp_gt_u32 s49, 200000")
            k(f"s_cbranch_scc1 {done}")
            k(f"s_cbranch_vccnz {lab}")
            k.L(done)
            k("s_mov_b64 exec, -1")
        k.stamp()
        if p.has_ln:
            stv = k.valloc(16, 4)
            srd(k, 28, P_WS, p.st_off, 2048 * 64)
            k("s_lshl_b32 s48, s59, 6")
            k("s_add_u32 s48, s48, s50")
            k(f"v_add_u32 {v(vt)}, s48, {v(k.vL)}")
            k(f"v_lshlrev_b32 {v(vt)}, 6, {v(vt)}")
            for x in range(4):
                k(f"buffer_load_dwordx4 {v(stv+4*x,4)}, {v(vt)}, s[28:31], 0 offen offset:{16*x}")
        for c in range(min(p.D, p.NC)): p.issue_A(k, c)
        for c in range(p.NC):
            k.wait_tag(f"{p.tag}a{c}")
            k.cur = i; k.dstamp()
            k("s_barrier")
            if c + p.D < p.NC: p.issue_A(k, c + p.D)
            if first and c == 0:
                l3 = f"{name}_zk"
                k.vm_save()
                k("s_cmp_lg_u32 s59, 0")
                k(f"s_cbranch_scc1 {l3}")
                k(f"v_readfirstlane_b32 s48, {v(vfd)}")
                k("s_nop 3")
                k("s_cmp_lg_u32 s48, 0")
                k(f"s_cbranch_scc1 {l3}")
                k(f"s_lshl_b32 s48, s{SM_}, 11")
                k(f"v_lshlrev_b32 {v(vfl)}, 4, {v(k.vL)}"); k(f"v_add_u32 {v(vt)}, s48, {v(vfl)}")
                k(f"buffer_store_dwordx4 {v(vz,4)}, {v(vt)}, s[28:31], 0 offen sc0 sc1")
                k(f"buffer_store_dwordx4 {v(vz,4)}, {v(vt)}, s[28:31], 0 offen offset:1024 sc0 sc1")
                k(f"s_lshl_b32 s48, s{SM_}, 7"); k("s_add_u32 s48, s48, 32768")
                k(f"v_add_u32 {v(vt)}, s48, {v(vfl)}")
                k("s_mov_b64 exec, 0xff")
                k(f"buffer_store_dwordx4 {v(vz,4)}, {v(vt)}, s[28:31], 0 offen sc0 sc1")
                k("s_waitcnt vmcnt(0)")
                k(f"s_lshl_b32 s48, s{SM_}, 2"); k("s_add_u32 s48, s48, 64")
                k(f"v_mov_b32 {v(vfl)}, s48"); k(f"v_mov_b32 {v(vfd)}, 1")
                k("s_mov_b64 exec, 1")
                k(f"buffer_store_dword {v(vfd)}, {v(vfl)}, s[32:35], 0 offen sc0 sc1")
                k("s_mov_b64 exec, -1")
                k.L(l3)
                k.vm_restore()
            if first and c == p.NC - 1:
                lab = f"{name}_rp"; done = f"{name}_rpd"
                k(f"s_lshl_b32 s48, s{SM_}, 2"); k("s_add_u32 s48, s48, 64")
                k(f"v_mov_b32 {v(vfl)}, s48")
                k("s_mov_b64 exec, 1")
                k("s_mov_b32 s49, 0")
                k.L(lab)
                k(f"buffer_load_dword {v(vfd)}, {v(vfl)}, s[32:35], 0 offen sc0 sc1")
                k("s_add_u32 s49, s49, 1")
                k("s_waitcnt vmcnt(0)")
                k(f"v_cmp_ne_u32 vcc, 1, {v(vfd)}")
                k("s_cmp_gt_u32 s49, 200000")
                k(f"s_cbranch_scc1 {done}")
                k(f"s_cbranch_vccnz {lab}")
                k.L(done)
                k("s_mov_b64 exec, -1")
            if c == 1 and p.has_ln:
                ab = k.valloc(2, 2)
                gen.ln_params(k, stv, ab, ab + 1, vt, vt2)
                k("s_lshl_b32 s48, s59, 9")
                k(f"s_add_u32 s48, s48, {LDS_AB}")
                k(f"v_lshlrev_b32 {v(vt)}, 3, {v(k.vL)}")
                k(f"v_add_u32 {v(vt)}, s48, {v(vt)}")
                k(f"ds_write_b64 {v(vt)}, {v(ab,2)}")
                k("s_waitcnt lgkmcnt(0)")
            if i == 0 and n > 1 and c == p.NC - 1:
                k(f"s_lshl_b32 s48, s{SC_}, 6"); k(f"s_add_u32 s48, s48, {WS_XT - WS_FLAG + xtidx*1024}")
                k(f"v_and_b32 {v(vfl)}, 15, {v(k.vL)}")
                k(f"v_lshlrev_b32 {v(vfl)}, 2, {v(vfl)}"); k(f"v_add_u32 {v(vfl)}, s48, {v(vfl)}")
                k(f"buffer_load_dword {v(vfd)}, {v(vfl)}, s[{SFL}:{SFL+3}], 0 offen sc0 sc1")
                k(f"v_cmp_ne_u32 vcc, s98, {v(vfd)}")
                k("s_cmp_eq_u64 vcc, 0")
                k("s_cselect_b32 s99, 1, 0")
                if FORCE == "fast": k("s_mov_b32 s99, 1")
                if FORCE == "slow": k("s_mov_b32 s99, 0")
                k(f"v_mov_b32 {v(vfd)}, s99"); k(f"v_mov_b32 {v(vfl)}, {LDS_MODE}")
                k(f"s_lshl_b32 s48, s59, 2"); k(f"v_add_u32 {v(vfl)}, s48, {v(vfl)}")
                k(f"ds_write_b32 {v(vfl)}, {v(vfd)}")
                k("s_waitcnt lgkmcnt(0)")
        k.stamp()
        k("s_barrier")
        k("s_barrier")
        if i < n - 1:
            k("s_barrier")
            k.stamp()
            lab = f"{name}_pub{i}"; lab2 = f"{name}_pubs{i}"
            k("s_cmp_lg_u32 s59, 0")
            k(f"s_cbranch_scc1 {lab}")
            k(f"s_lshl_b32 s48, s{SC_}, 8"); k(f"s_lshl_b32 s49, s{SM_}, 2"); k("s_add_u32 s48, s48, s49")
            k(f"s_add_u32 s48, s48, {(flagbase+i)*4096}")
            k(f"v_mov_b32 {v(vfl)}, s48"); k(f"v_mov_b32 {v(vfd)}, 1")
            k("s_mov_b64 exec, 1")
            k("s_cmp_eq_u32 s99, 1")
            k(f"s_cbranch_scc0 {lab2}")
            k(f"buffer_store_dword {v(vfd)}, {v(vfl)}, s[{SFL}:{SFL+3}], 0 offen")
            k(f"s_branch {lab}")
            k.L(lab2)
            k(f"buffer_store_dword {v(vfd)}, {v(vfl)}, s[{SFL}:{SFL+3}], 0 offen sc0 sc1")
            k.L(lab)
            k("s_mov_b64 exec, -1")
    if stamps: k.stamp(); k.stamp_flush(P_WS, vt, vt2)
    k("s_endpgm")
    k.L(f"{name}_compute"); k.reset()
    k.stamp_set(0); k.stamp()
    for i, p in enumerate(phases):
        k.nv = mark; k.cur = i
        p.tile(k)
        p.compute(k, vt, vt2, vt3)
        if os.environ.get("G_BND"): k.stamp()
        k.nv = mark + 12
        def emit_stores(lst, i=i):
            if i == n - 1:
                for x in lst: k(x)
                return
            if i == 0:
                k(f"v_mov_b32 {v(vfl)}, {LDS_MODE}")
                k(f"ds_read_b32 {v(vfd)}, {v(vfl)}")
                k(f"v_readfirstlane_b32 s99, {v(vfd)}")
            l1 = f"{name}_st{i}_slow"; l2 = f"{name}_st{i}_done"
            k("s_waitcnt vmcnt(0) lgkmcnt(0)")
            k("s_nop 4")
            k("s_cmp_eq_u32 s99, 1")
            k(f"s_cbranch_scc0 {l1}")
            for x in lst: k(x)
            k(f"s_branch {l2}")
            k.L(l1)
            for x in lst: k(x + (" sc0 sc1" if x.startswith("buffer_store") else ""))
            k.L(l2)
        p.store(k, vt, vt2, vt3, emit_stores)
        if os.environ.get("G_BND"): k.stamp()
        if i < n - 1:
            k("s_waitcnt vmcnt(0)")
            if os.environ.get("G_BND"): k.stamp()
            k("s_barrier")
    if stamps:
        k("s_waitcnt vmcnt(0)"); k.stamp(); k.stamp_flush(P_WS, vt, vt2)
    epilogue_end(k)
    return k

def build(path, stamps=False):
    kA = gen_fused("kA_kernel", [P1("p1a", "in", WS_KV, None)], 0, 0, stamps and os.environ.get("G_STA") == "1", True)
    kB = gen_fused("kB_kernel", [P2("p2a", "in", WS_KV, WS_X1, WS_ST1), P3("p3a", WS_X1, WS_ST1, WS_H), P4("p4a", WS_X1, WS_X2, WS_ST2, WS_H),
                                 P1("p1b", WS_X2, WS_KV + 0x10000, WS_ST2)], 0, 0, stamps and os.environ.get("G_STA") != "1")
    kC = gen_fused("kC_kernel", [P2("p2b", WS_X2, WS_KV + 0x10000, WS_X1, WS_ST1), P3("p3b", WS_X1, WS_ST1, WS_H), P4("p4b", WS_X1, "out", None, WS_H)], 3, 1)
    ks = [kA, kB, kC]
    launches = [(k.name, 256, 512, k.lds) for i, k in enumerate(ks)]
    open(path, "w").write(build_file(HEADER, launches, ks))
    for k in ks: print(k.name, "vgpr", k.maxv, "lds", k.lds, "ninst", sum(1 for i in k.items if isinstance(i, Ins)))

if __name__ == "__main__":
    build(sys.argv[1] if len(sys.argv) > 1 else "interleave_layers__linear_attn_block__dense_activation_silu__prompt.s")
    build(sys.argv[2] if len(sys.argv) > 2 else "fused_stamps.s", True)
```

```python
import re

TRANS = ("v_exp_f32", "v_log_f32", "v_rcp_f32", "v_rsq_f32", "v_sqrt_f32", "v_sin_f32", "v_cos_f32")

def regs_of(tok):
    tok = tok.strip()
    tok = tok.lstrip('-')
    m = re.fullmatch(r"abs\((.*)\)", tok)
    if m: tok = m.group(1)
    m = re.fullmatch(r"([vsa])\[(\d+):(\d+)\]", tok)
    if m:
        return {f"{m.group(1)}{i}" for i in range(int(m.group(2)), int(m.group(3)) + 1)}
    m = re.fullmatch(r"([vsa])(\d+)", tok)
    if m: return {tok}
    if tok in ("vcc", "vcc_lo", "vcc_hi"): return {"vcc"}
    if tok in ("exec", "exec_lo", "exec_hi"): return {"exec"}
    if tok == "m0": return {"m0"}
    return set()

class Ins:
    __slots__ = ("text", "op", "ops", "mods", "dst", "src", "kind", "srcA", "srcB", "srcC", "lds_dma", "wide_store", "dpp", "tag")
    def __init__(self, text):
        self.text = text
        t = text.split(";")[0].strip()
        parts = t.split(None, 1)
        self.op = parts[0]
        rest = parts[1] if len(parts) > 1 else ""
        toks = []; depth = 0; cur = ""
        for ch in rest:
            if ch == "[": depth += 1
            if ch == "]": depth -= 1
            if ch == "," and depth == 0:
                toks.append(cur.strip()); cur = ""
            else: cur += ch
        if cur.strip(): toks.append(cur.strip())
        ops = []; mods = []
        for i, tk in enumerate(toks):
            sp = tk.split()
            if not sp: continue
            ops.append(sp[0]); mods += sp[1:]
        self.ops = ops; self.mods = mods
        self.dst = set(); self.src = set(); self.srcA = set(); self.srcB = set(); self.srcC = set()
        self.lds_dma = False; self.wide_store = False
        for m_ in mods:
            if m_.startswith("offset:"):
                o_ = int(m_[7:], 0)
                lim = 65535 if self.op.startswith("ds_") else 4095
                assert 0 <= o_ <= lim, "offset out of range: " + text
        self.dpp = any(m.startswith(("row_", "quad_perm", "wave_")) for m in mods) or self.op.endswith("_dpp")
        op = self.op
        R = lambda i: regs_of(ops[i]) if i < len(ops) else set()
        allsrc = lambda a: set().union(*[regs_of(o) for o in ops[a:]]) if len(ops) > a else set()
        if op.startswith("v_mfma"):
            self.kind = "mfma"; self.dst = R(0); self.srcA = R(1); self.srcB = R(2); self.srcC = R(3)
            self.src = self.srcA | self.srcB | self.srcC
        elif op.startswith("v_permlane") and "swap" in op:
            self.kind = "valu"; self.dst = R(0) | R(1); self.src = R(0) | R(1)
        elif op.startswith("v_"):
            self.kind = "trans" if op.replace("_e32", "").replace("_e64", "") in TRANS else "valu"
            self.dst = R(0); self.src = allsrc(1)
            if op.startswith(("v_fmac", "v_dot2c", "v_pk_fmac")): self.src |= R(0)
            if op.startswith("v_cndmask") and len(ops) == 3: self.src |= {"vcc"}
            if op.startswith(("v_add_co", "v_sub_co", "v_addc_co", "v_subb_co")): self.dst |= R(1); self.src = allsrc(2)
            if op.startswith("v_cmpx"): self.dst |= {"exec"}
            if self.dpp: self.src |= R(0)
        elif op.startswith("ds_"):
            self.kind = "ds"
            if op.startswith(("ds_read", "ds_bpermute", "ds_permute", "ds_swizzle")) : self.dst = R(0); self.src = allsrc(1)
            else: self.src = allsrc(0)
        elif op.startswith(("buffer_", "global_")):
            self.kind = "vm"
            if op in ("buffer_wbl2", "buffer_inv"):
                pass
            elif "lds" in mods or "_lds_" in op:
                self.lds_dma = True; self.src = allsrc(0) | {"m0"}
            elif "_load" in op:
                self.dst = R(0); self.src = allsrc(1)
            elif "atomic" in op and "sc0" in mods:
                self.dst = R(0); self.src = allsrc(0)
            else:
                self.src = allsrc(0)
                if op.endswith(("x3", "x4")): self.wide_store = True
        elif op.startswith(("s_load", "s_buffer_load", "s_atomic", "s_memtime", "s_memrealtime")):
            self.kind = "smem"; self.dst = R(0); self.src = allsrc(1)
        elif op in ("s_waitcnt", "s_barrier", "s_nop", "s_endpgm", "s_sleep", "s_setprio") or op.startswith(("s_cbranch", "s_branch")):
            self.kind = "sctl"
        elif op.startswith("s_cmp"):
            self.kind = "salu"; self.src = allsrc(0)
        elif op.startswith("s_"):
            self.kind = "salu"; self.dst = R(0); self.src = allsrc(1)
            if "saveexec" in op: self.dst |= {"exec"}; self.src |= {"exec"}
        else:
            raise ValueError("unknown instruction: " + text)

class Kern:
    def __init__(self, name):
        self.name = name
        self.items = []
        self.nv = 0
        self.maxv = 0
        self.lds = 0
    def valloc(self, n=1, align=None):
        if align is None: align = 1 if n == 1 else (2 if n < 4 else 4)
        self.nv = (self.nv + align - 1) // align * align
        r = self.nv; self.nv += n; self.maxv = max(self.maxv, self.nv)
        return r
    def aalloc(self, n=1, align=4):
        self.na = (getattr(self, "na", 0) + align - 1) // align * align
        r = self.na; self.na += n
        return r
    def I(self, text, tag=None):
        ins = Ins(text); ins.tag = tag; self.items.append(ins)
    def wait_tag(self, tag): self.items.append(("WAITTAG", tag))
    def reset(self): self.items.append(("RESET", None))
    def reset_vm(self): self.items.append(("RESETVM", None))
    def vm_limit(self, n): self.items.append(("VMLIMIT", n))
    def vm_save(self): self.items.append(("VMSAVE", None))
    def vm_restore(self): self.items.append(("VMRESTORE", None))
    stamps_on = False
    det = None; cur = None
    def dstamp(self):
        if self.det is not None and self.det == self.cur: self.stamp(True)
    def stamp(self, force=False):
        if not self.stamps_on: return
        if self.det is not None and not force and getattr(self, "nstamp", 0) > 0: return
        n = getattr(self, "nstamp", 0); self.nstamp = n + 1
        self("s_memrealtime s[68:69]"); self("s_waitcnt lgkmcnt(0)"); self(f"s_mov_b32 s{70+n}, s68")
    def stamp_set(self, n): self.nstamp = n
    def stamp_flush(self, wsptr, vt, vt2):
        if not self.stamps_on: return
        self(f"s_add_u32 s64, s{wsptr}, 0xF00000"); self(f"s_addc_u32 s65, s{wsptr+1}, 0"); self("s_and_b32 s65, s65, 0xffff")
        self("s_mov_b32 s66, 0x100000"); self("s_mov_b32 s67, 0x20000")
        self("s_lshl_b32 s68, s2, 3"); self("s_add_u32 s68, s68, s3"); self("s_lshl_b32 s68, s68, 7")
        self("s_mov_b64 exec, 1")
        self(f"v_mov_b32 v{vt}, s68")
        for i in range(22):
            self(f"v_mov_b32 v{vt2}, s{70+i}")
            self(f"buffer_store_dword v{vt2}, v{vt}, s[64:67], 0 offen offset:{4*i}")
            self("s_nop 1")
    def L(self, label): self.items.append(label + ":")
    def C(self, text): self.items.append("; " + text)
    def __call__(self, text):
        for line in text.strip().split("\n"):
            line = line.strip()
            if not line: continue
            if line.startswith(";"): self.items.append(line)
            elif line.endswith(":"): self.items.append(line)
            else: self.I(line)

    def finalize(self):
        out = []
        vm = []
        lg = []
        hist = []
        pos = 0
        def emit_txt(t): out.append("    " + t)
        for it in self.items:
            if isinstance(it, tuple) and it[0] == "RESETVM":
                continue
            if isinstance(it, tuple) and it[0] == "VMSAVE":
                vm_saved = list(vm); continue
            if isinstance(it, tuple) and it[0] == "VMRESTORE":
                vm = list(vm_saved); continue
            if isinstance(it, tuple) and it[0] == "VMLIMIT":
                if len(vm) > it[1]:
                    emit_txt(f"s_waitcnt vmcnt({it[1]})"); pos += 1
                    vm = vm[len(vm) - it[1]:] if it[1] else []
                continue
            if isinstance(it, tuple) and it[0] == "RESET":
                vm = []; lg = []; hist = []
                emit_txt("s_nop 7"); emit_txt("s_nop 7"); pos += 16
                continue
            if isinstance(it, tuple):
                idx = [i for i, (d, tg) in enumerate(vm) if tg == it[1]]
                if idx:
                    n = min(len(vm) - 1 - idx[-1], 63)
                    emit_txt(f"s_waitcnt vmcnt({n})"); pos += 1
                    vm = vm[len(vm) - n:] if n else []
                continue
            if isinstance(it, str):
                out.append(it if it.endswith(":") else "    " + it)
                if it.endswith(":"):
                    pass
                continue
            ins = it
            touched = ins.src | ins.dst
            if ins.op == "s_waitcnt":
                m = re.search(r"vmcnt\((\d+)\)", ins.text)
                if m:
                    n = int(m.group(1)); vm = vm[len(vm) - n:] if n < len(vm) else vm
                    if n == 0: vm = []
                m = re.search(r"lgkmcnt\((\d+)\)", ins.text)
                if m:
                    n = int(m.group(1)); lg = lg[len(lg) - n:] if n < len(lg) else lg
                    if n == 0: lg = []
            else:
                need_vm = None
                for i, (d, tg) in enumerate(vm):
                    if d & touched: need_vm = len(vm) - 1 - i
                need_lg = None
                for i, (d, sm) in enumerate(lg):
                    if d & touched:
                        need_lg = len(lg) - 1 - i
                        if any(s for _, s in lg): need_lg = 0
                w = []
                if need_vm is not None:
                    n = min(need_vm, 63); w.append(f"vmcnt({n})"); vm = vm[len(vm) - n:] if n else []
                if need_lg is not None:
                    n = min(need_lg, 15); w.append(f"lgkmcnt({n})"); lg = lg[len(lg) - n:] if n else []
                if w:
                    emit_txt("s_waitcnt " + " ".join(w)); pos += 1
            need = 0
            for (p, ppos) in reversed(hist):
                dist = pos - ppos - 1
                if dist >= 20: break
                req = 0
                pv = p.kind in ("valu", "trans")
                cv = ins.kind in ("valu", "trans")
                if p.kind == "mfma":
                    passes = 8 if "32x32" in p.op else 4
                    big = {4: 8, 8: 12}[passes]
                    if ins.kind == "mfma":
                        if p.dst & (ins.srcA | ins.srcB): req = max(req, big)
                        if p.dst & ins.srcC and not (p.dst == ins.srcC and p.op == ins.op): req = max(req, {4: 6, 8: 10}[passes])
                    elif ins.kind in ("valu", "trans", "vm", "ds"):
                        if p.dst & touched: req = max(req, big)
                        if cv and (p.srcC & ins.dst): req = max(req, {4: 3, 8: 7}[passes])
                if pv:
                    pvd = {r for r in p.dst if r[0] in "va" and r != "vcc"}
                    psd = {r for r in p.dst if r[0] == "s" or r == "vcc"}
                    if ins.kind == "mfma" and (pvd & ins.src): req = max(req, 2)
                    if ins.kind == "mfma" and "exec" in p.dst: req = max(req, 4)
                    if p.kind == "trans" and ins.kind == "valu" and (pvd & ins.src): req = max(req, 1)
                    if cv and (psd & ins.src): req = max(req, 4 if ins.op.startswith(("v_readlane", "v_writelane")) else 2)
                    if ins.kind == "vm" and (psd & ins.src): req = max(req, 5)
                    if ins.op.startswith(("v_readfirstlane", "v_readlane")) and (pvd & ins.src): req = max(req, 1)
                    if ins.op.startswith("v_permlane") and (pvd & ins.src): req = max(req, 2)
                    if ins.dpp and (pvd & ins.src): req = max(req, 2)
                    if ins.dpp and "exec" in p.dst: req = max(req, 5)
                    if "exec" in p.dst and ins.op.startswith(("v_readfirstlane", "v_readlane", "v_writelane", "v_permlane")): req = max(req, 4)
                    if ins.kind == "salu" and (psd & ins.src): req = max(req, 1)
                if p.kind == "salu" and "m0" in p.dst and ins.lds_dma: req = max(req, 1)
                if p.wide_store and (p.src & ins.dst) and ins.kind != "salu": req = max(req, 2)
                if req > dist: need = max(need, req - dist)
            while need > 0:
                n = min(need, 16); emit_txt(f"s_nop {n - 1}"); pos += n; need -= n
            emit_txt(ins.text)
            hist.append((ins, pos));
            if len(hist) > 40: hist = hist[-40:]
            if len(vm) > 62 and ins.kind == "vm": print("WARNING: >63 vm ops outstanding in", self.name)
            if ins.op == "s_nop": pos += int(ins.ops[0]) + 1
            else: pos += 1
            if ins.kind == "vm" and ins.op not in ("buffer_wbl2", "buffer_inv"): vm.append((set(ins.dst), ins.tag))
            if ins.kind == "vm" and ins.op in ("buffer_wbl2", "buffer_inv"): vm.append((set(), None))
            if ins.kind == "ds": lg.append((set(ins.dst), False))
            if ins.kind == "smem": lg.append((set(ins.dst), True))
        return out

    def text(self, nsgpr=100):
        body = self.finalize()
        assert self.maxv <= 256, self.maxv
        na = getattr(self, "na", 0)
        assert na <= 256
        acc_off = max(4, (self.maxv + 3) // 4 * 4)
        nv = max(8, (acc_off + na + 7) // 8 * 8)
        code = [f".globl {self.name}", ".p2align 8", f".type {self.name},@function", f"{self.name}:"] + body
        desc = [f".amdhsa_kernel {self.name}",
                f"  .amdhsa_next_free_vgpr {nv}",
                f"  .amdhsa_next_free_sgpr {nsgpr}",
                f"  .amdhsa_accum_offset {acc_off}",
                "  .amdhsa_group_segment_fixed_size 0",
                "  .amdhsa_kernarg_size 72",
                "  .amdhsa_user_sgpr_count 2",
                "  .amdhsa_user_sgpr_kernarg_segment_ptr 1",
                "  .amdhsa_system_sgpr_workgroup_id_x 1",
                "  .amdhsa_float_denorm_mode_32 3",
                ".end_amdhsa_kernel"]
        return "\n".join(code), "\n".join(desc)

def v(r, n=1): return f"v{r}" if n == 1 else f"v[{r}:{r + n - 1}]"
def a(r, n=1): return f"a{r}" if n == 1 else f"a[{r}:{r + n - 1}]"
def s(r, n=1): return f"s{r}" if n == 1 else f"s[{r}:{r + n - 1}]"

def build_file(header, launches, kerns):
    out = [header.rstrip()]
    for (k, g, b, l) in launches:
        out.append(f"; @launch kernel={k} grid=({g},1,1) block=({b},1,1) lds={l}")
    out.append('.amdgcn_target "amdgcn-amd-amdhsa--gfx950"')
    out.append(".text")
    descs = []
    for k in kerns:
        c, d = k.text(); out.append(c); descs.append(d)
    out.append("all_code_end:")
    out.append('.section .rodata,"a"')
    for d in descs:
        out.append(".p2align 6"); out.append(d)
    return "\n".join(out) + "\n"
```

```python
import sys, struct, os
from asmlib import *
from gen import (S_, D_, F_, WS_PQ, WS_X1, WS_X2, WS_H, WS_KV, WS_CS, WS_ST0, WS_ST1, WS_ST2, XB, P_X, P_WQKV, P_WO, P_W1, P_W2, P_OUT, P_WS,
                 LOG2E, fbits, prologue, srd, epilogue_end, HEADER)
from gen2 import Bases, interleave, a_read_bases, phi4
import gen

WS_FLAG = 0xE18800
WS_XT = 0xE1E800
SC_, SM_ = 96, 97
NA = int(os.environ.get("G_NA", "4")); NB = 9 - NA
ARING, BRING, EX = 0, NA * 16384, 147456
LDS_AB, LDS_MODE = EX, EX + 1024
SFL = 92
FORCE = os.environ.get("G_MODE", "")

def a_dma_offsets(k, nins, PA, rowpitch, rowbase_s, t0, t1):
    UA = PA // 16; RA = 64 // UA; sh = {8: 3, 16: 4}[UA]
    out = []
    k(f"s_mul_i32 s58, s59, {nins*RA}")
    k(f"s_add_u32 s58, s58, s{rowbase_s}")
    for i in range(nins):
        r = k.valloc(); out.append(r)
        k(f"v_lshrrev_b32 {v(t0)}, {sh}, {v(k.vL)}")
        if i: k(f"v_add_u32 {v(t0)}, {RA*i}, {v(t0)}")
        if PA == 128: k(f"v_bfe_u32 {v(t1)}, {v(t0)}, 1, 3")
        else: k(f"v_and_b32 {v(t1)}, 15, {v(t0)}")
        k(f"v_and_b32 {v(r)}, {UA-1}, {v(k.vL)}")
        k(f"v_xor_b32 {v(t1)}, {v(t1)}, {v(r)}")
        k(f"v_add_u32 {v(t0)}, s58, {v(t0)}")
        k(f"v_mul_u32_u24 {v(t0)}, {rowpitch}, {v(t0)}")
        k(f"v_lshl_add_u32 {v(r)}, {v(t1)}, 4, {v(t0)}")
    assert (nins * RA) % 16 == 0
    return out

def ln_finish(k, m, q, ab):
    k(f"v_mul_f32 {v(m)}, {fbits(1/512):#x}, {v(m)}")
    k(f"v_mul_f32 {v(q)}, {fbits(1/512):#x}, {v(q)}")
    k(f"v_fma_f32 {v(q)}, -{v(m)}, {v(m)}, {v(q)}")
    k(f"v_max_f32 {v(q)}, 0, {v(q)}")
    gen.bf16_round(k, m, m); gen.bf16_round(k, q, q)
    k(f"v_add_f32 {v(q)}, {fbits(1e-5):#x}, {v(q)}")
    gen.bf16_round(k, q, q)
    k(f"v_sqrt_f32 {v(q)}, {v(q)}")
    gen.bf16_round(k, q, q)
    k(f"v_rcp_f32 {v(ab)}, {v(q)}")
    k(f"v_mul_f32 {v(ab+1)}, {v(m)}, {v(ab)}")
    k(f"v_sub_f32 {v(ab+1)}, 0, {v(ab+1)}")

def tile64(k):
    k(f"s_lshr_b32 s48, s{SM_}, 3")
    k(f"s_lshl_b32 s22, s{SC_}, 1")
    k("s_add_u32 s22, s22, s48")
    k(f"s_and_b32 s23, s{SM_}, 7")
    k("s_lshl_b32 s50, s22, 6")
    k("s_lshl_b32 s54, s23, 7")

def resid_load64(k, SX, t0, t1, xr):
    k(f"v_lshrrev_b32 {v(t0)}, 3, v0")
    k(f"v_and_b32 {v(t1)}, 7, v0")
    k(f"v_add_u32 {v(t0)}, s50, {v(t0)}")
    k(f"v_lshlrev_b32 {v(t0)}, 10, {v(t0)}")
    k(f"v_lshl_add_u32 {v(t0)}, {v(t1)}, 4, {v(t0)}")
    k(f"v_add_u32 {v(t0)}, s54, {v(t0)}")
    k("s_mov_b32 s60, 32768")
    k(f"buffer_load_dwordx4 {v(xr,4)}, {v(t0)}, s[{SX}:{SX+3}], 0 offen")
    k(f"buffer_load_dwordx4 {v(xr+4,4)}, {v(t0)}, s[{SX}:{SX+3}], s60 offen")

def store64_prep(k, xr, do_stats):
    vy = k.valloc(8, 4); va_ = k.valloc(); vo = k.valloc(); sm = k.valloc(4, 4); tt = k.valloc(2, 2)
    t0, t1, t2, t3 = [k.valloc() for _ in range(4)]
    k(f"v_lshrrev_b32 {v(t0)}, 3, v0")
    k(f"v_and_b32 {v(t1)}, 7, v0")
    k(f"v_mul_u32_u24 {v(va_)}, 144, {v(t0)}")
    k(f"v_lshl_add_u32 {v(va_)}, {v(t1)}, 4, {v(va_)}")
    k(f"ds_read_b128 {v(vy,4)}, {v(va_)}")
    k(f"ds_read_b128 {v(vy+4,4)}, {v(va_)} offset:{32*144}")
    k(f"v_add_u32 {v(t0)}, s50, {v(t0)}")
    k(f"v_lshlrev_b32 {v(vo)}, 10, {v(t0)}")
    k(f"v_lshl_add_u32 {v(vo)}, {v(t1)}, 4, {v(vo)}")
    k(f"v_add_u32 {v(vo)}, s54, {v(vo)}")
    if do_stats:
        for i in range(4): k(f"v_mov_b32 {v(sm+i)}, 0")
        k("s_mov_b32 s60, 0x3f803f80")
        k(f"v_lshlrev_b32 {v(va_)}, 6, {v(t0)}")
        k(f"s_lshr_b32 s61, s54, 4")
        k(f"v_add_u32 {v(va_)}, s61, {v(va_)}")
    for i in range(8):
        k(f"v_lshlrev_b32 {v(t0)}, 16, {v(vy+i)}")
        k(f"v_and_b32 {v(t1)}, 0xffff0000, {v(vy+i)}")
        k(f"v_lshlrev_b32 {v(t2)}, 16, {v(xr+i)}")
        k(f"v_and_b32 {v(t3)}, 0xffff0000, {v(xr+i)}")
        k(f"v_add_f32 {v(t0)}, {v(t0)}, {v(t2)}")
        k(f"v_add_f32 {v(t1)}, {v(t1)}, {v(t3)}")
        k(f"v_cvt_pk_bf16_f32 {v(vy+i)}, {v(t0)}, {v(t1)}")
        if do_stats:
            s_ = sm + 2 * (i // 4)
            k(f"v_dot2_f32_bf16 {v(s_)}, {v(vy+i)}, s60, {v(s_)}")
            k(f"v_dot2_f32_bf16 {v(s_+1)}, {v(vy+i)}, {v(vy+i)}, {v(s_+1)}")
    if do_stats:
        for dpp in ("quad_perm:[1,0,3,2]", "quad_perm:[2,3,0,1]", "row_half_mirror"):
            for h in range(2):
                for c in range(2):
                    k(f"v_add_f32_dpp {v(tt+c)}, {v(sm+2*h+c)}, {v(sm+2*h+c)} {dpp} row_mask:0xf bank_mask:0xf")
                for c in range(2):
                    k(f"v_mov_b32 {v(sm+2*h+c)}, {v(tt+c)}")
    return vy, vo, sm, va_

def main_loop(k, nks, kpc, reads, mfmas, last=()):
    k.dstamp()
    k("s_barrier"); k.stamp()
    for r in reads(0): k(r)
    for ks in range(nks):
        if ks == nks - 1: interleave(k, mfmas(ks), list(last))
        else:
            if (ks + 1) % kpc == 0:
                k("s_waitcnt lgkmcnt(0)")
                k.dstamp()
                k("s_barrier")
            interleave(k, mfmas(ks), reads(ks + 1))
    k.stamp()

class Phase:
    D = NA - 1; has_ln = False; pseudo = 0
    def __init__(self, tag): self.tag = tag; self.bslot = {}
    def aslot(self, c): return ARING + (c % NA) * 16384
    def issue_A(self, k, c):
        k(f"s_mov_b32 s56, {c*self.PA}")
        for i in range(8):
            k(f"s_add_u32 m0, s55, {self.aslot(c)+i*1024}")
            k.I(f"buffer_load_dwordx4 {v(self.voA[i])}, s[24:27], s56 offen lds", tag=f"{self.tag}a{c}")
    def issue_B(self, k, c):
        k(f"s_mov_b32 s57, {c*self.BSTEP}")
        for i in range(self.NBI):
            k(f"s_add_u32 m0, s{self.sBW}, {self.bslot[c]+i*1024}")
            k.I(f"buffer_load_dwordx4 {v(self.voB[i])}, s[{self.SWB}:{self.SWB+3}], s57 offen lds", tag=f"{self.tag}b{c}")
    def issue_Bv(self, k, c, vs):
        k(f"s_mov_b32 s57, {c*self.BSTEP}")
        for i in range(self.NBI):
            k.I(f"buffer_load_dwordx4 {v(vs+4*i,4)}, {v(self.voB[i])}, s[{self.SWB}:{self.SWB+3}], s57 offen", tag=f"{self.tag}b{c}")
    def place_Bv(self, k, c, vs, vl16, vtmp):
        k(f"s_add_u32 s58, s{self.sBW}, {self.bslot[c]}")
        k(f"v_add_u32 {v(vtmp)}, s58, {v(vl16)}")
        for i in range(self.NBI):
            k(f"ds_write_b128 {v(vtmp)}, {v(vs+4*i,4)} offset:{i*1024}")
    Qe = 1
    def spare(self, c): return 1 if c >= self.NC - self.D else 0

class P1(Phase):
    Qe = 5
    def spare(self, c): return 1 if (c >= self.NC - self.D or c % 2 == 1) else 0
    NC = 8; PA = 128; NBI = 6; BSTEP = 64 * 3072; has_ln = True; nprod = 16
    LDS_KV, LDS_Z, SP = EX + 2048, EX + 6144, 80
    def __init__(self, tag, xsrc, kv_off, st_off):
        super().__init__(tag); self.xsrc, self.kv_off, self.st_off = xsrc, kv_off, st_off
        self.instat = st_off is None
        self.has_ln = not self.instat
    def tile(self, k):
        k(f"s_mov_b32 s22, s{SC_}"); k(f"s_mov_b32 s23, s{SM_}")
        k("s_lshl_b32 s50, s22, 7"); k("s_lshl_b32 s54, s23, 6")
    def setup_A(self, k, vt, vt2):
        self.voA = a_dma_offsets(k, 8, 128, 1024, 50, vt, vt2)
        k("s_waitcnt lgkmcnt(0)")
        if self.xsrc == "in": srd(k, 24, P_X, 0, XB)
        else: srd(k, 24, P_WS, self.xsrc, XB)
    def setup_B(self, k, vt, vt2, vt3, tmp):
        self.voB = [k.valloc() for _ in range(6)]
        u, row, rem, t_, c_ = tmp
        k("s_mul_i32 s53, s59, 384")
        k(f"s_lshl_b32 s54, s{SM_}, 6")
        for i in range(6):
            k(f"v_add_u32 {v(u)}, s53, {v(k.vL)}")
            if i: k(f"v_add_u32 {v(u)}, {64*i}, {v(u)}")
            k(f"v_mul_u32_u24 {v(row)}, 0xaaab, {v(u)}")
            k(f"v_lshrrev_b32 {v(row)}, 19, {v(row)}")
            k(f"v_mul_u32_u24 {v(rem)}, 12, {v(row)}")
            k(f"v_sub_u32 {v(rem)}, {v(u)}, {v(rem)}")
            k(f"v_lshrrev_b32 {v(t_)}, 1, {v(rem)}")
            k(f"v_bfe_u32 {v(c_)}, {v(row)}, 3, 1")
            k(f"v_sub_u32 {v(t_)}, {v(t_)}, {v(c_)}")
            k(f"v_add_u32 {v(c_)}, 6, {v(t_)}")
            k(f"v_min_u32 {v(t_)}, {v(t_)}, {v(c_)}")
            k(f"v_lshrrev_b32 {v(c_)}, 1, {v(t_)}")
            k(f"v_lshlrev_b32 {v(c_)}, 10, {v(c_)}")
            k(f"v_and_b32 {v(t_)}, 1, {v(t_)}")
            k(f"v_lshl_add_u32 {v(c_)}, {v(t_)}, 5, {v(c_)}")
            k(f"v_and_b32 {v(rem)}, 1, {v(rem)}")
            k(f"v_lshl_add_u32 {v(c_)}, {v(rem)}, 4, {v(c_)}")
            k(f"v_mul_u32_u24 {v(row)}, 3072, {v(row)}")
            k(f"v_add3_u32 {v(self.voB[i])}, {v(row)}, {v(c_)}, s54")
        k(f"s_mul_i32 s{self.sBW}, s59, 6144")
        k("s_waitcnt lgkmcnt(0)")
        srd(k, self.SWB, P_WQKV, 0, 512 * 1536 * 2)
    def compute(self, k, vt, vt2, vt3):
        SP = self.SP; SCS = 40
        k("s_lshr_b32 s52, s3, 1")
        k("s_lshl_b32 s52, s52, 6")
        k("s_and_b32 s53, s3, 1")
        cs3 = k.valloc(12, 4)
        csq = cs3
        vcq = k.valloc(); vck = k.valloc()
        k("s_lshl_b32 s56, s23, 7")
        k("s_lshl_b32 s57, s53, 6")
        k("s_add_u32 s56, s56, s57")
        k(f"v_lshlrev_b32 {v(vcq)}, 4, {v(k.vG)}")
        k(f"v_add_u32 {v(vcq)}, s56, {v(vcq)}")
        k(f"v_lshlrev_b32 {v(vck)}, 2, {v(k.vR16)}")
        k(f"v_add_u32 {v(vck)}, s56, {v(vck)}")
        k(f"v_add_u32 {v(vck)}, 2048, {v(vck)}")
        if self.instat:
            for i in range(12): k(f"v_mov_b32 {v(cs3+i)}, 0")
        else:
            k("s_waitcnt lgkmcnt(0)")
            srd(k, SCS, P_WS, WS_CS, 1536 * 4)
            k(f"buffer_load_dwordx4 {v(cs3,4)}, {v(vcq)}, s[{SCS}:{SCS+3}], 0 offen")
            for kv in range(2):
                k(f"buffer_load_dword {v(cs3+4+4*kv)}, {v(vck)}, s[{SCS}:{SCS+3}], 0 offen offset:{2048*kv}")
        ones = k.valloc(4)
        for i in range(4): k(f"v_mov_b32 {v(ones+i)}, 0x3f803f80")
        k("s_lshl_b32 s57, s53, 5")
        k("s_add_u32 s66, s52, s57")
        k("s_xor_b32 s57, s57, 32")
        k("s_add_u32 s67, s52, s57")
        B = Bases(k)
        a_read_bases(k, B, 128, 66, 2, vt, vt2)
        B2 = Bases(k)
        a_read_bases(k, B2, 128, 67, 2, vt, vt2)
        k(f"v_bfe_u32 {v(vt)}, {v(k.vL)}, 2, 2")
        k(f"v_lshl_add_u32 {v(vt)}, {v(k.vG)}, 3, {v(vt)}")
        k(f"v_mul_u32_u24 {v(vt)}, 192, {v(vt)}")
        k(f"v_and_b32 {v(vt2)}, 3, {v(k.vL)}")
        k(f"v_lshl_add_u32 {v(vt)}, {v(vt2)}, 3, {v(vt)}")
        k(f"v_and_b32 {v(vt2)}, 1, {v(k.vG)}")
        k(f"v_add_u32 {v(vt2)}, s53, {v(vt2)}")
        for j in range(3):
            r = k.valloc()
            k(f"v_add_u32 {v(vt3)}, {2*j}, {v(vt2)}")
            if j == 2:
                k(f"v_subrev_u32 {v(r)}, 6, {v(vt3)}")
                k(f"v_min_u32 {v(vt3)}, {v(vt3)}, {v(r)}")
            k(f"v_lshl_add_u32 {v(r)}, {v(vt3)}, 5, {v(vt)}")
            B.add(("W", j), r, 3)
        acc = k.valloc(48, 4)
        for i in range(48): k(f"v_mov_b32 {v(acc+i)}, 0")
        Ab = [k.valloc(16, 4), k.valloc(16, 4)]; Wb = [k.valloc(12, 4), k.valloc(12, 4)]
        ab = [k.valloc(2, 2) for _ in range(4)]
        abn = [k.valloc(8, 4) for _ in range(4)]
        vab = [k.valloc(), k.valloc()]; vabn = [k.valloc(), k.valloc()]
        for h in range(2):
            k(f"v_add_u32 {v(vab[h])}, s{66+h}, {v(k.vR16)}")
            k(f"v_lshlrev_b32 {v(vab[h])}, 3, {v(vab[h])}")
            k(f"v_add_u32 {v(vab[h])}, {LDS_AB}, {v(vab[h])}")
            k(f"v_lshlrev_b32 {v(vabn[h])}, 2, {v(k.vG)}")
            k(f"v_add_u32 {v(vabn[h])}, s{66+h}, {v(vabn[h])}")
            k(f"v_lshlrev_b32 {v(vabn[h])}, 3, {v(vabn[h])}")
            k(f"v_add_u32 {v(vabn[h])}, {LDS_AB}, {v(vabn[h])}")
        if self.instat:
            sta = k.valloc(16, 4)
            for i in range(16): k(f"v_mov_b32 {v(sta+i)}, 0")
        def reads(ks):
            c = ks // 2; kk = ks & 1; A_ = Ab[ks & 1]; W_ = Wb[ks & 1]
            ra = [f"ds_read_b128 {v(A_+4*rt,4)}, {(B if rt < 2 else B2).at(('A',kk), self.aslot(c) + (rt&1)*2048)}" for rt in range(4)]
            rw = [f"ds_read_b64_tr_b16 {v(W_+4*j+2*hh,2)}, {B.at(('W',j), self.bslot[c] + kk*6144 + hh*768)}" for j in range(3) for hh in range(2)]
            return [ra[0]] + rw + ra[1:]
        def mfmas(ks):
            A_ = Ab[ks & 1]; W_ = Wb[ks & 1]; out = []
            for rt in range(4):
                for j in range(3):
                    ac = acc + (rt * 3 + j) * 4
                    if j == 0: out.append(f"v_mfma_f32_16x16x32_bf16 {v(ac,4)}, {v(W_,4)}, {v(A_+4*rt,4)}, {v(ac,4)}")
                    else: out.append(f"v_mfma_f32_16x16x32_bf16 {v(ac,4)}, {v(A_+4*rt,4)}, {v(W_+4*j,4)}, {v(ac,4)}")
            if self.instat:
                out.append(f"v_mfma_f32_16x16x32_bf16 {v(cs3,4)}, {v(W_,4)}, {v(ones,4)}, {v(cs3,4)}")
                for j in (1, 2): out.append(f"v_mfma_f32_16x16x32_bf16 {v(cs3+4*j,4)}, {v(ones,4)}, {v(W_+4*j,4)}, {v(cs3+4*j,4)}")
                for rt in range(2):
                    out.append(f"v_mfma_f32_16x16x32_bf16 {v(sta+8*rt,4)}, {v(ones,4)}, {v(A_+4*rt,4)}, {v(sta+8*rt,4)}")
                    out.append(f"v_mfma_f32_16x16x32_bf16 {v(sta+8*rt+4,4)}, {v(A_+4*rt,4)}, {v(A_+4*rt,4)}, {v(sta+8*rt+4,4)}")
            return out
        o = []
        for rt in range(4):
            o.append(f"ds_read_b128 {v(abn[rt],4)}, {v(vabn[rt>>1])} offset:{(rt&1)*128}")
            o.append(f"ds_read_b128 {v(abn[rt]+4,4)}, {v(vabn[rt>>1])} offset:{(rt&1)*128+16}")
            o.append(f"ds_read_b64 {v(ab[rt],2)}, {v(vab[rt>>1])} offset:{(rt&1)*128}")
        main_loop(k, 16, 2, reads, mfmas, [] if self.instat else o)
        if self.instat:
            k(f"v_and_b32 {v(vt)}, 3, {v(k.vL)}")
            k(f"v_lshrrev_b32 {v(vt2)}, 2, {v(k.vR16)}")
            k(f"v_cmp_eq_u32 s[60:61], {v(vt2)}, {v(k.vG)}")
            for rt in range(2):
                g_ = sta + 8 * rt + 4; q = sta + 8 * rt + 1; m = sta + 8 * rt
                for j in range(1, 4):
                    k(f"v_cmp_eq_u32 vcc, {j}, {v(vt)}")
                    k(f"v_cndmask_b32 {v(g_)}, {v(g_)}, {v(g_+j)}, vcc")
                k(f"v_cndmask_b32 {v(q)}, 0, {v(g_)}, s[60:61]")
                gen.xlane_sum_g(k, q, vt3)
                ln_finish(k, m, q, ab[rt])
                k(f"ds_write_b64 {v(vab[0])}, {v(ab[rt],2)} offset:{rt*128}")
            k("s_waitcnt lgkmcnt(0)")
        k("s_barrier")
        if self.instat:
            for x in o: k(x)
            srd(k, SCS, P_WS, WS_CS, 1536 * 4)
            k(f"s_or_b32 s57, s{SC_}, s52")
            k("s_cmp_eq_u32 s57, 0")
            k(f"s_cselect_b32 s{SCS+2}, s{SCS+2}, 0")
            k(f"buffer_store_dwordx4 {v(cs3,4)}, {v(vcq)}, s[{SCS}:{SCS+3}], 0 offen")
            for kv in range(2):
                k(f"buffer_store_dword {v(cs3+4+4*kv)}, {v(vck)}, s[{SCS}:{SCS+3}], 0 offen offset:{2048*kv}")
        k(f"s_mov_b32 s62, {LOG2E:#x}"); k(f"s_mov_b32 s63, {LOG2E:#x}")
        k(f"s_mov_b32 s64, {fbits(1e-6):#x}"); k(f"s_mov_b32 s65, {fbits(1e-6):#x}")
        T = k.valloc(4)
        fk = k.valloc(8, 4); fv = k.valloc(8, 4)
        for rt in range(4):
            for j in (1, 2):
                ac = acc + (rt * 3 + j) * 4; f = (fk, fv)[j - 1] + 2 * rt
                for jj in range(4): k(f"v_mul_f32 {v(T+jj)}, {v(abn[rt]+2*jj+1)}, {v(cs3+4*j)}")
                for jj in range(4): k(f"v_fma_f32 {v(ac+jj)}, {v(abn[rt]+2*jj)}, {v(ac+jj)}, {v(T+jj)}")
                if j == 1: phi4(k, ac, T)
                k(f"v_cvt_pk_bf16_f32 {v(f)}, {v(ac)}, {v(ac+1)}")
                k(f"v_cvt_pk_bf16_f32 {v(f+1)}, {v(ac+2)}, {v(ac+3)}")
        kvp = k.valloc(4); zp = k.valloc(4)
        k(f"v_mfma_f32_16x16x32_bf16 {v(kvp,4)}, {v(fk,4)}, {v(fv,4)}, 0")
        k(f"v_mfma_f32_16x16x32_bf16 {v(zp,4)}, {v(fk,4)}, {v(ones,4)}, 0")
        k(f"v_mfma_f32_16x16x32_bf16 {v(kvp,4)}, {v(fk+4,4)}, {v(fv+4,4)}, {v(kvp,4)}")
        k(f"v_mfma_f32_16x16x32_bf16 {v(zp,4)}, {v(fk+4,4)}, {v(ones,4)}, {v(zp,4)}")
        vs = [k.valloc(), k.valloc()]
        k("s_lshl_b32 s57, s53, 5")
        for h in range(2):
            k(f"v_add_u32 {v(vs[h])}, s{66+h}, {v(k.vR16)}")
            k(f"v_mul_u32_u24 {v(vs[h])}, {SP}, {v(vs[h])}")
            k(f"v_lshl_add_u32 {v(vs[h])}, {v(k.vG)}, 3, {v(vs[h])}")
            k(f"v_add_u32 {v(vs[h])}, s57, {v(vs[h])}")
        for rt in range(4):
            ac = acc + rt * 12
            for p in range(2):
                k(f"v_pk_mul_f32 {v(T+2*p,2)}, {v(csq+2*p,2)}, {v(ab[rt],2)} op_sel:[0,1] op_sel_hi:[1,1]")
            for p in range(2):
                k(f"v_pk_fma_f32 {v(ac+2*p,2)}, {v(ac+2*p,2)}, {v(ab[rt],2)}, {v(T+2*p,2)} op_sel:[0,0,0] op_sel_hi:[1,0,1]")
            phi4(k, ac, T)
            k(f"v_cvt_pk_bf16_f32 {v(ac)}, {v(ac)}, {v(ac+1)}")
            k(f"v_cvt_pk_bf16_f32 {v(ac+1)}, {v(ac+2)}, {v(ac+3)}")
            k(f"ds_write_b64 {v(vs[rt>>1])}, {v(ac,2)} offset:{(rt&1)*16*SP}")
        k("s_lshl_b32 s57, s3, 10")
        k(f"s_add_u32 s57, s57, {self.LDS_KV}")
        k(f"v_lshlrev_b32 {v(vt)}, 4, {v(k.vL)}")
        k(f"v_add_u32 {v(vt)}, s57, {v(vt)}")
        k("s_lshl_b32 s58, s3, 6")
        k(f"s_add_u32 s58, s58, {self.LDS_Z}")
        k(f"v_lshlrev_b32 {v(vt2)}, 4, {v(k.vG)}")
        k(f"v_add_u32 {v(vt2)}, s58, {v(vt2)}")
        k(f"ds_write_b128 {v(vt)}, {v(kvp,4)}")
        k(f"ds_write_b128 {v(vt2)}, {v(zp,4)}")
        k("s_waitcnt lgkmcnt(0)")
    def store(self, k, vt, vt2, vt3, emit_stores):
        SPQ, SKV, SP = 32, 36, self.SP
        srd(k, SPQ, P_WS, WS_PQ, XB)
        srd(k, SKV, P_WS, self.kv_off, 34816)
        k("s_barrier")
        vy = k.valloc(8, 4); va_ = k.valloc(); vo = k.valloc(); rd = k.valloc(8, 4)
        k(f"v_lshrrev_b32 {v(vt)}, 2, v0")
        k(f"v_and_b32 {v(vt2)}, 3, v0")
        k(f"v_mul_u32_u24 {v(va_)}, {SP}, {v(vt)}")
        k(f"v_lshl_add_u32 {v(va_)}, {v(vt2)}, 4, {v(va_)}")
        k(f"ds_read_b128 {v(vy,4)}, {v(va_)}")
        k(f"ds_read_b128 {v(vy+4,4)}, {v(va_)} offset:{64*SP}")
        k(f"v_add_u32 {v(vt)}, s50, {v(vt)}")
        k(f"v_lshlrev_b32 {v(vo)}, 10, {v(vt)}")
        k(f"v_lshl_add_u32 {v(vo)}, {v(vt2)}, 4, {v(vo)}")
        k(f"v_add_u32 {v(vo)}, s54, {v(vo)}")
        k(f"v_bfe_u32 {v(vt)}, v0, 3, 4")
        k(f"v_lshlrev_b32 {v(vt)}, 4, {v(vt)}")
        k(f"v_bfe_u32 {v(vt2)}, v0, 7, 1")
        k(f"v_lshl_add_u32 {v(vt)}, {v(vt2)}, 9, {v(vt)}")
        k(f"v_bfe_u32 {v(vt2)}, v0, 2, 1")
        k(f"v_lshl_add_u32 {v(vt)}, {v(vt2)}, 8, {v(vt)}")
        k(f"v_and_b32 {v(vt2)}, 3, v0")
        k(f"v_lshl_add_u32 {v(vt)}, {v(vt2)}, 2, {v(vt)}")
        k(f"v_add_u32 {v(vt)}, {self.LDS_KV}, {v(vt)}")
        for h in range(2):
            k(f"ds_read_b32 {v(rd+2*h)}, {v(vt)} offset:{h*1024}")
            k(f"ds_read_b32 {v(rd+2*h+1)}, {v(vt)} offset:{h*1024+2048}")
        k(f"v_and_b32 {v(vt3)}, 31, v0")
        k(f"v_lshlrev_b32 {v(vt3)}, 2, {v(vt3)}")
        k(f"v_add_u32 {v(vt2)}, {self.LDS_Z}, {v(vt3)}")
        k(f"ds_read_b32 {v(rd+4)}, {v(vt2)}")
        k(f"ds_read_b32 {v(rd+5)}, {v(vt2)} offset:128")
        k("s_mov_b32 s60, 65536")
        emit_stores([f"buffer_store_dwordx4 {v(vy,4)}, {v(vo)}, s[{SPQ}:{SPQ+3}], 0 offen",
                     f"buffer_store_dwordx4 {v(vy+4,4)}, {v(vo)}, s[{SPQ}:{SPQ+3}], s60 offen"])
        k("s_lshl_b32 s57, s23, 11")
        k(f"v_lshlrev_b32 {v(vt2)}, 2, v0")
        k(f"v_add_u32 {v(vt2)}, s57, {v(vt2)}")
        for h in range(2):
            k(f"v_add_f32 {v(rd+2*h)}, {v(rd+2*h)}, {v(rd+2*h+1)}")
            k(f"buffer_atomic_add_f32 {v(rd+2*h)}, {v(vt2)}, s[{SKV}:{SKV+3}], 0 offen offset:{h*1024}")
        k("s_lshl_b32 s57, s23, 7")
        k(f"s_add_u32 s57, s57, 32768")
        k(f"v_add_u32 {v(vt3)}, s57, {v(vt3)}")
        k(f"v_mov_b32 {v(vt2)}, 0x7ffffff0")
        k(f"v_cmp_gt_u32 vcc, 32, v0")
        k(f"v_cndmask_b32 {v(vt3)}, {v(vt2)}, {v(vt3)}, vcc")
        k(f"v_add_f32 {v(rd+4)}, {v(rd+4)}, {v(rd+5)}")
        k(f"buffer_atomic_add_f32 {v(rd+4)}, {v(vt3)}, s[{SKV}:{SKV+3}], 0 offen")

class P2(Phase):
    NC = 4; PA = 256; NBI = 8; BSTEP = 131072; nprod = 16; pseudo = 1
    LDS_Z, LDS_0 = EX + 2048, EX + 3072
    def __init__(self, tag, xsrc, kv_off, xdst, st_off): super().__init__(tag); self.xsrc, self.kv_off, self.xdst, self.st_off = xsrc, kv_off, xdst, st_off
    def tile(self, k): tile64(k)
    def setup_A(self, k, vt, vt2):
        self.voA = a_dma_offsets(k, 8, 256, 1024, 50, vt, vt2)
        k("s_waitcnt lgkmcnt(0)")
        srd(k, 24, P_WS, WS_PQ, XB)
    def setup_B(self, k, vt, vt2, vt3, tmp):
        self.voB = [k.valloc() for _ in range(8)]
        k(f"v_lshrrev_b32 {v(vt)}, 3, {v(k.vL)}")
        k(f"v_bfe_u32 {v(vt2)}, {v(k.vL)}, 4, 2")
        k(f"v_lshlrev_b32 {v(vt2)}, 1, {v(vt2)}")
        k(f"v_and_b32 {v(vt3)}, 7, {v(k.vL)}")
        k(f"v_xor_b32 {v(vt2)}, {v(vt2)}, {v(vt3)}")
        k(f"v_lshlrev_b32 {v(vt2)}, 4, {v(vt2)}")
        k(f"v_lshl_add_u32 {v(vt)}, {v(vt)}, 10, {v(vt2)}")
        k("s_lshl_b32 s52, s59, 16")
        k(f"s_and_b32 s54, s{SM_}, 7"); k("s_lshl_b32 s54, s54, 7")
        k("s_add_u32 s52, s52, s54")
        k(f"v_add_u32 {v(self.voB[0])}, s52, {v(vt)}")
        for i in range(1, 8): k(f"v_add_u32 {v(self.voB[i])}, {8192*i}, {v(self.voB[0])}")
        k(f"s_lshl_b32 s{self.sBW}, s59, 13")
        k("s_waitcnt lgkmcnt(0)")
        srd(k, self.SWB, P_WO, 0, 512 * 512 * 2)
    def compute(self, k, vt, vt2, vt3):
        SKV, SX = 36, 24
        LDS_F, LDS_Z, LDS_0 = self.bslot[self.NC], self.LDS_Z, self.LDS_0
        self.xr = k.valloc(8, 4)
        kvf = k.valloc(32, 4); zf = k.valloc(2, 2)
        k("s_lshl_b32 s52, s3, 13")
        k(f"v_lshlrev_b32 {v(vt)}, 5, {v(k.vL)}")
        k(f"v_add_u32 {v(vt)}, s52, {v(vt)}")
        k(f"v_add_u32 {v(vt2)}, 4096, {v(vt)}")
        k("s_waitcnt lgkmcnt(0)")
        srd(k, SKV, P_WS, self.kv_off, 34816)
        for p in range(4):
            for hlf in range(2):
                k(f"buffer_load_dwordx4 {v(kvf+8*p+4*hlf,4)}, {v(vt if p < 2 else vt2)}, s[{SKV}:{SKV+3}], 0 offen offset:{(p&1)*2048+hlf*16}")
        k(f"v_lshlrev_b32 {v(vt3)}, 3, v0")
        k(f"v_add_u32 {v(vt3)}, 32768, {v(vt3)}")
        k(f"buffer_load_dwordx2 {v(zf,2)}, {v(vt3)}, s[{SKV}:{SKV+3}], 0 offen")
        if self.xsrc == "in": srd(k, SX, P_X, 0, XB)
        else: srd(k, SX, P_WS, self.xsrc, XB)
        resid_load64(k, SX, vt, vt2, self.xr)
        k("s_lshl_b32 s52, s3, 4")
        B = Bases(k)
        a_read_bases(k, B, 256, 52, 2, vt, vt2)
        aA0, aA1, aAz, sA0, sA1, sAz = [k.valloc() for _ in range(6)]
        k(f"v_lshlrev_b32 {v(vt)}, 4, {v(k.vL)}")
        k(f"v_add_u32 {v(vt)}, {LDS_F}, {v(vt)}")
        k(f"v_mov_b32 {v(vt2)}, {LDS_0}")
        k(f"v_cmp_gt_u32 vcc, 2, {v(k.vG)}")
        k(f"v_cndmask_b32 {v(aA0)}, {v(vt2)}, {v(vt)}, vcc")
        k(f"v_cndmask_b32 {v(aA1)}, {v(vt)}, {v(vt2)}, vcc")
        k(f"v_mov_b32 {v(vt3)}, 1024")
        k(f"v_cndmask_b32 {v(sA0)}, 0, {v(vt3)}, vcc")
        k(f"v_cndmask_b32 {v(sA1)}, {v(vt3)}, 0, vcc")
        k(f"v_and_b32 {v(vt)}, 3, {v(k.vL)}")
        k(f"v_lshrrev_b32 {v(vt3)}, 1, {v(k.vG)}")
        k(f"v_cmp_eq_u32 vcc, {v(vt)}, {v(vt3)}")
        k(f"v_lshlrev_b32 {v(vt)}, 4, {v(k.vG)}")
        k(f"v_add_u32 {v(vt)}, {LDS_Z}, {v(vt)}")
        k(f"v_cndmask_b32 {v(aAz)}, {v(vt2)}, {v(vt)}, vcc")
        k(f"v_cndmask_b32 {v(sAz)}, 0, 64, vcc")
        k(f"v_bfe_u32 {v(vt)}, {v(k.vL)}, 2, 2")
        k(f"v_lshl_add_u32 {v(vt)}, {v(k.vG)}, 2, {v(vt)}")
        k(f"v_bfe_u32 {v(vt2)}, {v(vt)}, 1, 2")
        k(f"v_lshlrev_b32 {v(vt)}, 7, {v(vt)}")
        k(f"v_and_b32 {v(vt3)}, 3, {v(k.vL)}")
        k(f"v_lshl_add_u32 {v(vt)}, {v(vt3)}, 3, {v(vt)}")
        for t in range(4):
            r = k.valloc()
            k(f"v_xor_b32 {v(vt3)}, {t}, {v(vt2)}")
            k(f"v_lshl_add_u32 {v(r)}, {v(vt3)}, 5, {v(vt)}")
            B.add(("W", t), r, 3)
        acc = k.valloc(16, 4)
        for i in range(16): k(f"v_mov_b32 {v(acc+i)}, 0")
        k("s_lshl_b32 s57, s3, 12")
        k(f"s_add_u32 s57, s57, {LDS_F}")
        k(f"v_lshlrev_b32 {v(vt)}, 4, {v(k.vL)}")
        k(f"v_add_u32 {v(vt)}, s57, {v(vt)}")
        for p in range(4):
            for i in range(4):
                k(f"v_cvt_pk_bf16_f32 {v(kvf+8*p+i)}, {v(kvf+8*p+2*i)}, {v(kvf+8*p+2*i+1)}")
            k(f"ds_write_b128 {v(vt)}, {v(kvf+8*p,4)} offset:{p*1024}")
        k(f"v_cvt_pk_bf16_f32 {v(zf)}, {v(zf)}, {v(zf+1)}")
        k(f"v_lshlrev_b32 {v(vt2)}, 2, v0")
        k(f"v_add_u32 {v(vt2)}, {LDS_Z}, {v(vt2)}")
        k(f"ds_write_b32 {v(vt2)}, {v(zf)}")
        k(f"v_mov_b32 {v(zf)}, 0")
        k(f"v_and_b32 {v(vt2)}, 3, v0")
        k(f"v_lshlrev_b32 {v(vt2)}, 2, {v(vt2)}")
        k(f"v_add_u32 {v(vt2)}, {LDS_0}, {v(vt2)}")
        k(f"ds_write_b32 {v(vt2)}, {v(zf)}")
        Wb = [kvf, k.valloc(32, 4)]
        Fb = k.valloc(24, 4); Pb = k.valloc(8, 4)
        N = [k.valloc(24, 4), k.valloc(24, 4)]
        O = [k.valloc(8, 4), k.valloc(8, 4)]; rr = k.valloc(4, 4)
        k(f"s_mov_b32 s62, {fbits(1e-6):#x}"); k(f"s_mov_b32 s63, {fbits(1e-6):#x}")
        def freads(hc):
            o = []
            for q in range(2):
                o += [f"ds_read_b128 {v(Pb+4*q,4)}, {B.at(('A',(hc&1)*2+q), self.aslot(hc//2))}",
                      f"ds_read_b128 {v(Fb+12*q,4)}, {v(aA0)}", f"ds_read_b128 {v(Fb+12*q+4,4)}, {v(aA1)}", f"ds_read_b128 {v(Fb+12*q+8,4)}, {v(aAz)}",
                      f"v_add_u32 {v(aA0)}, {v(aA0)}, {v(sA0)}", f"v_add_u32 {v(aA1)}, {v(aA1)}, {v(sA1)}", f"v_add_u32 {v(aAz)}, {v(aAz)}, {v(sAz)}"]
            return o
        def wreads(hc):
            b = Wb[hc & 1]
            return [f"ds_read_b64_tr_b16 {v(b+16*q+4*t+2*hh,2)}, {B.at(('W',t), self.bslot[hc//2] + ((hc&1)*2+q)*4096 + hh*2048)}" for q in range(2) for t in range(4) for hh in range(2)]
        def amfma(c):
            n = N[c & 1]
            return [f"v_mfma_f32_16x16x32_bf16 {v(n+12*q+4*i,4)}, {v(Fb+12*q+4*i,4)}, {v(Pb+4*q,4)}, 0" for q in range(2) for i in range(3)]
        def cmfma(c):
            b = Wb[c & 1]; o = O[c & 1]
            return [f"v_mfma_f32_16x16x32_bf16 {v(acc+4*t,4)}, {v(b+16*q+4*t,4)}, {v(o+4*q,4)}, {v(acc+4*t,4)}" for q in range(2) for t in range(4)]
        def ovalu(c):
            n0 = N[c & 1]; Oo = O[c & 1]; o = []
            for q in range(2): o.append(f"v_pk_add_f32 {v(rr+2*q,2)}, {v(n0+12*q+8,2)}, s[62:63]")
            for i in range(4): o.append(f"v_rcp_f32 {v(rr+i)}, {v(rr+i)}")
            for q in range(2):
                n = n0 + 12 * q
                for x in range(2): o.append(f"v_pk_mul_f32 {v(n+2*x,2)}, {v(n+2*x,2)}, {v(rr+2*q,2)} op_sel_hi:[1,0]")
                for x in range(2): o.append(f"v_pk_mul_f32 {v(n+4+2*x,2)}, {v(n+4+2*x,2)}, {v(rr+2*q,2)} op_sel:[0,1] op_sel_hi:[1,1]")
            for q in range(2):
                n = n0 + 12 * q
                for h in range(2):
                    o.append(f"v_cvt_pk_bf16_f32 {v(Oo+4*q+2*h)}, {v(n+4*h)}, {v(n+4*h+1)}")
                    o.append(f"v_cvt_pk_bf16_f32 {v(Oo+4*q+2*h+1)}, {v(n+4*h+2)}, {v(n+4*h+3)}")
            return o
        k("s_waitcnt lgkmcnt(0)")
        k("s_barrier"); k.stamp()
        for r in freads(0) + wreads(0): k(r)
        for r in amfma(0): k(r)
        for c in range(9):
            if c + 1 < 8:
                if (c + 1) % 2 == 0:
                    k("s_waitcnt lgkmcnt(0)")
                    k("s_barrier")
                for r in freads(c + 1): k(r)
            interleave(k, cmfma(c - 1) if c >= 1 else [], ovalu(c) if c < 8 else [])
            if c + 1 < 8: interleave(k, amfma(c + 1), wreads(c + 1))
        k.stamp()
        k("s_barrier")
        vs = k.valloc()
        k(f"v_add_u32 {v(vs)}, s52, {v(k.vR16)}")
        k(f"v_mul_u32_u24 {v(vs)}, 144, {v(vs)}")
        k(f"v_lshl_add_u32 {v(vs)}, {v(k.vG)}, 3, {v(vs)}")
        for t in range(4):
            ac = acc + 4 * t
            k(f"v_cvt_pk_bf16_f32 {v(ac)}, {v(ac)}, {v(ac+1)}")
            k(f"v_cvt_pk_bf16_f32 {v(ac+1)}, {v(ac+2)}, {v(ac+3)}")
            k(f"ds_write_b64 {v(vs)}, {v(ac,2)} offset:{t*32}")
        k("s_waitcnt lgkmcnt(0)")
    def store(self, k, vt, vt2, vt3, emit_stores):
        store64(self, k, emit_stores)

def store64(p, k, emit_stores):
    SD, SST = 40, 44
    if p.xdst == "out": srd(k, SD, P_OUT, 0, XB)
    else: srd(k, SD, P_WS, p.xdst, XB)
    if p.st_off is not None: srd(k, SST, P_WS, p.st_off, 2048 * 64)
    k("s_barrier")
    vy, vo, sm, va_ = store64_prep(k, p.xr, p.st_off is not None)
    k("s_mov_b32 s60, 32768")
    st = [f"buffer_store_dwordx4 {v(vy,4)}, {v(vo)}, s[{SD}:{SD+3}], 0 offen", f"buffer_store_dwordx4 {v(vy+4,4)}, {v(vo)}, s[{SD}:{SD+3}], s60 offen"]
    if p.st_off is not None:
        st += [f"buffer_store_dwordx2 {v(sm,2)}, {v(va_)}, s[{SST}:{SST+3}], 0 offen", f"buffer_store_dwordx2 {v(sm+2,2)}, {v(va_)}, s[{SST}:{SST+3}], 0 offen offset:2048"]
    emit_stores(st)

class P3(Phase):
    Qe = 6
    def spare(self, c): return 1 if (c >= self.NC - self.D or c % 2 == 1) else 0
    NC = 8; PA = 128; NBI = 8; BSTEP = 64 * 3584; has_ln = True; nprod = 16
    SP = 272
    def __init__(self, tag, xsrc, st_off, hoff): super().__init__(tag); self.xsrc, self.st_off, self.hoff = xsrc, st_off, hoff
    def tile(self, k):
        k(f"s_mov_b32 s22, s{SC_}"); k(f"s_min_u32 s23, s{SM_}, 13")
        k("s_lshl_b32 s50, s22, 7"); k("s_lshl_b32 s54, s23, 8")
    def setup_A(self, k, vt, vt2):
        self.voA = a_dma_offsets(k, 8, 128, 1024, 50, vt, vt2)
        k("s_waitcnt lgkmcnt(0)")
        srd(k, 24, P_WS, self.xsrc, XB)
    def setup_B(self, k, vt, vt2, vt3, tmp):
        self.voB = [k.valloc() for _ in range(8)]
        k("s_lshl_b32 s52, s59, 5")
        k(f"s_min_u32 s54, s{SM_}, 13"); k("s_lshl_b32 s54, s54, 8")
        for i in range(8):
            k(f"v_lshlrev_b32 {v(vt)}, 1, {v(k.vG)}")
            if (i >> 1) & 1: k(f"v_or_b32 {v(vt)}, 8, {v(vt)}")
            k(f"v_xor_b32 {v(vt)}, {v(vt)}, {v(k.vR16)}")
            k(f"v_lshlrev_b32 {v(vt)}, 4, {v(vt)}")
            k(f"v_add3_u32 {v(vt2)}, {v(k.vG)}, s52, {4*i}")
            k(f"v_mul_u32_u24 {v(vt2)}, 3584, {v(vt2)}")
            k(f"v_add3_u32 {v(self.voB[i])}, {v(vt2)}, {v(vt)}, s54")
        k(f"s_lshl_b32 s{self.sBW}, s59, 13")
        k("s_waitcnt lgkmcnt(0)")
        srd(k, self.SWB, P_W1, 0, 512 * 1792 * 2)
    def compute(self, k, vt, vt2, vt3):
        SP = self.SP; SCS = 36
        k("s_lshr_b32 s52, s3, 1")
        k("s_lshl_b32 s52, s52, 6")
        k("s_and_b32 s53, s3, 1")
        k("s_waitcnt lgkmcnt(0)")
        srd(k, SCS, P_WS, WS_CS + 0x2000, 8 * 1792 * 4)
        cs = k.valloc(16, 4)
        k("s_lshl_b32 s56, s23, 9")
        k("s_lshl_b32 s57, s53, 8")
        k("s_add_u32 s56, s56, s57")
        k(f"v_lshlrev_b32 {v(vt2)}, 4, {v(k.vG)}")
        k(f"v_add_u32 {v(vt2)}, s56, {v(vt2)}")
        for t in range(4):
            k(f"buffer_load_dwordx4 {v(cs+4*t,4)}, {v(vt2)}, s[{SCS}:{SCS+3}], 0 offen offset:{t*64}")
        csmark = k.nv
        csp = k.valloc(112, 4)
        for g_ in range(1, 8):
            k(f"s_mov_b32 s57, {g_*7168}")
            for t in range(4):
                k(f"buffer_load_dwordx4 {v(csp+16*(g_-1)+4*t,4)}, {v(vt2)}, s[{SCS}:{SCS+3}], s57 offen offset:{t*64}")
        for g_ in range(7):
            for x in range(8):
                k(f"v_pk_add_f32 {v(cs+2*x,2)}, {v(cs+2*x,2)}, {v(csp+16*g_+2*x,2)}")
        k.nv = csmark
        B = Bases(k)
        a_read_bases(k, B, 128, 52, 2, vt, vt2)
        k(f"v_bfe_u32 {v(vt)}, {v(k.vL)}, 2, 2")
        k(f"v_and_b32 {v(vt2)}, 1, {v(k.vG)}")
        k(f"v_lshl_add_u32 {v(vt2)}, {v(vt2)}, 2, {v(vt)}")
        k("s_lshl_b32 s57, s53, 2")
        k(f"v_xor_b32 {v(vt2)}, s57, {v(vt2)}")
        k(f"v_lshl_add_u32 {v(vt)}, {v(k.vG)}, 3, {v(vt)}")
        k(f"v_lshlrev_b32 {v(vt)}, 8, {v(vt)}")
        k(f"v_and_b32 {v(vt3)}, 3, {v(k.vL)}")
        k(f"v_lshl_add_u32 {v(vt)}, {v(vt3)}, 3, {v(vt)}")
        for t in range(4):
            r = k.valloc()
            k(f"v_xor_b32 {v(vt3)}, {t}, {v(vt2)}")
            k(f"v_lshl_add_u32 {v(r)}, {v(vt3)}, 5, {v(vt)}")
            B.add(("W", t), r, 3)
        acc = k.valloc(64, 4)
        for i in range(64): k(f"v_mov_b32 {v(acc+i)}, 0")
        Ab = [k.valloc(16, 4), k.valloc(16, 4)]; Wb = [k.valloc(16, 4), k.valloc(16, 4)]
        ab = [k.valloc(2, 2) for _ in range(4)]
        vab = k.valloc()
        k(f"v_add_u32 {v(vab)}, s52, {v(k.vR16)}")
        k(f"v_lshlrev_b32 {v(vab)}, 3, {v(vab)}")
        k(f"v_add_u32 {v(vab)}, {LDS_AB}, {v(vab)}")
        def reads(ks):
            c = ks // 2; kk = ks & 1; A_ = Ab[ks & 1]; W_ = Wb[ks & 1]
            ra = [f"ds_read_b128 {v(A_+4*rt,4)}, {B.at(('A',kk), self.aslot(c) + rt*2048)}" for rt in range(4)]
            rw = [f"ds_read_b64_tr_b16 {v(W_+4*t+2*hh,2)}, {B.at(('W',t), self.bslot[c] + kk*8192 + hh*1024)}" for t in range(4) for hh in range(2)]
            return [ra[0]] + rw + ra[1:]
        def mfmas(ks):
            A_ = Ab[ks & 1]; W_ = Wb[ks & 1]
            return [f"v_mfma_f32_16x16x32_bf16 {v(acc+(rt*4+t)*4,4)}, {v(W_+4*t,4)}, {v(A_+4*rt,4)}, {v(acc+(rt*4+t)*4,4)}" for rt in range(4) for t in range(4)]
        main_loop(k, 16, 2, reads, mfmas, [f"ds_read_b64 {v(ab[rt],2)}, {v(vab)} offset:{rt*128}" for rt in range(4)])
        k("s_barrier")
        vs = k.valloc()
        k(f"v_add_u32 {v(vs)}, s52, {v(k.vR16)}")
        k(f"v_mul_u32_u24 {v(vs)}, {SP}, {v(vs)}")
        k(f"v_lshl_add_u32 {v(vs)}, {v(k.vG)}, 3, {v(vs)}")
        k("s_lshl_b32 s57, s53, 7")
        k(f"v_add_u32 {v(vs)}, s57, {v(vs)}")
        tmp = k.valloc(8, 4)
        k(f"s_mov_b32 s62, {LOG2E | 0x80000000:#x}")
        k(f"s_mov_b32 s63, {LOG2E | 0x80000000:#x}")
        k("s_mov_b32 s64, 1.0"); k("s_mov_b32 s65, 1.0")
        for rt in range(4):
            for t in range(4):
                ac = acc + (rt * 4 + t) * 4; T = tmp + 4 * (t & 1)
                for p in range(2):
                    k(f"v_pk_mul_f32 {v(T+2*p,2)}, {v(cs+4*t+2*p,2)}, {v(ab[rt],2)} op_sel:[0,1] op_sel_hi:[1,1]")
                for p in range(2):
                    k(f"v_pk_fma_f32 {v(ac+2*p,2)}, {v(ac+2*p,2)}, {v(ab[rt],2)}, {v(T+2*p,2)} op_sel:[0,0,0] op_sel_hi:[1,0,1]")
                for p in range(2):
                    k(f"v_pk_mul_f32 {v(T+2*p,2)}, {v(ac+2*p,2)}, s[62:63]")
                for j in range(4): k(f"v_exp_f32 {v(T+j)}, {v(T+j)}")
                for p in range(2):
                    k(f"v_pk_add_f32 {v(T+2*p,2)}, {v(T+2*p,2)}, s[64:65]")
                for j in range(4): k(f"v_rcp_f32 {v(T+j)}, {v(T+j)}")
                for p in range(2):
                    k(f"v_pk_mul_f32 {v(ac+2*p,2)}, {v(ac+2*p,2)}, {v(T+2*p,2)}")
                k(f"v_cvt_pk_bf16_f32 {v(ac)}, {v(ac)}, {v(ac+1)}")
                k(f"v_cvt_pk_bf16_f32 {v(ac+1)}, {v(ac+2)}, {v(ac+3)}")
                k(f"ds_write_b64 {v(vs)}, {v(ac,2)} offset:{rt*16*SP + t*32}")
        k("s_waitcnt lgkmcnt(0)")
    def store(self, k, vt, vt2, vt3, emit_stores):
        SH, SP = 32, self.SP
        srd(k, SH, P_WS, self.hoff, S_ * F_ * 2)
        k(f"s_cmp_lt_u32 s{SM_}, 14")
        k(f"s_cselect_b32 s{SH+2}, s{SH+2}, 0")
        k("s_barrier")
        vy = k.valloc(32, 4); va_ = k.valloc(); vo = k.valloc()
        k(f"v_lshrrev_b32 {v(vt)}, 4, v0")
        k(f"v_and_b32 {v(vt2)}, 15, v0")
        k(f"v_mul_u32_u24 {v(va_)}, {SP}, {v(vt)}")
        k(f"v_lshl_add_u32 {v(va_)}, {v(vt2)}, 4, {v(va_)}")
        for p in range(8):
            k(f"ds_read_b128 {v(vy+4*p,4)}, {v(va_)} offset:{p*16*SP}")
        k(f"v_add_u32 {v(vt)}, s50, {v(vt)}")
        k(f"v_mul_u32_u24 {v(vo)}, 3584, {v(vt)}")
        k(f"v_lshl_add_u32 {v(vo)}, {v(vt2)}, 4, {v(vo)}")
        k(f"v_add_u32 {v(vo)}, s54, {v(vo)}")
        st = []
        for p in range(8):
            st.append(f"s_mov_b32 s56, {p*16*3584}")
            st.append(f"buffer_store_dwordx4 {v(vy+4*p,4)}, {v(vo)}, s[{SH}:{SH+3}], s56 offen")
        emit_stores(st)

class P4(Phase):
    NC = 14; PA = 256; NBI = 8; BSTEP = 131072; nprod = 16
    def __init__(self, tag, xsrc, xdst, st_off, hoff): super().__init__(tag); self.xsrc, self.xdst, self.st_off, self.hoff = xsrc, xdst, st_off, hoff
    def tile(self, k): tile64(k)
    def setup_A(self, k, vt, vt2):
        self.voA = a_dma_offsets(k, 8, 256, 3584, 50, vt, vt2)
        k("s_waitcnt lgkmcnt(0)")
        srd(k, 24, P_WS, self.hoff, S_ * F_ * 2)
    def setup_B(self, k, vt, vt2, vt3, tmp):
        self.voB = [k.valloc() for _ in range(8)]
        k("s_lshl_b32 s52, s59, 16")
        k(f"s_and_b32 s54, s{SM_}, 7"); k("s_lshl_b32 s54, s54, 7")
        k("s_add_u32 s52, s52, s54")
        for i in range(8):
            k(f"v_bfe_u32 {v(vt)}, {v(k.vL)}, 4, 1")
            k(f"v_lshlrev_b32 {v(vt)}, 1, {v(vt)}")
            if i & 1: k(f"v_or_b32 {v(vt)}, 4, {v(vt)}")
            k(f"v_and_b32 {v(vt2)}, 7, {v(k.vL)}")
            k(f"v_xor_b32 {v(vt)}, {v(vt)}, {v(vt2)}")
            k(f"v_lshlrev_b32 {v(vt)}, 4, {v(vt)}")
            k(f"v_lshrrev_b32 {v(vt2)}, 3, {v(k.vL)}")
            k(f"v_add_u32 {v(vt2)}, {8*i}, {v(vt2)}")
            k(f"v_lshl_add_u32 {v(vt)}, {v(vt2)}, 10, {v(vt)}")
            k(f"v_add_u32 {v(self.voB[i])}, s52, {v(vt)}")
        k(f"s_lshl_b32 s{self.sBW}, s59, 13")
        k("s_waitcnt lgkmcnt(0)")
        srd(k, self.SWB, P_W2, 0, 1792 * 512 * 2)
    def compute(self, k, vt, vt2, vt3):
        SX = 24
        self.xr = k.valloc(8, 4)
        k("s_waitcnt lgkmcnt(0)")
        srd(k, SX, P_WS, self.xsrc, XB)
        resid_load64(k, SX, vt, vt2, self.xr)
        k("s_lshr_b32 s52, s3, 1")
        k("s_lshl_b32 s52, s52, 5")
        k("s_and_b32 s53, s3, 1")
        B = Bases(k)
        a_read_bases(k, B, 256, 52, 2, vt, vt2)
        k(f"v_bfe_u32 {v(vt)}, {v(k.vL)}, 2, 2")
        k(f"v_and_b32 {v(vt2)}, 1, {v(k.vG)}")
        k(f"v_lshlrev_b32 {v(vt2)}, 1, {v(vt2)}")
        k(f"v_bfe_u32 {v(vt3)}, {v(k.vL)}, 3, 1")
        k(f"v_or_b32 {v(vt2)}, {v(vt2)}, {v(vt3)}")
        k("s_lshl_b32 s57, s53, 1")
        k(f"v_xor_b32 {v(vt2)}, s57, {v(vt2)}")
        k(f"v_lshl_add_u32 {v(vt)}, {v(k.vG)}, 3, {v(vt)}")
        k(f"v_lshlrev_b32 {v(vt)}, 7, {v(vt)}")
        k(f"v_and_b32 {v(vt3)}, 3, {v(k.vL)}")
        k(f"v_lshl_add_u32 {v(vt)}, {v(vt3)}, 3, {v(vt)}")
        for t in range(2):
            r = k.valloc()
            k(f"v_xor_b32 {v(vt3)}, {t}, {v(vt2)}")
            k(f"v_lshl_add_u32 {v(r)}, {v(vt3)}, 5, {v(vt)}")
            B.add(("W", t), r, 3)
        acc = k.valloc(16, 4)
        for i in range(16): k(f"v_mov_b32 {v(acc+i)}, 0")
        Ab = [k.valloc(32, 4), k.valloc(32, 4)]; Wb = [k.valloc(32, 4), k.valloc(32, 4)]
        def reads(c):
            A_ = Ab[c & 1]; W_ = Wb[c & 1]; o = []
            for kk in range(4):
                ra = [f"ds_read_b128 {v(A_+8*kk+4*rt,4)}, {B.at(('A',kk), self.aslot(c) + rt*4096)}" for rt in range(2)]
                rw = [f"ds_read_b64_tr_b16 {v(W_+8*kk+4*t+2*hh,2)}, {B.at(('W',t), self.bslot[c] + kk*4096 + hh*512)}" for t in range(2) for hh in range(2)]
                o += [ra[0]] + rw + ra[1:]
            if os.environ.get("G_NOREAD"): return o[:int(os.environ["G_NOREAD"])]
            return o
        def mfmas(c):
            A_ = Ab[c & 1]; W_ = Wb[c & 1]
            return [f"v_mfma_f32_16x16x32_bf16 {v(acc+(rt*2+t)*4,4)}, {v(W_+8*kk+4*t,4)}, {v(A_+8*kk+4*rt,4)}, {v(acc+(rt*2+t)*4,4)}" for kk in range(4) for rt in range(2) for t in range(2)]
        for c in range(self.NC + 1):
            if c < self.NC:
                if c: k("s_waitcnt lgkmcnt(0)")
                k.dstamp()
                k("s_barrier")
                if c == 0: k.stamp()
            rd = reads(c) if c < self.NC else []
            mf = mfmas(c - 1) if c else []
            i = j = 0
            while i < len(mf) or j < len(rd):
                for _ in range(2):
                    if j < len(rd): k(rd[j]); j += 1
                if i < len(mf): k(mf[i]); i += 1
                if j < len(rd): k(rd[j]); j += 1
                if i < len(mf): k(mf[i]); i += 1
        k.stamp()
        k("s_barrier")
        vs = k.valloc()
        k(f"v_add_u32 {v(vs)}, s52, {v(k.vR16)}")
        k(f"v_mul_u32_u24 {v(vs)}, 144, {v(vs)}")
        k(f"v_lshl_add_u32 {v(vs)}, {v(k.vG)}, 3, {v(vs)}")
        k("s_lshl_b32 s57, s53, 6")
        k(f"v_add_u32 {v(vs)}, s57, {v(vs)}")
        for rt in range(2):
            for t in range(2):
                ac = acc + (rt * 2 + t) * 4
                k(f"v_cvt_pk_bf16_f32 {v(ac)}, {v(ac)}, {v(ac+1)}")
                k(f"v_cvt_pk_bf16_f32 {v(ac+1)}, {v(ac+2)}, {v(ac+3)}")
                k(f"ds_write_b64 {v(vs)}, {v(ac,2)} offset:{rt*16*144 + t*32}")
        k("s_waitcnt lgkmcnt(0)")
    def store(self, k, vt, vt2, vt3, emit_stores):
        store64(self, k, emit_stores)

def gen_fused(name, phases, flagbase, xtidx, stamps=False, first=False):
    k = Kern(name); k.stamps_on = stamps
    if os.environ.get("G_DET"): k.det = int(os.environ["G_DET"])
    prologue(k, 256, wait=False)
    k("s_sub_u32 s59, s3, 4")
    k("s_and_b32 s48, s2, 7"); k("s_lshl_b32 s48, s48, 1"); k("s_lshr_b32 s49, s2, 7")
    k(f"s_add_u32 s{SC_}, s48, s49"); k(f"s_bfe_u32 s{SM_}, s2, 0x40003")
    vt, vt2, vt3 = k.valloc(), k.valloc(), k.valloc()
    vfl = k.valloc(); vfd = k.valloc()
    mark = k.nv
    k.lds = 163840
    n = len(phases)
    bars = []
    for i, p in enumerate(phases):
        bars += [(i, "b", c) for c in range(p.NC)] + [(i, "e", 0), (i, "s", 0)] + ([(i, "u", 0)] if i < n - 1 else [])
    bidx = {b: j for j, b in enumerate(bars)}
    chunks = []
    for i, p in enumerate(phases):
        for c in range(p.NC):
            rel = bidx[(i, "b", c + 1)] if c + 1 < p.NC else bidx[(i, "e", 0)]
            chunks.append((i, c, bidx[(i, "b", c)], rel, True))
        for x in range(p.pseudo):
            chunks.append((i, p.NC + x, None, bidx[(i, "e", 0)], False))
    for j, (i, c, _, _, _) in enumerate(chunks): phases[i].bslot[c] = BRING + (j % NB) * 16384
    for i, p in enumerate(phases): p.SWB = 24 + 4 * i; p.sBW = 44 + i
    k("s_cmp_lt_u32 s3, 4")
    k(f"s_cbranch_scc1 {name}_compute")
    k("s_cmp_lt_u32 s3, 6")
    k(f"s_cbranch_scc1 {name}_aload")
    k("s_sub_u32 s59, s3, 6")
    k.stamp_set(0); k.stamp()
    tmp5 = [k.valloc() for _ in range(5)]
    NV = int(os.environ.get("G_NV", "0"))
    vl16 = k.valloc()
    k(f"v_lshlrev_b32 {v(vl16)}, 4, {v(k.vL)}")
    for p in phases: p._vo = None
    vslots = [256 - 32 * (x + 1) for x in range(NV)]
    k.maxv = 256 if NV else k.maxv
    freev = list(vslots); vq = []
    setup_done = set(); nxt = [0]; placed = set(); pend = []
    def slot_free(j, after_bar): return j < NB or chunks[j - NB][3] <= after_bar
    def b_step(after_bar, maxn, curphase=None, spare=0):
        if pend:
            k("s_waitcnt lgkmcnt(0)")
            for (j, vs) in pend: placed.add(j); freev.append(vs)
            pend.clear()
        while vq and slot_free(vq[0][0], after_bar):
            j, vs = vq.pop(0); i, c = chunks[j][0], chunks[j][1]
            phases[i].place_Bv(k, c, vs, vl16, vt); pend.append((j, vs))
        cnt = 0
        while nxt[0] < len(chunks) and cnt < maxn:
            j = nxt[0]; i, c, need, rel, real = chunks[j]
            if not real:
                if not slot_free(j, after_bar): break
                placed.add(j); nxt[0] += 1; continue
            direct = (not vq) and slot_free(j, after_bar)
            if not direct and not freev: break
            if curphase is not None and i != curphase:
                if spare <= 0: break
                spare -= 1
            if i not in setup_done:
                phases[i].setup_B(k, vt, vt2, vt3, tmp5); setup_done.add(i)
                assert k.nv <= 256 - 32 * NV
            k.vm_limit(int(os.environ.get("G_VML", "24")))
            if direct:
                phases[i].issue_B(k, c); placed.add(j)
            else:
                vs = freev.pop(0); phases[i].issue_Bv(k, c, vs); vq.append((j, vs))
            cnt += 1; nxt[0] += 1
    b_step(-1, 2)
    if os.environ.get("G_CODEPF"):
        endlab = "all_code_end" if first else f"{name}_end"
        ca = k.valloc(2, 2); cd = k.valloc(4)
        k("s_getpc_b64 s[40:41]")
        k.L(f"{name}_pc")
        k(f"s_mov_b32 s42, {endlab}-{name}_pc-16")
        k("s_bfe_u32 s43, s2, 0x50003")
        k("s_lshl_b32 s43, s43, 1"); k("s_add_u32 s43, s43, s59"); k("s_lshl_b32 s43, s43, 10")
        nrep = 2 if first else 1
        for x in range(nrep):
            k(f"v_add_u32 {v(vt)}, s43, {v(vl16)}")
            if x: k(f"v_add_u32 {v(vt)}, {x*65536}, {v(vt)}")
            k(f"v_min_u32 {v(vt)}, s42, {v(vt)}")
            k(f"v_and_b32 {v(vt)}, -4, {v(vt)}")
            k(f"global_load_dwordx4 {v(cd,4)}, {v(vt)}, s[40:41]")
    for j, (i, kind, c) in enumerate(bars):
        if kind == "b":
            jj = next(x for x, ch in enumerate(chunks) if ch[0] == i and ch[1] == c)
            if jj not in placed:
                assert any(x[0] == jj for x in pend), (i, c)
                k("s_waitcnt lgkmcnt(0)")
                for (j_, vs) in pend: placed.add(j_); freev.append(vs)
                pend.clear()
            k.wait_tag(f"{phases[i].tag}b{c}")
        k.cur = i; k.dstamp()
        k("s_barrier")
        if first and kind == "b" and c == 2:
            sw = k.valloc(16, 4); sacc = k.valloc(8, 4); svo = k.valloc()
            srd(k, 28, P_W1, 0, 512 * 1792 * 2)
            k("s_min_u32 s40, s2, 223")
            k("s_mul_i32 s41, s40, 2341"); k("s_lshr_b32 s41, s41, 16")
            k("s_mul_i32 s48, s41, 28"); k("s_sub_u32 s40, s40, s48")
            k("s_lshl_b32 s48, s41, 6"); k("s_lshl_b32 s49, s59, 5"); k("s_add_u32 s48, s48, s49")
            k(f"v_lshrrev_b32 {v(svo)}, 3, {v(k.vL)}")
            k(f"v_add_u32 {v(svo)}, s48, {v(svo)}")
            k(f"v_mul_u32_u24 {v(svo)}, 3584, {v(svo)}")
            k(f"v_and_b32 {v(vt)}, 7, {v(k.vL)}")
            k(f"v_lshl_add_u32 {v(svo)}, {v(vt)}, 4, {v(svo)}")
            k("s_lshl_b32 s48, s40, 7")
            k(f"v_add_u32 {v(svo)}, s48, {v(svo)}")
            for x in range(4):
                k(f"s_mov_b32 s49, {x*8*3584}")
                k(f"buffer_load_dwordx4 {v(sw+4*x,4)}, {v(svo)}, s[28:31], s49 offen")
        if first and kind == "b" and c == 4 and os.environ.get("G_TOUCH"):
            tw = k.valloc(20, 4)
            srd(k, 32, P_W2, 0, 1792 * 512 * 2)
            srd(k, 36, P_WO, 0, 512 * 512 * 2)
            k("s_mul_i32 s48, s2, 7168"); k("s_mul_i32 s49, s59, 3584"); k("s_add_u32 s48, s48, s49")
            k(f"v_add_u32 {v(vt)}, s48, {v(vl16)}")
            for x in range(4):
                k(f"buffer_load_dwordx4 {v(tw+4*x,4)}, {v(vt)}, s[32:35], 0 offen offset:{x*1024 if x < 3 else 2560}")
            k("s_lshl_b32 s48, s2, 11"); k("s_lshl_b32 s49, s59, 10"); k("s_add_u32 s48, s48, s49")
            k(f"v_add_u32 {v(vt)}, s48, {v(vl16)}")
            k(f"buffer_load_dwordx4 {v(tw+16,4)}, {v(vt)}, s[36:39], 0 offen")
        if first and kind == "b" and c == 5:
            k("s_mov_b32 s60, 0x00003f80"); k("s_mov_b32 s61, 0x3f800000")
            for x in range(8): k(f"v_mov_b32 {v(sacc+x)}, 0")
            for x in range(4):
                for y in range(4):
                    k(f"v_dot2_f32_bf16 {v(sacc+2*y)}, {v(sw+4*x+y)}, s60, {v(sacc+2*y)}")
                    k(f"v_dot2_f32_bf16 {v(sacc+2*y+1)}, {v(sw+4*x+y)}, s61, {v(sacc+2*y+1)}")
        if first and kind == "b" and c == 6:
            for x in range(8):
                k(f"v_add_f32_dpp {v(sw+x)}, {v(sacc+x)}, {v(sacc+x)} row_ror:8 row_mask:0xf bank_mask:0xf")
            for x in range(8): gen.xlane_sum_g(k, sw + x, sacc + x)
            k("s_lshl_b32 s48, s59, 8"); k(f"s_add_u32 s48, s48, {EX+8192}")
            k(f"v_and_b32 {v(vt)}, 7, {v(k.vL)}")
            k(f"v_lshlrev_b32 {v(svo)}, 5, {v(vt)}")
            k(f"v_add_u32 {v(vt)}, s48, {v(svo)}")
            k(f"ds_write_b128 {v(vt)}, {v(sw,4)}"); k(f"ds_write_b128 {v(vt)}, {v(sw+4,4)} offset:16")
            k("s_waitcnt lgkmcnt(0)")
        if first and kind == "b" and c == 7:
            k(f"v_add_u32 {v(vt)}, {EX+8192}, {v(svo)}")
            for x in range(2):
                k(f"ds_read_b128 {v(sw+4*x,4)}, {v(vt)} offset:{16*x}")
                k(f"ds_read_b128 {v(sw+8+4*x,4)}, {v(vt)} offset:{256+16*x}")
            for x in range(8): k(f"v_add_f32 {v(sw+x)}, {v(sw+x)}, {v(sw+8+x)}")
            srd(k, 28, P_WS, WS_CS + 0x2000, 8 * 1792 * 4)
            k("s_mul_i32 s48, s41, 7168"); k("s_lshl_b32 s49, s40, 8"); k("s_add_u32 s48, s48, s49")
            k(f"v_add_u32 {v(vt)}, s48, {v(svo)}")
            k("s_mov_b64 exec, 0xff")
            k(f"buffer_store_dwordx4 {v(sw,4)}, {v(vt)}, s[28:31], 0 offen")
            k(f"buffer_store_dwordx4 {v(sw+4,4)}, {v(vt)}, s[28:31], 0 offen offset:16")
            k("s_mov_b64 exec, -1")
        if kind in ("e", "u"): k.stamp()
        if kind == "b":
            b_step(j, 2 if i == 0 else 1, i, phases[i].spare(c))
        else:
            b_step(j, {"e": phases[i].Qe, "s": 3, "u": 7}[kind])
    assert nxt[0] == len(chunks) and not vq
    if stamps: k.stamp(); k.stamp_flush(P_WS, vt, vt2)
    k("s_endpgm")
    k.L(f"{name}_aload"); k.reset()
    k.stamp_set(0); k.stamp()
    k("s_lshl_b32 s55, s59, 13")
    for i, p in enumerate(phases):
        k.nv = mark
        p.tile(k)
        p.setup_A(k, vt, vt2)
        if first:
            vz = k.valloc(4)
            for x in range(4): k(f"v_mov_b32 {v(vz+x)}, 0")
            srd(k, 28, P_WS, WS_KV, 0x20000)
            srd(k, 32, 18, 0, 256)
            l1 = f"{name}_tk"; l2 = f"{name}_tkd"
            k("s_cmp_eq_u32 s59, 0")
            k(f"s_cbranch_scc1 {l1}")
            k("s_lshl_b32 s48, s2, 8"); k("s_add_u32 s48, s48, 0x10000")
            k(f"v_lshlrev_b32 {v(vfl)}, 4, {v(k.vL)}"); k(f"v_add_u32 {v(vfl)}, s48, {v(vfl)}")
            k("s_mov_b64 exec, 0xffff")
            k(f"buffer_store_dwordx4 {v(vz,4)}, {v(vfl)}, s[28:31], 0 offen")
            k("s_mov_b64 exec, -1")
            k(f"s_branch {l2}")
            k.L(l1)
            k(f"s_lshl_b32 s48, s{SM_}, 2")
            k(f"v_mov_b32 {v(vfl)}, s48"); k(f"v_mov_b32 {v(vfd)}, 1")
            k("s_mov_b64 exec, 1")
            k(f"buffer_atomic_add {v(vfd)}, {v(vfl)}, s[32:35], 0 offen sc0")
            k("s_mov_b64 exec, -1")
            k.L(l2)
        if i == 0 and n > 1:
            srd(k, SFL, P_WS, WS_FLAG, 0x7000)
            k("s_getreg_b32 s98, hwreg(HW_REG_XCC_ID)")
            k("s_and_b32 s98, s98, 15"); k("s_add_u32 s98, s98, 1")
            k(f"s_lshl_b32 s48, s{SC_}, 6"); k(f"s_lshl_b32 s49, s{SM_}, 2"); k("s_add_u32 s48, s48, s49")
            k(f"s_add_u32 s48, s48, {WS_XT - WS_FLAG + xtidx*1024}")
            k(f"v_mov_b32 {v(vfl)}, s48"); k(f"v_mov_b32 {v(vfd)}, s98")
            k("s_mov_b64 exec, 1")
            k(f"buffer_store_dword {v(vfd)}, {v(vfl)}, s[{SFL}:{SFL+3}], 0 offen sc0 sc1")
            k("s_mov_b64 exec, -1")
        if i > 0:
            lab = f"{name}_poll{i}"; done = f"{name}_polld{i}"
            k(f"s_lshl_b32 s48, s{SC_}, 8"); k(f"s_add_u32 s48, s48, {(flagbase+i-1)*4096}")
            k(f"v_lshlrev_b32 {v(vfl)}, 2, {v(k.vL)}"); k(f"v_add_u32 {v(vfl)}, s48, {v(vfl)}")
            k(f"s_mov_b64 exec, {(1<<phases[i-1].nprod)-1:#x}")
            k("s_mov_b32 s49, 0")
            k.L(lab)
            k(f"buffer_load_dword {v(vfd)}, {v(vfl)}, s[{SFL}:{SFL+3}], 0 offen sc1")
            k("s_add_u32 s49, s49, 1")
            k("s_waitcnt vmcnt(0)")
            k(f"v_cmp_ne_u32 vcc, 1, {v(vfd)}")
            k("s_cmp_gt_u32 s49, 200000")
            k(f"s_cbranch_scc1 {done}")
            k(f"s_cbranch_vccnz {lab}")
            k.L(done)
            k("s_mov_b64 exec, -1")
        k.stamp()
        if p.has_ln:
            stv = k.valloc(16, 4)
            srd(k, 28, P_WS, p.st_off, 2048 * 64)
            k("s_lshl_b32 s48, s59, 6")
            k("s_add_u32 s48, s48, s50")
            k(f"v_add_u32 {v(vt)}, s48, {v(k.vL)}")
            k(f"v_lshlrev_b32 {v(vt)}, 6, {v(vt)}")
            for x in range(4):
                k(f"buffer_load_dwordx4 {v(stv+4*x,4)}, {v(vt)}, s[28:31], 0 offen offset:{16*x}")
        for c in range(min(p.D, p.NC)): p.issue_A(k, c)
        for c in range(p.NC):
            k.wait_tag(f"{p.tag}a{c}")
            k.cur = i; k.dstamp()
            k("s_barrier")
            if c + p.D < p.NC: p.issue_A(k, c + p.D)
            if first and c == 0:
                l3 = f"{name}_zk"
                k.vm_save()
                k("s_cmp_lg_u32 s59, 0")
                k(f"s_cbranch_scc1 {l3}")
                k(f"v_readfirstlane_b32 s48, {v(vfd)}")
                k("s_nop 3")
                k("s_cmp_lg_u32 s48, 0")
                k(f"s_cbranch_scc1 {l3}")
                k(f"s_lshl_b32 s48, s{SM_}, 11")
                k(f"v_lshlrev_b32 {v(vfl)}, 4, {v(k.vL)}"); k(f"v_add_u32 {v(vt)}, s48, {v(vfl)}")
                k(f"buffer_store_dwordx4 {v(vz,4)}, {v(vt)}, s[28:31], 0 offen sc0 sc1")
                k(f"buffer_store_dwordx4 {v(vz,4)}, {v(vt)}, s[28:31], 0 offen offset:1024 sc0 sc1")
                k(f"s_lshl_b32 s48, s{SM_}, 7"); k("s_add_u32 s48, s48, 32768")
                k(f"v_add_u32 {v(vt)}, s48, {v(vfl)}")
                k("s_mov_b64 exec, 0xff")
                k(f"buffer_store_dwordx4 {v(vz,4)}, {v(vt)}, s[28:31], 0 offen sc0 sc1")
                k("s_waitcnt vmcnt(0)")
                k(f"s_lshl_b32 s48, s{SM_}, 2"); k("s_add_u32 s48, s48, 64")
                k(f"v_mov_b32 {v(vfl)}, s48"); k(f"v_mov_b32 {v(vfd)}, 1")
                k("s_mov_b64 exec, 1")
                k(f"buffer_store_dword {v(vfd)}, {v(vfl)}, s[32:35], 0 offen sc0 sc1")
                k("s_mov_b64 exec, -1")
                k.L(l3)
                k.vm_restore()
            if first and c == p.NC - 1:
                lab = f"{name}_rp"; done = f"{name}_rpd"
                k(f"s_lshl_b32 s48, s{SM_}, 2"); k("s_add_u32 s48, s48, 64")
                k(f"v_mov_b32 {v(vfl)}, s48")
                k("s_mov_b64 exec, 1")
                k("s_mov_b32 s49, 0")
                k.L(lab)
                k(f"buffer_load_dword {v(vfd)}, {v(vfl)}, s[32:35], 0 offen sc0 sc1")
                k("s_add_u32 s49, s49, 1")
                k("s_waitcnt vmcnt(0)")
                k(f"v_cmp_ne_u32 vcc, 1, {v(vfd)}")
                k("s_cmp_gt_u32 s49, 200000")
                k(f"s_cbranch_scc1 {done}")
                k(f"s_cbranch_vccnz {lab}")
                k.L(done)
                k("s_mov_b64 exec, -1")
            if c == 1 and p.has_ln:
                ab = k.valloc(2, 2)
                gen.ln_params(k, stv, ab, ab + 1, vt, vt2)
                k("s_lshl_b32 s48, s59, 9")
                k(f"s_add_u32 s48, s48, {LDS_AB}")
                k(f"v_lshlrev_b32 {v(vt)}, 3, {v(k.vL)}")
                k(f"v_add_u32 {v(vt)}, s48, {v(vt)}")
                k(f"ds_write_b64 {v(vt)}, {v(ab,2)}")
                k("s_waitcnt lgkmcnt(0)")
            if i == 0 and n > 1 and c == p.NC - 1:
                k(f"s_lshl_b32 s48, s{SC_}, 6"); k(f"s_add_u32 s48, s48, {WS_XT - WS_FLAG + xtidx*1024}")
                k(f"v_and_b32 {v(vfl)}, 15, {v(k.vL)}")
                k(f"v_lshlrev_b32 {v(vfl)}, 2, {v(vfl)}"); k(f"v_add_u32 {v(vfl)}, s48, {v(vfl)}")
                k(f"buffer_load_dword {v(vfd)}, {v(vfl)}, s[{SFL}:{SFL+3}], 0 offen sc0 sc1")
                k(f"v_cmp_ne_u32 vcc, s98, {v(vfd)}")
                k("s_cmp_eq_u64 vcc, 0")
                k("s_cselect_b32 s99, 1, 0")
                if FORCE == "fast": k("s_mov_b32 s99, 1")
                if FORCE == "slow": k("s_mov_b32 s99, 0")
                k(f"v_mov_b32 {v(vfd)}, s99"); k(f"v_mov_b32 {v(vfl)}, {LDS_MODE}")
                k(f"s_lshl_b32 s48, s59, 2"); k(f"v_add_u32 {v(vfl)}, s48, {v(vfl)}")
                k(f"ds_write_b32 {v(vfl)}, {v(vfd)}")
                k("s_waitcnt lgkmcnt(0)")
        k.stamp()
        k("s_barrier")
        k("s_barrier")
        if i < n - 1:
            k("s_barrier")
            k.stamp()
            lab = f"{name}_pub{i}"; lab2 = f"{name}_pubs{i}"
            k("s_cmp_lg_u32 s59, 0")
            k(f"s_cbranch_scc1 {lab}")
            k(f"s_lshl_b32 s48, s{SC_}, 8"); k(f"s_lshl_b32 s49, s{SM_}, 2"); k("s_add_u32 s48, s48, s49")
            k(f"s_add_u32 s48, s48, {(flagbase+i)*4096}")
            k(f"v_mov_b32 {v(vfl)}, s48"); k(f"v_mov_b32 {v(vfd)}, 1")
            k("s_mov_b64 exec, 1")
            k("s_cmp_eq_u32 s99, 1")
            k(f"s_cbranch_scc0 {lab2}")
            k(f"buffer_store_dword {v(vfd)}, {v(vfl)}, s[{SFL}:{SFL+3}], 0 offen")
            k(f"s_branch {lab}")
            k.L(lab2)
            k(f"buffer_store_dword {v(vfd)}, {v(vfl)}, s[{SFL}:{SFL+3}], 0 offen sc0 sc1")
            k.L(lab)
            k("s_mov_b64 exec, -1")
    if stamps: k.stamp(); k.stamp_flush(P_WS, vt, vt2)
    k("s_endpgm")
    k.L(f"{name}_compute"); k.reset()
    k.stamp_set(0); k.stamp()
    for i, p in enumerate(phases):
        k.nv = mark; k.cur = i
        p.tile(k)
        p.compute(k, vt, vt2, vt3)
        if os.environ.get("G_BND"): k.stamp()
        k.nv = mark + 12
        def emit_stores(lst, i=i):
            if i == n - 1:
                for x in lst: k(x)
                return
            if i == 0:
                k(f"v_mov_b32 {v(vfl)}, {LDS_MODE}")
                k(f"ds_read_b32 {v(vfd)}, {v(vfl)}")
                k(f"v_readfirstlane_b32 s99, {v(vfd)}")
            l1 = f"{name}_st{i}_slow"; l2 = f"{name}_st{i}_done"
            k("s_waitcnt vmcnt(0) lgkmcnt(0)")
            k("s_nop 4")
            k("s_cmp_eq_u32 s99, 1")
            k(f"s_cbranch_scc0 {l1}")
            for x in lst: k(x)
            k(f"s_branch {l2}")
            k.L(l1)
            for x in lst: k(x + (" sc0 sc1" if x.startswith("buffer_store") else ""))
            k.L(l2)
        p.store(k, vt, vt2, vt3, emit_stores)
        if os.environ.get("G_BND"): k.stamp()
        if i < n - 1:
            k("s_waitcnt vmcnt(0)")
            if os.environ.get("G_BND"): k.stamp()
            k("s_barrier")
    if stamps:
        k("s_waitcnt vmcnt(0)"); k.stamp(); k.stamp_flush(P_WS, vt, vt2)
    epilogue_end(k)
    return k

def build(path, stamps=False):
    kA = gen_fused("kA_kernel", [P1("p1a", "in", WS_KV, None)], 0, 0, stamps and os.environ.get("G_STA") == "1", True)
    kB = gen_fused("kB_kernel", [P2("p2a", "in", WS_KV, WS_X1, WS_ST1), P3("p3a", WS_X1, WS_ST1, WS_H), P4("p4a", WS_X1, WS_X2, WS_ST2, WS_H),
                                 P1("p1b", WS_X2, WS_KV + 0x10000, WS_ST2)], 0, 0, stamps and os.environ.get("G_STA") != "1")
    kC = gen_fused("kC_kernel", [P2("p2b", WS_X2, WS_KV + 0x10000, WS_X1, WS_ST1), P3("p3b", WS_X1, WS_ST1, WS_H), P4("p4b", WS_X1, "out", None, WS_H)], 3, 1)
    ks = [kA, kB, kC]
    launches = [(k.name, 256, 512, k.lds) for i, k in enumerate(ks)]
    open(path, "w").write(build_file(HEADER, launches, ks))
    for k in ks: print(k.name, "vgpr", k.maxv, "lds", k.lds, "ninst", sum(1 for i in k.items if isinstance(i, Ins)))

if __name__ == "__main__":
    build(sys.argv[1] if len(sys.argv) > 1 else "interleave_layers__linear_attn_block__dense_activation_silu__prompt.s")
    build(sys.argv[2] if len(sys.argv) > 2 else "fused_stamps.s", True)
```

```python
import re

TRANS = ("v_exp_f32", "v_log_f32", "v_rcp_f32", "v_rsq_f32", "v_sqrt_f32", "v_sin_f32", "v_cos_f32")

def regs_of(tok):
    tok = tok.strip()
    tok = tok.lstrip('-')
    m = re.fullmatch(r"abs\((.*)\)", tok)
    if m: tok = m.group(1)
    m = re.fullmatch(r"([vsa])\[(\d+):(\d+)\]", tok)
    if m:
        return {f"{m.group(1)}{i}" for i in range(int(m.group(2)), int(m.group(3)) + 1)}
    m = re.fullmatch(r"([vsa])(\d+)", tok)
    if m: return {tok}
    if tok in ("vcc", "vcc_lo", "vcc_hi"): return {"vcc"}
    if tok in ("exec", "exec_lo", "exec_hi"): return {"exec"}
    if tok == "m0": return {"m0"}
    return set()

class Ins:
    __slots__ = ("text", "op", "ops", "mods", "dst", "src", "kind", "srcA", "srcB", "srcC", "lds_dma", "wide_store", "dpp", "tag")
    def __init__(self, text):
        self.text = text
        t = text.split(";")[0].strip()
        parts = t.split(None, 1)
        self.op = parts[0]
        rest = parts[1] if len(parts) > 1 else ""
        toks = []; depth = 0; cur = ""
        for ch in rest:
            if ch == "[": depth += 1
            if ch == "]": depth -= 1
            if ch == "," and depth == 0:
                toks.append(cur.strip()); cur = ""
            else: cur += ch
        if cur.strip(): toks.append(cur.strip())
        ops = []; mods = []
        for i, tk in enumerate(toks):
            sp = tk.split()
            if not sp: continue
            ops.append(sp[0]); mods += sp[1:]
        self.ops = ops; self.mods = mods
        self.dst = set(); self.src = set(); self.srcA = set(); self.srcB = set(); self.srcC = set()
        self.lds_dma = False; self.wide_store = False
        for m_ in mods:
            if m_.startswith("offset:"):
                o_ = int(m_[7:], 0)
                lim = 65535 if self.op.startswith("ds_") else 4095
                assert 0 <= o_ <= lim, "offset out of range: " + text
        self.dpp = any(m.startswith(("row_", "quad_perm", "wave_")) for m in mods) or self.op.endswith("_dpp")
        op = self.op
        R = lambda i: regs_of(ops[i]) if i < len(ops) else set()
        allsrc = lambda a: set().union(*[regs_of(o) for o in ops[a:]]) if len(ops) > a else set()
        if op.startswith("v_mfma"):
            self.kind = "mfma"; self.dst = R(0); self.srcA = R(1); self.srcB = R(2); self.srcC = R(3)
            self.src = self.srcA | self.srcB | self.srcC
        elif op.startswith("v_permlane") and "swap" in op:
            self.kind = "valu"; self.dst = R(0) | R(1); self.src = R(0) | R(1)
        elif op.startswith("v_"):
            self.kind = "trans" if op.replace("_e32", "").replace("_e64", "") in TRANS else "valu"
            self.dst = R(0); self.src = allsrc(1)
            if op.startswith(("v_fmac", "v_dot2c", "v_pk_fmac")): self.src |= R(0)
            if op.startswith("v_cndmask") and len(ops) == 3: self.src |= {"vcc"}
            if op.startswith(("v_add_co", "v_sub_co", "v_addc_co", "v_subb_co")): self.dst |= R(1); self.src = allsrc(2)
            if op.startswith("v_cmpx"): self.dst |= {"exec"}
            if self.dpp: self.src |= R(0)
        elif op.startswith("ds_"):
            self.kind = "ds"
            if op.startswith(("ds_read", "ds_bpermute", "ds_permute", "ds_swizzle")) : self.dst = R(0); self.src = allsrc(1)
            else: self.src = allsrc(0)
        elif op.startswith(("buffer_", "global_")):
            self.kind = "vm"
            if op in ("buffer_wbl2", "buffer_inv"):
                pass
            elif "lds" in mods or "_lds_" in op:
                self.lds_dma = True; self.src = allsrc(0) | {"m0"}
            elif "_load" in op:
                self.dst = R(0); self.src = allsrc(1)
            elif "atomic" in op and "sc0" in mods:
                self.dst = R(0); self.src = allsrc(0)
            else:
                self.src = allsrc(0)
                if op.endswith(("x3", "x4")): self.wide_store = True
        elif op.startswith(("s_load", "s_buffer_load", "s_atomic", "s_memtime", "s_memrealtime")):
            self.kind = "smem"; self.dst = R(0); self.src = allsrc(1)
        elif op in ("s_waitcnt", "s_barrier", "s_nop", "s_endpgm", "s_sleep", "s_setprio") or op.startswith(("s_cbranch", "s_branch")):
            self.kind = "sctl"
        elif op.startswith("s_cmp"):
            self.kind = "salu"; self.src = allsrc(0)
        elif op.startswith("s_"):
            self.kind = "salu"; self.dst = R(0); self.src = allsrc(1)
            if "saveexec" in op: self.dst |= {"exec"}; self.src |= {"exec"}
        else:
            raise ValueError("unknown instruction: " + text)

class Kern:
    def __init__(self, name):
        self.name = name
        self.items = []
        self.nv = 0
        self.maxv = 0
        self.lds = 0
    def valloc(self, n=1, align=None):
        if align is None: align = 1 if n == 1 else (2 if n < 4 else 4)
        self.nv = (self.nv + align - 1) // align * align
        r = self.nv; self.nv += n; self.maxv = max(self.maxv, self.nv)
        return r
    def aalloc(self, n=1, align=4):
        self.na = (getattr(self, "na", 0) + align - 1) // align * align
        r = self.na; self.na += n
        return r
    def I(self, text, tag=None):
        ins = Ins(text); ins.tag = tag; self.items.append(ins)
    def wait_tag(self, tag): self.items.append(("WAITTAG", tag))
    def reset(self): self.items.append(("RESET", None))
    def reset_vm(self): self.items.append(("RESETVM", None))
    def vm_limit(self, n): self.items.append(("VMLIMIT", n))
    def vm_pad(self): self.items.append(("VMPAD", None))
    def vm_save(self): self.items.append(("VMSAVE", None))
    def vm_restore(self): self.items.append(("VMRESTORE", None))
    stamps_on = False
    det = None; cur = None
    def dstamp(self):
        if self.det is not None and self.det == self.cur: self.stamp(True)
    def stamp(self, force=False):
        if not self.stamps_on: return
        if self.det is not None and not force and getattr(self, "nstamp", 0) > 0: return
        n = getattr(self, "nstamp", 0); self.nstamp = n + 1
        sk = getattr(self, "stamp_skip", 0)
        if n and n <= sk: return
        if n: n -= sk
        if n >= 22: return
        self("s_memrealtime s[68:69]"); self("s_waitcnt lgkmcnt(0)"); self(f"s_mov_b32 s{70+n}, s68")
    def stamp_set(self, n): self.nstamp = n
    def stamp_flush(self, wsptr, vt, vt2):
        if not self.stamps_on: return
        self(f"s_add_u32 s64, s{wsptr}, 0xF00000"); self(f"s_addc_u32 s65, s{wsptr+1}, 0"); self("s_and_b32 s65, s65, 0xffff")
        self("s_mov_b32 s66, 0x100000"); self("s_mov_b32 s67, 0x20000")
        self("s_lshl_b32 s68, s2, 3"); self("s_add_u32 s68, s68, s3"); self("s_lshl_b32 s68, s68, 7")
        self("s_mov_b64 exec, 1")
        self(f"v_mov_b32 v{vt}, s68")
        for i in range(22):
            self(f"v_mov_b32 v{vt2}, s{70+i}")
            self(f"buffer_store_dword v{vt2}, v{vt}, s[64:67], 0 offen offset:{4*i}")
            self("s_nop 1")
    def L(self, label): self.items.append(label + ":")
    def C(self, text): self.items.append("; " + text)
    def __call__(self, text):
        for line in text.strip().split("\n"):
            line = line.strip()
            if not line: continue
            if line.startswith(";"): self.items.append(line)
            elif line.endswith(":"): self.items.append(line)
            else: self.I(line)

    def finalize(self):
        out = []
        vm = []
        lg = []
        hist = []
        pos = 0
        def emit_txt(t): out.append("    " + t)
        for it in self.items:
            if isinstance(it, tuple) and it[0] == "RESETVM":
                continue
            if isinstance(it, tuple) and it[0] == "VMPAD":
                continue
            if isinstance(it, tuple) and it[0] == "VMSAVE":
                vm_saved = list(vm); continue
            if isinstance(it, tuple) and it[0] == "VMRESTORE":
                vm = list(vm_saved); continue
            if isinstance(it, tuple) and it[0] == "VMLIMIT":
                if len(vm) > it[1]:
                    emit_txt(f"s_waitcnt vmcnt({it[1]})"); pos += 1
                    vm = vm[len(vm) - it[1]:] if it[1] else []
                continue
            if isinstance(it, tuple) and it[0] == "RESET":
                vm = []; lg = []; hist = []
                emit_txt("s_nop 7"); emit_txt("s_nop 7"); pos += 16
                continue
            if isinstance(it, tuple):
                idx = [i for i, (d, tg) in enumerate(vm) if tg == it[1]]
                if idx:
                    n = min(len(vm) - 1 - idx[-1], 63)
                    emit_txt(f"s_waitcnt vmcnt({n})"); pos += 1
                    vm = vm[len(vm) - n:] if n else []
                continue
            if isinstance(it, str):
                out.append(it if it.endswith(":") else "    " + it)
                if it.endswith(":"):
                    pass
                continue
            ins = it
            touched = ins.src | ins.dst
            if ins.op == "s_waitcnt":
                m = re.search(r"vmcnt\((\d+)\)", ins.text)
                if m:
                    n = int(m.group(1)); vm = vm[len(vm) - n:] if n < len(vm) else vm
                    if n == 0: vm = []
                m = re.search(r"lgkmcnt\((\d+)\)", ins.text)
                if m:
                    n = int(m.group(1)); lg = lg[len(lg) - n:] if n < len(lg) else lg
                    if n == 0: lg = []
            else:
                need_vm = None
                for i, (d, tg) in enumerate(vm):
                    if d & touched: need_vm = len(vm) - 1 - i
                need_lg = None
                for i, (d, sm) in enumerate(lg):
                    if d & touched:
                        need_lg = len(lg) - 1 - i
                        if any(s for _, s in lg): need_lg = 0
                w = []
                if need_vm is not None:
                    n = min(need_vm, 63); w.append(f"vmcnt({n})"); vm = vm[len(vm) - n:] if n else []
                if need_lg is not None:
                    n = min(need_lg, 15); w.append(f"lgkmcnt({n})"); lg = lg[len(lg) - n:] if n else []
                if w:
                    emit_txt("s_waitcnt " + " ".join(w)); pos += 1
            need = 0
            for (p, ppos) in reversed(hist):
                dist = pos - ppos - 1
                if dist >= 20: break
                req = 0
                pv = p.kind in ("valu", "trans")
                cv = ins.kind in ("valu", "trans")
                if p.kind == "mfma":
                    passes = 8 if "32x32" in p.op else 4
                    big = {4: 8, 8: 12}[passes]
                    if ins.kind == "mfma":
                        if p.dst & (ins.srcA | ins.srcB): req = max(req, big)
                        if p.dst & ins.srcC and not (p.dst == ins.srcC and p.op == ins.op): req = max(req, {4: 6, 8: 10}[passes])
                    elif ins.kind in ("valu", "trans", "vm", "ds"):
                        if p.dst & touched: req = max(req, big)
                        if cv and (p.srcC & ins.dst): req = max(req, {4: 3, 8: 7}[passes])
                if pv:
                    pvd = {r for r in p.dst if r[0] in "va" and r != "vcc"}
                    psd = {r for r in p.dst if r[0] == "s" or r == "vcc"}
                    if ins.kind == "mfma" and (pvd & ins.src): req = max(req, 2)
                    if ins.kind == "mfma" and "exec" in p.dst: req = max(req, 4)
                    if p.kind == "trans" and ins.kind == "valu" and (pvd & ins.src): req = max(req, 1)
                    if p.op.startswith("v_dot") and (pvd & touched) and ins.kind != "salu":
                        if ins.op != p.op: req = max(req, 3)
                        elif pvd & (regs_of(ins.ops[1]) | regs_of(ins.ops[2])): req = max(req, 3)
                    if cv and (psd & ins.src): req = max(req, 4 if ins.op.startswith(("v_readlane", "v_writelane")) else 2)
                    if ins.kind == "vm" and (psd & ins.src): req = max(req, 5)
                    if ins.op.startswith(("v_readfirstlane", "v_readlane")) and (pvd & ins.src): req = max(req, 1)
                    if ins.op.startswith("v_permlane") and (pvd & ins.src): req = max(req, 2)
                    if ins.dpp and (pvd & ins.src): req = max(req, 2)
                    if ins.dpp and "exec" in p.dst: req = max(req, 5)
                    if "exec" in p.dst and ins.op.startswith(("v_readfirstlane", "v_readlane", "v_writelane", "v_permlane")): req = max(req, 4)
                    if ins.kind == "salu" and (psd & ins.src): req = max(req, 1)
                if p.kind == "salu" and "m0" in p.dst and ins.lds_dma: req = max(req, 1)
                if p.wide_store and (p.src & ins.dst) and ins.kind != "salu": req = max(req, 2)
                if req > dist: need = max(need, req - dist)
            while need > 0:
                n = min(need, 16); emit_txt(f"s_nop {n - 1}"); pos += n; need -= n
            emit_txt(ins.text)
            hist.append((ins, pos));
            if len(hist) > 40: hist = hist[-40:]
            if len(vm) > 62 and ins.kind == "vm": print("WARNING: >63 vm ops outstanding in", self.name)
            if ins.op == "s_nop": pos += int(ins.ops[0]) + 1
            else: pos += 1
            if ins.kind == "vm" and ins.op not in ("buffer_wbl2", "buffer_inv"): vm.append((set(ins.dst), ins.tag))
            if ins.kind == "vm" and ins.op in ("buffer_wbl2", "buffer_inv"): vm.append((set(), None))
            if ins.kind == "ds": lg.append((set(ins.dst), False))
            if ins.kind == "smem": lg.append((set(ins.dst), True))
        return out

    def text(self, nsgpr=100):
        body = self.finalize()
        assert self.maxv <= 256, self.maxv
        na = getattr(self, "na", 0)
        assert na <= 256
        acc_off = max(4, (self.maxv + 3) // 4 * 4)
        nv = max(8, (acc_off + na + 7) // 8 * 8)
        code = [f".globl {self.name}", ".p2align 8", f".type {self.name},@function", f"{self.name}:"] + body
        desc = [f".amdhsa_kernel {self.name}",
                f"  .amdhsa_next_free_vgpr {nv}",
                f"  .amdhsa_next_free_sgpr {nsgpr}",
                f"  .amdhsa_accum_offset {acc_off}",
                "  .amdhsa_group_segment_fixed_size 0",
                "  .amdhsa_kernarg_size 72",
                "  .amdhsa_user_sgpr_count 2",
                "  .amdhsa_user_sgpr_kernarg_segment_ptr 1",
                "  .amdhsa_system_sgpr_workgroup_id_x 1",
                "  .amdhsa_float_denorm_mode_32 3",
                ".end_amdhsa_kernel"]
        return "\n".join(code), "\n".join(desc)

def v(r, n=1): return f"v{r}" if n == 1 else f"v[{r}:{r + n - 1}]"
def a(r, n=1): return f"a{r}" if n == 1 else f"a[{r}:{r + n - 1}]"
def s(r, n=1): return f"s{r}" if n == 1 else f"s[{r}:{r + n - 1}]"

def build_file(header, launches, kerns):
    out = [header.rstrip()]
    for (k, g, b, l) in launches:
        out.append(f"; @launch kernel={k} grid=({g},1,1) block=({b},1,1) lds={l}")
    out.append('.amdgcn_target "amdgcn-amd-amdhsa--gfx950"')
    out.append(".text")
    descs = []
    for k in kerns:
        c, d = k.text(); out.append(c); descs.append(d)
    out.append("all_code_end:")
    out.append('.section .rodata,"a"')
    for d in descs:
        out.append(".p2align 6"); out.append(d)
    return "\n".join(out) + "\n"
```

```python
import sys, struct, os
from asmlib import *
from gen import (S_, D_, F_, WS_PQ, WS_X1, WS_X2, WS_H, WS_KV, WS_CS, WS_ST0, WS_ST1, WS_ST2, XB, P_X, P_WQKV, P_WO, P_W1, P_W2, P_OUT, P_WS,
                 LOG2E, fbits, prologue, srd, epilogue_end, HEADER)
from gen2 import Bases, interleave, a_read_bases, phi4
import gen

WS_FLAG = 0xE18800
WS_XT = 0xE1E800
SC_, SM_ = 96, 97
NA = int(os.environ.get("G_NA", "4")); NB = 9 - NA
ARING, BRING, EX = 0, NA * 16384, 147456
LDS_AB, LDS_MODE, LDS_CS = EX, EX + 1024, EX + 7168
SFL = 92
FORCE = os.environ.get("G_MODE", "")

def a_dma_offsets(k, nins, PA, rowpitch, rowbase_s, t0, t1):
    UA = PA // 16; RA = 64 // UA; sh = {8: 3, 16: 4}[UA]
    out = []
    k(f"s_mul_i32 s58, s59, {nins*RA}")
    k(f"s_add_u32 s58, s58, s{rowbase_s}")
    for i in range(nins):
        r = k.valloc(); out.append(r)
        k(f"v_lshrrev_b32 {v(t0)}, {sh}, {v(k.vL)}")
        if i: k(f"v_add_u32 {v(t0)}, {RA*i}, {v(t0)}")
        if PA == 128: k(f"v_bfe_u32 {v(t1)}, {v(t0)}, 1, 3")
        else: k(f"v_and_b32 {v(t1)}, 15, {v(t0)}")
        k(f"v_and_b32 {v(r)}, {UA-1}, {v(k.vL)}")
        k(f"v_xor_b32 {v(t1)}, {v(t1)}, {v(r)}")
        k(f"v_add_u32 {v(t0)}, s58, {v(t0)}")
        k(f"v_mul_u32_u24 {v(t0)}, {rowpitch}, {v(t0)}")
        k(f"v_lshl_add_u32 {v(r)}, {v(t1)}, 4, {v(t0)}")
    assert (nins * RA) % 16 == 0
    return out

def ln_finish(k, m, q, ab):
    k(f"v_mul_f32 {v(m)}, {fbits(1/512):#x}, {v(m)}")
    k(f"v_mul_f32 {v(q)}, {fbits(1/512):#x}, {v(q)}")
    k(f"v_fma_f32 {v(q)}, -{v(m)}, {v(m)}, {v(q)}")
    k(f"v_max_f32 {v(q)}, 0, {v(q)}")
    gen.bf16_round(k, m, m); gen.bf16_round(k, q, q)
    k(f"v_add_f32 {v(q)}, {fbits(1e-5):#x}, {v(q)}")
    gen.bf16_round(k, q, q)
    k(f"v_sqrt_f32 {v(q)}, {v(q)}")
    gen.bf16_round(k, q, q)
    k(f"v_rcp_f32 {v(ab)}, {v(q)}")
    k(f"v_mul_f32 {v(ab+1)}, {v(m)}, {v(ab)}")
    k(f"v_sub_f32 {v(ab+1)}, 0, {v(ab+1)}")

def tile64(k):
    k(f"s_lshr_b32 s48, s{SM_}, 3")
    k(f"s_lshl_b32 s22, s{SC_}, 1")
    k("s_add_u32 s22, s22, s48")
    k(f"s_and_b32 s23, s{SM_}, 7")
    k("s_lshl_b32 s50, s22, 6")
    k("s_lshl_b32 s54, s23, 7")

def resid_load64(k, SX, t0, t1, xr):
    k(f"v_lshrrev_b32 {v(t0)}, 3, v0")
    k(f"v_and_b32 {v(t1)}, 7, v0")
    k(f"v_add_u32 {v(t0)}, s50, {v(t0)}")
    k(f"v_lshlrev_b32 {v(t0)}, 10, {v(t0)}")
    k(f"v_lshl_add_u32 {v(t0)}, {v(t1)}, 4, {v(t0)}")
    k(f"v_add_u32 {v(t0)}, s54, {v(t0)}")
    k("s_mov_b32 s60, 32768")
    k(f"buffer_load_dwordx4 {v(xr,4)}, {v(t0)}, s[{SX}:{SX+3}], 0 offen")
    k(f"buffer_load_dwordx4 {v(xr+4,4)}, {v(t0)}, s[{SX}:{SX+3}], s60 offen")

def store64_prep(k, xr, do_stats):
    vy = k.valloc(8, 4); va_ = k.valloc(); vo = k.valloc(); sm = k.valloc(4, 4); tt = k.valloc(2, 2)
    t0, t1, t2, t3 = [k.valloc() for _ in range(4)]
    k(f"v_lshrrev_b32 {v(t0)}, 3, v0")
    k(f"v_and_b32 {v(t1)}, 7, v0")
    k(f"v_mul_u32_u24 {v(va_)}, 144, {v(t0)}")
    k(f"v_lshl_add_u32 {v(va_)}, {v(t1)}, 4, {v(va_)}")
    k(f"ds_read_b128 {v(vy,4)}, {v(va_)}")
    k(f"ds_read_b128 {v(vy+4,4)}, {v(va_)} offset:{32*144}")
    k(f"v_add_u32 {v(t0)}, s50, {v(t0)}")
    k(f"v_lshlrev_b32 {v(vo)}, 10, {v(t0)}")
    k(f"v_lshl_add_u32 {v(vo)}, {v(t1)}, 4, {v(vo)}")
    k(f"v_add_u32 {v(vo)}, s54, {v(vo)}")
    if do_stats:
        for i in range(4): k(f"v_mov_b32 {v(sm+i)}, 0")
        k("s_mov_b32 s60, 0x3f803f80")
        k(f"v_lshlrev_b32 {v(va_)}, 6, {v(t0)}")
        k(f"s_lshr_b32 s61, s54, 4")
        k(f"v_add_u32 {v(va_)}, s61, {v(va_)}")
    for i in range(8):
        k(f"v_lshlrev_b32 {v(t0)}, 16, {v(vy+i)}")
        k(f"v_and_b32 {v(t1)}, 0xffff0000, {v(vy+i)}")
        k(f"v_lshlrev_b32 {v(t2)}, 16, {v(xr+i)}")
        k(f"v_and_b32 {v(t3)}, 0xffff0000, {v(xr+i)}")
        k(f"v_add_f32 {v(t0)}, {v(t0)}, {v(t2)}")
        k(f"v_add_f32 {v(t1)}, {v(t1)}, {v(t3)}")
        k(f"v_cvt_pk_bf16_f32 {v(vy+i)}, {v(t0)}, {v(t1)}")
        if do_stats:
            s_ = sm + 2 * (i // 4)
            k(f"v_dot2_f32_bf16 {v(s_)}, {v(vy+i)}, s60, {v(s_)}")
            k(f"v_dot2_f32_bf16 {v(s_+1)}, {v(vy+i)}, {v(vy+i)}, {v(s_+1)}")
    if do_stats:
        for dpp in ("quad_perm:[1,0,3,2]", "quad_perm:[2,3,0,1]", "row_half_mirror"):
            for h in range(2):
                for c in range(2):
                    k(f"v_add_f32_dpp {v(tt+c)}, {v(sm+2*h+c)}, {v(sm+2*h+c)} {dpp} row_mask:0xf bank_mask:0xf")
                for c in range(2):
                    k(f"v_mov_b32 {v(sm+2*h+c)}, {v(tt+c)}")
    return vy, vo, sm, va_

def main_loop(k, nks, kpc, reads, mfmas, last=()):
    k.dstamp()
    k("s_barrier"); k.stamp()
    for r in reads(0): k(r)
    for ks in range(nks):
        if ks == nks - 1: interleave(k, mfmas(ks), list(last))
        else:
            if (ks + 1) % kpc == 0:
                k("s_waitcnt lgkmcnt(0)")
                k.dstamp()
                k("s_barrier")
            interleave(k, mfmas(ks), reads(ks + 1))
    k.stamp()

class Phase:
    D = NA - 1; has_ln = False; pseudo = 0
    def __init__(self, tag): self.tag = tag; self.bslot = {}
    def aslot(self, c): return ARING + (c % NA) * 16384
    def issue_A(self, k, c):
        k(f"s_mov_b32 s56, {c*self.PA}")
        for i in range(8):
            k(f"s_add_u32 m0, s55, {self.aslot(c)+i*1024}")
            k.I(f"buffer_load_dwordx4 {v(self.voA[i])}, s[24:27], s56 offen lds", tag=f"{self.tag}a{c}")
    def issue_B(self, k, c):
        k(f"s_mov_b32 s57, {c*self.BSTEP}")
        for i in range(self.NBI):
            k(f"s_add_u32 m0, s{self.sBW}, {self.bslot[c]+i*1024}")
            k.I(f"buffer_load_dwordx4 {v(self.voB[i])}, s[{self.SWB}:{self.SWB+3}], s57 offen lds", tag=f"{self.tag}b{c}")
    def issue_Bv(self, k, c, vs):
        k(f"s_mov_b32 s57, {c*self.BSTEP}")
        for i in range(self.NBI):
            k.I(f"buffer_load_dwordx4 {v(vs+4*i,4)}, {v(self.voB[i])}, s[{self.SWB}:{self.SWB+3}], s57 offen", tag=f"{self.tag}b{c}")
    def place_Bv(self, k, c, vs, vl16, vtmp):
        k(f"s_add_u32 s58, s{self.sBW}, {self.bslot[c]}")
        k(f"v_add_u32 {v(vtmp)}, s58, {v(vl16)}")
        for i in range(self.NBI):
            k(f"ds_write_b128 {v(vtmp)}, {v(vs+4*i,4)} offset:{i*1024}")
    Qe = 1
    def spare(self, c): return 1 if c >= self.NC - self.D else 0

class P1(Phase):
    Qe = 5
    def spare(self, c): return 1 if (c >= self.NC - self.D or c % 2 == 1) else 0
    NC = 8; PA = 128; NBI = 6; BSTEP = 64 * 3072; has_ln = True; nprod = 16
    LDS_KV, LDS_Z, SP = EX + 2048, EX + 6144, 80
    def __init__(self, tag, xsrc, kv_off, st_off):
        super().__init__(tag); self.xsrc, self.kv_off, self.st_off = xsrc, kv_off, st_off
        self.instat = st_off is None
        self.has_ln = not self.instat
    def tile(self, k):
        k(f"s_mov_b32 s22, s{SC_}"); k(f"s_mov_b32 s23, s{SM_}")
        k("s_lshl_b32 s50, s22, 7"); k("s_lshl_b32 s54, s23, 6")
    def setup_A(self, k, vt, vt2):
        self.voA = a_dma_offsets(k, 8, 128, 1024, 50, vt, vt2)
        k("s_waitcnt lgkmcnt(0)")
        if self.xsrc == "in": srd(k, 24, P_X, 0, XB)
        else: srd(k, 24, P_WS, self.xsrc, XB)
    def setup_B(self, k, vt, vt2, vt3, tmp):
        self.voB = [k.valloc() for _ in range(6)]
        u, row, rem, t_, c_ = tmp
        k("s_mul_i32 s53, s59, 384")
        k(f"s_lshl_b32 s54, s{SM_}, 6")
        for i in range(6):
            k(f"v_add_u32 {v(u)}, s53, {v(k.vL)}")
            if i: k(f"v_add_u32 {v(u)}, {64*i}, {v(u)}")
            k(f"v_mul_u32_u24 {v(row)}, 0xaaab, {v(u)}")
            k(f"v_lshrrev_b32 {v(row)}, 19, {v(row)}")
            k(f"v_mul_u32_u24 {v(rem)}, 12, {v(row)}")
            k(f"v_sub_u32 {v(rem)}, {v(u)}, {v(rem)}")
            k(f"v_lshrrev_b32 {v(t_)}, 1, {v(rem)}")
            k(f"v_bfe_u32 {v(c_)}, {v(row)}, 3, 1")
            k(f"v_sub_u32 {v(t_)}, {v(t_)}, {v(c_)}")
            k(f"v_add_u32 {v(c_)}, 6, {v(t_)}")
            k(f"v_min_u32 {v(t_)}, {v(t_)}, {v(c_)}")
            k(f"v_lshrrev_b32 {v(c_)}, 1, {v(t_)}")
            k(f"v_lshlrev_b32 {v(c_)}, 10, {v(c_)}")
            k(f"v_and_b32 {v(t_)}, 1, {v(t_)}")
            k(f"v_lshl_add_u32 {v(c_)}, {v(t_)}, 5, {v(c_)}")
            k(f"v_and_b32 {v(rem)}, 1, {v(rem)}")
            k(f"v_lshl_add_u32 {v(c_)}, {v(rem)}, 4, {v(c_)}")
            k(f"v_mul_u32_u24 {v(row)}, 3072, {v(row)}")
            k(f"v_add3_u32 {v(self.voB[i])}, {v(row)}, {v(c_)}, s54")
        k(f"s_mul_i32 s{self.sBW}, s59, 6144")
        k("s_waitcnt lgkmcnt(0)")
        srd(k, self.SWB, P_WQKV, 0, 512 * 1536 * 2)
    def compute(self, k, vt, vt2, vt3):
        SP = self.SP; SCS = 40
        k("s_lshr_b32 s52, s3, 1")
        k("s_lshl_b32 s52, s52, 6")
        k("s_and_b32 s53, s3, 1")
        cs3 = k.valloc(12, 4)
        csq = cs3
        vcq = k.valloc(); vck = k.valloc()
        k("s_lshl_b32 s56, s23, 7")
        k("s_lshl_b32 s57, s53, 6")
        k("s_add_u32 s56, s56, s57")
        k(f"v_lshlrev_b32 {v(vcq)}, 4, {v(k.vG)}")
        k(f"v_add_u32 {v(vcq)}, s56, {v(vcq)}")
        k(f"v_lshlrev_b32 {v(vck)}, 2, {v(k.vR16)}")
        k(f"v_add_u32 {v(vck)}, s56, {v(vck)}")
        k(f"v_add_u32 {v(vck)}, 2048, {v(vck)}")
        if self.instat:
            for i in range(12): k(f"v_mov_b32 {v(cs3+i)}, 0")
        else:
            k("s_waitcnt lgkmcnt(0)")
            srd(k, SCS, P_WS, WS_CS, 1536 * 4)
            k(f"buffer_load_dwordx4 {v(cs3,4)}, {v(vcq)}, s[{SCS}:{SCS+3}], 0 offen")
            for kv in range(2):
                k(f"buffer_load_dword {v(cs3+4+4*kv)}, {v(vck)}, s[{SCS}:{SCS+3}], 0 offen offset:{2048*kv}")
        ones = k.valloc(4)
        for i in range(4): k(f"v_mov_b32 {v(ones+i)}, 0x3f803f80")
        k("s_lshl_b32 s57, s53, 5")
        k("s_add_u32 s66, s52, s57")
        k("s_xor_b32 s57, s57, 32")
        k("s_add_u32 s67, s52, s57")
        B = Bases(k)
        a_read_bases(k, B, 128, 66, 2, vt, vt2)
        B2 = Bases(k)
        a_read_bases(k, B2, 128, 67, 2, vt, vt2)
        k(f"v_bfe_u32 {v(vt)}, {v(k.vL)}, 2, 2")
        k(f"v_lshl_add_u32 {v(vt)}, {v(k.vG)}, 3, {v(vt)}")
        k(f"v_mul_u32_u24 {v(vt)}, 192, {v(vt)}")
        k(f"v_and_b32 {v(vt2)}, 3, {v(k.vL)}")
        k(f"v_lshl_add_u32 {v(vt)}, {v(vt2)}, 3, {v(vt)}")
        k(f"v_and_b32 {v(vt2)}, 1, {v(k.vG)}")
        k(f"v_add_u32 {v(vt2)}, s53, {v(vt2)}")
        for j in range(3):
            r = k.valloc()
            k(f"v_add_u32 {v(vt3)}, {2*j}, {v(vt2)}")
            if j == 2:
                k(f"v_subrev_u32 {v(r)}, 6, {v(vt3)}")
                k(f"v_min_u32 {v(vt3)}, {v(vt3)}, {v(r)}")
            k(f"v_lshl_add_u32 {v(r)}, {v(vt3)}, 5, {v(vt)}")
            B.add(("W", j), r, 3)
        acc = k.valloc(48, 4)
        for i in range(48): k(f"v_mov_b32 {v(acc+i)}, 0")
        Ab = [k.valloc(16, 4), k.valloc(16, 4)]; Wb = [k.valloc(12, 4), k.valloc(12, 4)]
        ab = [k.valloc(2, 2) for _ in range(4)]
        abn = [k.valloc(8, 4) for _ in range(4)]
        vab = [k.valloc(), k.valloc()]; vabn = [k.valloc(), k.valloc()]
        for h in range(2):
            k(f"v_add_u32 {v(vab[h])}, s{66+h}, {v(k.vR16)}")
            k(f"v_lshlrev_b32 {v(vab[h])}, 3, {v(vab[h])}")
            k(f"v_add_u32 {v(vab[h])}, {LDS_AB}, {v(vab[h])}")
            k(f"v_lshlrev_b32 {v(vabn[h])}, 2, {v(k.vG)}")
            k(f"v_add_u32 {v(vabn[h])}, s{66+h}, {v(vabn[h])}")
            k(f"v_lshlrev_b32 {v(vabn[h])}, 3, {v(vabn[h])}")
            k(f"v_add_u32 {v(vabn[h])}, {LDS_AB}, {v(vabn[h])}")
        if self.instat:
            sta = k.valloc(16, 4)
            for i in range(16): k(f"v_mov_b32 {v(sta+i)}, 0")
        def reads(ks):
            c = ks // 2; kk = ks & 1; A_ = Ab[ks & 1]; W_ = Wb[ks & 1]
            ra = [f"ds_read_b128 {v(A_+4*rt,4)}, {(B if rt < 2 else B2).at(('A',kk), self.aslot(c) + (rt&1)*2048)}" for rt in range(4)]
            rw = [f"ds_read_b64_tr_b16 {v(W_+4*j+2*hh,2)}, {B.at(('W',j), self.bslot[c] + kk*6144 + hh*768)}" for j in range(3) for hh in range(2)]
            return [ra[0]] + rw + ra[1:]
        def mfmas(ks):
            A_ = Ab[ks & 1]; W_ = Wb[ks & 1]; out = []
            for rt in range(4):
                for j in range(3):
                    ac = acc + (rt * 3 + j) * 4
                    if j == 0: out.append(f"v_mfma_f32_16x16x32_bf16 {v(ac,4)}, {v(W_,4)}, {v(A_+4*rt,4)}, {v(ac,4)}")
                    else: out.append(f"v_mfma_f32_16x16x32_bf16 {v(ac,4)}, {v(A_+4*rt,4)}, {v(W_+4*j,4)}, {v(ac,4)}")
            if self.instat:
                out.append(f"v_mfma_f32_16x16x32_bf16 {v(cs3,4)}, {v(W_,4)}, {v(ones,4)}, {v(cs3,4)}")
                for j in (1, 2): out.append(f"v_mfma_f32_16x16x32_bf16 {v(cs3+4*j,4)}, {v(ones,4)}, {v(W_+4*j,4)}, {v(cs3+4*j,4)}")
                for rt in range(2):
                    out.append(f"v_mfma_f32_16x16x32_bf16 {v(sta+8*rt,4)}, {v(ones,4)}, {v(A_+4*rt,4)}, {v(sta+8*rt,4)}")
                    out.append(f"v_mfma_f32_16x16x32_bf16 {v(sta+8*rt+4,4)}, {v(A_+4*rt,4)}, {v(A_+4*rt,4)}, {v(sta+8*rt+4,4)}")
            return out
        o = []
        for rt in range(4):
            o.append(f"ds_read_b128 {v(abn[rt],4)}, {v(vabn[rt>>1])} offset:{(rt&1)*128}")
            o.append(f"ds_read_b128 {v(abn[rt]+4,4)}, {v(vabn[rt>>1])} offset:{(rt&1)*128+16}")
            o.append(f"ds_read_b64 {v(ab[rt],2)}, {v(vab[rt>>1])} offset:{(rt&1)*128}")
        main_loop(k, 16, 2, reads, mfmas, [] if self.instat else o)
        if self.instat:
            k(f"v_and_b32 {v(vt)}, 3, {v(k.vL)}")
            k(f"v_lshrrev_b32 {v(vt2)}, 2, {v(k.vR16)}")
            k(f"v_cmp_eq_u32 s[60:61], {v(vt2)}, {v(k.vG)}")
            for rt in range(2):
                g_ = sta + 8 * rt + 4; q = sta + 8 * rt + 1; m = sta + 8 * rt
                for j in range(1, 4):
                    k(f"v_cmp_eq_u32 vcc, {j}, {v(vt)}")
                    k(f"v_cndmask_b32 {v(g_)}, {v(g_)}, {v(g_+j)}, vcc")
                k(f"v_cndmask_b32 {v(q)}, 0, {v(g_)}, s[60:61]")
                gen.xlane_sum_g(k, q, vt3)
                ln_finish(k, m, q, ab[rt])
                k(f"ds_write_b64 {v(vab[0])}, {v(ab[rt],2)} offset:{rt*128}")
            k("s_waitcnt lgkmcnt(0)")
        k("s_barrier")
        if self.instat:
            for x in o: k(x)
            srd(k, SCS, P_WS, WS_CS, 1536 * 4)
            k(f"s_or_b32 s57, s{SC_}, s52")
            k("s_cmp_eq_u32 s57, 0")
            k(f"s_cselect_b32 s{SCS+2}, s{SCS+2}, 0")
            k(f"buffer_store_dwordx4 {v(cs3,4)}, {v(vcq)}, s[{SCS}:{SCS+3}], 0 offen")
            for kv in range(2):
                k(f"buffer_store_dword {v(cs3+4+4*kv)}, {v(vck)}, s[{SCS}:{SCS+3}], 0 offen offset:{2048*kv}")
        k(f"s_mov_b32 s62, {LOG2E:#x}"); k(f"s_mov_b32 s63, {LOG2E:#x}")
        k(f"s_mov_b32 s64, {fbits(1e-6):#x}"); k(f"s_mov_b32 s65, {fbits(1e-6):#x}")
        T = k.valloc(4)
        fk = k.valloc(8, 4); fv = k.valloc(8, 4)
        for rt in range(4):
            for j in (1, 2):
                ac = acc + (rt * 3 + j) * 4; f = (fk, fv)[j - 1] + 2 * rt
                for jj in range(4): k(f"v_mul_f32 {v(T+jj)}, {v(abn[rt]+2*jj+1)}, {v(cs3+4*j)}")
                for jj in range(4): k(f"v_fma_f32 {v(ac+jj)}, {v(abn[rt]+2*jj)}, {v(ac+jj)}, {v(T+jj)}")
                if j == 1: phi4(k, ac, T)
                k(f"v_cvt_pk_bf16_f32 {v(f)}, {v(ac)}, {v(ac+1)}")
                k(f"v_cvt_pk_bf16_f32 {v(f+1)}, {v(ac+2)}, {v(ac+3)}")
        kvp = k.valloc(4); zp = k.valloc(4)
        k(f"v_mfma_f32_16x16x32_bf16 {v(kvp,4)}, {v(fk,4)}, {v(fv,4)}, 0")
        k(f"v_mfma_f32_16x16x32_bf16 {v(zp,4)}, {v(fk,4)}, {v(ones,4)}, 0")
        k(f"v_mfma_f32_16x16x32_bf16 {v(kvp,4)}, {v(fk+4,4)}, {v(fv+4,4)}, {v(kvp,4)}")
        k(f"v_mfma_f32_16x16x32_bf16 {v(zp,4)}, {v(fk+4,4)}, {v(ones,4)}, {v(zp,4)}")
        vs = [k.valloc(), k.valloc()]
        k("s_lshl_b32 s57, s53, 5")
        for h in range(2):
            k(f"v_add_u32 {v(vs[h])}, s{66+h}, {v(k.vR16)}")
            k(f"v_mul_u32_u24 {v(vs[h])}, {SP}, {v(vs[h])}")
            k(f"v_lshl_add_u32 {v(vs[h])}, {v(k.vG)}, 3, {v(vs[h])}")
            k(f"v_add_u32 {v(vs[h])}, s57, {v(vs[h])}")
        for rt in range(4):
            ac = acc + rt * 12
            for p in range(2):
                k(f"v_pk_mul_f32 {v(T+2*p,2)}, {v(csq+2*p,2)}, {v(ab[rt],2)} op_sel:[0,1] op_sel_hi:[1,1]")
            for p in range(2):
                k(f"v_pk_fma_f32 {v(ac+2*p,2)}, {v(ac+2*p,2)}, {v(ab[rt],2)}, {v(T+2*p,2)} op_sel:[0,0,0] op_sel_hi:[1,0,1]")
            phi4(k, ac, T)
            k(f"v_cvt_pk_bf16_f32 {v(ac)}, {v(ac)}, {v(ac+1)}")
            k(f"v_cvt_pk_bf16_f32 {v(ac+1)}, {v(ac+2)}, {v(ac+3)}")
            k(f"ds_write_b64 {v(vs[rt>>1])}, {v(ac,2)} offset:{(rt&1)*16*SP}")
        k("s_lshl_b32 s57, s3, 10")
        k(f"s_add_u32 s57, s57, {self.LDS_KV}")
        k(f"v_lshlrev_b32 {v(vt)}, 4, {v(k.vL)}")
        k(f"v_add_u32 {v(vt)}, s57, {v(vt)}")
        k("s_lshl_b32 s58, s3, 6")
        k(f"s_add_u32 s58, s58, {self.LDS_Z}")
        k(f"v_lshlrev_b32 {v(vt2)}, 4, {v(k.vG)}")
        k(f"v_add_u32 {v(vt2)}, s58, {v(vt2)}")
        k(f"ds_write_b128 {v(vt)}, {v(kvp,4)}")
        k(f"ds_write_b128 {v(vt2)}, {v(zp,4)}")
        k("s_waitcnt lgkmcnt(0)")
    def store(self, k, vt, vt2, vt3, emit_stores):
        SPQ, SKV, SP = 32, 36, self.SP
        srd(k, SPQ, P_WS, WS_PQ, XB)
        srd(k, SKV, P_WS, self.kv_off, 34816)
        k("s_barrier")
        vy = k.valloc(8, 4); va_ = k.valloc(); vo = k.valloc(); rd = k.valloc(8, 4)
        k(f"v_lshrrev_b32 {v(vt)}, 2, v0")
        k(f"v_and_b32 {v(vt2)}, 3, v0")
        k(f"v_mul_u32_u24 {v(va_)}, {SP}, {v(vt)}")
        k(f"v_lshl_add_u32 {v(va_)}, {v(vt2)}, 4, {v(va_)}")
        k(f"ds_read_b128 {v(vy,4)}, {v(va_)}")
        k(f"ds_read_b128 {v(vy+4,4)}, {v(va_)} offset:{64*SP}")
        k(f"v_add_u32 {v(vt)}, s50, {v(vt)}")
        k(f"v_lshlrev_b32 {v(vo)}, 10, {v(vt)}")
        k(f"v_lshl_add_u32 {v(vo)}, {v(vt2)}, 4, {v(vo)}")
        k(f"v_add_u32 {v(vo)}, s54, {v(vo)}")
        k(f"v_bfe_u32 {v(vt)}, v0, 3, 4")
        k(f"v_lshlrev_b32 {v(vt)}, 4, {v(vt)}")
        k(f"v_bfe_u32 {v(vt2)}, v0, 7, 1")
        k(f"v_lshl_add_u32 {v(vt)}, {v(vt2)}, 9, {v(vt)}")
        k(f"v_bfe_u32 {v(vt2)}, v0, 2, 1")
        k(f"v_lshl_add_u32 {v(vt)}, {v(vt2)}, 8, {v(vt)}")
        k(f"v_and_b32 {v(vt2)}, 3, v0")
        k(f"v_lshl_add_u32 {v(vt)}, {v(vt2)}, 2, {v(vt)}")
        k(f"v_add_u32 {v(vt)}, {self.LDS_KV}, {v(vt)}")
        for h in range(2):
            k(f"ds_read_b32 {v(rd+2*h)}, {v(vt)} offset:{h*1024}")
            k(f"ds_read_b32 {v(rd+2*h+1)}, {v(vt)} offset:{h*1024+2048}")
        k(f"v_and_b32 {v(vt3)}, 31, v0")
        k(f"v_lshlrev_b32 {v(vt3)}, 2, {v(vt3)}")
        k(f"v_add_u32 {v(vt2)}, {self.LDS_Z}, {v(vt3)}")
        k(f"ds_read_b32 {v(rd+4)}, {v(vt2)}")
        k(f"ds_read_b32 {v(rd+5)}, {v(vt2)} offset:128")
        k("s_mov_b32 s60, 65536")
        emit_stores([f"buffer_store_dwordx4 {v(vy,4)}, {v(vo)}, s[{SPQ}:{SPQ+3}], 0 offen",
                     f"buffer_store_dwordx4 {v(vy+4,4)}, {v(vo)}, s[{SPQ}:{SPQ+3}], s60 offen"])
        k("s_lshl_b32 s57, s23, 11")
        k(f"v_lshlrev_b32 {v(vt2)}, 2, v0")
        k(f"v_add_u32 {v(vt2)}, s57, {v(vt2)}")
        for h in range(2):
            k(f"v_add_f32 {v(rd+2*h)}, {v(rd+2*h)}, {v(rd+2*h+1)}")
            k(f"buffer_atomic_add_f32 {v(rd+2*h)}, {v(vt2)}, s[{SKV}:{SKV+3}], 0 offen offset:{h*1024}")
        k("s_lshl_b32 s57, s23, 7")
        k(f"s_add_u32 s57, s57, 32768")
        k(f"v_add_u32 {v(vt3)}, s57, {v(vt3)}")
        k(f"v_mov_b32 {v(vt2)}, 0x7ffffff0")
        k(f"v_cmp_gt_u32 vcc, 32, v0")
        k(f"v_cndmask_b32 {v(vt3)}, {v(vt2)}, {v(vt3)}, vcc")
        k(f"v_add_f32 {v(rd+4)}, {v(rd+4)}, {v(rd+5)}")
        k(f"buffer_atomic_add_f32 {v(rd+4)}, {v(vt3)}, s[{SKV}:{SKV+3}], 0 offen")

class P2(Phase):
    NC = 4; PA = 256; NBI = 8; BSTEP = 131072; nprod = 16; pseudo = 1
    LDS_Z, LDS_0 = EX + 2048, EX + 3072
    def __init__(self, tag, xsrc, kv_off, xdst, st_off): super().__init__(tag); self.xsrc, self.kv_off, self.xdst, self.st_off = xsrc, kv_off, xdst, st_off
    def tile(self, k): tile64(k)
    def setup_A(self, k, vt, vt2):
        self.voA = a_dma_offsets(k, 8, 256, 1024, 50, vt, vt2)
        k("s_waitcnt lgkmcnt(0)")
        srd(k, 24, P_WS, WS_PQ, XB)
    def setup_B(self, k, vt, vt2, vt3, tmp):
        self.voB = [k.valloc() for _ in range(8)]
        k(f"v_lshrrev_b32 {v(vt)}, 3, {v(k.vL)}")
        k(f"v_bfe_u32 {v(vt2)}, {v(k.vL)}, 4, 2")
        k(f"v_lshlrev_b32 {v(vt2)}, 1, {v(vt2)}")
        k(f"v_and_b32 {v(vt3)}, 7, {v(k.vL)}")
        k(f"v_xor_b32 {v(vt2)}, {v(vt2)}, {v(vt3)}")
        k(f"v_lshlrev_b32 {v(vt2)}, 4, {v(vt2)}")
        k(f"v_lshl_add_u32 {v(vt)}, {v(vt)}, 10, {v(vt2)}")
        k("s_lshl_b32 s52, s59, 16")
        k(f"s_and_b32 s54, s{SM_}, 7"); k("s_lshl_b32 s54, s54, 7")
        k("s_add_u32 s52, s52, s54")
        k(f"v_add_u32 {v(self.voB[0])}, s52, {v(vt)}")
        for i in range(1, 8): k(f"v_add_u32 {v(self.voB[i])}, {8192*i}, {v(self.voB[0])}")
        k(f"s_lshl_b32 s{self.sBW}, s59, 13")
        k("s_waitcnt lgkmcnt(0)")
        srd(k, self.SWB, P_WO, 0, 512 * 512 * 2)
    def compute(self, k, vt, vt2, vt3):
        SKV, SX = 36, 24
        LDS_F, LDS_Z, LDS_0 = self.bslot[self.NC], self.LDS_Z, self.LDS_0
        self.xr = k.valloc(8, 4)
        kvf = k.valloc(32, 4); zf = k.valloc(2, 2)
        k("s_lshl_b32 s52, s3, 13")
        k(f"v_lshlrev_b32 {v(vt)}, 5, {v(k.vL)}")
        k(f"v_add_u32 {v(vt)}, s52, {v(vt)}")
        k(f"v_add_u32 {v(vt2)}, 4096, {v(vt)}")
        k("s_waitcnt lgkmcnt(0)")
        srd(k, SKV, P_WS, self.kv_off, 34816)
        for p in range(4):
            for hlf in range(2):
                k(f"buffer_load_dwordx4 {v(kvf+8*p+4*hlf,4)}, {v(vt if p < 2 else vt2)}, s[{SKV}:{SKV+3}], 0 offen offset:{(p&1)*2048+hlf*16}")
        k(f"v_lshlrev_b32 {v(vt3)}, 3, v0")
        k(f"v_add_u32 {v(vt3)}, 32768, {v(vt3)}")
        k(f"buffer_load_dwordx2 {v(zf,2)}, {v(vt3)}, s[{SKV}:{SKV+3}], 0 offen")
        if self.xsrc == "in": srd(k, SX, P_X, 0, XB)
        else: srd(k, SX, P_WS, self.xsrc, XB)
        resid_load64(k, SX, vt, vt2, self.xr)
        k("s_lshl_b32 s52, s3, 4")
        B = Bases(k)
        a_read_bases(k, B, 256, 52, 2, vt, vt2)
        aA0, aA1, aAz, sA0, sA1, sAz = [k.valloc() for _ in range(6)]
        k(f"v_lshlrev_b32 {v(vt)}, 4, {v(k.vL)}")
        k(f"v_add_u32 {v(vt)}, {LDS_F}, {v(vt)}")
        k(f"v_mov_b32 {v(vt2)}, {LDS_0}")
        k(f"v_cmp_gt_u32 vcc, 2, {v(k.vG)}")
        k(f"v_cndmask_b32 {v(aA0)}, {v(vt2)}, {v(vt)}, vcc")
        k(f"v_cndmask_b32 {v(aA1)}, {v(vt)}, {v(vt2)}, vcc")
        k(f"v_mov_b32 {v(vt3)}, 1024")
        k(f"v_cndmask_b32 {v(sA0)}, 0, {v(vt3)}, vcc")
        k(f"v_cndmask_b32 {v(sA1)}, {v(vt3)}, 0, vcc")
        k(f"v_and_b32 {v(vt)}, 3, {v(k.vL)}")
        k(f"v_lshrrev_b32 {v(vt3)}, 1, {v(k.vG)}")
        k(f"v_cmp_eq_u32 vcc, {v(vt)}, {v(vt3)}")
        k(f"v_lshlrev_b32 {v(vt)}, 4, {v(k.vG)}")
        k(f"v_add_u32 {v(vt)}, {LDS_Z}, {v(vt)}")
        k(f"v_cndmask_b32 {v(aAz)}, {v(vt2)}, {v(vt)}, vcc")
        k(f"v_cndmask_b32 {v(sAz)}, 0, 64, vcc")
        k(f"v_bfe_u32 {v(vt)}, {v(k.vL)}, 2, 2")
        k(f"v_lshl_add_u32 {v(vt)}, {v(k.vG)}, 2, {v(vt)}")
        k(f"v_bfe_u32 {v(vt2)}, {v(vt)}, 1, 2")
        k(f"v_lshlrev_b32 {v(vt)}, 7, {v(vt)}")
        k(f"v_and_b32 {v(vt3)}, 3, {v(k.vL)}")
        k(f"v_lshl_add_u32 {v(vt)}, {v(vt3)}, 3, {v(vt)}")
        for t in range(4):
            r = k.valloc()
            k(f"v_xor_b32 {v(vt3)}, {t}, {v(vt2)}")
            k(f"v_lshl_add_u32 {v(r)}, {v(vt3)}, 5, {v(vt)}")
            B.add(("W", t), r, 3)
        acc = k.valloc(16, 4)
        for i in range(16): k(f"v_mov_b32 {v(acc+i)}, 0")
        k("s_lshl_b32 s57, s3, 12")
        k(f"s_add_u32 s57, s57, {LDS_F}")
        k(f"v_lshlrev_b32 {v(vt)}, 4, {v(k.vL)}")
        k(f"v_add_u32 {v(vt)}, s57, {v(vt)}")
        for p in range(4):
            for i in range(4):
                k(f"v_cvt_pk_bf16_f32 {v(kvf+8*p+i)}, {v(kvf+8*p+2*i)}, {v(kvf+8*p+2*i+1)}")
            k(f"ds_write_b128 {v(vt)}, {v(kvf+8*p,4)} offset:{p*1024}")
        k(f"v_cvt_pk_bf16_f32 {v(zf)}, {v(zf)}, {v(zf+1)}")
        k(f"v_lshlrev_b32 {v(vt2)}, 2, v0")
        k(f"v_add_u32 {v(vt2)}, {LDS_Z}, {v(vt2)}")
        k(f"ds_write_b32 {v(vt2)}, {v(zf)}")
        k(f"v_mov_b32 {v(zf)}, 0")
        k(f"v_and_b32 {v(vt2)}, 3, v0")
        k(f"v_lshlrev_b32 {v(vt2)}, 2, {v(vt2)}")
        k(f"v_add_u32 {v(vt2)}, {LDS_0}, {v(vt2)}")
        k(f"ds_write_b32 {v(vt2)}, {v(zf)}")
        Wb = [kvf, k.valloc(32, 4)]
        Fb = k.valloc(24, 4); Pb = k.valloc(8, 4)
        N = [k.valloc(24, 4), k.valloc(24, 4)]
        O = [k.valloc(8, 4), k.valloc(8, 4)]; rr = k.valloc(4, 4)
        k(f"s_mov_b32 s62, {fbits(1e-6):#x}"); k(f"s_mov_b32 s63, {fbits(1e-6):#x}")
        def freads(hc):
            o = []
            for q in range(2):
                o += [f"ds_read_b128 {v(Pb+4*q,4)}, {B.at(('A',(hc&1)*2+q), self.aslot(hc//2))}",
                      f"ds_read_b128 {v(Fb+12*q,4)}, {v(aA0)}", f"ds_read_b128 {v(Fb+12*q+4,4)}, {v(aA1)}", f"ds_read_b128 {v(Fb+12*q+8,4)}, {v(aAz)}",
                      f"v_add_u32 {v(aA0)}, {v(aA0)}, {v(sA0)}", f"v_add_u32 {v(aA1)}, {v(aA1)}, {v(sA1)}", f"v_add_u32 {v(aAz)}, {v(aAz)}, {v(sAz)}"]
            return o
        def wreads(hc):
            b = Wb[hc & 1]
            return [f"ds_read_b64_tr_b16 {v(b+16*q+4*t+2*hh,2)}, {B.at(('W',t), self.bslot[hc//2] + ((hc&1)*2+q)*4096 + hh*2048)}" for q in range(2) for t in range(4) for hh in range(2)]
        def amfma(c):
            n = N[c & 1]
            return [f"v_mfma_f32_16x16x32_bf16 {v(n+12*q+4*i,4)}, {v(Fb+12*q+4*i,4)}, {v(Pb+4*q,4)}, 0" for q in range(2) for i in range(3)]
        def cmfma(c):
            b = Wb[c & 1]; o = O[c & 1]
            return [f"v_mfma_f32_16x16x32_bf16 {v(acc+4*t,4)}, {v(b+16*q+4*t,4)}, {v(o+4*q,4)}, {v(acc+4*t,4)}" for q in range(2) for t in range(4)]
        def ovalu(c):
            n0 = N[c & 1]; Oo = O[c & 1]; o = []
            for q in range(2):
                for i in range(2): o.append(f"v_add_f32 {v(rr+2*q+i)}, s62, {v(n0+12*q+8+i)}")
            for i in range(4): o.append(f"v_rcp_f32 {v(rr+i)}, {v(rr+i)}")
            for q in range(2):
                n = n0 + 12 * q
                for x in range(8): o.append(f"v_mul_f32 {v(n+x)}, {v(n+x)}, {v(rr+2*q+x//4)}")
            for q in range(2):
                n = n0 + 12 * q
                for h in range(2):
                    o.append(f"v_cvt_pk_bf16_f32 {v(Oo+4*q+2*h)}, {v(n+4*h)}, {v(n+4*h+1)}")
                    o.append(f"v_cvt_pk_bf16_f32 {v(Oo+4*q+2*h+1)}, {v(n+4*h+2)}, {v(n+4*h+3)}")
            return o
        k("s_waitcnt lgkmcnt(0)")
        k("s_barrier"); k.stamp()
        for r in freads(0) + wreads(0): k(r)
        for r in amfma(0): k(r)
        for c in range(9):
            if c + 1 < 8:
                if (c + 1) % 2 == 0:
                    k("s_waitcnt lgkmcnt(0)")
                    k("s_barrier")
                for r in freads(c + 1): k(r)
            mf = (cmfma(c - 1) if c >= 1 else []) + (amfma(c + 1) if c + 1 < 8 else [])
            va = (ovalu(c) if c < 8 else [])
            wr = wreads(c + 1) if c + 1 < 8 else []
            nc_ = 8 if c >= 1 else 0
            i_ = j_ = w_ = 0
            while i_ < len(mf) or j_ < len(va) or w_ < len(wr):
                if i_ < len(mf): k(mf[i_]); i_ += 1
                for _ in range(2):
                    if j_ < len(va): k(va[j_]); j_ += 1
                if i_ >= nc_:
                    for _ in range(3):
                        if w_ < len(wr): k(wr[w_]); w_ += 1
        k.stamp()
        k("s_barrier")
        vs = k.valloc()
        k(f"v_add_u32 {v(vs)}, s52, {v(k.vR16)}")
        k(f"v_mul_u32_u24 {v(vs)}, 144, {v(vs)}")
        k(f"v_lshl_add_u32 {v(vs)}, {v(k.vG)}, 3, {v(vs)}")
        for t in range(4):
            ac = acc + 4 * t
            k(f"v_cvt_pk_bf16_f32 {v(ac)}, {v(ac)}, {v(ac+1)}")
            k(f"v_cvt_pk_bf16_f32 {v(ac+1)}, {v(ac+2)}, {v(ac+3)}")
            k(f"ds_write_b64 {v(vs)}, {v(ac,2)} offset:{t*32}")
        k("s_waitcnt lgkmcnt(0)")
    def store(self, k, vt, vt2, vt3, emit_stores):
        store64(self, k, emit_stores)

def store64(p, k, emit_stores):
    SD, SST = 40, 44
    if p.xdst == "out": srd(k, SD, P_OUT, 0, XB)
    else: srd(k, SD, P_WS, p.xdst, XB)
    if p.st_off is not None: srd(k, SST, P_WS, p.st_off, 2048 * 64)
    k("s_barrier")
    vy, vo, sm, va_ = store64_prep(k, p.xr, p.st_off is not None)
    k("s_mov_b32 s60, 32768")
    st = [f"buffer_store_dwordx4 {v(vy,4)}, {v(vo)}, s[{SD}:{SD+3}], 0 offen", f"buffer_store_dwordx4 {v(vy+4,4)}, {v(vo)}, s[{SD}:{SD+3}], s60 offen"]
    if p.st_off is not None:
        st += [f"buffer_store_dwordx2 {v(sm,2)}, {v(va_)}, s[{SST}:{SST+3}], 0 offen", f"buffer_store_dwordx2 {v(sm+2,2)}, {v(va_)}, s[{SST}:{SST+3}], 0 offen offset:2048"]
    emit_stores(st)

class P3(Phase):
    Qe = 6
    def spare(self, c): return 1 if (c >= self.NC - self.D or c % 2 == 1) else 0
    NC = 8; PA = 128; NBI = 8; BSTEP = 64 * 3584; has_ln = True; nprod = 16
    SP = 272
    def __init__(self, tag, xsrc, st_off, hoff): super().__init__(tag); self.xsrc, self.st_off, self.hoff = xsrc, st_off, hoff
    def tile(self, k):
        k(f"s_mov_b32 s22, s{SC_}"); k(f"s_min_u32 s23, s{SM_}, 13")
        k("s_lshl_b32 s50, s22, 7"); k("s_lshl_b32 s54, s23, 8")
    def setup_A(self, k, vt, vt2):
        self.voA = a_dma_offsets(k, 8, 128, 1024, 50, vt, vt2)
        k("s_waitcnt lgkmcnt(0)")
        srd(k, 24, P_WS, self.xsrc, XB)
    def setup_B(self, k, vt, vt2, vt3, tmp):
        self.voB = [k.valloc() for _ in range(8)]
        k("s_lshl_b32 s52, s59, 5")
        k(f"s_min_u32 s54, s{SM_}, 13"); k("s_lshl_b32 s54, s54, 8")
        for i in range(8):
            k(f"v_lshlrev_b32 {v(vt)}, 1, {v(k.vG)}")
            if (i >> 1) & 1: k(f"v_or_b32 {v(vt)}, 8, {v(vt)}")
            k(f"v_xor_b32 {v(vt)}, {v(vt)}, {v(k.vR16)}")
            k(f"v_lshlrev_b32 {v(vt)}, 4, {v(vt)}")
            k(f"v_add3_u32 {v(vt2)}, {v(k.vG)}, s52, {4*i}")
            k(f"v_mul_u32_u24 {v(vt2)}, 3584, {v(vt2)}")
            k(f"v_add3_u32 {v(self.voB[i])}, {v(vt2)}, {v(vt)}, s54")
        k(f"s_lshl_b32 s{self.sBW}, s59, 13")
        k("s_waitcnt lgkmcnt(0)")
        srd(k, self.SWB, P_W1, 0, 512 * 1792 * 2)
    def compute(self, k, vt, vt2, vt3):
        SP = self.SP; SCS = 36
        k("s_lshr_b32 s52, s3, 1")
        k("s_lshl_b32 s52, s52, 6")
        k("s_and_b32 s53, s3, 1")
        cs = k.valloc(16, 4); vcs = k.valloc()
        k("s_lshl_b32 s57, s53, 8")
        k(f"s_add_u32 s57, s57, {LDS_CS}")
        k(f"v_lshlrev_b32 {v(vcs)}, 4, {v(k.vG)}")
        k(f"v_add_u32 {v(vcs)}, s57, {v(vcs)}")
        B = Bases(k)
        a_read_bases(k, B, 128, 52, 2, vt, vt2)
        k(f"v_bfe_u32 {v(vt)}, {v(k.vL)}, 2, 2")
        k(f"v_and_b32 {v(vt2)}, 1, {v(k.vG)}")
        k(f"v_lshl_add_u32 {v(vt2)}, {v(vt2)}, 2, {v(vt)}")
        k("s_lshl_b32 s57, s53, 2")
        k(f"v_xor_b32 {v(vt2)}, s57, {v(vt2)}")
        k(f"v_lshl_add_u32 {v(vt)}, {v(k.vG)}, 3, {v(vt)}")
        k(f"v_lshlrev_b32 {v(vt)}, 8, {v(vt)}")
        k(f"v_and_b32 {v(vt3)}, 3, {v(k.vL)}")
        k(f"v_lshl_add_u32 {v(vt)}, {v(vt3)}, 3, {v(vt)}")
        for t in range(4):
            r = k.valloc()
            k(f"v_xor_b32 {v(vt3)}, {t}, {v(vt2)}")
            k(f"v_lshl_add_u32 {v(r)}, {v(vt3)}, 5, {v(vt)}")
            B.add(("W", t), r, 3)
        acc = k.valloc(64, 4)
        for i in range(64): k(f"v_mov_b32 {v(acc+i)}, 0")
        Ab = [k.valloc(16, 4), k.valloc(16, 4)]; Wb = [k.valloc(16, 4), k.valloc(16, 4)]
        ab = [k.valloc(2, 2) for _ in range(4)]
        vab = k.valloc()
        k(f"v_add_u32 {v(vab)}, s52, {v(k.vR16)}")
        k(f"v_lshlrev_b32 {v(vab)}, 3, {v(vab)}")
        k(f"v_add_u32 {v(vab)}, {LDS_AB}, {v(vab)}")
        def reads(ks):
            c = ks // 2; kk = ks & 1; A_ = Ab[ks & 1]; W_ = Wb[ks & 1]
            ra = [f"ds_read_b128 {v(A_+4*rt,4)}, {B.at(('A',kk), self.aslot(c) + rt*2048)}" for rt in range(4)]
            rw = [f"ds_read_b64_tr_b16 {v(W_+4*t+2*hh,2)}, {B.at(('W',t), self.bslot[c] + kk*8192 + hh*1024)}" for t in range(4) for hh in range(2)]
            return [ra[0]] + rw + ra[1:]
        def mfmas(ks):
            A_ = Ab[ks & 1]; W_ = Wb[ks & 1]
            return [f"v_mfma_f32_16x16x32_bf16 {v(acc+(rt*4+t)*4,4)}, {v(W_+4*t,4)}, {v(A_+4*rt,4)}, {v(acc+(rt*4+t)*4,4)}" for rt in range(4) for t in range(4)]
        main_loop(k, 16, 2, reads, mfmas, [f"ds_read_b64 {v(ab[rt],2)}, {v(vab)} offset:{rt*128}" for rt in range(4)] +
                  [f"ds_read_b128 {v(cs+4*t,4)}, {v(vcs)} offset:{t*64}" for t in range(4)])
        k("s_barrier")
        vs = k.valloc()
        k(f"v_add_u32 {v(vs)}, s52, {v(k.vR16)}")
        k(f"v_mul_u32_u24 {v(vs)}, {SP}, {v(vs)}")
        k(f"v_lshl_add_u32 {v(vs)}, {v(k.vG)}, 3, {v(vs)}")
        k("s_lshl_b32 s57, s53, 7")
        k(f"v_add_u32 {v(vs)}, s57, {v(vs)}")
        tmp = k.valloc(8, 4)
        k(f"s_mov_b32 s62, {LOG2E | 0x80000000:#x}")
        k(f"s_mov_b32 s63, {LOG2E | 0x80000000:#x}")
        k("s_mov_b32 s64, 1.0"); k("s_mov_b32 s65, 1.0")
        for rt in range(4):
            for t in range(4):
                ac = acc + (rt * 4 + t) * 4; T = tmp + 4 * (t & 1)
                for p in range(2):
                    k(f"v_pk_mul_f32 {v(T+2*p,2)}, {v(cs+4*t+2*p,2)}, {v(ab[rt],2)} op_sel:[0,1] op_sel_hi:[1,1]")
                for p in range(2):
                    k(f"v_pk_fma_f32 {v(ac+2*p,2)}, {v(ac+2*p,2)}, {v(ab[rt],2)}, {v(T+2*p,2)} op_sel:[0,0,0] op_sel_hi:[1,0,1]")
                for p in range(2):
                    k(f"v_pk_mul_f32 {v(T+2*p,2)}, {v(ac+2*p,2)}, s[62:63]")
                for j in range(4): k(f"v_exp_f32 {v(T+j)}, {v(T+j)}")
                for p in range(2):
                    k(f"v_pk_add_f32 {v(T+2*p,2)}, {v(T+2*p,2)}, s[64:65]")
                for j in range(4): k(f"v_rcp_f32 {v(T+j)}, {v(T+j)}")
                for p in range(2):
                    k(f"v_pk_mul_f32 {v(ac+2*p,2)}, {v(ac+2*p,2)}, {v(T+2*p,2)}")
                k(f"v_cvt_pk_bf16_f32 {v(ac)}, {v(ac)}, {v(ac+1)}")
                k(f"v_cvt_pk_bf16_f32 {v(ac+1)}, {v(ac+2)}, {v(ac+3)}")
                k(f"ds_write_b64 {v(vs)}, {v(ac,2)} offset:{rt*16*SP + t*32}")
        k("s_waitcnt lgkmcnt(0)")
    def store(self, k, vt, vt2, vt3, emit_stores):
        SH, SP = 32, self.SP
        srd(k, SH, P_WS, self.hoff, S_ * F_ * 2)
        k(f"s_cmp_lt_u32 s{SM_}, 14")
        k(f"s_cselect_b32 s{SH+2}, s{SH+2}, 0")
        k("s_barrier")
        vy = k.valloc(32, 4); va_ = k.valloc(); vo = k.valloc()
        k(f"v_lshrrev_b32 {v(vt)}, 4, v0")
        k(f"v_and_b32 {v(vt2)}, 15, v0")
        k(f"v_mul_u32_u24 {v(va_)}, {SP}, {v(vt)}")
        k(f"v_lshl_add_u32 {v(va_)}, {v(vt2)}, 4, {v(va_)}")
        for p in range(8):
            k(f"ds_read_b128 {v(vy+4*p,4)}, {v(va_)} offset:{p*16*SP}")
        k(f"v_add_u32 {v(vt)}, s50, {v(vt)}")
        k(f"v_mul_u32_u24 {v(vo)}, 3584, {v(vt)}")
        k(f"v_lshl_add_u32 {v(vo)}, {v(vt2)}, 4, {v(vo)}")
        k(f"v_add_u32 {v(vo)}, s54, {v(vo)}")
        st = []
        for p in range(8):
            st.append(f"s_mov_b32 s56, {p*16*3584}")
            st.append(f"buffer_store_dwordx4 {v(vy+4*p,4)}, {v(vo)}, s[{SH}:{SH+3}], s56 offen")
        emit_stores(st)

class P4(Phase):
    NC = 14; PA = 256; NBI = 8; BSTEP = 131072; nprod = 16
    def __init__(self, tag, xsrc, xdst, st_off, hoff): super().__init__(tag); self.xsrc, self.xdst, self.st_off, self.hoff = xsrc, xdst, st_off, hoff
    def tile(self, k): tile64(k)
    def setup_A(self, k, vt, vt2):
        self.voA = a_dma_offsets(k, 8, 256, 3584, 50, vt, vt2)
        k("s_waitcnt lgkmcnt(0)")
        srd(k, 24, P_WS, self.hoff, S_ * F_ * 2)
    def setup_B(self, k, vt, vt2, vt3, tmp):
        self.voB = [k.valloc() for _ in range(8)]
        k("s_lshl_b32 s52, s59, 16")
        k(f"s_and_b32 s54, s{SM_}, 7"); k("s_lshl_b32 s54, s54, 7")
        k("s_add_u32 s52, s52, s54")
        for i in range(8):
            k(f"v_bfe_u32 {v(vt)}, {v(k.vL)}, 4, 1")
            k(f"v_lshlrev_b32 {v(vt)}, 1, {v(vt)}")
            if i & 1: k(f"v_or_b32 {v(vt)}, 4, {v(vt)}")
            k(f"v_and_b32 {v(vt2)}, 7, {v(k.vL)}")
            k(f"v_xor_b32 {v(vt)}, {v(vt)}, {v(vt2)}")
            k(f"v_lshlrev_b32 {v(vt)}, 4, {v(vt)}")
            k(f"v_lshrrev_b32 {v(vt2)}, 3, {v(k.vL)}")
            k(f"v_add_u32 {v(vt2)}, {8*i}, {v(vt2)}")
            k(f"v_lshl_add_u32 {v(vt)}, {v(vt2)}, 10, {v(vt)}")
            k(f"v_add_u32 {v(self.voB[i])}, s52, {v(vt)}")
        k(f"s_lshl_b32 s{self.sBW}, s59, 13")
        k("s_waitcnt lgkmcnt(0)")
        srd(k, self.SWB, P_W2, 0, 1792 * 512 * 2)
    def compute(self, k, vt, vt2, vt3):
        SX = 24
        self.xr = k.valloc(8, 4)
        k("s_waitcnt lgkmcnt(0)")
        srd(k, SX, P_WS, self.xsrc, XB)
        resid_load64(k, SX, vt, vt2, self.xr)
        k("s_lshr_b32 s52, s3, 1")
        k("s_lshl_b32 s52, s52, 5")
        k("s_and_b32 s53, s3, 1")
        B = Bases(k)
        a_read_bases(k, B, 256, 52, 2, vt, vt2)
        k(f"v_bfe_u32 {v(vt)}, {v(k.vL)}, 2, 2")
        k(f"v_and_b32 {v(vt2)}, 1, {v(k.vG)}")
        k(f"v_lshlrev_b32 {v(vt2)}, 1, {v(vt2)}")
        k(f"v_bfe_u32 {v(vt3)}, {v(k.vL)}, 3, 1")
        k(f"v_or_b32 {v(vt2)}, {v(vt2)}, {v(vt3)}")
        k("s_lshl_b32 s57, s53, 1")
        k(f"v_xor_b32 {v(vt2)}, s57, {v(vt2)}")
        k(f"v_lshl_add_u32 {v(vt)}, {v(k.vG)}, 3, {v(vt)}")
        k(f"v_lshlrev_b32 {v(vt)}, 7, {v(vt)}")
        k(f"v_and_b32 {v(vt3)}, 3, {v(k.vL)}")
        k(f"v_lshl_add_u32 {v(vt)}, {v(vt3)}, 3, {v(vt)}")
        for t in range(2):
            r = k.valloc()
            k(f"v_xor_b32 {v(vt3)}, {t}, {v(vt2)}")
            k(f"v_lshl_add_u32 {v(r)}, {v(vt3)}, 5, {v(vt)}")
            B.add(("W", t), r, 3)
        acc = k.valloc(16, 4)
        for i in range(16): k(f"v_mov_b32 {v(acc+i)}, 0")
        Ab = [k.valloc(32, 4), k.valloc(32, 4)]; Wb = [k.valloc(32, 4), k.valloc(32, 4)]
        def reads(c):
            A_ = Ab[c & 1]; W_ = Wb[c & 1]; o = []
            for kk in range(4):
                ra = [f"ds_read_b128 {v(A_+8*kk+4*rt,4)}, {B.at(('A',kk), self.aslot(c) + rt*4096)}" for rt in range(2)]
                rw = [f"ds_read_b64_tr_b16 {v(W_+8*kk+4*t+2*hh,2)}, {B.at(('W',t), self.bslot[c] + kk*4096 + hh*512)}" for t in range(2) for hh in range(2)]
                o += [ra[0]] + rw + ra[1:]
            if os.environ.get("G_NOREAD"): return o[:int(os.environ["G_NOREAD"])]
            return o
        def mfmas(c):
            A_ = Ab[c & 1]; W_ = Wb[c & 1]
            return [f"v_mfma_f32_16x16x32_bf16 {v(acc+(rt*2+t)*4,4)}, {v(W_+8*kk+4*t,4)}, {v(A_+8*kk+4*rt,4)}, {v(acc+(rt*2+t)*4,4)}" for kk in range(4) for rt in range(2) for t in range(2)]
        for c in range(self.NC + 1):
            if c < self.NC:
                if c: k("s_waitcnt lgkmcnt(0)")
                k.dstamp()
                k("s_barrier")
                if c == 0: k.stamp()
            rd = reads(c) if c < self.NC else []
            mf = mfmas(c - 1) if c else []
            i = j = 0
            while i < len(mf) or j < len(rd):
                for _ in range(2):
                    if j < len(rd): k(rd[j]); j += 1
                if i < len(mf): k(mf[i]); i += 1
                if j < len(rd): k(rd[j]); j += 1
                if i < len(mf): k(mf[i]); i += 1
        k.stamp()
        k("s_barrier")
        vs = k.valloc()
        k(f"v_add_u32 {v(vs)}, s52, {v(k.vR16)}")
        k(f"v_mul_u32_u24 {v(vs)}, 144, {v(vs)}")
        k(f"v_lshl_add_u32 {v(vs)}, {v(k.vG)}, 3, {v(vs)}")
        k("s_lshl_b32 s57, s53, 6")
        k(f"v_add_u32 {v(vs)}, s57, {v(vs)}")
        for rt in range(2):
            for t in range(2):
                ac = acc + (rt * 2 + t) * 4
                k(f"v_cvt_pk_bf16_f32 {v(ac)}, {v(ac)}, {v(ac+1)}")
                k(f"v_cvt_pk_bf16_f32 {v(ac+1)}, {v(ac+2)}, {v(ac+3)}")
                k(f"ds_write_b64 {v(vs)}, {v(ac,2)} offset:{rt*16*144 + t*32}")
        k("s_waitcnt lgkmcnt(0)")
    def store(self, k, vt, vt2, vt3, emit_stores):
        store64(self, k, emit_stores)

def gen_fused(name, phases, flagbase, xtidx, stamps=False, first=False):
    k = Kern(name); k.stamps_on = stamps
    if os.environ.get("G_DET"): k.det = int(os.environ["G_DET"])
    prologue(k, 256, wait=False)
    k("s_sub_u32 s59, s3, 4")
    k("s_and_b32 s48, s2, 7"); k("s_lshl_b32 s48, s48, 1"); k("s_lshr_b32 s49, s2, 7")
    k(f"s_add_u32 s{SC_}, s48, s49"); k(f"s_bfe_u32 s{SM_}, s2, 0x40003")
    vt, vt2, vt3 = k.valloc(), k.valloc(), k.valloc()
    vfl = k.valloc(); vfd = k.valloc()
    mark = k.nv
    k.lds = 163840
    n = len(phases)
    bars = []
    for i, p in enumerate(phases):
        bars += [(i, "b", c) for c in range(p.NC)] + [(i, "e", 0), (i, "s", 0)] + ([(i, "u", 0)] if i < n - 1 else [])
    bidx = {b: j for j, b in enumerate(bars)}
    chunks = []
    for i, p in enumerate(phases):
        for c in range(p.NC):
            rel = bidx[(i, "b", c + 1)] if c + 1 < p.NC else bidx[(i, "e", 0)]
            chunks.append((i, c, bidx[(i, "b", c)], rel, True))
        for x in range(p.pseudo):
            chunks.append((i, p.NC + x, None, bidx[(i, "e", 0)], False))
    for j, (i, c, _, _, _) in enumerate(chunks): phases[i].bslot[c] = BRING + (j % NB) * 16384
    for i, p in enumerate(phases): p.SWB = 24 + 4 * i; p.sBW = 44 + i
    k("s_cmp_lt_u32 s3, 4")
    k(f"s_cbranch_scc1 {name}_compute")
    k("s_cmp_lt_u32 s3, 6")
    k(f"s_cbranch_scc1 {name}_aload")
    k("s_sub_u32 s59, s3, 6")
    k.stamp_set(0); k.stamp()
    tmp5 = [k.valloc() for _ in range(5)]
    NV = int(os.environ.get("G_NV", "0"))
    vl16 = k.valloc()
    k(f"v_lshlrev_b32 {v(vl16)}, 4, {v(k.vL)}")
    for p in phases: p._vo = None
    vslots = [256 - 32 * (x + 1) for x in range(NV)]
    k.maxv = 256 if NV else k.maxv
    freev = list(vslots); vq = []
    setup_done = set(); nxt = [0]; placed = set(); pend = []
    def slot_free(j, after_bar): return j < NB or chunks[j - NB][3] <= after_bar
    def b_step(after_bar, maxn, curphase=None, spare=0):
        if pend:
            k("s_waitcnt lgkmcnt(0)")
            for (j, vs) in pend: placed.add(j); freev.append(vs)
            pend.clear()
        while vq and slot_free(vq[0][0], after_bar):
            j, vs = vq.pop(0); i, c = chunks[j][0], chunks[j][1]
            phases[i].place_Bv(k, c, vs, vl16, vt); pend.append((j, vs))
        cnt = 0
        while nxt[0] < len(chunks) and cnt < maxn:
            j = nxt[0]; i, c, need, rel, real = chunks[j]
            if not real:
                if not slot_free(j, after_bar): break
                placed.add(j); nxt[0] += 1; continue
            direct = (not vq) and slot_free(j, after_bar)
            if not direct and not freev: break
            if curphase is not None and i != curphase:
                if spare <= 0: break
                spare -= 1
            if i not in setup_done:
                phases[i].setup_B(k, vt, vt2, vt3, tmp5); setup_done.add(i)
                assert k.nv <= 256 - 32 * NV
            k.vm_limit(int(os.environ.get("G_VML", "24")))
            if direct:
                phases[i].issue_B(k, c); placed.add(j)
            else:
                vs = freev.pop(0); phases[i].issue_Bv(k, c, vs); vq.append((j, vs))
            cnt += 1; nxt[0] += 1
    b_step(-1, int(os.environ.get("G_B0", "2")))
    if True:
        endlab = "all_code_end" if first else f"{name}_end"
        ca = k.valloc(2, 2); cd = k.valloc(4)
        k("s_getpc_b64 s[40:41]")
        k.L(f"{name}_pc")
        k(f"s_mov_b32 s42, {endlab}-{name}_pc-16")
        k("s_bfe_u32 s43, s2, 0x50003")
        k("s_lshl_b32 s43, s43, 1"); k("s_add_u32 s43, s43, s59"); k("s_lshl_b32 s43, s43, 10")
        nrep = 2 if first else 1
        for x in range(nrep):
            k(f"v_add_u32 {v(vt)}, s43, {v(vl16)}")
            if x: k(f"v_add_u32 {v(vt)}, {x*65536}, {v(vt)}")
            k(f"v_min_u32 {v(vt)}, s42, {v(vt)}")
            k(f"v_and_b32 {v(vt)}, -4, {v(vt)}")
            k(f"global_load_dwordx4 {v(cd,4)}, {v(vt)}, s[40:41]")
    for j, (i, kind, c) in enumerate(bars):
        if kind == "b":
            jj = next(x for x, ch in enumerate(chunks) if ch[0] == i and ch[1] == c)
            if jj not in placed:
                assert any(x[0] == jj for x in pend), (i, c)
                k("s_waitcnt lgkmcnt(0)")
                for (j_, vs) in pend: placed.add(j_); freev.append(vs)
                pend.clear()
            k.wait_tag(f"{phases[i].tag}b{c}")
        k.cur = i; k.dstamp()
        k("s_barrier")
        if first and kind == "b" and c == 2:
            sw = k.valloc(16, 4); sacc = k.valloc(8, 4); svo = k.valloc()
            srd(k, 28, P_W1, 0, 512 * 1792 * 2)
            k("s_min_u32 s40, s2, 223")
            k("s_mul_i32 s41, s40, 2341"); k("s_lshr_b32 s41, s41, 16")
            k("s_mul_i32 s48, s41, 28"); k("s_sub_u32 s40, s40, s48")
            k("s_lshl_b32 s48, s41, 6"); k("s_lshl_b32 s49, s59, 5"); k("s_add_u32 s48, s48, s49")
            k(f"v_lshrrev_b32 {v(svo)}, 3, {v(k.vL)}")
            k(f"v_add_u32 {v(svo)}, s48, {v(svo)}")
            k(f"v_mul_u32_u24 {v(svo)}, 3584, {v(svo)}")
            k(f"v_and_b32 {v(vt)}, 7, {v(k.vL)}")
            k(f"v_lshl_add_u32 {v(svo)}, {v(vt)}, 4, {v(svo)}")
            k("s_lshl_b32 s48, s40, 7")
            k(f"v_add_u32 {v(svo)}, s48, {v(svo)}")
            for x in range(4):
                k(f"s_mov_b32 s49, {x*8*3584}")
                k(f"buffer_load_dwordx4 {v(sw+4*x,4)}, {v(svo)}, s[28:31], s49 offen")
        if first and kind == "b" and c == 4:
            tw = k.valloc(20, 4)
            srd(k, 32, P_W2, 0, 1792 * 512 * 2)
            srd(k, 36, P_WO, 0, 512 * 512 * 2)
            k("s_mul_i32 s48, s2, 7168"); k("s_mul_i32 s49, s59, 3584"); k("s_add_u32 s48, s48, s49")
            k(f"v_add_u32 {v(vt)}, s48, {v(vl16)}")
            for x in range(4):
                k(f"buffer_load_dwordx4 {v(tw+4*x,4)}, {v(vt)}, s[32:35], 0 offen offset:{x*1024 if x < 3 else 2560}")
            k("s_lshl_b32 s48, s2, 11"); k("s_lshl_b32 s49, s59, 10"); k("s_add_u32 s48, s48, s49")
            k(f"v_add_u32 {v(vt)}, s48, {v(vl16)}")
            k(f"buffer_load_dwordx4 {v(tw+16,4)}, {v(vt)}, s[36:39], 0 offen")
            if os.environ.get("G_TLB"):
                tl = k.valloc(2, 2)
                srd(k, 32, P_WS, 0, 0x1000000)
                srd(k, 36, P_OUT, 0, XB)
                k(f"v_lshlrev_b32 {v(vt)}, 18, {v(k.vL)}")
                k(f"buffer_load_dword {v(tl)}, {v(vt)}, s[32:35], 0 offen")
                k(f"v_lshlrev_b32 {v(vt)}, 15, {v(k.vL)}")
                k(f"buffer_load_dword {v(tl+1)}, {v(vt)}, s[36:39], 0 offen")
        if first and kind == "b" and c == 5:
            k("s_mov_b32 s60, 0x00003f80"); k("s_mov_b32 s61, 0x3f800000")
            for x in range(8): k(f"v_mov_b32 {v(sacc+x)}, 0")
            for x in range(4):
                for y in range(4):
                    k(f"v_dot2_f32_bf16 {v(sacc+2*y)}, {v(sw+4*x+y)}, s60, {v(sacc+2*y)}")
                    k(f"v_dot2_f32_bf16 {v(sacc+2*y+1)}, {v(sw+4*x+y)}, s61, {v(sacc+2*y+1)}")
        if first and kind == "b" and c == 6:
            for x in range(8):
                k(f"v_add_f32_dpp {v(sw+x)}, {v(sacc+x)}, {v(sacc+x)} row_ror:8 row_mask:0xf bank_mask:0xf")
            for x in range(8): gen.xlane_sum_g(k, sw + x, sacc + x)
            k("s_lshl_b32 s48, s59, 8"); k(f"s_add_u32 s48, s48, {EX+8192}")
            k(f"v_and_b32 {v(vt)}, 7, {v(k.vL)}")
            k(f"v_lshlrev_b32 {v(svo)}, 5, {v(vt)}")
            k(f"v_add_u32 {v(vt)}, s48, {v(svo)}")
            k(f"ds_write_b128 {v(vt)}, {v(sw,4)}"); k(f"ds_write_b128 {v(vt)}, {v(sw+4,4)} offset:16")
            k("s_waitcnt lgkmcnt(0)")
        if first and kind == "b" and c == 7:
            k(f"v_add_u32 {v(vt)}, {EX+8192}, {v(svo)}")
            for x in range(2):
                k(f"ds_read_b128 {v(sw+4*x,4)}, {v(vt)} offset:{16*x}")
                k(f"ds_read_b128 {v(sw+8+4*x,4)}, {v(vt)} offset:{256+16*x}")
            for x in range(8): k(f"v_add_f32 {v(sw+x)}, {v(sw+x)}, {v(sw+8+x)}")
            srd(k, 28, P_WS, WS_CS + 0x2000, 8 * 1792 * 4)
            k("s_mul_i32 s48, s41, 7168"); k("s_lshl_b32 s49, s40, 8"); k("s_add_u32 s48, s48, s49")
            k(f"v_add_u32 {v(vt)}, s48, {v(svo)}")
            k("s_mov_b64 exec, 0xff")
            k(f"buffer_store_dwordx4 {v(sw,4)}, {v(vt)}, s[28:31], 0 offen")
            k(f"buffer_store_dwordx4 {v(sw+4,4)}, {v(vt)}, s[28:31], 0 offen offset:16")
            k("s_mov_b64 exec, -1")
        if kind in ("e", "u"): k.stamp()
        if kind == "b":
            b_step(j, 2 if (i == 0 or c == 0) else 1, i, phases[i].spare(c) if not os.environ.get("G_SPALL") else 1)
        else:
            b_step(j, {"e": int(os.environ.get("G_QE", phases[i].Qe)), "s": int(os.environ.get("G_QS", "3")), "u": int(os.environ.get("G_QU", "7"))}[kind])
    assert nxt[0] == len(chunks) and not vq
    if stamps: k.stamp(); k.stamp_flush(P_WS, vt, vt2)
    k("s_endpgm")
    k.L(f"{name}_aload"); k.reset()
    k.stamp_set(0); k.stamp()
    k("s_lshl_b32 s55, s59, 13")
    for i, p in enumerate(phases):
        k.nv = mark
        p.tile(k)
        p.setup_A(k, vt, vt2)
        if first:
            vz = k.valloc(4)
            for x in range(4): k(f"v_mov_b32 {v(vz+x)}, 0")
            srd(k, 28, P_WS, WS_KV, 0x20000)
            srd(k, 32, 18, 0, 256)
            l1 = f"{name}_tk"; l2 = f"{name}_tkd"
            k("s_cmp_eq_u32 s59, 0")
            k(f"s_cbranch_scc1 {l1}")
            k("s_lshl_b32 s48, s2, 8"); k("s_add_u32 s48, s48, 0x10000")
            k(f"v_lshlrev_b32 {v(vfl)}, 4, {v(k.vL)}"); k(f"v_add_u32 {v(vfl)}, s48, {v(vfl)}")
            k("s_mov_b64 exec, 0xffff")
            k(f"buffer_store_dwordx4 {v(vz,4)}, {v(vfl)}, s[28:31], 0 offen")
            k("s_mov_b64 exec, -1")
            k(f"s_branch {l2}")
            k.L(l1)
            k(f"s_lshl_b32 s48, s{SM_}, 2")
            k(f"v_mov_b32 {v(vfl)}, s48"); k(f"v_mov_b32 {v(vfd)}, 1")
            k("s_mov_b64 exec, 1")
            k(f"buffer_atomic_add {v(vfd)}, {v(vfl)}, s[32:35], 0 offen sc0")
            k("s_mov_b64 exec, -1")
            k.L(l2)
        if i == 0 and n > 1:
            srd(k, SFL, P_WS, WS_FLAG, 0x7000)
            k("s_getreg_b32 s98, hwreg(HW_REG_XCC_ID)")
            k("s_and_b32 s98, s98, 15"); k("s_add_u32 s98, s98, 1")
            k(f"s_lshl_b32 s48, s{SC_}, 6"); k(f"s_lshl_b32 s49, s{SM_}, 2"); k("s_add_u32 s48, s48, s49")
            k(f"s_add_u32 s48, s48, {WS_XT - WS_FLAG + xtidx*1024}")
            k(f"v_mov_b32 {v(vfl)}, s48"); k(f"v_mov_b32 {v(vfd)}, s98")
            k("s_mov_b64 exec, 1")
            k(f"buffer_store_dword {v(vfd)}, {v(vfl)}, s[{SFL}:{SFL+3}], 0 offen sc0 sc1")
            k("s_mov_b64 exec, -1")
        if i > 0:
            lab = f"{name}_poll{i}"; done = f"{name}_polld{i}"
            k(f"s_lshl_b32 s48, s{SC_}, 8"); k(f"s_add_u32 s48, s48, {(flagbase+i-1)*4096}")
            k(f"v_lshlrev_b32 {v(vfl)}, 2, {v(k.vL)}"); k(f"v_add_u32 {v(vfl)}, s48, {v(vfl)}")
            k(f"s_mov_b64 exec, {(1<<phases[i-1].nprod)-1:#x}")
            k("s_mov_b32 s49, 0")
            k.L(lab)
            k(f"buffer_load_dword {v(vfd)}, {v(vfl)}, s[{SFL}:{SFL+3}], 0 offen sc1")
            k("s_add_u32 s49, s49, 1")
            k("s_waitcnt vmcnt(0)")
            k(f"v_cmp_ne_u32 vcc, 1, {v(vfd)}")
            k("s_cmp_gt_u32 s49, 200000")
            k(f"s_cbranch_scc1 {done}")
            k(f"s_cbranch_vccnz {lab}")
            k.L(done)
            k("s_mov_b64 exec, -1")
        k.stamp()
        if p.has_ln:
            stv = k.valloc(16, 4)
            srd(k, 28, P_WS, p.st_off, 2048 * 64)
            k("s_lshl_b32 s48, s59, 6")
            k("s_add_u32 s48, s48, s50")
            k(f"v_add_u32 {v(vt)}, s48, {v(k.vL)}")
            k(f"v_lshlrev_b32 {v(vt)}, 6, {v(vt)}")
            for x in range(4):
                k(f"buffer_load_dwordx4 {v(stv+4*x,4)}, {v(vt)}, s[28:31], 0 offen offset:{16*x}")
        A0N = min(NA if os.environ.get("G_A0") else p.D, p.NC)
        for c in range(A0N): p.issue_A(k, c)
        for c in range(p.NC):
            k.wait_tag(f"{p.tag}a{c}")
            k.cur = i; k.dstamp()
            k("s_barrier")
            if c + p.D < p.NC and c + p.D >= A0N: p.issue_A(k, c + p.D)
            if first and c == 0:
                l3 = f"{name}_zk"
                k.vm_save()
                k("s_cmp_lg_u32 s59, 0")
                k(f"s_cbranch_scc1 {l3}")
                k(f"v_readfirstlane_b32 s48, {v(vfd)}")
                k("s_nop 3")
                k("s_cmp_lg_u32 s48, 0")
                k(f"s_cbranch_scc1 {l3}")
                k(f"s_lshl_b32 s48, s{SM_}, 11")
                k(f"v_lshlrev_b32 {v(vfl)}, 4, {v(k.vL)}"); k(f"v_add_u32 {v(vt)}, s48, {v(vfl)}")
                k(f"buffer_store_dwordx4 {v(vz,4)}, {v(vt)}, s[28:31], 0 offen sc0 sc1")
                k(f"buffer_store_dwordx4 {v(vz,4)}, {v(vt)}, s[28:31], 0 offen offset:1024 sc0 sc1")
                k(f"s_lshl_b32 s48, s{SM_}, 7"); k("s_add_u32 s48, s48, 32768")
                k(f"v_add_u32 {v(vt)}, s48, {v(vfl)}")
                k("s_mov_b64 exec, 0xff")
                k(f"buffer_store_dwordx4 {v(vz,4)}, {v(vt)}, s[28:31], 0 offen sc0 sc1")
                k("s_waitcnt vmcnt(0)")
                k(f"s_lshl_b32 s48, s{SM_}, 2"); k("s_add_u32 s48, s48, 64")
                k(f"v_mov_b32 {v(vfl)}, s48"); k(f"v_mov_b32 {v(vfd)}, 1")
                k("s_mov_b64 exec, 1")
                k(f"buffer_store_dword {v(vfd)}, {v(vfl)}, s[32:35], 0 offen sc0 sc1")
                k("s_mov_b64 exec, -1")
                k.L(l3)
                k.vm_restore()
            if first and c == p.NC - 1:
                lab = f"{name}_rp"; done = f"{name}_rpd"
                k(f"s_lshl_b32 s48, s{SM_}, 2"); k("s_add_u32 s48, s48, 64")
                k(f"v_mov_b32 {v(vfl)}, s48")
                k("s_mov_b64 exec, 1")
                k("s_mov_b32 s49, 0")
                k.L(lab)
                k(f"buffer_load_dword {v(vfd)}, {v(vfl)}, s[32:35], 0 offen sc0 sc1")
                k("s_add_u32 s49, s49, 1")
                k("s_waitcnt vmcnt(0)")
                k(f"v_cmp_ne_u32 vcc, 1, {v(vfd)}")
                k("s_cmp_gt_u32 s49, 200000")
                k(f"s_cbranch_scc1 {done}")
                k(f"s_cbranch_vccnz {lab}")
                k.L(done)
                k("s_mov_b64 exec, -1")
            if isinstance(p, P2) and c == 0:
                cp = k.valloc(16, 4)
                srd(k, 28, P_WS, WS_CS + 0x2000, 8 * 1792 * 4)
                k(f"s_min_u32 s48, s{SM_}, 13"); k("s_lshl_b32 s48, s48, 9")
                k(f"v_lshlrev_b32 {v(vt)}, 3, {v(k.vL)}"); k(f"v_add_u32 {v(vt)}, s48, {v(vt)}")
                for g_ in range(8):
                    k(f"s_mov_b32 s49, {g_*7168}")
                    k(f"buffer_load_dwordx2 {v(cp+2*g_,2)}, {v(vt)}, s[28:31], s49 offen")
            if isinstance(p, P2) and c == 2:
                for g_ in range(1, 8): k(f"v_pk_add_f32 {v(cp,2)}, {v(cp,2)}, {v(cp+2*g_,2)}")
                k(f"v_lshlrev_b32 {v(vt)}, 3, {v(k.vL)}"); k(f"v_add_u32 {v(vt)}, {LDS_CS}, {v(vt)}")
                k(f"ds_write_b64 {v(vt)}, {v(cp,2)}")
                k("s_waitcnt lgkmcnt(0)")
            if c == 1 and p.has_ln:
                ab = k.valloc(2, 2)
                gen.ln_params(k, stv, ab, ab + 1, vt, vt2)
                k("s_lshl_b32 s48, s59, 9")
                k(f"s_add_u32 s48, s48, {LDS_AB}")
                k(f"v_lshlrev_b32 {v(vt)}, 3, {v(k.vL)}")
                k(f"v_add_u32 {v(vt)}, s48, {v(vt)}")
                k(f"ds_write_b64 {v(vt)}, {v(ab,2)}")
                k("s_waitcnt lgkmcnt(0)")
            if i == 0 and n > 1 and c == p.NC - 1:
                k(f"s_lshl_b32 s48, s{SC_}, 6"); k(f"s_add_u32 s48, s48, {WS_XT - WS_FLAG + xtidx*1024}")
                k(f"v_and_b32 {v(vfl)}, 15, {v(k.vL)}")
                k(f"v_lshlrev_b32 {v(vfl)}, 2, {v(vfl)}"); k(f"v_add_u32 {v(vfl)}, s48, {v(vfl)}")
                k(f"buffer_load_dword {v(vfd)}, {v(vfl)}, s[{SFL}:{SFL+3}], 0 offen sc0 sc1")
                k(f"v_cmp_ne_u32 vcc, s98, {v(vfd)}")
                k("s_cmp_eq_u64 vcc, 0")
                k("s_cselect_b32 s99, 1, 0")
                if FORCE == "fast": k("s_mov_b32 s99, 1")
                if FORCE == "slow": k("s_mov_b32 s99, 0")
                k(f"v_mov_b32 {v(vfd)}, s99"); k(f"v_mov_b32 {v(vfl)}, {LDS_MODE}")
                k(f"s_lshl_b32 s48, s59, 2"); k(f"v_add_u32 {v(vfl)}, s48, {v(vfl)}")
                k(f"ds_write_b32 {v(vfl)}, {v(vfd)}")
                k("s_waitcnt lgkmcnt(0)")
        k.stamp()
        k("s_barrier")
        k("s_barrier")
        if i < n - 1:
            k("s_barrier")
            k.stamp()
            lab = f"{name}_pub{i}"; lab2 = f"{name}_pubs{i}"
            k("s_cmp_lg_u32 s59, 0")
            k(f"s_cbranch_scc1 {lab}")
            k(f"s_lshl_b32 s48, s{SC_}, 8"); k(f"s_lshl_b32 s49, s{SM_}, 2"); k("s_add_u32 s48, s48, s49")
            k(f"s_add_u32 s48, s48, {(flagbase+i)*4096}")
            k(f"v_mov_b32 {v(vfl)}, s48"); k(f"v_mov_b32 {v(vfd)}, 1")
            k("s_mov_b64 exec, 1")
            k("s_cmp_eq_u32 s99, 1")
            k(f"s_cbranch_scc0 {lab2}")
            k(f"buffer_store_dword {v(vfd)}, {v(vfl)}, s[{SFL}:{SFL+3}], 0 offen")
            k(f"s_branch {lab}")
            k.L(lab2)
            k(f"buffer_store_dword {v(vfd)}, {v(vfl)}, s[{SFL}:{SFL+3}], 0 offen sc0 sc1")
            k.L(lab)
            k("s_mov_b64 exec, -1")
    if stamps: k.stamp(); k.stamp_flush(P_WS, vt, vt2)
    k("s_endpgm")
    k.L(f"{name}_compute"); k.reset()
    k.stamp_set(0); k.stamp()
    for i, p in enumerate(phases):
        k.nv = mark; k.cur = i
        p.tile(k)
        p.compute(k, vt, vt2, vt3)
        if os.environ.get("G_BND"): k.stamp()
        k.nv = mark + 12
        def emit_stores(lst, i=i):
            if i == n - 1:
                for x in lst: k(x)
                return
            if i == 0:
                k(f"v_mov_b32 {v(vfl)}, {LDS_MODE}")
                k(f"ds_read_b32 {v(vfd)}, {v(vfl)}")
                k(f"v_readfirstlane_b32 s99, {v(vfd)}")
            l1 = f"{name}_st{i}_slow"; l2 = f"{name}_st{i}_done"
            k("s_waitcnt vmcnt(0) lgkmcnt(0)")
            k("s_nop 4")
            k("s_cmp_eq_u32 s99, 1")
            k(f"s_cbranch_scc0 {l1}")
            for x in lst: k(x)
            k(f"s_branch {l2}")
            k.L(l1)
            for x in lst: k(x + (" sc0 sc1" if x.startswith("buffer_store") else ""))
            k.L(l2)
        p.store(k, vt, vt2, vt3, emit_stores)
        if os.environ.get("G_BND"): k.stamp()
        if i < n - 1:
            k("s_waitcnt vmcnt(0)")
            if os.environ.get("G_BND"): k.stamp()
            k("s_barrier")
    if stamps:
        k("s_waitcnt vmcnt(0)"); k.stamp(); k.stamp_flush(P_WS, vt, vt2)
    epilogue_end(k)
    return k

def build(path, stamps=False):
    kA = gen_fused("kA_kernel", [P1("p1a", "in", WS_KV, None)], 0, 0, stamps and os.environ.get("G_STA") == "1", True)
    kB = gen_fused("kB_kernel", [P2("p2a", "in", WS_KV, WS_X1, WS_ST1), P3("p3a", WS_X1, WS_ST1, WS_H), P4("p4a", WS_X1, WS_X2, WS_ST2, WS_H),
                                 P1("p1b", WS_X2, WS_KV + 0x10000, WS_ST2)], 0, 0, stamps and os.environ.get("G_STA") != "1")
    kC = gen_fused("kC_kernel", [P2("p2b", WS_X2, WS_KV + 0x10000, WS_X1, WS_ST1), P3("p3b", WS_X1, WS_ST1, WS_H), P4("p4b", WS_X1, "out", None, WS_H)], 3, 1)
    ks = [kA, kB, kC]
    launches = [(k.name, 256, 512, k.lds) for i, k in enumerate(ks)]
    open(path, "w").write(build_file(HEADER, launches, ks))
    for k in ks: print(k.name, "vgpr", k.maxv, "lds", k.lds, "ninst", sum(1 for i in k.items if isinstance(i, Ins)))

if __name__ == "__main__":
    build(sys.argv[1] if len(sys.argv) > 1 else "interleave_layers__linear_attn_block__dense_activation_silu__prompt.s")
    build(sys.argv[2] if len(sys.argv) > 2 else "fused_stamps.s", True)
```

```python
import sys, struct, os
from asmlib import *
from gen import (S_, D_, F_, WS_PQ, WS_X1, WS_X2, WS_H, WS_KV, WS_CS, WS_ST0, WS_ST1, WS_ST2, XB, P_X, P_WQKV, P_WO, P_W1, P_W2, P_OUT, P_WS,
                 LOG2E, fbits, prologue, srd, epilogue_end, HEADER)
from gen2 import Bases, interleave, a_read_bases, phi4
import gen

WS_FLAG = 0xE18800
WS_XT = 0xE1E800
SC_, SM_ = 96, 97
NA = int(os.environ.get("G_NA", "4")); NB = 9 - NA
ARING, BRING, EX = 0, NA * 16384, 147456
LDS_AB, LDS_MODE, LDS_CS = EX, EX + 1024, EX + 7168
SFL = 92
FORCE = os.environ.get("G_MODE", "")

def a_dma_offsets(k, nins, PA, rowpitch, rowbase_s, t0, t1):
    UA = PA // 16; RA = 64 // UA; sh = {8: 3, 16: 4}[UA]
    out = []
    k(f"s_mul_i32 s58, s59, {nins*RA}")
    k(f"s_add_u32 s58, s58, s{rowbase_s}")
    for i in range(nins):
        r = k.valloc(); out.append(r)
        k(f"v_lshrrev_b32 {v(t0)}, {sh}, {v(k.vL)}")
        if i: k(f"v_add_u32 {v(t0)}, {RA*i}, {v(t0)}")
        if PA == 128: k(f"v_bfe_u32 {v(t1)}, {v(t0)}, 1, 3")
        else: k(f"v_and_b32 {v(t1)}, 15, {v(t0)}")
        k(f"v_and_b32 {v(r)}, {UA-1}, {v(k.vL)}")
        k(f"v_xor_b32 {v(t1)}, {v(t1)}, {v(r)}")
        k(f"v_add_u32 {v(t0)}, s58, {v(t0)}")
        k(f"v_mul_u32_u24 {v(t0)}, {rowpitch}, {v(t0)}")
        k(f"v_lshl_add_u32 {v(r)}, {v(t1)}, 4, {v(t0)}")
    assert (nins * RA) % 16 == 0
    return out

def ln_finish(k, m, q, ab):
    k(f"v_mul_f32 {v(m)}, {fbits(1/512):#x}, {v(m)}")
    k(f"v_mul_f32 {v(q)}, {fbits(1/512):#x}, {v(q)}")
    k(f"v_fma_f32 {v(q)}, -{v(m)}, {v(m)}, {v(q)}")
    k(f"v_max_f32 {v(q)}, 0, {v(q)}")
    gen.bf16_round(k, m, m); gen.bf16_round(k, q, q)
    k(f"v_add_f32 {v(q)}, {fbits(1e-5):#x}, {v(q)}")
    gen.bf16_round(k, q, q)
    k(f"v_sqrt_f32 {v(q)}, {v(q)}")
    gen.bf16_round(k, q, q)
    k(f"v_rcp_f32 {v(ab)}, {v(q)}")
    k(f"v_mul_f32 {v(ab+1)}, {v(m)}, {v(ab)}")
    k(f"v_sub_f32 {v(ab+1)}, 0, {v(ab+1)}")

def tile64(k):
    k(f"s_lshr_b32 s48, s{SM_}, 3")
    k(f"s_lshl_b32 s22, s{SC_}, 1")
    k("s_add_u32 s22, s22, s48")
    k(f"s_and_b32 s23, s{SM_}, 7")
    k("s_lshl_b32 s50, s22, 6")
    k("s_lshl_b32 s54, s23, 7")

def resid_load64(k, SX, t0, t1, xr):
    k(f"v_lshrrev_b32 {v(t0)}, 3, v0")
    k(f"v_and_b32 {v(t1)}, 7, v0")
    k(f"v_add_u32 {v(t0)}, s50, {v(t0)}")
    k(f"v_lshlrev_b32 {v(t0)}, 10, {v(t0)}")
    k(f"v_lshl_add_u32 {v(t0)}, {v(t1)}, 4, {v(t0)}")
    k(f"v_add_u32 {v(t0)}, s54, {v(t0)}")
    k("s_mov_b32 s60, 32768")
    k(f"buffer_load_dwordx4 {v(xr,4)}, {v(t0)}, s[{SX}:{SX+3}], 0 offen")
    k(f"buffer_load_dwordx4 {v(xr+4,4)}, {v(t0)}, s[{SX}:{SX+3}], s60 offen")

def store64_prep(k, xr, do_stats):
    vy = k.valloc(8, 4); va_ = k.valloc(); vo = k.valloc(); sm = k.valloc(4, 4); tt = k.valloc(2, 2)
    t0, t1, t2, t3 = [k.valloc() for _ in range(4)]
    k(f"v_lshrrev_b32 {v(t0)}, 3, v0")
    k(f"v_and_b32 {v(t1)}, 7, v0")
    k(f"v_mul_u32_u24 {v(va_)}, 144, {v(t0)}")
    k(f"v_lshl_add_u32 {v(va_)}, {v(t1)}, 4, {v(va_)}")
    k(f"ds_read_b128 {v(vy,4)}, {v(va_)}")
    k(f"ds_read_b128 {v(vy+4,4)}, {v(va_)} offset:{32*144}")
    k(f"v_add_u32 {v(t0)}, s50, {v(t0)}")
    k(f"v_lshlrev_b32 {v(vo)}, 10, {v(t0)}")
    k(f"v_lshl_add_u32 {v(vo)}, {v(t1)}, 4, {v(vo)}")
    k(f"v_add_u32 {v(vo)}, s54, {v(vo)}")
    if do_stats:
        for i in range(4): k(f"v_mov_b32 {v(sm+i)}, 0")
        k("s_mov_b32 s60, 0x3f803f80")
        k(f"v_lshlrev_b32 {v(va_)}, 6, {v(t0)}")
        k(f"s_lshr_b32 s61, s54, 4")
        k(f"v_add_u32 {v(va_)}, s61, {v(va_)}")
    for i in range(8):
        k(f"v_lshlrev_b32 {v(t0)}, 16, {v(vy+i)}")
        k(f"v_and_b32 {v(t1)}, 0xffff0000, {v(vy+i)}")
        k(f"v_lshlrev_b32 {v(t2)}, 16, {v(xr+i)}")
        k(f"v_and_b32 {v(t3)}, 0xffff0000, {v(xr+i)}")
        k(f"v_add_f32 {v(t0)}, {v(t0)}, {v(t2)}")
        k(f"v_add_f32 {v(t1)}, {v(t1)}, {v(t3)}")
        k(f"v_cvt_pk_bf16_f32 {v(vy+i)}, {v(t0)}, {v(t1)}")
        if do_stats:
            s_ = sm + 2 * (i // 4)
            k(f"v_dot2_f32_bf16 {v(s_)}, {v(vy+i)}, s60, {v(s_)}")
            k(f"v_dot2_f32_bf16 {v(s_+1)}, {v(vy+i)}, {v(vy+i)}, {v(s_+1)}")
    if do_stats:
        for dpp in ("quad_perm:[1,0,3,2]", "quad_perm:[2,3,0,1]", "row_half_mirror"):
            for h in range(2):
                for c in range(2):
                    k(f"v_add_f32_dpp {v(tt+c)}, {v(sm+2*h+c)}, {v(sm+2*h+c)} {dpp} row_mask:0xf bank_mask:0xf")
                for c in range(2):
                    k(f"v_mov_b32 {v(sm+2*h+c)}, {v(tt+c)}")
    return vy, vo, sm, va_

def main_loop(k, nks, kpc, reads, mfmas, last=()):
    k.dstamp()
    k("s_barrier"); k.stamp()
    for r in reads(0): k(r)
    for ks in range(nks):
        if ks == nks - 1: interleave(k, mfmas(ks), list(last))
        else:
            if (ks + 1) % kpc == 0:
                k("s_waitcnt lgkmcnt(0)")
                k.dstamp()
                k("s_barrier")
            interleave(k, mfmas(ks), reads(ks + 1))
    k.stamp()

class Phase:
    D = NA - 1; has_ln = False; pseudo = 0
    def __init__(self, tag): self.tag = tag; self.bslot = {}
    def aslot(self, c): return ARING + (c % NA) * 16384
    def issue_A(self, k, c):
        k(f"s_mov_b32 s56, {c*self.PA}")
        for i in range(8):
            k(f"s_add_u32 m0, s55, {self.aslot(c)+i*1024}")
            k.I(f"buffer_load_dwordx4 {v(self.voA[i])}, s[24:27], s56 offen lds", tag=f"{self.tag}a{c}")
    def issue_B(self, k, c):
        k(f"s_mov_b32 s57, {c*self.BSTEP}")
        for i in range(self.NBI):
            k(f"s_add_u32 m0, s{self.sBW}, {self.bslot[c]+i*1024}")
            k.I(f"buffer_load_dwordx4 {v(self.voB[i])}, s[{self.SWB}:{self.SWB+3}], s57 offen lds", tag=f"{self.tag}b{c}")
    def issue_Bv(self, k, c, vs):
        k(f"s_mov_b32 s57, {c*self.BSTEP}")
        for i in range(self.NBI):
            k.I(f"buffer_load_dwordx4 {v(vs+4*i,4)}, {v(self.voB[i])}, s[{self.SWB}:{self.SWB+3}], s57 offen", tag=f"{self.tag}b{c}")
    def place_Bv(self, k, c, vs, vl16, vtmp):
        k(f"s_add_u32 s58, s{self.sBW}, {self.bslot[c]}")
        k(f"v_add_u32 {v(vtmp)}, s58, {v(vl16)}")
        for i in range(self.NBI):
            k(f"ds_write_b128 {v(vtmp)}, {v(vs+4*i,4)} offset:{i*1024}")
    Qe = 1
    def spare(self, c): return 1 if c >= self.NC - self.D else 0

class P1(Phase):
    Qe = 5
    def spare(self, c): return 1 if (c >= self.NC - self.D or c % 2 == 1) else 0
    NC = 8; PA = 128; NBI = 6; BSTEP = 64 * 3072; has_ln = True; nprod = 16
    LDS_KV, LDS_Z, SP = EX + 2048, EX + 6144, 80
    def __init__(self, tag, xsrc, kv_off, st_off):
        super().__init__(tag); self.xsrc, self.kv_off, self.st_off = xsrc, kv_off, st_off
        self.instat = st_off is None
        self.has_ln = not self.instat
    def tile(self, k):
        k(f"s_mov_b32 s22, s{SC_}"); k(f"s_mov_b32 s23, s{SM_}")
        k("s_lshl_b32 s50, s22, 7"); k("s_lshl_b32 s54, s23, 6")
    def setup_A(self, k, vt, vt2):
        self.voA = a_dma_offsets(k, 8, 128, 1024, 50, vt, vt2)
        k("s_waitcnt lgkmcnt(0)")
        if self.xsrc == "in": srd(k, 24, P_X, 0, XB)
        else: srd(k, 24, P_WS, self.xsrc, XB)
    def setup_B(self, k, vt, vt2, vt3, tmp):
        self.voB = [k.valloc() for _ in range(6)]
        u, row, rem, t_, c_ = tmp
        k("s_mul_i32 s53, s59, 384")
        k(f"s_lshl_b32 s54, s{SM_}, 6")
        for i in range(6):
            k(f"v_add_u32 {v(u)}, s53, {v(k.vL)}")
            if i: k(f"v_add_u32 {v(u)}, {64*i}, {v(u)}")
            k(f"v_mul_u32_u24 {v(row)}, 0xaaab, {v(u)}")
            k(f"v_lshrrev_b32 {v(row)}, 19, {v(row)}")
            k(f"v_mul_u32_u24 {v(rem)}, 12, {v(row)}")
            k(f"v_sub_u32 {v(rem)}, {v(u)}, {v(rem)}")
            k(f"v_lshrrev_b32 {v(t_)}, 1, {v(rem)}")
            k(f"v_bfe_u32 {v(c_)}, {v(row)}, 3, 1")
            k(f"v_sub_u32 {v(t_)}, {v(t_)}, {v(c_)}")
            k(f"v_add_u32 {v(c_)}, 6, {v(t_)}")
            k(f"v_min_u32 {v(t_)}, {v(t_)}, {v(c_)}")
            k(f"v_lshrrev_b32 {v(c_)}, 1, {v(t_)}")
            k(f"v_lshlrev_b32 {v(c_)}, 10, {v(c_)}")
            k(f"v_and_b32 {v(t_)}, 1, {v(t_)}")
            k(f"v_lshl_add_u32 {v(c_)}, {v(t_)}, 5, {v(c_)}")
            k(f"v_and_b32 {v(rem)}, 1, {v(rem)}")
            k(f"v_lshl_add_u32 {v(c_)}, {v(rem)}, 4, {v(c_)}")
            k(f"v_mul_u32_u24 {v(row)}, 3072, {v(row)}")
            k(f"v_add3_u32 {v(self.voB[i])}, {v(row)}, {v(c_)}, s54")
        k(f"s_mul_i32 s{self.sBW}, s59, 6144")
        k("s_waitcnt lgkmcnt(0)")
        srd(k, self.SWB, P_WQKV, 0, 512 * 1536 * 2)
    def compute(self, k, vt, vt2, vt3):
        SP = self.SP; SCS = 40
        k("s_lshr_b32 s52, s3, 1")
        k("s_lshl_b32 s52, s52, 6")
        k("s_and_b32 s53, s3, 1")
        cs3 = k.valloc(12, 4)
        csq = cs3
        vcq = k.valloc(); vck = k.valloc()
        k("s_lshl_b32 s56, s23, 7")
        k("s_lshl_b32 s57, s53, 6")
        k("s_add_u32 s56, s56, s57")
        k(f"v_lshlrev_b32 {v(vcq)}, 4, {v(k.vG)}")
        k(f"v_add_u32 {v(vcq)}, s56, {v(vcq)}")
        k(f"v_lshlrev_b32 {v(vck)}, 2, {v(k.vR16)}")
        k(f"v_add_u32 {v(vck)}, s56, {v(vck)}")
        k(f"v_add_u32 {v(vck)}, 2048, {v(vck)}")
        if self.instat:
            for i in range(12): k(f"v_mov_b32 {v(cs3+i)}, 0")
        else:
            k("s_waitcnt lgkmcnt(0)")
            srd(k, SCS, P_WS, WS_CS, 1536 * 4)
            k(f"buffer_load_dwordx4 {v(cs3,4)}, {v(vcq)}, s[{SCS}:{SCS+3}], 0 offen")
            for kv in range(2):
                k(f"buffer_load_dword {v(cs3+4+4*kv)}, {v(vck)}, s[{SCS}:{SCS+3}], 0 offen offset:{2048*kv}")
        ones = k.valloc(4)
        for i in range(4): k(f"v_mov_b32 {v(ones+i)}, 0x3f803f80")
        k("s_lshl_b32 s57, s53, 5")
        k("s_add_u32 s66, s52, s57")
        k("s_xor_b32 s57, s57, 32")
        k("s_add_u32 s67, s52, s57")
        B = Bases(k)
        a_read_bases(k, B, 128, 66, 2, vt, vt2)
        B2 = Bases(k)
        a_read_bases(k, B2, 128, 67, 2, vt, vt2)
        k(f"v_bfe_u32 {v(vt)}, {v(k.vL)}, 2, 2")
        k(f"v_lshl_add_u32 {v(vt)}, {v(k.vG)}, 3, {v(vt)}")
        k(f"v_mul_u32_u24 {v(vt)}, 192, {v(vt)}")
        k(f"v_and_b32 {v(vt2)}, 3, {v(k.vL)}")
        k(f"v_lshl_add_u32 {v(vt)}, {v(vt2)}, 3, {v(vt)}")
        k(f"v_and_b32 {v(vt2)}, 1, {v(k.vG)}")
        k(f"v_add_u32 {v(vt2)}, s53, {v(vt2)}")
        for j in range(3):
            r = k.valloc()
            k(f"v_add_u32 {v(vt3)}, {2*j}, {v(vt2)}")
            if j == 2:
                k(f"v_subrev_u32 {v(r)}, 6, {v(vt3)}")
                k(f"v_min_u32 {v(vt3)}, {v(vt3)}, {v(r)}")
            k(f"v_lshl_add_u32 {v(r)}, {v(vt3)}, 5, {v(vt)}")
            B.add(("W", j), r, 3)
        acc = k.valloc(48, 4)
        for i in range(48): k(f"v_mov_b32 {v(acc+i)}, 0")
        Ab = [k.valloc(16, 4), k.valloc(16, 4)]; Wb = [k.valloc(12, 4), k.valloc(12, 4)]
        ab = [k.valloc(2, 2) for _ in range(4)]
        abn = [k.valloc(8, 4) for _ in range(4)]
        vab = [k.valloc(), k.valloc()]; vabn = [k.valloc(), k.valloc()]
        for h in range(2):
            k(f"v_add_u32 {v(vab[h])}, s{66+h}, {v(k.vR16)}")
            k(f"v_lshlrev_b32 {v(vab[h])}, 3, {v(vab[h])}")
            k(f"v_add_u32 {v(vab[h])}, {LDS_AB}, {v(vab[h])}")
            k(f"v_lshlrev_b32 {v(vabn[h])}, 2, {v(k.vG)}")
            k(f"v_add_u32 {v(vabn[h])}, s{66+h}, {v(vabn[h])}")
            k(f"v_lshlrev_b32 {v(vabn[h])}, 3, {v(vabn[h])}")
            k(f"v_add_u32 {v(vabn[h])}, {LDS_AB}, {v(vabn[h])}")
        if self.instat:
            sta = k.valloc(16, 4)
            for i in range(16): k(f"v_mov_b32 {v(sta+i)}, 0")
        def reads(ks):
            c = ks // 2; kk = ks & 1; A_ = Ab[ks & 1]; W_ = Wb[ks & 1]
            ra = [f"ds_read_b128 {v(A_+4*rt,4)}, {(B if rt < 2 else B2).at(('A',kk), self.aslot(c) + (rt&1)*2048)}" for rt in range(4)]
            rw = [f"ds_read_b64_tr_b16 {v(W_+4*j+2*hh,2)}, {B.at(('W',j), self.bslot[c] + kk*6144 + hh*768)}" for j in range(3) for hh in range(2)]
            return [ra[0]] + rw + ra[1:]
        def mfmas(ks):
            A_ = Ab[ks & 1]; W_ = Wb[ks & 1]; out = []
            for rt in range(4):
                for j in range(3):
                    ac = acc + (rt * 3 + j) * 4
                    if j == 0: out.append(f"v_mfma_f32_16x16x32_bf16 {v(ac,4)}, {v(W_,4)}, {v(A_+4*rt,4)}, {v(ac,4)}")
                    else: out.append(f"v_mfma_f32_16x16x32_bf16 {v(ac,4)}, {v(A_+4*rt,4)}, {v(W_+4*j,4)}, {v(ac,4)}")
            if self.instat:
                out.append(f"v_mfma_f32_16x16x32_bf16 {v(cs3,4)}, {v(W_,4)}, {v(ones,4)}, {v(cs3,4)}")
                for j in (1, 2): out.append(f"v_mfma_f32_16x16x32_bf16 {v(cs3+4*j,4)}, {v(ones,4)}, {v(W_+4*j,4)}, {v(cs3+4*j,4)}")
                for rt in range(2):
                    out.append(f"v_mfma_f32_16x16x32_bf16 {v(sta+8*rt,4)}, {v(ones,4)}, {v(A_+4*rt,4)}, {v(sta+8*rt,4)}")
                    out.append(f"v_mfma_f32_16x16x32_bf16 {v(sta+8*rt+4,4)}, {v(A_+4*rt,4)}, {v(A_+4*rt,4)}, {v(sta+8*rt+4,4)}")
            return out
        o = []
        for rt in range(4):
            o.append(f"ds_read_b128 {v(abn[rt],4)}, {v(vabn[rt>>1])} offset:{(rt&1)*128}")
            o.append(f"ds_read_b128 {v(abn[rt]+4,4)}, {v(vabn[rt>>1])} offset:{(rt&1)*128+16}")
            o.append(f"ds_read_b64 {v(ab[rt],2)}, {v(vab[rt>>1])} offset:{(rt&1)*128}")
        main_loop(k, 16, 2, reads, mfmas, [] if self.instat else o)
        if self.instat:
            k(f"v_and_b32 {v(vt)}, 3, {v(k.vL)}")
            k(f"v_lshrrev_b32 {v(vt2)}, 2, {v(k.vR16)}")
            k(f"v_cmp_eq_u32 s[60:61], {v(vt2)}, {v(k.vG)}")
            for rt in range(2):
                g_ = sta + 8 * rt + 4; q = sta + 8 * rt + 1; m = sta + 8 * rt
                for j in range(1, 4):
                    k(f"v_cmp_eq_u32 vcc, {j}, {v(vt)}")
                    k(f"v_cndmask_b32 {v(g_)}, {v(g_)}, {v(g_+j)}, vcc")
                k(f"v_cndmask_b32 {v(q)}, 0, {v(g_)}, s[60:61]")
                gen.xlane_sum_g(k, q, vt3)
                ln_finish(k, m, q, ab[rt])
                k(f"ds_write_b64 {v(vab[0])}, {v(ab[rt],2)} offset:{rt*128}")
            k("s_waitcnt lgkmcnt(0)")
        k("s_barrier")
        if self.instat:
            for x in o: k(x)
            srd(k, SCS, P_WS, WS_CS, 1536 * 4)
            k(f"s_or_b32 s57, s{SC_}, s52")
            k("s_cmp_eq_u32 s57, 0")
            k(f"s_cselect_b32 s{SCS+2}, s{SCS+2}, 0")
            k(f"buffer_store_dwordx4 {v(cs3,4)}, {v(vcq)}, s[{SCS}:{SCS+3}], 0 offen")
            for kv in range(2):
                k(f"buffer_store_dword {v(cs3+4+4*kv)}, {v(vck)}, s[{SCS}:{SCS+3}], 0 offen offset:{2048*kv}")
        k(f"s_mov_b32 s62, {LOG2E:#x}"); k(f"s_mov_b32 s63, {LOG2E:#x}")
        k(f"s_mov_b32 s64, {fbits(1e-6):#x}"); k(f"s_mov_b32 s65, {fbits(1e-6):#x}")
        T = k.valloc(4)
        fk = k.valloc(8, 4); fv = k.valloc(8, 4)
        for rt in range(4):
            for j in (1, 2):
                ac = acc + (rt * 3 + j) * 4; f = (fk, fv)[j - 1] + 2 * rt
                for jj in range(4): k(f"v_mul_f32 {v(T+jj)}, {v(abn[rt]+2*jj+1)}, {v(cs3+4*j)}")
                for jj in range(4): k(f"v_fma_f32 {v(ac+jj)}, {v(abn[rt]+2*jj)}, {v(ac+jj)}, {v(T+jj)}")
                if j == 1: phi4(k, ac, T)
                k(f"v_cvt_pk_bf16_f32 {v(f)}, {v(ac)}, {v(ac+1)}")
                k(f"v_cvt_pk_bf16_f32 {v(f+1)}, {v(ac+2)}, {v(ac+3)}")
        kvp = k.valloc(4); zp = k.valloc(4)
        k(f"v_mfma_f32_16x16x32_bf16 {v(kvp,4)}, {v(fk,4)}, {v(fv,4)}, 0")
        k(f"v_mfma_f32_16x16x32_bf16 {v(zp,4)}, {v(fk,4)}, {v(ones,4)}, 0")
        k(f"v_mfma_f32_16x16x32_bf16 {v(kvp,4)}, {v(fk+4,4)}, {v(fv+4,4)}, {v(kvp,4)}")
        k(f"v_mfma_f32_16x16x32_bf16 {v(zp,4)}, {v(fk+4,4)}, {v(ones,4)}, {v(zp,4)}")
        vs = [k.valloc(), k.valloc()]
        k("s_lshl_b32 s57, s53, 5")
        for h in range(2):
            k(f"v_add_u32 {v(vs[h])}, s{66+h}, {v(k.vR16)}")
            k(f"v_mul_u32_u24 {v(vs[h])}, {SP}, {v(vs[h])}")
            k(f"v_lshl_add_u32 {v(vs[h])}, {v(k.vG)}, 3, {v(vs[h])}")
            k(f"v_add_u32 {v(vs[h])}, s57, {v(vs[h])}")
        for rt in range(4):
            ac = acc + rt * 12
            for p in range(2):
                k(f"v_pk_mul_f32 {v(T+2*p,2)}, {v(csq+2*p,2)}, {v(ab[rt],2)} op_sel:[0,1] op_sel_hi:[1,1]")
            for p in range(2):
                k(f"v_pk_fma_f32 {v(ac+2*p,2)}, {v(ac+2*p,2)}, {v(ab[rt],2)}, {v(T+2*p,2)} op_sel:[0,0,0] op_sel_hi:[1,0,1]")
            phi4(k, ac, T)
            k(f"v_cvt_pk_bf16_f32 {v(ac)}, {v(ac)}, {v(ac+1)}")
            k(f"v_cvt_pk_bf16_f32 {v(ac+1)}, {v(ac+2)}, {v(ac+3)}")
            k(f"ds_write_b64 {v(vs[rt>>1])}, {v(ac,2)} offset:{(rt&1)*16*SP}")
        k("s_lshl_b32 s57, s3, 10")
        k(f"s_add_u32 s57, s57, {self.LDS_KV}")
        k(f"v_lshlrev_b32 {v(vt)}, 4, {v(k.vL)}")
        k(f"v_add_u32 {v(vt)}, s57, {v(vt)}")
        k("s_lshl_b32 s58, s3, 6")
        k(f"s_add_u32 s58, s58, {self.LDS_Z}")
        k(f"v_lshlrev_b32 {v(vt2)}, 4, {v(k.vG)}")
        k(f"v_add_u32 {v(vt2)}, s58, {v(vt2)}")
        k(f"ds_write_b128 {v(vt)}, {v(kvp,4)}")
        k(f"ds_write_b128 {v(vt2)}, {v(zp,4)}")
        k("s_waitcnt lgkmcnt(0)")
    def store(self, k, vt, vt2, vt3, emit_stores):
        SPQ, SKV, SP = 32, 36, self.SP
        srd(k, SPQ, P_WS, WS_PQ, XB)
        srd(k, SKV, P_WS, self.kv_off, 34816)
        k("s_barrier")
        vy = k.valloc(8, 4); va_ = k.valloc(); vo = k.valloc(); rd = k.valloc(8, 4)
        k(f"v_lshrrev_b32 {v(vt)}, 2, v0")
        k(f"v_and_b32 {v(vt2)}, 3, v0")
        k(f"v_mul_u32_u24 {v(va_)}, {SP}, {v(vt)}")
        k(f"v_lshl_add_u32 {v(va_)}, {v(vt2)}, 4, {v(va_)}")
        k(f"ds_read_b128 {v(vy,4)}, {v(va_)}")
        k(f"ds_read_b128 {v(vy+4,4)}, {v(va_)} offset:{64*SP}")
        k(f"v_add_u32 {v(vt)}, s50, {v(vt)}")
        k(f"v_lshlrev_b32 {v(vo)}, 10, {v(vt)}")
        k(f"v_lshl_add_u32 {v(vo)}, {v(vt2)}, 4, {v(vo)}")
        k(f"v_add_u32 {v(vo)}, s54, {v(vo)}")
        k(f"v_bfe_u32 {v(vt)}, v0, 3, 4")
        k(f"v_lshlrev_b32 {v(vt)}, 4, {v(vt)}")
        k(f"v_bfe_u32 {v(vt2)}, v0, 7, 1")
        k(f"v_lshl_add_u32 {v(vt)}, {v(vt2)}, 9, {v(vt)}")
        k(f"v_bfe_u32 {v(vt2)}, v0, 2, 1")
        k(f"v_lshl_add_u32 {v(vt)}, {v(vt2)}, 8, {v(vt)}")
        k(f"v_and_b32 {v(vt2)}, 3, v0")
        k(f"v_lshl_add_u32 {v(vt)}, {v(vt2)}, 2, {v(vt)}")
        k(f"v_add_u32 {v(vt)}, {self.LDS_KV}, {v(vt)}")
        for h in range(2):
            k(f"ds_read_b32 {v(rd+2*h)}, {v(vt)} offset:{h*1024}")
            k(f"ds_read_b32 {v(rd+2*h+1)}, {v(vt)} offset:{h*1024+2048}")
        k(f"v_and_b32 {v(vt3)}, 31, v0")
        k(f"v_lshlrev_b32 {v(vt3)}, 2, {v(vt3)}")
        k(f"v_add_u32 {v(vt2)}, {self.LDS_Z}, {v(vt3)}")
        k(f"ds_read_b32 {v(rd+4)}, {v(vt2)}")
        k(f"ds_read_b32 {v(rd+5)}, {v(vt2)} offset:128")
        k("s_mov_b32 s60, 65536")
        emit_stores([f"buffer_store_dwordx4 {v(vy,4)}, {v(vo)}, s[{SPQ}:{SPQ+3}], 0 offen",
                     f"buffer_store_dwordx4 {v(vy+4,4)}, {v(vo)}, s[{SPQ}:{SPQ+3}], s60 offen"])
        k("s_lshl_b32 s57, s23, 11")
        k(f"v_lshlrev_b32 {v(vt2)}, 2, v0")
        k(f"v_add_u32 {v(vt2)}, s57, {v(vt2)}")
        for h in range(2):
            k(f"v_add_f32 {v(rd+2*h)}, {v(rd+2*h)}, {v(rd+2*h+1)}")
            k(f"buffer_atomic_add_f32 {v(rd+2*h)}, {v(vt2)}, s[{SKV}:{SKV+3}], 0 offen offset:{h*1024}")
        k("s_lshl_b32 s57, s23, 7")
        k(f"s_add_u32 s57, s57, 32768")
        k(f"v_add_u32 {v(vt3)}, s57, {v(vt3)}")
        k(f"v_mov_b32 {v(vt2)}, 0x7ffffff0")
        k(f"v_cmp_gt_u32 vcc, 32, v0")
        k(f"v_cndmask_b32 {v(vt3)}, {v(vt2)}, {v(vt3)}, vcc")
        k(f"v_add_f32 {v(rd+4)}, {v(rd+4)}, {v(rd+5)}")
        k(f"buffer_atomic_add_f32 {v(rd+4)}, {v(vt3)}, s[{SKV}:{SKV+3}], 0 offen")

class P2(Phase):
    NC = 4; PA = 256; NBI = 8; BSTEP = 131072; nprod = 16; pseudo = 1
    LDS_Z, LDS_0 = EX + 2048, EX + 3072
    def __init__(self, tag, xsrc, kv_off, xdst, st_off): super().__init__(tag); self.xsrc, self.kv_off, self.xdst, self.st_off = xsrc, kv_off, xdst, st_off
    def tile(self, k): tile64(k)
    def setup_A(self, k, vt, vt2):
        self.voA = a_dma_offsets(k, 8, 256, 1024, 50, vt, vt2)
        k("s_waitcnt lgkmcnt(0)")
        srd(k, 24, P_WS, WS_PQ, XB)
    def setup_B(self, k, vt, vt2, vt3, tmp):
        self.voB = [k.valloc() for _ in range(8)]
        k(f"v_lshrrev_b32 {v(vt)}, 3, {v(k.vL)}")
        k(f"v_bfe_u32 {v(vt2)}, {v(k.vL)}, 4, 2")
        k(f"v_lshlrev_b32 {v(vt2)}, 1, {v(vt2)}")
        k(f"v_and_b32 {v(vt3)}, 7, {v(k.vL)}")
        k(f"v_xor_b32 {v(vt2)}, {v(vt2)}, {v(vt3)}")
        k(f"v_lshlrev_b32 {v(vt2)}, 4, {v(vt2)}")
        k(f"v_lshl_add_u32 {v(vt)}, {v(vt)}, 10, {v(vt2)}")
        k("s_lshl_b32 s52, s59, 16")
        k(f"s_and_b32 s54, s{SM_}, 7"); k("s_lshl_b32 s54, s54, 7")
        k("s_add_u32 s52, s52, s54")
        k(f"v_add_u32 {v(self.voB[0])}, s52, {v(vt)}")
        for i in range(1, 8): k(f"v_add_u32 {v(self.voB[i])}, {8192*i}, {v(self.voB[0])}")
        k(f"s_lshl_b32 s{self.sBW}, s59, 13")
        k("s_waitcnt lgkmcnt(0)")
        srd(k, self.SWB, P_WO, 0, 512 * 512 * 2)
    def compute(self, k, vt, vt2, vt3):
        SKV, SX = 36, 24
        LDS_F, LDS_Z, LDS_0 = self.bslot[self.NC], self.LDS_Z, self.LDS_0
        self.xr = k.valloc(8, 4)
        kvf = k.valloc(32, 4); zf = k.valloc(2, 2)
        k("s_lshl_b32 s52, s3, 13")
        k(f"v_lshlrev_b32 {v(vt)}, 5, {v(k.vL)}")
        k(f"v_add_u32 {v(vt)}, s52, {v(vt)}")
        k(f"v_add_u32 {v(vt2)}, 4096, {v(vt)}")
        k("s_waitcnt lgkmcnt(0)")
        srd(k, SKV, P_WS, self.kv_off, 34816)
        for p in range(4):
            for hlf in range(2):
                k(f"buffer_load_dwordx4 {v(kvf+8*p+4*hlf,4)}, {v(vt if p < 2 else vt2)}, s[{SKV}:{SKV+3}], 0 offen offset:{(p&1)*2048+hlf*16}")
        k(f"v_lshlrev_b32 {v(vt3)}, 3, v0")
        k(f"v_add_u32 {v(vt3)}, 32768, {v(vt3)}")
        k(f"buffer_load_dwordx2 {v(zf,2)}, {v(vt3)}, s[{SKV}:{SKV+3}], 0 offen")
        if self.xsrc == "in": srd(k, SX, P_X, 0, XB)
        else: srd(k, SX, P_WS, self.xsrc, XB)
        resid_load64(k, SX, vt, vt2, self.xr)
        k("s_lshl_b32 s52, s3, 4")
        B = Bases(k)
        a_read_bases(k, B, 256, 52, 2, vt, vt2)
        aA0, aA1, aAz, sA0, sA1, sAz = [k.valloc() for _ in range(6)]
        k(f"v_lshlrev_b32 {v(vt)}, 4, {v(k.vL)}")
        k(f"v_add_u32 {v(vt)}, {LDS_F}, {v(vt)}")
        k(f"v_mov_b32 {v(vt2)}, {LDS_0}")
        k(f"v_cmp_gt_u32 vcc, 2, {v(k.vG)}")
        k(f"v_cndmask_b32 {v(aA0)}, {v(vt2)}, {v(vt)}, vcc")
        k(f"v_cndmask_b32 {v(aA1)}, {v(vt)}, {v(vt2)}, vcc")
        k(f"v_mov_b32 {v(vt3)}, 1024")
        k(f"v_cndmask_b32 {v(sA0)}, 0, {v(vt3)}, vcc")
        k(f"v_cndmask_b32 {v(sA1)}, {v(vt3)}, 0, vcc")
        k(f"v_and_b32 {v(vt)}, 3, {v(k.vL)}")
        k(f"v_lshrrev_b32 {v(vt3)}, 1, {v(k.vG)}")
        k(f"v_cmp_eq_u32 vcc, {v(vt)}, {v(vt3)}")
        k(f"v_lshlrev_b32 {v(vt)}, 4, {v(k.vG)}")
        k(f"v_add_u32 {v(vt)}, {LDS_Z}, {v(vt)}")
        k(f"v_cndmask_b32 {v(aAz)}, {v(vt2)}, {v(vt)}, vcc")
        k(f"v_cndmask_b32 {v(sAz)}, 0, 64, vcc")
        k(f"v_bfe_u32 {v(vt)}, {v(k.vL)}, 2, 2")
        k(f"v_lshl_add_u32 {v(vt)}, {v(k.vG)}, 2, {v(vt)}")
        k(f"v_bfe_u32 {v(vt2)}, {v(vt)}, 1, 2")
        k(f"v_lshlrev_b32 {v(vt)}, 7, {v(vt)}")
        k(f"v_and_b32 {v(vt3)}, 3, {v(k.vL)}")
        k(f"v_lshl_add_u32 {v(vt)}, {v(vt3)}, 3, {v(vt)}")
        for t in range(4):
            r = k.valloc()
            k(f"v_xor_b32 {v(vt3)}, {t}, {v(vt2)}")
            k(f"v_lshl_add_u32 {v(r)}, {v(vt3)}, 5, {v(vt)}")
            B.add(("W", t), r, 3)
        acc = k.valloc(16, 4)
        for i in range(16): k(f"v_mov_b32 {v(acc+i)}, 0")
        k("s_lshl_b32 s57, s3, 12")
        k(f"s_add_u32 s57, s57, {LDS_F}")
        k(f"v_lshlrev_b32 {v(vt)}, 4, {v(k.vL)}")
        k(f"v_add_u32 {v(vt)}, s57, {v(vt)}")
        for p in range(4):
            for i in range(4):
                k(f"v_cvt_pk_bf16_f32 {v(kvf+8*p+i)}, {v(kvf+8*p+2*i)}, {v(kvf+8*p+2*i+1)}")
            k(f"ds_write_b128 {v(vt)}, {v(kvf+8*p,4)} offset:{p*1024}")
        k(f"v_cvt_pk_bf16_f32 {v(zf)}, {v(zf)}, {v(zf+1)}")
        k(f"v_lshlrev_b32 {v(vt2)}, 2, v0")
        k(f"v_add_u32 {v(vt2)}, {LDS_Z}, {v(vt2)}")
        k(f"ds_write_b32 {v(vt2)}, {v(zf)}")
        k(f"v_mov_b32 {v(zf)}, 0")
        k(f"v_and_b32 {v(vt2)}, 3, v0")
        k(f"v_lshlrev_b32 {v(vt2)}, 2, {v(vt2)}")
        k(f"v_add_u32 {v(vt2)}, {LDS_0}, {v(vt2)}")
        k(f"ds_write_b32 {v(vt2)}, {v(zf)}")
        Wb = [kvf, k.valloc(32, 4)]
        Fb = k.valloc(24, 4); Pb = k.valloc(8, 4)
        N = [k.valloc(24, 4), k.valloc(24, 4)]
        O = [k.valloc(8, 4), k.valloc(8, 4)]; rr = k.valloc(4, 4)
        k(f"s_mov_b32 s62, {fbits(1e-6):#x}"); k(f"s_mov_b32 s63, {fbits(1e-6):#x}")
        def freads(hc):
            o = []
            for q in range(2):
                o += [f"ds_read_b128 {v(Pb+4*q,4)}, {B.at(('A',(hc&1)*2+q), self.aslot(hc//2))}",
                      f"ds_read_b128 {v(Fb+12*q,4)}, {v(aA0)}", f"ds_read_b128 {v(Fb+12*q+4,4)}, {v(aA1)}", f"ds_read_b128 {v(Fb+12*q+8,4)}, {v(aAz)}",
                      f"v_add_u32 {v(aA0)}, {v(aA0)}, {v(sA0)}", f"v_add_u32 {v(aA1)}, {v(aA1)}, {v(sA1)}", f"v_add_u32 {v(aAz)}, {v(aAz)}, {v(sAz)}"]
            return o
        def wreads(hc):
            b = Wb[hc & 1]
            return [f"ds_read_b64_tr_b16 {v(b+16*q+4*t+2*hh,2)}, {B.at(('W',t), self.bslot[hc//2] + ((hc&1)*2+q)*4096 + hh*2048)}" for q in range(2) for t in range(4) for hh in range(2)]
        def amfma(c):
            n = N[c & 1]
            return [f"v_mfma_f32_16x16x32_bf16 {v(n+12*q+4*i,4)}, {v(Fb+12*q+4*i,4)}, {v(Pb+4*q,4)}, 0" for q in range(2) for i in range(3)]
        def cmfma(c):
            b = Wb[c & 1]; o = O[c & 1]
            return [f"v_mfma_f32_16x16x32_bf16 {v(acc+4*t,4)}, {v(b+16*q+4*t,4)}, {v(o+4*q,4)}, {v(acc+4*t,4)}" for q in range(2) for t in range(4)]
        def ovalu(c):
            n0 = N[c & 1]; Oo = O[c & 1]; o = []
            for q in range(2):
                for i in range(2): o.append(f"v_add_f32 {v(rr+2*q+i)}, s62, {v(n0+12*q+8+i)}")
            for i in range(4): o.append(f"v_rcp_f32 {v(rr+i)}, {v(rr+i)}")
            for q in range(2):
                n = n0 + 12 * q
                for x in range(8): o.append(f"v_mul_f32 {v(n+x)}, {v(n+x)}, {v(rr+2*q+x//4)}")
            for q in range(2):
                n = n0 + 12 * q
                for h in range(2):
                    o.append(f"v_cvt_pk_bf16_f32 {v(Oo+4*q+2*h)}, {v(n+4*h)}, {v(n+4*h+1)}")
                    o.append(f"v_cvt_pk_bf16_f32 {v(Oo+4*q+2*h+1)}, {v(n+4*h+2)}, {v(n+4*h+3)}")
            return o
        k("s_waitcnt lgkmcnt(0)")
        k("s_barrier"); k.stamp()
        for r in freads(0) + wreads(0): k(r)
        for r in amfma(0): k(r)
        for c in range(9):
            if c + 1 < 8:
                if (c + 1) % 2 == 0:
                    k("s_waitcnt lgkmcnt(0)")
                    k("s_barrier")
                for r in freads(c + 1): k(r)
            mf = (cmfma(c - 1) if c >= 1 else []) + (amfma(c + 1) if c + 1 < 8 else [])
            va = (ovalu(c) if c < 8 else [])
            wr = wreads(c + 1) if c + 1 < 8 else []
            nc_ = 8 if c >= 1 else 0
            i_ = j_ = w_ = 0
            while i_ < len(mf) or j_ < len(va) or w_ < len(wr):
                if i_ < len(mf): k(mf[i_]); i_ += 1
                for _ in range(2):
                    if j_ < len(va): k(va[j_]); j_ += 1
                if i_ >= nc_:
                    for _ in range(3):
                        if w_ < len(wr): k(wr[w_]); w_ += 1
        k.stamp()
        k("s_barrier")
        vs = k.valloc()
        k(f"v_add_u32 {v(vs)}, s52, {v(k.vR16)}")
        k(f"v_mul_u32_u24 {v(vs)}, 144, {v(vs)}")
        k(f"v_lshl_add_u32 {v(vs)}, {v(k.vG)}, 3, {v(vs)}")
        for t in range(4):
            ac = acc + 4 * t
            k(f"v_cvt_pk_bf16_f32 {v(ac)}, {v(ac)}, {v(ac+1)}")
            k(f"v_cvt_pk_bf16_f32 {v(ac+1)}, {v(ac+2)}, {v(ac+3)}")
            k(f"ds_write_b64 {v(vs)}, {v(ac,2)} offset:{t*32}")
        k("s_waitcnt lgkmcnt(0)")
    def store(self, k, vt, vt2, vt3, emit_stores):
        store64(self, k, emit_stores)

def store64(p, k, emit_stores):
    SD, SST = 40, 44
    if p.xdst == "out": srd(k, SD, P_OUT, 0, XB)
    else: srd(k, SD, P_WS, p.xdst, XB)
    if p.st_off is not None: srd(k, SST, P_WS, p.st_off, 2048 * 64)
    k("s_barrier")
    vy, vo, sm, va_ = store64_prep(k, p.xr, p.st_off is not None)
    k("s_mov_b32 s60, 32768")
    st = [f"buffer_store_dwordx4 {v(vy,4)}, {v(vo)}, s[{SD}:{SD+3}], 0 offen", f"buffer_store_dwordx4 {v(vy+4,4)}, {v(vo)}, s[{SD}:{SD+3}], s60 offen"]
    if p.st_off is not None:
        st += [f"buffer_store_dwordx2 {v(sm,2)}, {v(va_)}, s[{SST}:{SST+3}], 0 offen", f"buffer_store_dwordx2 {v(sm+2,2)}, {v(va_)}, s[{SST}:{SST+3}], 0 offen offset:2048"]
    emit_stores(st)

class P3(Phase):
    Qe = 6
    def spare(self, c): return 1 if (c >= self.NC - self.D or c % 2 == 1) else 0
    NC = 8; PA = 128; NBI = 8; BSTEP = 64 * 3584; has_ln = True; nprod = 16
    SP = 240
    def __init__(self, tag, xsrc, st_off, hoff): super().__init__(tag); self.xsrc, self.st_off, self.hoff = xsrc, st_off, hoff
    def tile(self, k):
        k(f"s_mov_b32 s22, s{SC_}"); k(f"s_mov_b32 s23, s{SM_}")
        k("s_lshl_b32 s50, s22, 7"); k("s_mul_i32 s54, s23, 224")
    def setup_A(self, k, vt, vt2):
        self.voA = a_dma_offsets(k, 8, 128, 1024, 50, vt, vt2)
        k("s_waitcnt lgkmcnt(0)")
        srd(k, 24, P_WS, self.xsrc, XB)
    def setup_B(self, k, vt, vt2, vt3, tmp):
        self.voB = [k.valloc() for _ in range(8)]
        k("s_lshl_b32 s52, s59, 5")
        k(f"s_mul_i32 s54, s{SM_}, 224")
        for i in range(8):
            k(f"v_lshlrev_b32 {v(vt)}, 1, {v(k.vG)}")
            if (i >> 1) & 1: k(f"v_or_b32 {v(vt)}, 8, {v(vt)}")
            k(f"v_xor_b32 {v(vt)}, {v(vt)}, {v(k.vR16)}")
            if i in (0, 2): k(f"v_cmp_gt_u32 s[{62+i}:{63+i}], 14, {v(vt)}")
            k(f"v_lshlrev_b32 {v(vt)}, 4, {v(vt)}")
            k(f"v_add3_u32 {v(vt2)}, {v(k.vG)}, s52, {4*i}")
            k(f"v_mul_u32_u24 {v(vt2)}, 3584, {v(vt2)}")
            k(f"v_add3_u32 {v(self.voB[i])}, {v(vt2)}, {v(vt)}, s54")
        k(f"s_lshl_b32 s{self.sBW}, s59, 13")
        k("s_waitcnt lgkmcnt(0)")
        srd(k, self.SWB, P_W1, 0, 512 * 1792 * 2)
    def issue_B(self, k, c):
        k(f"s_mov_b32 s57, {c*self.BSTEP}")
        for i in range(self.NBI):
            if i % 2 == 0: k(f"s_mov_b64 exec, s[{62+(i&2)}:{63+(i&2)}]")
            k(f"s_add_u32 m0, s{self.sBW}, {self.bslot[c]+i*1024}")
            k.I(f"buffer_load_dwordx4 {v(self.voB[i])}, s[{self.SWB}:{self.SWB+3}], s57 offen lds", tag=f"{self.tag}b{c}")
        k("s_mov_b64 exec, -1")
    def compute(self, k, vt, vt2, vt3):
        SP = self.SP
        k("s_lshl_b32 s52, s3, 5")
        cs = k.valloc(28, 4); vcs = k.valloc()
        k(f"v_lshlrev_b32 {v(vcs)}, 4, {v(k.vG)}")
        k(f"v_add_u32 {v(vcs)}, {LDS_CS}, {v(vcs)}")
        B = Bases(k)
        a_read_bases(k, B, 128, 52, 1, vt, vt2)
        k(f"v_bfe_u32 {v(vt)}, {v(k.vL)}, 2, 2")
        k(f"v_and_b32 {v(vt2)}, 1, {v(k.vG)}")
        k(f"v_lshl_add_u32 {v(vt2)}, {v(vt2)}, 2, {v(vt)}")
        k(f"v_lshl_add_u32 {v(vt)}, {v(k.vG)}, 3, {v(vt)}")
        k(f"v_lshlrev_b32 {v(vt)}, 8, {v(vt)}")
        k(f"v_and_b32 {v(vt3)}, 3, {v(k.vL)}")
        k(f"v_lshl_add_u32 {v(vt)}, {v(vt3)}, 3, {v(vt)}")
        k(f"v_add_u32 {v(vt)}, 65536, {v(vt)}")
        W0 = {}
        for t in range(7):
            r = k.valloc(); r2 = k.valloc()
            k(f"v_xor_b32 {v(vt3)}, {t}, {v(vt2)}")
            k(f"v_lshl_add_u32 {v(r)}, {v(vt3)}, 5, {v(vt)}")
            k(f"v_add_u32 {v(r2)}, 65536, {v(r)}")
            W0[t] = (r, r2)
        assert BRING == 65536
        def wat(t, off): return f"{v(W0[t][(off >> 16) - 1])} offset:{off & 65535}"
        acc = k.valloc(56, 4)
        for i in range(56): k(f"v_mov_b32 {v(acc+i)}, 0")
        Ab = [k.valloc(8, 4), k.valloc(8, 4)]; Wb = [k.valloc(28, 4), k.valloc(28, 4)]
        ab = [k.valloc(2, 2) for _ in range(2)]
        vab = k.valloc()
        k(f"v_add_u32 {v(vab)}, s52, {v(k.vR16)}")
        k(f"v_lshlrev_b32 {v(vab)}, 3, {v(vab)}")
        k(f"v_add_u32 {v(vab)}, {LDS_AB}, {v(vab)}")
        def reads(ks):
            c = ks // 2; kk = ks & 1; A_ = Ab[ks & 1]; W_ = Wb[ks & 1]
            ra = [f"ds_read_b128 {v(A_+4*rt,4)}, {B.at(('A',kk), self.aslot(c) + rt*2048)}" for rt in range(2)]
            rw = [f"ds_read_b64_tr_b16 {v(W_+4*t+2*hh,2)}, {wat(t, self.bslot[c] + kk*8192 + hh*1024)}" for t in range(7) for hh in range(2)]
            return ra + rw
        def mfmas(ks):
            A_ = Ab[ks & 1]; W_ = Wb[ks & 1]
            return [f"v_mfma_f32_16x16x32_bf16 {v(acc+(rt*7+t)*4,4)}, {v(W_+4*t,4)}, {v(A_+4*rt,4)}, {v(acc+(rt*7+t)*4,4)}" for t in range(7) for rt in range(2)]
        last = [f"ds_read_b64 {v(ab[rt],2)}, {v(vab)} offset:{rt*128}" for rt in range(2)] + [f"ds_read_b128 {v(cs+4*t,4)}, {v(vcs)} offset:{t*64}" for t in range(7)]
        k.dstamp()
        k("s_barrier"); k.stamp()
        for r in reads(0): k(r)
        for ks in range(16):
            if ks == 15: interleave(k, mfmas(ks), last)
            else:
                if (ks + 1) % 2 == 0:
                    k("s_waitcnt lgkmcnt(0)")
                    k.dstamp()
                    k("s_barrier")
                rd = reads(ks + 1); mf = mfmas(ks)
                k(rd[0]); k(rd[1])
                interleave(k, mf, rd[2:])
        k.stamp()
        k("s_barrier")
        vs = k.valloc()
        k(f"v_add_u32 {v(vs)}, s52, {v(k.vR16)}")
        k(f"v_mul_u32_u24 {v(vs)}, {SP}, {v(vs)}")
        k(f"v_lshl_add_u32 {v(vs)}, {v(k.vG)}, 3, {v(vs)}")
        tmp = k.valloc(8, 4)
        k(f"s_mov_b32 s62, {LOG2E | 0x80000000:#x}")
        k(f"s_mov_b32 s63, {LOG2E | 0x80000000:#x}")
        k("s_mov_b32 s64, 1.0"); k("s_mov_b32 s65, 1.0")
        for rt in range(2):
            for t in range(7):
                ac = acc + (rt * 7 + t) * 4; T = tmp + 4 * (t & 1)
                for p in range(2):
                    k(f"v_pk_mul_f32 {v(T+2*p,2)}, {v(cs+4*t+2*p,2)}, {v(ab[rt],2)} op_sel:[0,1] op_sel_hi:[1,1]")
                for p in range(2):
                    k(f"v_pk_fma_f32 {v(ac+2*p,2)}, {v(ac+2*p,2)}, {v(ab[rt],2)}, {v(T+2*p,2)} op_sel:[0,0,0] op_sel_hi:[1,0,1]")
                for p in range(2):
                    k(f"v_pk_mul_f32 {v(T+2*p,2)}, {v(ac+2*p,2)}, s[62:63]")
                for j in range(4): k(f"v_exp_f32 {v(T+j)}, {v(T+j)}")
                for p in range(2):
                    k(f"v_pk_add_f32 {v(T+2*p,2)}, {v(T+2*p,2)}, s[64:65]")
                for j in range(4): k(f"v_rcp_f32 {v(T+j)}, {v(T+j)}")
                for p in range(2):
                    k(f"v_pk_mul_f32 {v(ac+2*p,2)}, {v(ac+2*p,2)}, {v(T+2*p,2)}")
                k(f"v_cvt_pk_bf16_f32 {v(ac)}, {v(ac)}, {v(ac+1)}")
                k(f"v_cvt_pk_bf16_f32 {v(ac+1)}, {v(ac+2)}, {v(ac+3)}")
                k(f"ds_write_b64 {v(vs)}, {v(ac,2)} offset:{rt*16*SP + t*32}")
        k("s_waitcnt lgkmcnt(0)")
    def store(self, k, vt, vt2, vt3, emit_stores):
        SH, SP = 32, self.SP
        srd(k, SH, P_WS, self.hoff, S_ * F_ * 2)
        vy = k.valloc(32, 4); va_ = k.valloc(); vo = k.valloc()
        k(f"v_lshrrev_b32 {v(vt)}, 4, v0")
        k(f"v_and_b32 {v(vt2)}, 15, v0")
        k(f"v_min_u32 {v(vt3)}, 13, {v(vt2)}")
        k(f"v_mul_u32_u24 {v(va_)}, {SP}, {v(vt)}")
        k(f"v_lshl_add_u32 {v(va_)}, {v(vt3)}, 4, {v(va_)}")
        k(f"v_add_u32 {v(vt)}, s50, {v(vt)}")
        k(f"v_mul_u32_u24 {v(vo)}, 3584, {v(vt)}")
        k(f"v_lshl_add_u32 {v(vo)}, {v(vt2)}, 4, {v(vo)}")
        k(f"v_add_u32 {v(vo)}, s54, {v(vo)}")
        k(f"v_mov_b32 {v(vt3)}, 0x7f000000")
        k(f"v_cmp_gt_u32 vcc, 14, {v(vt2)}")
        k(f"v_cndmask_b32 {v(vo)}, {v(vt3)}, {v(vo)}, vcc")
        k("s_barrier")
        for p in range(8):
            k(f"ds_read_b128 {v(vy+4*p,4)}, {v(va_)} offset:{p*16*SP}")
        st = []
        for p in range(8):
            st.append(f"s_mov_b32 s56, {p*16*3584}")
            st.append(f"buffer_store_dwordx4 {v(vy+4*p,4)}, {v(vo)}, s[{SH}:{SH+3}], s56 offen")
        emit_stores(st)

class P4(Phase):
    NC = 14; PA = 256; NBI = 8; BSTEP = 131072; nprod = 16
    def __init__(self, tag, xsrc, xdst, st_off, hoff): super().__init__(tag); self.xsrc, self.xdst, self.st_off, self.hoff = xsrc, xdst, st_off, hoff
    def tile(self, k): tile64(k)
    def setup_A(self, k, vt, vt2):
        self.voA = a_dma_offsets(k, 8, 256, 3584, 50, vt, vt2)
        k("s_waitcnt lgkmcnt(0)")
        srd(k, 24, P_WS, self.hoff, S_ * F_ * 2)
    def setup_B(self, k, vt, vt2, vt3, tmp):
        self.voB = [k.valloc() for _ in range(8)]
        k("s_lshl_b32 s52, s59, 16")
        k(f"s_and_b32 s54, s{SM_}, 7"); k("s_lshl_b32 s54, s54, 7")
        k("s_add_u32 s52, s52, s54")
        for i in range(8):
            k(f"v_bfe_u32 {v(vt)}, {v(k.vL)}, 4, 1")
            k(f"v_lshlrev_b32 {v(vt)}, 1, {v(vt)}")
            if i & 1: k(f"v_or_b32 {v(vt)}, 4, {v(vt)}")
            k(f"v_and_b32 {v(vt2)}, 7, {v(k.vL)}")
            k(f"v_xor_b32 {v(vt)}, {v(vt)}, {v(vt2)}")
            k(f"v_lshlrev_b32 {v(vt)}, 4, {v(vt)}")
            k(f"v_lshrrev_b32 {v(vt2)}, 3, {v(k.vL)}")
            k(f"v_add_u32 {v(vt2)}, {8*i}, {v(vt2)}")
            k(f"v_lshl_add_u32 {v(vt)}, {v(vt2)}, 10, {v(vt)}")
            k(f"v_add_u32 {v(self.voB[i])}, s52, {v(vt)}")
        k(f"s_lshl_b32 s{self.sBW}, s59, 13")
        k("s_waitcnt lgkmcnt(0)")
        srd(k, self.SWB, P_W2, 0, 1792 * 512 * 2)
    def compute(self, k, vt, vt2, vt3):
        SX = 24
        self.xr = k.valloc(8, 4)
        k("s_waitcnt lgkmcnt(0)")
        srd(k, SX, P_WS, self.xsrc, XB)
        resid_load64(k, SX, vt, vt2, self.xr)
        k("s_lshr_b32 s52, s3, 1")
        k("s_lshl_b32 s52, s52, 5")
        k("s_and_b32 s53, s3, 1")
        B = Bases(k)
        a_read_bases(k, B, 256, 52, 2, vt, vt2)
        k(f"v_bfe_u32 {v(vt)}, {v(k.vL)}, 2, 2")
        k(f"v_and_b32 {v(vt2)}, 1, {v(k.vG)}")
        k(f"v_lshlrev_b32 {v(vt2)}, 1, {v(vt2)}")
        k(f"v_bfe_u32 {v(vt3)}, {v(k.vL)}, 3, 1")
        k(f"v_or_b32 {v(vt2)}, {v(vt2)}, {v(vt3)}")
        k("s_lshl_b32 s57, s53, 1")
        k(f"v_xor_b32 {v(vt2)}, s57, {v(vt2)}")
        k(f"v_lshl_add_u32 {v(vt)}, {v(k.vG)}, 3, {v(vt)}")
        k(f"v_lshlrev_b32 {v(vt)}, 7, {v(vt)}")
        k(f"v_and_b32 {v(vt3)}, 3, {v(k.vL)}")
        k(f"v_lshl_add_u32 {v(vt)}, {v(vt3)}, 3, {v(vt)}")
        for t in range(2):
            r = k.valloc()
            k(f"v_xor_b32 {v(vt3)}, {t}, {v(vt2)}")
            k(f"v_lshl_add_u32 {v(r)}, {v(vt3)}, 5, {v(vt)}")
            B.add(("W", t), r, 3)
        acc = k.valloc(16, 4)
        for i in range(16): k(f"v_mov_b32 {v(acc+i)}, 0")
        Ab = [k.valloc(32, 4), k.valloc(32, 4)]; Wb = [k.valloc(32, 4), k.valloc(32, 4)]
        def reads(c):
            A_ = Ab[c & 1]; W_ = Wb[c & 1]; o = []
            for kk in range(4):
                ra = [f"ds_read_b128 {v(A_+8*kk+4*rt,4)}, {B.at(('A',kk), self.aslot(c) + rt*4096)}" for rt in range(2)]
                rw = [f"ds_read_b64_tr_b16 {v(W_+8*kk+4*t+2*hh,2)}, {B.at(('W',t), self.bslot[c] + kk*4096 + hh*512)}" for t in range(2) for hh in range(2)]
                o += [ra[0]] + rw + ra[1:]
            if os.environ.get("G_NOREAD"): return o[:int(os.environ["G_NOREAD"])]
            return o
        def mfmas(c):
            A_ = Ab[c & 1]; W_ = Wb[c & 1]
            return [f"v_mfma_f32_16x16x32_bf16 {v(acc+(rt*2+t)*4,4)}, {v(W_+8*kk+4*t,4)}, {v(A_+8*kk+4*rt,4)}, {v(acc+(rt*2+t)*4,4)}" for kk in range(4) for rt in range(2) for t in range(2)]
        for c in range(self.NC + 1):
            if c < self.NC:
                if c: k("s_waitcnt lgkmcnt(0)")
                k.dstamp()
                k("s_barrier")
                if c == 0: k.stamp()
            rd = reads(c) if c < self.NC else []
            mf = mfmas(c - 1) if c else []
            i = j = 0
            while i < len(mf) or j < len(rd):
                for _ in range(2):
                    if j < len(rd): k(rd[j]); j += 1
                if i < len(mf): k(mf[i]); i += 1
                if j < len(rd): k(rd[j]); j += 1
                if i < len(mf): k(mf[i]); i += 1
        k.stamp()
        k("s_barrier")
        vs = k.valloc()
        k(f"v_add_u32 {v(vs)}, s52, {v(k.vR16)}")
        k(f"v_mul_u32_u24 {v(vs)}, 144, {v(vs)}")
        k(f"v_lshl_add_u32 {v(vs)}, {v(k.vG)}, 3, {v(vs)}")
        k("s_lshl_b32 s57, s53, 6")
        k(f"v_add_u32 {v(vs)}, s57, {v(vs)}")
        for rt in range(2):
            for t in range(2):
                ac = acc + (rt * 2 + t) * 4
                k(f"v_cvt_pk_bf16_f32 {v(ac)}, {v(ac)}, {v(ac+1)}")
                k(f"v_cvt_pk_bf16_f32 {v(ac+1)}, {v(ac+2)}, {v(ac+3)}")
                k(f"ds_write_b64 {v(vs)}, {v(ac,2)} offset:{rt*16*144 + t*32}")
        k("s_waitcnt lgkmcnt(0)")
    def store(self, k, vt, vt2, vt3, emit_stores):
        store64(self, k, emit_stores)

def gen_fused(name, phases, flagbase, xtidx, stamps=False, first=False):
    k = Kern(name); k.stamps_on = stamps
    if os.environ.get("G_DET"): k.det = int(os.environ["G_DET"])
    prologue(k, 256, wait=False)
    k("s_sub_u32 s59, s3, 4")
    k("s_and_b32 s48, s2, 7"); k("s_lshl_b32 s48, s48, 1"); k("s_lshr_b32 s49, s2, 7")
    k(f"s_add_u32 s{SC_}, s48, s49"); k(f"s_bfe_u32 s{SM_}, s2, 0x40003")
    vt, vt2, vt3 = k.valloc(), k.valloc(), k.valloc()
    vfl = k.valloc(); vfd = k.valloc()
    mark = k.nv
    k.lds = 163840
    n = len(phases)
    bars = []
    for i, p in enumerate(phases):
        bars += [(i, "b", c) for c in range(p.NC)] + [(i, "e", 0), (i, "s", 0)] + ([(i, "u", 0)] if i < n - 1 else [])
    bidx = {b: j for j, b in enumerate(bars)}
    chunks = []
    for i, p in enumerate(phases):
        for c in range(p.NC):
            rel = bidx[(i, "b", c + 1)] if c + 1 < p.NC else bidx[(i, "e", 0)]
            chunks.append((i, c, bidx[(i, "b", c)], rel, True))
        for x in range(p.pseudo):
            chunks.append((i, p.NC + x, None, bidx[(i, "e", 0)], False))
    for j, (i, c, _, _, _) in enumerate(chunks): phases[i].bslot[c] = BRING + (j % NB) * 16384
    for i, p in enumerate(phases): p.SWB = 24 + 4 * i; p.sBW = 44 + i
    k("s_cmp_lt_u32 s3, 4")
    k(f"s_cbranch_scc1 {name}_compute")
    k("s_cmp_lt_u32 s3, 6")
    k(f"s_cbranch_scc1 {name}_aload")
    k("s_sub_u32 s59, s3, 6")
    k.stamp_set(0); k.stamp()
    tmp5 = [k.valloc() for _ in range(5)]
    NV = int(os.environ.get("G_NV", "0"))
    vl16 = k.valloc()
    k(f"v_lshlrev_b32 {v(vl16)}, 4, {v(k.vL)}")
    for p in phases: p._vo = None
    vslots = [256 - 32 * (x + 1) for x in range(NV)]
    k.maxv = 256 if NV else k.maxv
    freev = list(vslots); vq = []
    setup_done = set(); nxt = [0]; placed = set(); pend = []
    def slot_free(j, after_bar): return j < NB or chunks[j - NB][3] <= after_bar
    def b_step(after_bar, maxn, curphase=None, spare=0):
        if pend:
            k("s_waitcnt lgkmcnt(0)")
            for (j, vs) in pend: placed.add(j); freev.append(vs)
            pend.clear()
        while vq and slot_free(vq[0][0], after_bar):
            j, vs = vq.pop(0); i, c = chunks[j][0], chunks[j][1]
            phases[i].place_Bv(k, c, vs, vl16, vt); pend.append((j, vs))
        cnt = 0
        while nxt[0] < len(chunks) and cnt < maxn:
            j = nxt[0]; i, c, need, rel, real = chunks[j]
            if not real:
                if not slot_free(j, after_bar): break
                placed.add(j); nxt[0] += 1; continue
            direct = (not vq) and slot_free(j, after_bar)
            if not direct and not freev: break
            if curphase is not None and i != curphase:
                if spare <= 0: break
                spare -= 1
            if i not in setup_done:
                phases[i].setup_B(k, vt, vt2, vt3, tmp5); setup_done.add(i)
                assert k.nv <= 256 - 32 * NV
            k.vm_limit(int(os.environ.get("G_VML", "24")))
            if direct:
                phases[i].issue_B(k, c); placed.add(j)
            else:
                vs = freev.pop(0); phases[i].issue_Bv(k, c, vs); vq.append((j, vs))
            cnt += 1; nxt[0] += 1
    b_step(-1, int(os.environ.get("G_B0", "2")))
    if True:
        endlab = "all_code_end" if first else f"{name}_end"
        ca = k.valloc(2, 2); cd = k.valloc(4)
        k("s_getpc_b64 s[40:41]")
        k.L(f"{name}_pc")
        k(f"s_mov_b32 s42, {endlab}-{name}_pc-16")
        k("s_bfe_u32 s43, s2, 0x50003")
        k("s_lshl_b32 s43, s43, 1"); k("s_add_u32 s43, s43, s59"); k("s_lshl_b32 s43, s43, 10")
        nrep = 2 if first else 1
        for x in range(nrep):
            k(f"v_add_u32 {v(vt)}, s43, {v(vl16)}")
            if x: k(f"v_add_u32 {v(vt)}, {x*65536}, {v(vt)}")
            k(f"v_min_u32 {v(vt)}, s42, {v(vt)}")
            k(f"v_and_b32 {v(vt)}, -4, {v(vt)}")
            k(f"global_load_dwordx4 {v(cd,4)}, {v(vt)}, s[40:41]")
    for j, (i, kind, c) in enumerate(bars):
        if kind == "b":
            jj = next(x for x, ch in enumerate(chunks) if ch[0] == i and ch[1] == c)
            if jj not in placed:
                assert any(x[0] == jj for x in pend), (i, c)
                k("s_waitcnt lgkmcnt(0)")
                for (j_, vs) in pend: placed.add(j_); freev.append(vs)
                pend.clear()
            k.wait_tag(f"{phases[i].tag}b{c}")
        k.cur = i; k.dstamp()
        k("s_barrier")
        if first and kind == "b" and c == 2:
            sw = k.valloc(16, 4); sacc = k.valloc(8, 4); svo = k.valloc()
            srd(k, 28, P_W1, 0, 512 * 1792 * 2)
            k("s_min_u32 s40, s2, 223")
            k("s_mul_i32 s41, s40, 2341"); k("s_lshr_b32 s41, s41, 16")
            k("s_mul_i32 s48, s41, 28"); k("s_sub_u32 s40, s40, s48")
            k("s_lshl_b32 s48, s41, 6"); k("s_lshl_b32 s49, s59, 5"); k("s_add_u32 s48, s48, s49")
            k(f"v_lshrrev_b32 {v(svo)}, 3, {v(k.vL)}")
            k(f"v_add_u32 {v(svo)}, s48, {v(svo)}")
            k(f"v_mul_u32_u24 {v(svo)}, 3584, {v(svo)}")
            k(f"v_and_b32 {v(vt)}, 7, {v(k.vL)}")
            k(f"v_lshl_add_u32 {v(svo)}, {v(vt)}, 4, {v(svo)}")
            k("s_lshl_b32 s48, s40, 7")
            k(f"v_add_u32 {v(svo)}, s48, {v(svo)}")
            for x in range(4):
                k(f"s_mov_b32 s49, {x*8*3584}")
                k(f"buffer_load_dwordx4 {v(sw+4*x,4)}, {v(svo)}, s[28:31], s49 offen")
        if first and kind == "b" and c == 4:
            tw = k.valloc(20, 4)
            srd(k, 32, P_W2, 0, 1792 * 512 * 2)
            srd(k, 36, P_WO, 0, 512 * 512 * 2)
            k("s_mul_i32 s48, s2, 7168"); k("s_mul_i32 s49, s59, 3584"); k("s_add_u32 s48, s48, s49")
            k(f"v_add_u32 {v(vt)}, s48, {v(vl16)}")
            for x in range(4):
                k(f"buffer_load_dwordx4 {v(tw+4*x,4)}, {v(vt)}, s[32:35], 0 offen offset:{x*1024 if x < 3 else 2560}")
            k("s_lshl_b32 s48, s2, 11"); k("s_lshl_b32 s49, s59, 10"); k("s_add_u32 s48, s48, s49")
            k(f"v_add_u32 {v(vt)}, s48, {v(vl16)}")
            k(f"buffer_load_dwordx4 {v(tw+16,4)}, {v(vt)}, s[36:39], 0 offen")
            if os.environ.get("G_TLB"):
                tl = k.valloc(2, 2)
                srd(k, 32, P_WS, 0, 0x1000000)
                srd(k, 36, P_OUT, 0, XB)
                k(f"v_lshlrev_b32 {v(vt)}, 18, {v(k.vL)}")
                k(f"buffer_load_dword {v(tl)}, {v(vt)}, s[32:35], 0 offen")
                k(f"v_lshlrev_b32 {v(vt)}, 15, {v(k.vL)}")
                k(f"buffer_load_dword {v(tl+1)}, {v(vt)}, s[36:39], 0 offen")
        if first and kind == "b" and c == 5:
            k("s_mov_b32 s60, 0x00003f80"); k("s_mov_b32 s61, 0x3f800000")
            for x in range(8): k(f"v_mov_b32 {v(sacc+x)}, 0")
            for x in range(4):
                for y in range(4):
                    k(f"v_dot2_f32_bf16 {v(sacc+2*y)}, {v(sw+4*x+y)}, s60, {v(sacc+2*y)}")
                    k(f"v_dot2_f32_bf16 {v(sacc+2*y+1)}, {v(sw+4*x+y)}, s61, {v(sacc+2*y+1)}")
        if first and kind == "b" and c == 6:
            for x in range(8):
                k(f"v_add_f32_dpp {v(sw+x)}, {v(sacc+x)}, {v(sacc+x)} row_ror:8 row_mask:0xf bank_mask:0xf")
            for x in range(8): gen.xlane_sum_g(k, sw + x, sacc + x)
            k("s_lshl_b32 s48, s59, 8"); k(f"s_add_u32 s48, s48, {EX+8192}")
            k(f"v_and_b32 {v(vt)}, 7, {v(k.vL)}")
            k(f"v_lshlrev_b32 {v(svo)}, 5, {v(vt)}")
            k(f"v_add_u32 {v(vt)}, s48, {v(svo)}")
            k(f"ds_write_b128 {v(vt)}, {v(sw,4)}"); k(f"ds_write_b128 {v(vt)}, {v(sw+4,4)} offset:16")
            k("s_waitcnt lgkmcnt(0)")
        if first and kind == "b" and c == 7:
            k(f"v_add_u32 {v(vt)}, {EX+8192}, {v(svo)}")
            for x in range(2):
                k(f"ds_read_b128 {v(sw+4*x,4)}, {v(vt)} offset:{16*x}")
                k(f"ds_read_b128 {v(sw+8+4*x,4)}, {v(vt)} offset:{256+16*x}")
            for x in range(8): k(f"v_add_f32 {v(sw+x)}, {v(sw+x)}, {v(sw+8+x)}")
            srd(k, 28, P_WS, WS_CS + 0x2000, 8 * 1792 * 4)
            k("s_mul_i32 s48, s41, 7168"); k("s_lshl_b32 s49, s40, 8"); k("s_add_u32 s48, s48, s49")
            k(f"v_add_u32 {v(vt)}, s48, {v(svo)}")
            k("s_mov_b64 exec, 0xff")
            k(f"buffer_store_dwordx4 {v(sw,4)}, {v(vt)}, s[28:31], 0 offen")
            k(f"buffer_store_dwordx4 {v(sw+4,4)}, {v(vt)}, s[28:31], 0 offen offset:16")
            k("s_mov_b64 exec, -1")
        if os.environ.get("G_L2PF") and kind == "b" and i + 1 < n and isinstance(phases[i + 1], P4) and c < 7:
            if c == 0:
                tpf = k.valloc(2, 2); vpf = k.valloc()
                srd(k, 40, P_W2, 0, 1792 * 512 * 2)
                k(f"s_and_b32 s48, s{SM_}, 7"); k("s_lshl_b32 s48, s48, 7")
                k("s_lshl_b32 s49, s59, 16"); k("s_add_u32 s48, s48, s49")
                k(f"v_lshlrev_b32 {v(vpf)}, 10, {v(k.vL)}"); k(f"v_add_u32 {v(vpf)}, s48, {v(vpf)}")
            for x in range(2):
                k(f"s_mov_b32 s49, {(2*c+x)*131072}")
                k(f"buffer_load_dword {v(tpf+x)}, {v(vpf)}, s[40:43], s49 offen")
        if kind in ("e", "u"): k.stamp()
        if kind == "b":
            b_step(j, 2 if (i == 0 or c == 0) else 1, i, phases[i].spare(c) if not os.environ.get("G_SPALL") else 1)
        else:
            b_step(j, {"e": int(os.environ.get("G_QE", phases[i].Qe)), "s": int(os.environ.get("G_QS", "3")), "u": int(os.environ.get("G_QU", "7"))}[kind])
    assert nxt[0] == len(chunks) and not vq
    if stamps: k.stamp(); k.stamp_flush(P_WS, vt, vt2)
    k("s_endpgm")
    k.L(f"{name}_aload"); k.reset()
    k.stamp_set(0); k.stamp()
    k("s_lshl_b32 s55, s59, 13")
    for i, p in enumerate(phases):
        k.nv = mark
        p.tile(k)
        p.setup_A(k, vt, vt2)
        if first:
            vz = k.valloc(4)
            for x in range(4): k(f"v_mov_b32 {v(vz+x)}, 0")
            srd(k, 28, P_WS, WS_KV, 0x20000)
            srd(k, 32, 18, 0, 256)
            l1 = f"{name}_tk"; l2 = f"{name}_tkd"
            k("s_cmp_eq_u32 s59, 0")
            k(f"s_cbranch_scc1 {l1}")
            k("s_lshl_b32 s48, s2, 8"); k("s_add_u32 s48, s48, 0x10000")
            k(f"v_lshlrev_b32 {v(vfl)}, 4, {v(k.vL)}"); k(f"v_add_u32 {v(vfl)}, s48, {v(vfl)}")
            k("s_mov_b64 exec, 0xffff")
            k(f"buffer_store_dwordx4 {v(vz,4)}, {v(vfl)}, s[28:31], 0 offen")
            k("s_mov_b64 exec, -1")
            k(f"s_branch {l2}")
            k.L(l1)
            k(f"s_lshl_b32 s48, s{SM_}, 2")
            k(f"v_mov_b32 {v(vfl)}, s48"); k(f"v_mov_b32 {v(vfd)}, 1")
            k("s_mov_b64 exec, 1")
            k(f"buffer_atomic_add {v(vfd)}, {v(vfl)}, s[32:35], 0 offen sc0")
            k("s_mov_b64 exec, -1")
            k.L(l2)
        if i == 0 and n > 1:
            srd(k, SFL, P_WS, WS_FLAG, 0x7000)
            k("s_getreg_b32 s98, hwreg(HW_REG_XCC_ID)")
            k("s_and_b32 s98, s98, 15"); k("s_add_u32 s98, s98, 1")
            k(f"s_lshl_b32 s48, s{SC_}, 6"); k(f"s_lshl_b32 s49, s{SM_}, 2"); k("s_add_u32 s48, s48, s49")
            k(f"s_add_u32 s48, s48, {WS_XT - WS_FLAG + xtidx*1024}")
            k(f"v_mov_b32 {v(vfl)}, s48"); k(f"v_mov_b32 {v(vfd)}, s98")
            k("s_mov_b64 exec, 1")
            k(f"buffer_store_dword {v(vfd)}, {v(vfl)}, s[{SFL}:{SFL+3}], 0 offen sc0 sc1")
            k("s_mov_b64 exec, -1")
        if i > 0:
            lab = f"{name}_poll{i}"; done = f"{name}_polld{i}"
            k(f"s_lshl_b32 s48, s{SC_}, 8"); k(f"s_add_u32 s48, s48, {(flagbase+i-1)*4096}")
            k(f"v_lshlrev_b32 {v(vfl)}, 2, {v(k.vL)}"); k(f"v_add_u32 {v(vfl)}, s48, {v(vfl)}")
            k(f"s_mov_b64 exec, {(1<<phases[i-1].nprod)-1:#x}")
            k("s_mov_b32 s49, 0")
            k.L(lab)
            k(f"buffer_load_dword {v(vfd)}, {v(vfl)}, s[{SFL}:{SFL+3}], 0 offen sc1")
            k("s_add_u32 s49, s49, 1")
            k("s_waitcnt vmcnt(0)")
            k(f"v_cmp_ne_u32 vcc, 1, {v(vfd)}")
            k("s_cmp_gt_u32 s49, 200000")
            k(f"s_cbranch_scc1 {done}")
            k(f"s_cbranch_vccnz {lab}")
            k.L(done)
            k("s_mov_b64 exec, -1")
        k.stamp()
        if p.has_ln:
            stv = k.valloc(16, 4)
            srd(k, 28, P_WS, p.st_off, 2048 * 64)
            k("s_lshl_b32 s48, s59, 6")
            k("s_add_u32 s48, s48, s50")
            k(f"v_add_u32 {v(vt)}, s48, {v(k.vL)}")
            k(f"v_lshlrev_b32 {v(vt)}, 6, {v(vt)}")
            for x in range(4):
                k(f"buffer_load_dwordx4 {v(stv+4*x,4)}, {v(vt)}, s[28:31], 0 offen offset:{16*x}")
        A0N = min(NA if os.environ.get("G_A0") else p.D, p.NC)
        for c in range(A0N): p.issue_A(k, c)
        for c in range(p.NC):
            k.wait_tag(f"{p.tag}a{c}")
            k.cur = i; k.dstamp()
            k("s_barrier")
            if c + p.D < p.NC and c + p.D >= A0N: p.issue_A(k, c + p.D)
            if first and c == 0:
                l3 = f"{name}_zk"
                k.vm_save()
                k("s_cmp_lg_u32 s59, 0")
                k(f"s_cbranch_scc1 {l3}")
                k(f"v_readfirstlane_b32 s48, {v(vfd)}")
                k("s_nop 3")
                k("s_cmp_lg_u32 s48, 0")
                k(f"s_cbranch_scc1 {l3}")
                k(f"s_lshl_b32 s48, s{SM_}, 11")
                k(f"v_lshlrev_b32 {v(vfl)}, 4, {v(k.vL)}"); k(f"v_add_u32 {v(vt)}, s48, {v(vfl)}")
                k(f"buffer_store_dwordx4 {v(vz,4)}, {v(vt)}, s[28:31], 0 offen sc0 sc1")
                k(f"buffer_store_dwordx4 {v(vz,4)}, {v(vt)}, s[28:31], 0 offen offset:1024 sc0 sc1")
                k(f"s_lshl_b32 s48, s{SM_}, 7"); k("s_add_u32 s48, s48, 32768")
                k(f"v_add_u32 {v(vt)}, s48, {v(vfl)}")
                k("s_mov_b64 exec, 0xff")
                k(f"buffer_store_dwordx4 {v(vz,4)}, {v(vt)}, s[28:31], 0 offen sc0 sc1")
                k("s_waitcnt vmcnt(0)")
                k(f"s_lshl_b32 s48, s{SM_}, 2"); k("s_add_u32 s48, s48, 64")
                k(f"v_mov_b32 {v(vfl)}, s48"); k(f"v_mov_b32 {v(vfd)}, 1")
                k("s_mov_b64 exec, 1")
                k(f"buffer_store_dword {v(vfd)}, {v(vfl)}, s[32:35], 0 offen sc0 sc1")
                k("s_mov_b64 exec, -1")
                k.L(l3)
                k.vm_restore()
            if first and c == p.NC - 1:
                lab = f"{name}_rp"; done = f"{name}_rpd"
                k(f"s_lshl_b32 s48, s{SM_}, 2"); k("s_add_u32 s48, s48, 64")
                k(f"v_mov_b32 {v(vfl)}, s48")
                k("s_mov_b64 exec, 1")
                k("s_mov_b32 s49, 0")
                k.L(lab)
                k(f"buffer_load_dword {v(vfd)}, {v(vfl)}, s[32:35], 0 offen sc0 sc1")
                k("s_add_u32 s49, s49, 1")
                k("s_waitcnt vmcnt(0)")
                k(f"v_cmp_ne_u32 vcc, 1, {v(vfd)}")
                k("s_cmp_gt_u32 s49, 200000")
                k(f"s_cbranch_scc1 {done}")
                k(f"s_cbranch_vccnz {lab}")
                k.L(done)
                k("s_mov_b64 exec, -1")
            if isinstance(p, P2) and c == 0:
                cp = k.valloc(16, 4)
                srd(k, 28, P_WS, WS_CS + 0x2000, 8 * 1792 * 4)
                k(f"s_mul_i32 s48, s{SM_}, 448")
                k(f"v_lshlrev_b32 {v(vt)}, 3, {v(k.vL)}"); k(f"v_add_u32 {v(vt)}, s48, {v(vt)}")
                for g_ in range(8):
                    k(f"s_mov_b32 s49, {g_*7168}")
                    k(f"buffer_load_dwordx2 {v(cp+2*g_,2)}, {v(vt)}, s[28:31], s49 offen")
            if isinstance(p, P2) and c == 2:
                for g_ in range(1, 8): k(f"v_pk_add_f32 {v(cp,2)}, {v(cp,2)}, {v(cp+2*g_,2)}")
                k(f"v_lshlrev_b32 {v(vt)}, 3, {v(k.vL)}"); k(f"v_add_u32 {v(vt)}, {LDS_CS}, {v(vt)}")
                k(f"ds_write_b64 {v(vt)}, {v(cp,2)}")
                k("s_waitcnt lgkmcnt(0)")
            if c == 1 and p.has_ln:
                ab = k.valloc(2, 2)
                gen.ln_params(k, stv, ab, ab + 1, vt, vt2)
                k("s_lshl_b32 s48, s59, 9")
                k(f"s_add_u32 s48, s48, {LDS_AB}")
                k(f"v_lshlrev_b32 {v(vt)}, 3, {v(k.vL)}")
                k(f"v_add_u32 {v(vt)}, s48, {v(vt)}")
                k(f"ds_write_b64 {v(vt)}, {v(ab,2)}")
                k("s_waitcnt lgkmcnt(0)")
            if i == 0 and n > 1 and c == p.NC - 1:
                k(f"s_lshl_b32 s48, s{SC_}, 6"); k(f"s_add_u32 s48, s48, {WS_XT - WS_FLAG + xtidx*1024}")
                k(f"v_and_b32 {v(vfl)}, 15, {v(k.vL)}")
                k(f"v_lshlrev_b32 {v(vfl)}, 2, {v(vfl)}"); k(f"v_add_u32 {v(vfl)}, s48, {v(vfl)}")
                k(f"buffer_load_dword {v(vfd)}, {v(vfl)}, s[{SFL}:{SFL+3}], 0 offen sc0 sc1")
                k(f"v_cmp_ne_u32 vcc, s98, {v(vfd)}")
                k("s_cmp_eq_u64 vcc, 0")
                k("s_cselect_b32 s99, 1, 0")
                if FORCE == "fast": k("s_mov_b32 s99, 1")
                if FORCE == "slow": k("s_mov_b32 s99, 0")
                k(f"v_mov_b32 {v(vfd)}, s99"); k(f"v_mov_b32 {v(vfl)}, {LDS_MODE}")
                k(f"s_lshl_b32 s48, s59, 2"); k(f"v_add_u32 {v(vfl)}, s48, {v(vfl)}")
                k(f"ds_write_b32 {v(vfl)}, {v(vfd)}")
                k("s_waitcnt lgkmcnt(0)")
        k.stamp()
        k("s_barrier")
        k("s_barrier")
        if i < n - 1:
            k("s_barrier")
            k.stamp()
            lab = f"{name}_pub{i}"; lab2 = f"{name}_pubs{i}"
            k("s_cmp_lg_u32 s59, 0")
            k(f"s_cbranch_scc1 {lab}")
            k(f"s_lshl_b32 s48, s{SC_}, 8"); k(f"s_lshl_b32 s49, s{SM_}, 2"); k("s_add_u32 s48, s48, s49")
            k(f"s_add_u32 s48, s48, {(flagbase+i)*4096}")
            k(f"v_mov_b32 {v(vfl)}, s48"); k(f"v_mov_b32 {v(vfd)}, 1")
            k("s_mov_b64 exec, 1")
            k("s_cmp_eq_u32 s99, 1")
            k(f"s_cbranch_scc0 {lab2}")
            k(f"buffer_store_dword {v(vfd)}, {v(vfl)}, s[{SFL}:{SFL+3}], 0 offen")
            k(f"s_branch {lab}")
            k.L(lab2)
            k(f"buffer_store_dword {v(vfd)}, {v(vfl)}, s[{SFL}:{SFL+3}], 0 offen sc0 sc1")
            k.L(lab)
            k("s_mov_b64 exec, -1")
    if stamps: k.stamp(); k.stamp_flush(P_WS, vt, vt2)
    k("s_endpgm")
    k.L(f"{name}_compute"); k.reset()
    k.stamp_set(0); k.stamp()
    DIAG = os.environ.get("G_DIAG")
    if DIAG:
        k("s_memrealtime s[88:89]"); k("s_waitcnt lgkmcnt(0)")
    for i, p in enumerate(phases):
        k.nv = mark; k.cur = i
        p.tile(k)
        p.compute(k, vt, vt2, vt3)
        if os.environ.get("G_BND"): k.stamp()
        k.nv = mark + 12
        def emit_stores(lst, i=i):
            if i == n - 1:
                for x in lst: k(x)
                return
            if i == 0:
                k(f"v_mov_b32 {v(vfl)}, {LDS_MODE}")
                k(f"ds_read_b32 {v(vfd)}, {v(vfl)}")
                k(f"v_readfirstlane_b32 s99, {v(vfd)}")
            l1 = f"{name}_st{i}_slow"; l2 = f"{name}_st{i}_done"
            k("s_waitcnt vmcnt(0) lgkmcnt(0)")
            k("s_nop 4")
            k("s_cmp_eq_u32 s99, 1")
            k(f"s_cbranch_scc0 {l1}")
            for x in lst: k(x)
            k(f"s_branch {l2}")
            k.L(l1)
            for x in lst: k(x + (" sc0 sc1" if x.startswith("buffer_store") else ""))
            k.L(l2)
        p.store(k, vt, vt2, vt3, emit_stores)
        if os.environ.get("G_BND"): k.stamp()
        if i < n - 1:
            k("s_waitcnt vmcnt(0)")
            if os.environ.get("G_BND"): k.stamp()
            k("s_barrier")
    if stamps:
        k("s_waitcnt vmcnt(0)"); k.stamp(); k.stamp_flush(P_WS, vt, vt2)
    if DIAG:
        kid = {"kA": 0, "kB": 1, "kC": 2}[name[:2]]
        k("s_waitcnt vmcnt(0)")
        k("s_memrealtime s[90:91]"); k("s_waitcnt lgkmcnt(0)")
        k("s_or_b32 s48, s2, s3"); k("s_cmp_lg_u32 s48, 0"); k(f"s_cbranch_scc1 {name}_end")
        srd(k, 24, P_WS, 0xF80000, 64)
        dd = k.valloc(8, 4)
        k(f"v_mov_b32 {v(dd)}, s88"); k(f"v_mov_b32 {v(dd+1)}, s90"); k(f"v_mov_b32 {v(vt)}, 0")
        k("s_mov_b64 exec, 1")
        k(f"buffer_store_dwordx2 {v(dd,2)}, {v(vt)}, s[24:27], 0 offen offset:{kid*8}")
        if kid == 2:
            k(f"buffer_load_dwordx4 {v(dd+4,4)}, {v(vt)}, s[24:27], 0 offen")
            srd(k, 28, 18, 0, 256)
            k(f"buffer_store_dwordx4 {v(dd+4,4)}, {v(vt)}, s[28:31], 0 offen")
            k(f"buffer_store_dwordx2 {v(dd,2)}, {v(vt)}, s[28:31], 0 offen offset:16")
    epilogue_end(k)
    return k

def build(path, stamps=False):
    kA = gen_fused("kA_kernel", [P1("p1a", "in", WS_KV, None)], 0, 0, stamps and os.environ.get("G_STA") == "1", True)
    kB = gen_fused("kB_kernel", [P2("p2a", "in", WS_KV, WS_X1, WS_ST1), P3("p3a", WS_X1, WS_ST1, WS_H), P4("p4a", WS_X1, WS_X2, WS_ST2, WS_H),
                                 P1("p1b", WS_X2, WS_KV + 0x10000, WS_ST2)], 0, 0, stamps and os.environ.get("G_STA") != "1")
    kC = gen_fused("kC_kernel", [P2("p2b", WS_X2, WS_KV + 0x10000, WS_X1, WS_ST1), P3("p3b", WS_X1, WS_ST1, WS_H), P4("p4b", WS_X1, "out", None, WS_H)], 3, 1)
    ks = [kA, kB, kC]
    launches = [(k.name, 256, 512, k.lds) for i, k in enumerate(ks)]
    open(path, "w").write(build_file(HEADER, launches, ks))
    for k in ks: print(k.name, "vgpr", k.maxv, "lds", k.lds, "ninst", sum(1 for i in k.items if isinstance(i, Ins)))

if __name__ == "__main__":
    build(sys.argv[1] if len(sys.argv) > 1 else "interleave_layers__linear_attn_block__dense_activation_silu__prompt.s")
    build(sys.argv[2] if len(sys.argv) > 2 else "fused_stamps.s", True)
```

```python
import sys, struct, os
from asmlib import *
from gen import (S_, D_, F_, WS_PQ, WS_X1, WS_X2, WS_H, WS_KV, WS_CS, WS_ST0, WS_ST1, WS_ST2, XB, P_X, P_WQKV, P_WO, P_W1, P_W2, P_OUT, P_WS,
                 LOG2E, fbits, prologue, srd, epilogue_end, HEADER)
from gen2 import Bases, interleave, a_read_bases, phi4
import gen

WS_FLAG = 0xE18800
WS_XT = 0xE1E800
SC_, SM_ = 96, 97
NA = int(os.environ.get("G_NA", "4")); NB = 9 - NA
ARING, BRING, EX = 0, NA * 16384, 147456
LDS_AB, LDS_MODE, LDS_CS = EX, EX + 1024, EX + 7168
SFL = 92
FORCE = os.environ.get("G_MODE", "")

def a_dma_offsets(k, nins, PA, rowpitch, rowbase_s, t0, t1):
    UA = PA // 16; RA = 64 // UA; sh = {8: 3, 16: 4}[UA]
    out = []
    k(f"s_mul_i32 s58, s59, {nins*RA}")
    k(f"s_add_u32 s58, s58, s{rowbase_s}")
    for i in range(nins):
        r = k.valloc(); out.append(r)
        k(f"v_lshrrev_b32 {v(t0)}, {sh}, {v(k.vL)}")
        if i: k(f"v_add_u32 {v(t0)}, {RA*i}, {v(t0)}")
        if PA == 128: k(f"v_bfe_u32 {v(t1)}, {v(t0)}, 1, 3")
        else: k(f"v_and_b32 {v(t1)}, 15, {v(t0)}")
        k(f"v_and_b32 {v(r)}, {UA-1}, {v(k.vL)}")
        k(f"v_xor_b32 {v(t1)}, {v(t1)}, {v(r)}")
        k(f"v_add_u32 {v(t0)}, s58, {v(t0)}")
        k(f"v_mul_u32_u24 {v(t0)}, {rowpitch}, {v(t0)}")
        k(f"v_lshl_add_u32 {v(r)}, {v(t1)}, 4, {v(t0)}")
    assert (nins * RA) % 16 == 0
    return out

def ln_finish(k, m, q, ab):
    k(f"v_mul_f32 {v(m)}, {fbits(1/512):#x}, {v(m)}")
    k(f"v_mul_f32 {v(q)}, {fbits(1/512):#x}, {v(q)}")
    k(f"v_fma_f32 {v(q)}, -{v(m)}, {v(m)}, {v(q)}")
    k(f"v_max_f32 {v(q)}, 0, {v(q)}")
    gen.bf16_round(k, m, m); gen.bf16_round(k, q, q)
    k(f"v_add_f32 {v(q)}, {fbits(1e-5):#x}, {v(q)}")
    gen.bf16_round(k, q, q)
    k(f"v_sqrt_f32 {v(q)}, {v(q)}")
    gen.bf16_round(k, q, q)
    k(f"v_rcp_f32 {v(ab)}, {v(q)}")
    k(f"v_mul_f32 {v(ab+1)}, {v(m)}, {v(ab)}")
    k(f"v_sub_f32 {v(ab+1)}, 0, {v(ab+1)}")

def tile64(k):
    k(f"s_lshr_b32 s48, s{SM_}, 3")
    k(f"s_lshl_b32 s22, s{SC_}, 1")
    k("s_add_u32 s22, s22, s48")
    k(f"s_and_b32 s23, s{SM_}, 7")
    k("s_lshl_b32 s50, s22, 6")
    k("s_lshl_b32 s54, s23, 7")

def resid_load64(k, SX, t0, t1, xr):
    k(f"v_lshrrev_b32 {v(t0)}, 3, v0")
    k(f"v_and_b32 {v(t1)}, 7, v0")
    k(f"v_add_u32 {v(t0)}, s50, {v(t0)}")
    k(f"v_lshlrev_b32 {v(t0)}, 10, {v(t0)}")
    k(f"v_lshl_add_u32 {v(t0)}, {v(t1)}, 4, {v(t0)}")
    k(f"v_add_u32 {v(t0)}, s54, {v(t0)}")
    k("s_mov_b32 s60, 32768")
    k(f"buffer_load_dwordx4 {v(xr,4)}, {v(t0)}, s[{SX}:{SX+3}], 0 offen")
    k(f"buffer_load_dwordx4 {v(xr+4,4)}, {v(t0)}, s[{SX}:{SX+3}], s60 offen")

def store64_prep(k, xr, do_stats):
    vy = k.valloc(8, 4); va_ = k.valloc(); vo = k.valloc(); sm = k.valloc(4, 4); tt = k.valloc(2, 2)
    t0, t1, t2, t3 = [k.valloc() for _ in range(4)]
    k(f"v_lshrrev_b32 {v(t0)}, 3, v0")
    k(f"v_and_b32 {v(t1)}, 7, v0")
    k(f"v_mul_u32_u24 {v(va_)}, 144, {v(t0)}")
    k(f"v_lshl_add_u32 {v(va_)}, {v(t1)}, 4, {v(va_)}")
    k(f"ds_read_b128 {v(vy,4)}, {v(va_)}")
    k(f"ds_read_b128 {v(vy+4,4)}, {v(va_)} offset:{32*144}")
    k(f"v_add_u32 {v(t0)}, s50, {v(t0)}")
    k(f"v_lshlrev_b32 {v(vo)}, 10, {v(t0)}")
    k(f"v_lshl_add_u32 {v(vo)}, {v(t1)}, 4, {v(vo)}")
    k(f"v_add_u32 {v(vo)}, s54, {v(vo)}")
    if do_stats:
        for i in range(4): k(f"v_mov_b32 {v(sm+i)}, 0")
        k("s_mov_b32 s60, 0x3f803f80")
        k(f"v_lshlrev_b32 {v(va_)}, 6, {v(t0)}")
        k(f"s_lshr_b32 s61, s54, 4")
        k(f"v_add_u32 {v(va_)}, s61, {v(va_)}")
    for i in range(8):
        k(f"v_lshlrev_b32 {v(t0)}, 16, {v(vy+i)}")
        k(f"v_and_b32 {v(t1)}, 0xffff0000, {v(vy+i)}")
        k(f"v_lshlrev_b32 {v(t2)}, 16, {v(xr+i)}")
        k(f"v_and_b32 {v(t3)}, 0xffff0000, {v(xr+i)}")
        k(f"v_add_f32 {v(t0)}, {v(t0)}, {v(t2)}")
        k(f"v_add_f32 {v(t1)}, {v(t1)}, {v(t3)}")
        k(f"v_cvt_pk_bf16_f32 {v(vy+i)}, {v(t0)}, {v(t1)}")
        if do_stats:
            s_ = sm + 2 * (i // 4)
            k(f"v_dot2_f32_bf16 {v(s_)}, {v(vy+i)}, s60, {v(s_)}")
            k(f"v_dot2_f32_bf16 {v(s_+1)}, {v(vy+i)}, {v(vy+i)}, {v(s_+1)}")
    if do_stats:
        for dpp in ("quad_perm:[1,0,3,2]", "quad_perm:[2,3,0,1]", "row_half_mirror"):
            for h in range(2):
                for c in range(2):
                    k(f"v_add_f32_dpp {v(tt+c)}, {v(sm+2*h+c)}, {v(sm+2*h+c)} {dpp} row_mask:0xf bank_mask:0xf")
                for c in range(2):
                    k(f"v_mov_b32 {v(sm+2*h+c)}, {v(tt+c)}")
    return vy, vo, sm, va_

def main_loop(k, nks, kpc, reads, mfmas, last=()):
    k.dstamp()
    k("s_barrier"); k.stamp()
    for r in reads(0): k(r)
    for ks in range(nks):
        if ks == nks - 1: interleave(k, mfmas(ks), list(last))
        else:
            if (ks + 1) % kpc == 0:
                k("s_waitcnt lgkmcnt(0)")
                k.dstamp()
                k("s_barrier")
            interleave(k, mfmas(ks), reads(ks + 1))
    k.stamp()

class Phase:
    D = NA - 1; has_ln = False; pseudo = 0
    def __init__(self, tag): self.tag = tag; self.bslot = {}
    def aslot(self, c): return ARING + (c % NA) * 16384
    def issue_A(self, k, c):
        k(f"s_mov_b32 s56, {c*self.PA}")
        for i in range(8):
            k(f"s_add_u32 m0, s55, {self.aslot(c)+i*1024}")
            k.I(f"buffer_load_dwordx4 {v(self.voA[i])}, s[24:27], s56 offen lds", tag=f"{self.tag}a{c}")
    def issue_B(self, k, c):
        k(f"s_mov_b32 s57, {c*self.BSTEP}")
        for i in range(self.NBI):
            k(f"s_add_u32 m0, s{self.sBW}, {self.bslot[c]+i*1024}")
            k.I(f"buffer_load_dwordx4 {v(self.voB[i])}, s[{self.SWB}:{self.SWB+3}], s57 offen lds", tag=f"{self.tag}b{c}")
    def issue_Bv(self, k, c, vs):
        k(f"s_mov_b32 s57, {c*self.BSTEP}")
        for i in range(self.NBI):
            k.I(f"buffer_load_dwordx4 {v(vs+4*i,4)}, {v(self.voB[i])}, s[{self.SWB}:{self.SWB+3}], s57 offen", tag=f"{self.tag}b{c}")
    def place_Bv(self, k, c, vs, vl16, vtmp):
        k(f"s_add_u32 s58, s{self.sBW}, {self.bslot[c]}")
        k(f"v_add_u32 {v(vtmp)}, s58, {v(vl16)}")
        for i in range(self.NBI):
            k(f"ds_write_b128 {v(vtmp)}, {v(vs+4*i,4)} offset:{i*1024}")
    Qe = 1
    def spare(self, c): return 1 if c >= self.NC - self.D else 0

class P1(Phase):
    Qe = 5
    def spare(self, c): return 1 if (c >= self.NC - self.D or c % 2 == 1) else 0
    NC = 8; PA = 128; NBI = 6; BSTEP = 64 * 3072; has_ln = True; nprod = 16
    LDS_KV, LDS_Z, SP = EX + 2048, EX + 6144, 80
    def __init__(self, tag, xsrc, kv_off, st_off):
        super().__init__(tag); self.xsrc, self.kv_off, self.st_off = xsrc, kv_off, st_off
        self.instat = st_off is None
        self.has_ln = not self.instat
    def tile(self, k):
        k(f"s_mov_b32 s22, s{SC_}"); k(f"s_mov_b32 s23, s{SM_}")
        k("s_lshl_b32 s50, s22, 7"); k("s_lshl_b32 s54, s23, 6")
    def setup_A(self, k, vt, vt2):
        self.voA = a_dma_offsets(k, 8, 128, 1024, 50, vt, vt2)
        k("s_waitcnt lgkmcnt(0)")
        if self.xsrc == "in": srd(k, 24, P_X, 0, XB)
        else: srd(k, 24, P_WS, self.xsrc, XB)
    def setup_B(self, k, vt, vt2, vt3, tmp):
        self.voB = [k.valloc() for _ in range(6)]
        u, row, rem, t_, c_ = tmp
        k("s_mul_i32 s53, s59, 384")
        k(f"s_lshl_b32 s54, s{SM_}, 6")
        for i in range(6):
            k(f"v_add_u32 {v(u)}, s53, {v(k.vL)}")
            if i: k(f"v_add_u32 {v(u)}, {64*i}, {v(u)}")
            k(f"v_mul_u32_u24 {v(row)}, 0xaaab, {v(u)}")
            k(f"v_lshrrev_b32 {v(row)}, 19, {v(row)}")
            k(f"v_mul_u32_u24 {v(rem)}, 12, {v(row)}")
            k(f"v_sub_u32 {v(rem)}, {v(u)}, {v(rem)}")
            k(f"v_lshrrev_b32 {v(t_)}, 1, {v(rem)}")
            k(f"v_bfe_u32 {v(c_)}, {v(row)}, 3, 1")
            k(f"v_sub_u32 {v(t_)}, {v(t_)}, {v(c_)}")
            k(f"v_add_u32 {v(c_)}, 6, {v(t_)}")
            k(f"v_min_u32 {v(t_)}, {v(t_)}, {v(c_)}")
            k(f"v_lshrrev_b32 {v(c_)}, 1, {v(t_)}")
            k(f"v_lshlrev_b32 {v(c_)}, 10, {v(c_)}")
            k(f"v_and_b32 {v(t_)}, 1, {v(t_)}")
            k(f"v_lshl_add_u32 {v(c_)}, {v(t_)}, 5, {v(c_)}")
            k(f"v_and_b32 {v(rem)}, 1, {v(rem)}")
            k(f"v_lshl_add_u32 {v(c_)}, {v(rem)}, 4, {v(c_)}")
            k(f"v_mul_u32_u24 {v(row)}, 3072, {v(row)}")
            k(f"v_add3_u32 {v(self.voB[i])}, {v(row)}, {v(c_)}, s54")
        k(f"s_mul_i32 s{self.sBW}, s59, 6144")
        k("s_waitcnt lgkmcnt(0)")
        srd(k, self.SWB, P_WQKV, 0, 512 * 1536 * 2)
    def compute(self, k, vt, vt2, vt3):
        SP = self.SP; SCS = 40
        k("s_lshr_b32 s52, s3, 1")
        k("s_lshl_b32 s52, s52, 6")
        k("s_and_b32 s53, s3, 1")
        cs3 = k.valloc(12, 4)
        csq = cs3
        vcq = k.valloc(); vck = k.valloc()
        k("s_lshl_b32 s56, s23, 7")
        k("s_lshl_b32 s57, s53, 6")
        k("s_add_u32 s56, s56, s57")
        k(f"v_lshlrev_b32 {v(vcq)}, 4, {v(k.vG)}")
        k(f"v_add_u32 {v(vcq)}, s56, {v(vcq)}")
        k(f"v_lshlrev_b32 {v(vck)}, 2, {v(k.vR16)}")
        k(f"v_add_u32 {v(vck)}, s56, {v(vck)}")
        k(f"v_add_u32 {v(vck)}, 2048, {v(vck)}")
        if self.instat:
            for i in range(12): k(f"v_mov_b32 {v(cs3+i)}, 0")
            if os.environ.get("G_T0", "1") == "1":
                t0_ = k.valloc(4)
                k("s_waitcnt lgkmcnt(0)")
                srd(k, 24, P_WQKV, 0, 512 * 1536 * 2)
                srd(k, 28, P_X, 0, XB)
                k(f"v_lshlrev_b32 {v(vt)}, 4, v0")
                k("s_mul_i32 s57, s2, 6144")
                k(f"buffer_load_dword {v(t0_)}, {v(vt)}, s[24:27], s57 offen")
                k(f"buffer_load_dword {v(t0_+1)}, {v(vt)}, s[24:27], s57 offen offset:2048")
                k("s_lshl_b32 s57, s2, 13")
                k(f"buffer_load_dword {v(t0_+2)}, {v(vt)}, s[28:31], s57 offen")
                k("s_add_u32 s57, s57, 4096")
                k(f"buffer_load_dword {v(t0_+3)}, {v(vt)}, s[28:31], s57 offen")
        else:
            k("s_waitcnt lgkmcnt(0)")
            srd(k, SCS, P_WS, WS_CS, 1536 * 4)
            k(f"buffer_load_dwordx4 {v(cs3,4)}, {v(vcq)}, s[{SCS}:{SCS+3}], 0 offen")
            for kv in range(2):
                k(f"buffer_load_dword {v(cs3+4+4*kv)}, {v(vck)}, s[{SCS}:{SCS+3}], 0 offen offset:{2048*kv}")
        ones = k.valloc(4)
        for i in range(4): k(f"v_mov_b32 {v(ones+i)}, 0x3f803f80")
        k("s_lshl_b32 s57, s53, 5")
        k("s_add_u32 s66, s52, s57")
        k("s_xor_b32 s57, s57, 32")
        k("s_add_u32 s67, s52, s57")
        B = Bases(k)
        a_read_bases(k, B, 128, 66, 2, vt, vt2)
        B2 = Bases(k)
        a_read_bases(k, B2, 128, 67, 2, vt, vt2)
        k(f"v_bfe_u32 {v(vt)}, {v(k.vL)}, 2, 2")
        k(f"v_lshl_add_u32 {v(vt)}, {v(k.vG)}, 3, {v(vt)}")
        k(f"v_mul_u32_u24 {v(vt)}, 192, {v(vt)}")
        k(f"v_and_b32 {v(vt2)}, 3, {v(k.vL)}")
        k(f"v_lshl_add_u32 {v(vt)}, {v(vt2)}, 3, {v(vt)}")
        k(f"v_and_b32 {v(vt2)}, 1, {v(k.vG)}")
        k(f"v_add_u32 {v(vt2)}, s53, {v(vt2)}")
        for j in range(3):
            r = k.valloc()
            k(f"v_add_u32 {v(vt3)}, {2*j}, {v(vt2)}")
            if j == 2:
                k(f"v_subrev_u32 {v(r)}, 6, {v(vt3)}")
                k(f"v_min_u32 {v(vt3)}, {v(vt3)}, {v(r)}")
            k(f"v_lshl_add_u32 {v(r)}, {v(vt3)}, 5, {v(vt)}")
            B.add(("W", j), r, 3)
        acc = k.valloc(48, 4)
        for i in range(48): k(f"v_mov_b32 {v(acc+i)}, 0")
        Ab = [k.valloc(16, 4), k.valloc(16, 4)]; Wb = [k.valloc(12, 4), k.valloc(12, 4)]
        ab = [k.valloc(2, 2) for _ in range(4)]
        abn = [k.valloc(8, 4) for _ in range(4)]
        vab = [k.valloc(), k.valloc()]; vabn = [k.valloc(), k.valloc()]
        for h in range(2):
            k(f"v_add_u32 {v(vab[h])}, s{66+h}, {v(k.vR16)}")
            k(f"v_lshlrev_b32 {v(vab[h])}, 3, {v(vab[h])}")
            k(f"v_add_u32 {v(vab[h])}, {LDS_AB}, {v(vab[h])}")
            k(f"v_lshlrev_b32 {v(vabn[h])}, 2, {v(k.vG)}")
            k(f"v_add_u32 {v(vabn[h])}, s{66+h}, {v(vabn[h])}")
            k(f"v_lshlrev_b32 {v(vabn[h])}, 3, {v(vabn[h])}")
            k(f"v_add_u32 {v(vabn[h])}, {LDS_AB}, {v(vabn[h])}")
        if self.instat:
            sta = k.valloc(16, 4)
            for i in range(16): k(f"v_mov_b32 {v(sta+i)}, 0")
        def reads(ks):
            c = ks // 2; kk = ks & 1; A_ = Ab[ks & 1]; W_ = Wb[ks & 1]
            ra = [f"ds_read_b128 {v(A_+4*rt,4)}, {(B if rt < 2 else B2).at(('A',kk), self.aslot(c) + (rt&1)*2048)}" for rt in range(4)]
            rw = [f"ds_read_b64_tr_b16 {v(W_+4*j+2*hh,2)}, {B.at(('W',j), self.bslot[c] + kk*6144 + hh*768)}" for j in range(3) for hh in range(2)]
            return [ra[0]] + rw + ra[1:]
        def mfmas(ks):
            A_ = Ab[ks & 1]; W_ = Wb[ks & 1]; out = []
            for rt in range(4):
                for j in range(3):
                    ac = acc + (rt * 3 + j) * 4
                    if j == 0: out.append(f"v_mfma_f32_16x16x32_bf16 {v(ac,4)}, {v(W_,4)}, {v(A_+4*rt,4)}, {v(ac,4)}")
                    else: out.append(f"v_mfma_f32_16x16x32_bf16 {v(ac,4)}, {v(A_+4*rt,4)}, {v(W_+4*j,4)}, {v(ac,4)}")
            if self.instat:
                out.append(f"v_mfma_f32_16x16x32_bf16 {v(cs3,4)}, {v(W_,4)}, {v(ones,4)}, {v(cs3,4)}")
                for j in (1, 2): out.append(f"v_mfma_f32_16x16x32_bf16 {v(cs3+4*j,4)}, {v(ones,4)}, {v(W_+4*j,4)}, {v(cs3+4*j,4)}")
                for rt in range(2):
                    out.append(f"v_mfma_f32_16x16x32_bf16 {v(sta+8*rt,4)}, {v(ones,4)}, {v(A_+4*rt,4)}, {v(sta+8*rt,4)}")
                    out.append(f"v_mfma_f32_16x16x32_bf16 {v(sta+8*rt+4,4)}, {v(A_+4*rt,4)}, {v(A_+4*rt,4)}, {v(sta+8*rt+4,4)}")
            return out
        o = []
        for rt in range(4):
            o.append(f"ds_read_b128 {v(abn[rt],4)}, {v(vabn[rt>>1])} offset:{(rt&1)*128}")
            o.append(f"ds_read_b128 {v(abn[rt]+4,4)}, {v(vabn[rt>>1])} offset:{(rt&1)*128+16}")
            o.append(f"ds_read_b64 {v(ab[rt],2)}, {v(vab[rt>>1])} offset:{(rt&1)*128}")
        main_loop(k, 16, 2, reads, mfmas, [] if self.instat else o)
        if self.instat:
            k(f"v_and_b32 {v(vt)}, 3, {v(k.vL)}")
            k(f"v_lshrrev_b32 {v(vt2)}, 2, {v(k.vR16)}")
            k(f"v_cmp_eq_u32 s[60:61], {v(vt2)}, {v(k.vG)}")
            for rt in range(2):
                g_ = sta + 8 * rt + 4; q = sta + 8 * rt + 1; m = sta + 8 * rt
                for j in range(1, 4):
                    k(f"v_cmp_eq_u32 vcc, {j}, {v(vt)}")
                    k(f"v_cndmask_b32 {v(g_)}, {v(g_)}, {v(g_+j)}, vcc")
                k(f"v_cndmask_b32 {v(q)}, 0, {v(g_)}, s[60:61]")
                gen.xlane_sum_g(k, q, vt3)
                ln_finish(k, m, q, ab[rt])
                k(f"ds_write_b64 {v(vab[0])}, {v(ab[rt],2)} offset:{rt*128}")
            k("s_waitcnt lgkmcnt(0)")
        k("s_barrier")
        if self.instat:
            for x in o: k(x)
            srd(k, SCS, P_WS, WS_CS, 1536 * 4)
            k(f"s_or_b32 s57, s{SC_}, s52")
            k("s_cmp_eq_u32 s57, 0")
            k(f"s_cselect_b32 s{SCS+2}, s{SCS+2}, 0")
            k(f"buffer_store_dwordx4 {v(cs3,4)}, {v(vcq)}, s[{SCS}:{SCS+3}], 0 offen")
            for kv in range(2):
                k(f"buffer_store_dword {v(cs3+4+4*kv)}, {v(vck)}, s[{SCS}:{SCS+3}], 0 offen offset:{2048*kv}")
        k(f"s_mov_b32 s62, {LOG2E:#x}"); k(f"s_mov_b32 s63, {LOG2E:#x}")
        k(f"s_mov_b32 s64, {fbits(1e-6):#x}"); k(f"s_mov_b32 s65, {fbits(1e-6):#x}")
        T = k.valloc(4)
        fk = k.valloc(8, 4); fv = k.valloc(8, 4)
        for rt in range(4):
            for j in (1, 2):
                ac = acc + (rt * 3 + j) * 4; f = (fk, fv)[j - 1] + 2 * rt
                for jj in range(4): k(f"v_mul_f32 {v(T+jj)}, {v(abn[rt]+2*jj+1)}, {v(cs3+4*j)}")
                for jj in range(4): k(f"v_fma_f32 {v(ac+jj)}, {v(abn[rt]+2*jj)}, {v(ac+jj)}, {v(T+jj)}")
                if j == 1: phi4(k, ac, T)
                k(f"v_cvt_pk_bf16_f32 {v(f)}, {v(ac)}, {v(ac+1)}")
                k(f"v_cvt_pk_bf16_f32 {v(f+1)}, {v(ac+2)}, {v(ac+3)}")
        kvp = k.valloc(4); zp = k.valloc(4)
        k(f"v_mfma_f32_16x16x32_bf16 {v(kvp,4)}, {v(fk,4)}, {v(fv,4)}, 0")
        k(f"v_mfma_f32_16x16x32_bf16 {v(zp,4)}, {v(fk,4)}, {v(ones,4)}, 0")
        k(f"v_mfma_f32_16x16x32_bf16 {v(kvp,4)}, {v(fk+4,4)}, {v(fv+4,4)}, {v(kvp,4)}")
        k(f"v_mfma_f32_16x16x32_bf16 {v(zp,4)}, {v(fk+4,4)}, {v(ones,4)}, {v(zp,4)}")
        vs = [k.valloc(), k.valloc()]
        k("s_lshl_b32 s57, s53, 5")
        for h in range(2):
            k(f"v_add_u32 {v(vs[h])}, s{66+h}, {v(k.vR16)}")
            k(f"v_mul_u32_u24 {v(vs[h])}, {SP}, {v(vs[h])}")
            k(f"v_lshl_add_u32 {v(vs[h])}, {v(k.vG)}, 3, {v(vs[h])}")
            k(f"v_add_u32 {v(vs[h])}, s57, {v(vs[h])}")
        for rt in range(4):
            ac = acc + rt * 12
            for p in range(2):
                k(f"v_pk_mul_f32 {v(T+2*p,2)}, {v(csq+2*p,2)}, {v(ab[rt],2)} op_sel:[0,1] op_sel_hi:[1,1]")
            for p in range(2):
                k(f"v_pk_fma_f32 {v(ac+2*p,2)}, {v(ac+2*p,2)}, {v(ab[rt],2)}, {v(T+2*p,2)} op_sel:[0,0,0] op_sel_hi:[1,0,1]")
            phi4(k, ac, T)
            k(f"v_cvt_pk_bf16_f32 {v(ac)}, {v(ac)}, {v(ac+1)}")
            k(f"v_cvt_pk_bf16_f32 {v(ac+1)}, {v(ac+2)}, {v(ac+3)}")
            k(f"ds_write_b64 {v(vs[rt>>1])}, {v(ac,2)} offset:{(rt&1)*16*SP}")
        k("s_lshl_b32 s57, s3, 10")
        k(f"s_add_u32 s57, s57, {self.LDS_KV}")
        k(f"v_lshlrev_b32 {v(vt)}, 4, {v(k.vL)}")
        k(f"v_add_u32 {v(vt)}, s57, {v(vt)}")
        k("s_lshl_b32 s58, s3, 6")
        k(f"s_add_u32 s58, s58, {self.LDS_Z}")
        k(f"v_lshlrev_b32 {v(vt2)}, 4, {v(k.vG)}")
        k(f"v_add_u32 {v(vt2)}, s58, {v(vt2)}")
        k(f"ds_write_b128 {v(vt)}, {v(kvp,4)}")
        k(f"ds_write_b128 {v(vt2)}, {v(zp,4)}")
        k("s_waitcnt lgkmcnt(0)")
    def store(self, k, vt, vt2, vt3, emit_stores):
        SPQ, SKV, SP = 32, 36, self.SP
        srd(k, SPQ, P_WS, WS_PQ, XB)
        srd(k, SKV, P_WS, self.kv_off, 34816)
        k("s_barrier")
        vy = k.valloc(8, 4); va_ = k.valloc(); vo = k.valloc(); rd = k.valloc(8, 4)
        k(f"v_lshrrev_b32 {v(vt)}, 2, v0")
        k(f"v_and_b32 {v(vt2)}, 3, v0")
        k(f"v_mul_u32_u24 {v(va_)}, {SP}, {v(vt)}")
        k(f"v_lshl_add_u32 {v(va_)}, {v(vt2)}, 4, {v(va_)}")
        k(f"ds_read_b128 {v(vy,4)}, {v(va_)}")
        k(f"ds_read_b128 {v(vy+4,4)}, {v(va_)} offset:{64*SP}")
        k(f"v_add_u32 {v(vt)}, s50, {v(vt)}")
        k(f"v_lshlrev_b32 {v(vo)}, 10, {v(vt)}")
        k(f"v_lshl_add_u32 {v(vo)}, {v(vt2)}, 4, {v(vo)}")
        k(f"v_add_u32 {v(vo)}, s54, {v(vo)}")
        k(f"v_bfe_u32 {v(vt)}, v0, 3, 4")
        k(f"v_lshlrev_b32 {v(vt)}, 4, {v(vt)}")
        k(f"v_bfe_u32 {v(vt2)}, v0, 7, 1")
        k(f"v_lshl_add_u32 {v(vt)}, {v(vt2)}, 9, {v(vt)}")
        k(f"v_bfe_u32 {v(vt2)}, v0, 2, 1")
        k(f"v_lshl_add_u32 {v(vt)}, {v(vt2)}, 8, {v(vt)}")
        k(f"v_and_b32 {v(vt2)}, 3, v0")
        k(f"v_lshl_add_u32 {v(vt)}, {v(vt2)}, 2, {v(vt)}")
        k(f"v_add_u32 {v(vt)}, {self.LDS_KV}, {v(vt)}")
        for h in range(2):
            k(f"ds_read_b32 {v(rd+2*h)}, {v(vt)} offset:{h*1024}")
            k(f"ds_read_b32 {v(rd+2*h+1)}, {v(vt)} offset:{h*1024+2048}")
        k(f"v_and_b32 {v(vt3)}, 31, v0")
        k(f"v_lshlrev_b32 {v(vt3)}, 2, {v(vt3)}")
        k(f"v_add_u32 {v(vt2)}, {self.LDS_Z}, {v(vt3)}")
        k(f"ds_read_b32 {v(rd+4)}, {v(vt2)}")
        k(f"ds_read_b32 {v(rd+5)}, {v(vt2)} offset:128")
        k("s_mov_b32 s60, 65536")
        emit_stores([f"buffer_store_dwordx4 {v(vy,4)}, {v(vo)}, s[{SPQ}:{SPQ+3}], 0 offen",
                     f"buffer_store_dwordx4 {v(vy+4,4)}, {v(vo)}, s[{SPQ}:{SPQ+3}], s60 offen"])
        k("s_lshl_b32 s57, s23, 11")
        k(f"v_lshlrev_b32 {v(vt2)}, 2, v0")
        k(f"v_add_u32 {v(vt2)}, s57, {v(vt2)}")
        for h in range(2):
            k(f"v_add_f32 {v(rd+2*h)}, {v(rd+2*h)}, {v(rd+2*h+1)}")
            k(f"buffer_atomic_add_f32 {v(rd+2*h)}, {v(vt2)}, s[{SKV}:{SKV+3}], 0 offen offset:{h*1024}")
        k("s_lshl_b32 s57, s23, 7")
        k(f"s_add_u32 s57, s57, 32768")
        k(f"v_add_u32 {v(vt3)}, s57, {v(vt3)}")
        k(f"v_mov_b32 {v(vt2)}, 0x7ffffff0")
        k(f"v_cmp_gt_u32 vcc, 32, v0")
        k(f"v_cndmask_b32 {v(vt3)}, {v(vt2)}, {v(vt3)}, vcc")
        k(f"v_add_f32 {v(rd+4)}, {v(rd+4)}, {v(rd+5)}")
        k(f"buffer_atomic_add_f32 {v(rd+4)}, {v(vt3)}, s[{SKV}:{SKV+3}], 0 offen")

class P2(Phase):
    NC = 4; PA = 256; NBI = 8; BSTEP = 131072; nprod = 16; pseudo = 1
    LDS_Z, LDS_0 = EX + 2048, EX + 3072
    def __init__(self, tag, xsrc, kv_off, xdst, st_off): super().__init__(tag); self.xsrc, self.kv_off, self.xdst, self.st_off = xsrc, kv_off, xdst, st_off
    def tile(self, k): tile64(k)
    def setup_A(self, k, vt, vt2):
        self.voA = a_dma_offsets(k, 8, 256, 1024, 50, vt, vt2)
        k("s_waitcnt lgkmcnt(0)")
        srd(k, 24, P_WS, WS_PQ, XB)
    def setup_B(self, k, vt, vt2, vt3, tmp):
        self.voB = [k.valloc() for _ in range(8)]
        k(f"v_lshrrev_b32 {v(vt)}, 3, {v(k.vL)}")
        k(f"v_bfe_u32 {v(vt2)}, {v(k.vL)}, 4, 2")
        k(f"v_lshlrev_b32 {v(vt2)}, 1, {v(vt2)}")
        k(f"v_and_b32 {v(vt3)}, 7, {v(k.vL)}")
        k(f"v_xor_b32 {v(vt2)}, {v(vt2)}, {v(vt3)}")
        k(f"v_lshlrev_b32 {v(vt2)}, 4, {v(vt2)}")
        k(f"v_lshl_add_u32 {v(vt)}, {v(vt)}, 10, {v(vt2)}")
        k("s_lshl_b32 s52, s59, 16")
        k(f"s_and_b32 s54, s{SM_}, 7"); k("s_lshl_b32 s54, s54, 7")
        k("s_add_u32 s52, s52, s54")
        k(f"v_add_u32 {v(self.voB[0])}, s52, {v(vt)}")
        for i in range(1, 8): k(f"v_add_u32 {v(self.voB[i])}, {8192*i}, {v(self.voB[0])}")
        k(f"s_lshl_b32 s{self.sBW}, s59, 13")
        k("s_waitcnt lgkmcnt(0)")
        srd(k, self.SWB, P_WO, 0, 512 * 512 * 2)
    def compute(self, k, vt, vt2, vt3):
        SKV, SX = 36, 24
        LDS_F, LDS_Z, LDS_0 = self.bslot[self.NC], self.LDS_Z, self.LDS_0
        self.xr = k.valloc(8, 4)
        kvf = k.valloc(32, 4); zf = k.valloc(2, 2)
        k("s_lshl_b32 s52, s3, 13")
        k(f"v_lshlrev_b32 {v(vt)}, 5, {v(k.vL)}")
        k(f"v_add_u32 {v(vt)}, s52, {v(vt)}")
        k(f"v_add_u32 {v(vt2)}, 4096, {v(vt)}")
        k("s_waitcnt lgkmcnt(0)")
        srd(k, SKV, P_WS, self.kv_off, 34816)
        for p in range(4):
            for hlf in range(2):
                k(f"buffer_load_dwordx4 {v(kvf+8*p+4*hlf,4)}, {v(vt if p < 2 else vt2)}, s[{SKV}:{SKV+3}], 0 offen offset:{(p&1)*2048+hlf*16}")
        k(f"v_lshlrev_b32 {v(vt3)}, 3, v0")
        k(f"v_add_u32 {v(vt3)}, 32768, {v(vt3)}")
        k(f"buffer_load_dwordx2 {v(zf,2)}, {v(vt3)}, s[{SKV}:{SKV+3}], 0 offen")
        if self.xsrc == "in": srd(k, SX, P_X, 0, XB)
        else: srd(k, SX, P_WS, self.xsrc, XB)
        resid_load64(k, SX, vt, vt2, self.xr)
        k("s_lshl_b32 s52, s3, 4")
        B = Bases(k)
        a_read_bases(k, B, 256, 52, 2, vt, vt2)
        aA0, aA1, aAz, sA0, sA1, sAz = [k.valloc() for _ in range(6)]
        k(f"v_lshlrev_b32 {v(vt)}, 4, {v(k.vL)}")
        k(f"v_add_u32 {v(vt)}, {LDS_F}, {v(vt)}")
        k(f"v_mov_b32 {v(vt2)}, {LDS_0}")
        k(f"v_cmp_gt_u32 vcc, 2, {v(k.vG)}")
        k(f"v_cndmask_b32 {v(aA0)}, {v(vt2)}, {v(vt)}, vcc")
        k(f"v_cndmask_b32 {v(aA1)}, {v(vt)}, {v(vt2)}, vcc")
        k(f"v_mov_b32 {v(vt3)}, 1024")
        k(f"v_cndmask_b32 {v(sA0)}, 0, {v(vt3)}, vcc")
        k(f"v_cndmask_b32 {v(sA1)}, {v(vt3)}, 0, vcc")
        k(f"v_and_b32 {v(vt)}, 3, {v(k.vL)}")
        k(f"v_lshrrev_b32 {v(vt3)}, 1, {v(k.vG)}")
        k(f"v_cmp_eq_u32 vcc, {v(vt)}, {v(vt3)}")
        k(f"v_lshlrev_b32 {v(vt)}, 4, {v(k.vG)}")
        k(f"v_add_u32 {v(vt)}, {LDS_Z}, {v(vt)}")
        k(f"v_cndmask_b32 {v(aAz)}, {v(vt2)}, {v(vt)}, vcc")
        k(f"v_cndmask_b32 {v(sAz)}, 0, 64, vcc")
        k(f"v_bfe_u32 {v(vt)}, {v(k.vL)}, 2, 2")
        k(f"v_lshl_add_u32 {v(vt)}, {v(k.vG)}, 2, {v(vt)}")
        k(f"v_bfe_u32 {v(vt2)}, {v(vt)}, 1, 2")
        k(f"v_lshlrev_b32 {v(vt)}, 7, {v(vt)}")
        k(f"v_and_b32 {v(vt3)}, 3, {v(k.vL)}")
        k(f"v_lshl_add_u32 {v(vt)}, {v(vt3)}, 3, {v(vt)}")
        for t in range(4):
            r = k.valloc()
            k(f"v_xor_b32 {v(vt3)}, {t}, {v(vt2)}")
            k(f"v_lshl_add_u32 {v(r)}, {v(vt3)}, 5, {v(vt)}")
            B.add(("W", t), r, 3)
        acc = k.valloc(16, 4)
        for i in range(16): k(f"v_mov_b32 {v(acc+i)}, 0")
        k("s_lshl_b32 s57, s3, 12")
        k(f"s_add_u32 s57, s57, {LDS_F}")
        k(f"v_lshlrev_b32 {v(vt)}, 4, {v(k.vL)}")
        k(f"v_add_u32 {v(vt)}, s57, {v(vt)}")
        for p in range(4):
            for i in range(4):
                k(f"v_cvt_pk_bf16_f32 {v(kvf+8*p+i)}, {v(kvf+8*p+2*i)}, {v(kvf+8*p+2*i+1)}")
            k(f"ds_write_b128 {v(vt)}, {v(kvf+8*p,4)} offset:{p*1024}")
        k(f"v_cvt_pk_bf16_f32 {v(zf)}, {v(zf)}, {v(zf+1)}")
        k(f"v_lshlrev_b32 {v(vt2)}, 2, v0")
        k(f"v_add_u32 {v(vt2)}, {LDS_Z}, {v(vt2)}")
        k(f"ds_write_b32 {v(vt2)}, {v(zf)}")
        k(f"v_mov_b32 {v(zf)}, 0")
        k(f"v_and_b32 {v(vt2)}, 3, v0")
        k(f"v_lshlrev_b32 {v(vt2)}, 2, {v(vt2)}")
        k(f"v_add_u32 {v(vt2)}, {LDS_0}, {v(vt2)}")
        k(f"ds_write_b32 {v(vt2)}, {v(zf)}")
        Wb = [kvf, k.valloc(32, 4)]
        Fb = k.valloc(24, 4); Pb = k.valloc(8, 4)
        N = [k.valloc(24, 4), k.valloc(24, 4)]
        O = [k.valloc(8, 4), k.valloc(8, 4)]; rr = k.valloc(4, 4)
        k(f"s_mov_b32 s62, {fbits(1e-6):#x}"); k(f"s_mov_b32 s63, {fbits(1e-6):#x}")
        def freads(hc):
            o = []
            for q in range(2):
                o += [f"ds_read_b128 {v(Pb+4*q,4)}, {B.at(('A',(hc&1)*2+q), self.aslot(hc//2))}",
                      f"ds_read_b128 {v(Fb+12*q,4)}, {v(aA0)}", f"ds_read_b128 {v(Fb+12*q+4,4)}, {v(aA1)}", f"ds_read_b128 {v(Fb+12*q+8,4)}, {v(aAz)}",
                      f"v_add_u32 {v(aA0)}, {v(aA0)}, {v(sA0)}", f"v_add_u32 {v(aA1)}, {v(aA1)}, {v(sA1)}", f"v_add_u32 {v(aAz)}, {v(aAz)}, {v(sAz)}"]
            return o
        def wreads(hc):
            b = Wb[hc & 1]
            return [f"ds_read_b64_tr_b16 {v(b+16*q+4*t+2*hh,2)}, {B.at(('W',t), self.bslot[hc//2] + ((hc&1)*2+q)*4096 + hh*2048)}" for q in range(2) for t in range(4) for hh in range(2)]
        def amfma(c):
            n = N[c & 1]
            return [f"v_mfma_f32_16x16x32_bf16 {v(n+12*q+4*i,4)}, {v(Fb+12*q+4*i,4)}, {v(Pb+4*q,4)}, 0" for q in range(2) for i in range(3)]
        def cmfma(c):
            b = Wb[c & 1]; o = O[c & 1]
            return [f"v_mfma_f32_16x16x32_bf16 {v(acc+4*t,4)}, {v(b+16*q+4*t,4)}, {v(o+4*q,4)}, {v(acc+4*t,4)}" for q in range(2) for t in range(4)]
        def ovalu(c):
            n0 = N[c & 1]; Oo = O[c & 1]; o = []
            for q in range(2):
                for i in range(2): o.append(f"v_add_f32 {v(rr+2*q+i)}, s62, {v(n0+12*q+8+i)}")
            for i in range(4): o.append(f"v_rcp_f32 {v(rr+i)}, {v(rr+i)}")
            for q in range(2):
                n = n0 + 12 * q
                for x in range(8): o.append(f"v_mul_f32 {v(n+x)}, {v(n+x)}, {v(rr+2*q+x//4)}")
            for q in range(2):
                n = n0 + 12 * q
                for h in range(2):
                    o.append(f"v_cvt_pk_bf16_f32 {v(Oo+4*q+2*h)}, {v(n+4*h)}, {v(n+4*h+1)}")
                    o.append(f"v_cvt_pk_bf16_f32 {v(Oo+4*q+2*h+1)}, {v(n+4*h+2)}, {v(n+4*h+3)}")
            return o
        k("s_waitcnt lgkmcnt(0)")
        k("s_barrier"); k.stamp()
        for r in freads(0) + wreads(0): k(r)
        for r in amfma(0): k(r)
        for c in range(9):
            if c + 1 < 8:
                if (c + 1) % 2 == 0:
                    k("s_waitcnt lgkmcnt(0)")
                    k("s_barrier")
                for r in freads(c + 1): k(r)
            mf = (cmfma(c - 1) if c >= 1 else []) + (amfma(c + 1) if c + 1 < 8 else [])
            va = (ovalu(c) if c < 8 else [])
            wr = wreads(c + 1) if c + 1 < 8 else []
            nc_ = 8 if c >= 1 else 0
            i_ = j_ = w_ = 0
            while i_ < len(mf) or j_ < len(va) or w_ < len(wr):
                if i_ < len(mf): k(mf[i_]); i_ += 1
                for _ in range(2):
                    if j_ < len(va): k(va[j_]); j_ += 1
                if i_ >= nc_:
                    for _ in range(3):
                        if w_ < len(wr): k(wr[w_]); w_ += 1
        k.stamp()
        k("s_barrier")
        vs = k.valloc()
        k(f"v_add_u32 {v(vs)}, s52, {v(k.vR16)}")
        k(f"v_mul_u32_u24 {v(vs)}, 144, {v(vs)}")
        k(f"v_lshl_add_u32 {v(vs)}, {v(k.vG)}, 3, {v(vs)}")
        for t in range(4):
            ac = acc + 4 * t
            k(f"v_cvt_pk_bf16_f32 {v(ac)}, {v(ac)}, {v(ac+1)}")
            k(f"v_cvt_pk_bf16_f32 {v(ac+1)}, {v(ac+2)}, {v(ac+3)}")
            k(f"ds_write_b64 {v(vs)}, {v(ac,2)} offset:{t*32}")
        k("s_waitcnt lgkmcnt(0)")
    def store(self, k, vt, vt2, vt3, emit_stores):
        store64(self, k, emit_stores)

def store64(p, k, emit_stores):
    SD, SST = 40, 44
    if p.xdst == "out": srd(k, SD, P_OUT, 0, XB)
    else: srd(k, SD, P_WS, p.xdst, XB)
    if p.st_off is not None: srd(k, SST, P_WS, p.st_off, 2048 * 64)
    k("s_barrier")
    vy, vo, sm, va_ = store64_prep(k, p.xr, p.st_off is not None)
    k("s_mov_b32 s60, 32768")
    st = [f"buffer_store_dwordx4 {v(vy,4)}, {v(vo)}, s[{SD}:{SD+3}], 0 offen", f"buffer_store_dwordx4 {v(vy+4,4)}, {v(vo)}, s[{SD}:{SD+3}], s60 offen"]
    if p.st_off is not None:
        st += [f"buffer_store_dwordx2 {v(sm,2)}, {v(va_)}, s[{SST}:{SST+3}], 0 offen", f"buffer_store_dwordx2 {v(sm+2,2)}, {v(va_)}, s[{SST}:{SST+3}], 0 offen offset:2048"]
    emit_stores(st)

class P3(Phase):
    Qe = 6
    def spare(self, c): return 1 if (c >= self.NC - self.D or c % 2 == 1) else 0
    NC = 8; PA = 128; NBI = 8; BSTEP = 64 * 3584; has_ln = True; nprod = 16
    SP = 240
    def __init__(self, tag, xsrc, st_off, hoff): super().__init__(tag); self.xsrc, self.st_off, self.hoff = xsrc, st_off, hoff
    def tile(self, k):
        k(f"s_mov_b32 s22, s{SC_}"); k(f"s_mov_b32 s23, s{SM_}")
        k("s_lshl_b32 s50, s22, 7"); k("s_mul_i32 s54, s23, 224")
    def setup_A(self, k, vt, vt2):
        self.voA = a_dma_offsets(k, 8, 128, 1024, 50, vt, vt2)
        k("s_waitcnt lgkmcnt(0)")
        srd(k, 24, P_WS, self.xsrc, XB)
    def setup_B(self, k, vt, vt2, vt3, tmp):
        self.voB = [k.valloc() for _ in range(8)]
        k("s_lshl_b32 s52, s59, 5")
        k(f"s_mul_i32 s54, s{SM_}, 224")
        for i in range(8):
            k(f"v_lshlrev_b32 {v(vt)}, 1, {v(k.vG)}")
            if (i >> 1) & 1: k(f"v_or_b32 {v(vt)}, 8, {v(vt)}")
            k(f"v_xor_b32 {v(vt)}, {v(vt)}, {v(k.vR16)}")
            if i in (0, 2): k(f"v_cmp_gt_u32 s[{62+i}:{63+i}], 14, {v(vt)}")
            k(f"v_lshlrev_b32 {v(vt)}, 4, {v(vt)}")
            k(f"v_add3_u32 {v(vt2)}, {v(k.vG)}, s52, {4*i}")
            k(f"v_mul_u32_u24 {v(vt2)}, 3584, {v(vt2)}")
            k(f"v_add3_u32 {v(self.voB[i])}, {v(vt2)}, {v(vt)}, s54")
        k(f"s_lshl_b32 s{self.sBW}, s59, 13")
        k("s_waitcnt lgkmcnt(0)")
        srd(k, self.SWB, P_W1, 0, 512 * 1792 * 2)
    def issue_B(self, k, c):
        k(f"s_mov_b32 s57, {c*self.BSTEP}")
        for i in range(self.NBI):
            if i % 2 == 0: k(f"s_mov_b64 exec, s[{62+(i&2)}:{63+(i&2)}]")
            k(f"s_add_u32 m0, s{self.sBW}, {self.bslot[c]+i*1024}")
            k.I(f"buffer_load_dwordx4 {v(self.voB[i])}, s[{self.SWB}:{self.SWB+3}], s57 offen lds", tag=f"{self.tag}b{c}")
        k("s_mov_b64 exec, -1")
    def compute(self, k, vt, vt2, vt3):
        SP = self.SP
        k("s_lshl_b32 s52, s3, 5")
        cs = k.valloc(28, 4); vcs = k.valloc()
        k(f"v_lshlrev_b32 {v(vcs)}, 4, {v(k.vG)}")
        k(f"v_add_u32 {v(vcs)}, {LDS_CS}, {v(vcs)}")
        B = Bases(k)
        a_read_bases(k, B, 128, 52, 1, vt, vt2)
        k(f"v_bfe_u32 {v(vt)}, {v(k.vL)}, 2, 2")
        k(f"v_and_b32 {v(vt2)}, 1, {v(k.vG)}")
        k(f"v_lshl_add_u32 {v(vt2)}, {v(vt2)}, 2, {v(vt)}")
        k(f"v_lshl_add_u32 {v(vt)}, {v(k.vG)}, 3, {v(vt)}")
        k(f"v_lshlrev_b32 {v(vt)}, 8, {v(vt)}")
        k(f"v_and_b32 {v(vt3)}, 3, {v(k.vL)}")
        k(f"v_lshl_add_u32 {v(vt)}, {v(vt3)}, 3, {v(vt)}")
        k(f"v_add_u32 {v(vt)}, 65536, {v(vt)}")
        W0 = {}
        for t in range(7):
            r = k.valloc(); r2 = k.valloc()
            k(f"v_xor_b32 {v(vt3)}, {t}, {v(vt2)}")
            k(f"v_lshl_add_u32 {v(r)}, {v(vt3)}, 5, {v(vt)}")
            k(f"v_add_u32 {v(r2)}, 65536, {v(r)}")
            W0[t] = (r, r2)
        assert BRING == 65536
        def wat(t, off): return f"{v(W0[t][(off >> 16) - 1])} offset:{off & 65535}"
        acc = k.valloc(56, 4)
        for i in range(56): k(f"v_mov_b32 {v(acc+i)}, 0")
        Ab = [k.valloc(8, 4), k.valloc(8, 4)]; Wb = [k.valloc(28, 4), k.valloc(28, 4)]
        ab = [k.valloc(2, 2) for _ in range(2)]
        vab = k.valloc()
        k(f"v_add_u32 {v(vab)}, s52, {v(k.vR16)}")
        k(f"v_lshlrev_b32 {v(vab)}, 3, {v(vab)}")
        k(f"v_add_u32 {v(vab)}, {LDS_AB}, {v(vab)}")
        def reads(ks):
            c = ks // 2; kk = ks & 1; A_ = Ab[ks & 1]; W_ = Wb[ks & 1]
            ra = [f"ds_read_b128 {v(A_+4*rt,4)}, {B.at(('A',kk), self.aslot(c) + rt*2048)}" for rt in range(2)]
            rw = [f"ds_read_b64_tr_b16 {v(W_+4*t+2*hh,2)}, {wat(t, self.bslot[c] + kk*8192 + hh*1024)}" for t in range(7) for hh in range(2)]
            return ra + rw
        def mfmas(ks):
            A_ = Ab[ks & 1]; W_ = Wb[ks & 1]
            return [f"v_mfma_f32_16x16x32_bf16 {v(acc+(rt*7+t)*4,4)}, {v(W_+4*t,4)}, {v(A_+4*rt,4)}, {v(acc+(rt*7+t)*4,4)}" for t in range(7) for rt in range(2)]
        last = [f"ds_read_b64 {v(ab[rt],2)}, {v(vab)} offset:{rt*128}" for rt in range(2)] + [f"ds_read_b128 {v(cs+4*t,4)}, {v(vcs)} offset:{t*64}" for t in range(7)]
        k.dstamp()
        k("s_barrier"); k.stamp()
        for r in reads(0): k(r)
        for ks in range(16):
            if ks == 15: interleave(k, mfmas(ks), last)
            else:
                if (ks + 1) % 2 == 0:
                    k("s_waitcnt lgkmcnt(0)")
                    k.dstamp()
                    k("s_barrier")
                rd = reads(ks + 1); mf = mfmas(ks)
                k(rd[0]); k(rd[1])
                interleave(k, mf, rd[2:])
        k.stamp()
        k("s_barrier")
        vs = k.valloc()
        k(f"v_add_u32 {v(vs)}, s52, {v(k.vR16)}")
        k(f"v_mul_u32_u24 {v(vs)}, {SP}, {v(vs)}")
        k(f"v_lshl_add_u32 {v(vs)}, {v(k.vG)}, 3, {v(vs)}")
        tmp = k.valloc(8, 4)
        k(f"s_mov_b32 s62, {LOG2E | 0x80000000:#x}")
        k(f"s_mov_b32 s63, {LOG2E | 0x80000000:#x}")
        k("s_mov_b32 s64, 1.0"); k("s_mov_b32 s65, 1.0")
        for rt in range(2):
            for t in range(7):
                ac = acc + (rt * 7 + t) * 4; T = tmp + 4 * (t & 1)
                for p in range(2):
                    k(f"v_pk_mul_f32 {v(T+2*p,2)}, {v(cs+4*t+2*p,2)}, {v(ab[rt],2)} op_sel:[0,1] op_sel_hi:[1,1]")
                for p in range(2):
                    k(f"v_pk_fma_f32 {v(ac+2*p,2)}, {v(ac+2*p,2)}, {v(ab[rt],2)}, {v(T+2*p,2)} op_sel:[0,0,0] op_sel_hi:[1,0,1]")
                for p in range(2):
                    k(f"v_pk_mul_f32 {v(T+2*p,2)}, {v(ac+2*p,2)}, s[62:63]")
                for j in range(4): k(f"v_exp_f32 {v(T+j)}, {v(T+j)}")
                for p in range(2):
                    k(f"v_pk_add_f32 {v(T+2*p,2)}, {v(T+2*p,2)}, s[64:65]")
                for j in range(4): k(f"v_rcp_f32 {v(T+j)}, {v(T+j)}")
                for p in range(2):
                    k(f"v_pk_mul_f32 {v(ac+2*p,2)}, {v(ac+2*p,2)}, {v(T+2*p,2)}")
                k(f"v_cvt_pk_bf16_f32 {v(ac)}, {v(ac)}, {v(ac+1)}")
                k(f"v_cvt_pk_bf16_f32 {v(ac+1)}, {v(ac+2)}, {v(ac+3)}")
                k(f"ds_write_b64 {v(vs)}, {v(ac,2)} offset:{rt*16*SP + t*32}")
        k("s_waitcnt lgkmcnt(0)")
    def store(self, k, vt, vt2, vt3, emit_stores):
        SH, SP = 32, self.SP
        srd(k, SH, P_WS, self.hoff, S_ * F_ * 2)
        vy = k.valloc(32, 4); va_ = k.valloc(); vo = k.valloc()
        k(f"v_lshrrev_b32 {v(vt)}, 4, v0")
        k(f"v_and_b32 {v(vt2)}, 15, v0")
        k(f"v_min_u32 {v(vt3)}, 13, {v(vt2)}")
        k(f"v_mul_u32_u24 {v(va_)}, {SP}, {v(vt)}")
        k(f"v_lshl_add_u32 {v(va_)}, {v(vt3)}, 4, {v(va_)}")
        k(f"v_add_u32 {v(vt)}, s50, {v(vt)}")
        k(f"v_mul_u32_u24 {v(vo)}, 3584, {v(vt)}")
        k(f"v_lshl_add_u32 {v(vo)}, {v(vt2)}, 4, {v(vo)}")
        k(f"v_add_u32 {v(vo)}, s54, {v(vo)}")
        k(f"v_mov_b32 {v(vt3)}, 0x7f000000")
        k(f"v_cmp_gt_u32 vcc, 14, {v(vt2)}")
        k(f"v_cndmask_b32 {v(vo)}, {v(vt3)}, {v(vo)}, vcc")
        k("s_barrier")
        for p in range(8):
            k(f"ds_read_b128 {v(vy+4*p,4)}, {v(va_)} offset:{p*16*SP}")
        st = []
        for p in range(8):
            st.append(f"s_mov_b32 s56, {p*16*3584}")
            st.append(f"buffer_store_dwordx4 {v(vy+4*p,4)}, {v(vo)}, s[{SH}:{SH+3}], s56 offen")
        emit_stores(st)

class P4(Phase):
    NC = 14; PA = 256; NBI = 8; BSTEP = 131072; nprod = 16
    def __init__(self, tag, xsrc, xdst, st_off, hoff): super().__init__(tag); self.xsrc, self.xdst, self.st_off, self.hoff = xsrc, xdst, st_off, hoff
    def tile(self, k): tile64(k)
    def setup_A(self, k, vt, vt2):
        self.voA = a_dma_offsets(k, 8, 256, 3584, 50, vt, vt2)
        k("s_waitcnt lgkmcnt(0)")
        srd(k, 24, P_WS, self.hoff, S_ * F_ * 2)
    def setup_B(self, k, vt, vt2, vt3, tmp):
        self.voB = [k.valloc() for _ in range(8)]
        k("s_lshl_b32 s52, s59, 16")
        k(f"s_and_b32 s54, s{SM_}, 7"); k("s_lshl_b32 s54, s54, 7")
        k("s_add_u32 s52, s52, s54")
        for i in range(8):
            k(f"v_bfe_u32 {v(vt)}, {v(k.vL)}, 4, 1")
            k(f"v_lshlrev_b32 {v(vt)}, 1, {v(vt)}")
            if i & 1: k(f"v_or_b32 {v(vt)}, 4, {v(vt)}")
            k(f"v_and_b32 {v(vt2)}, 7, {v(k.vL)}")
            k(f"v_xor_b32 {v(vt)}, {v(vt)}, {v(vt2)}")
            k(f"v_lshlrev_b32 {v(vt)}, 4, {v(vt)}")
            k(f"v_lshrrev_b32 {v(vt2)}, 3, {v(k.vL)}")
            k(f"v_add_u32 {v(vt2)}, {8*i}, {v(vt2)}")
            k(f"v_lshl_add_u32 {v(vt)}, {v(vt2)}, 10, {v(vt)}")
            k(f"v_add_u32 {v(self.voB[i])}, s52, {v(vt)}")
        k(f"s_lshl_b32 s{self.sBW}, s59, 13")
        k("s_waitcnt lgkmcnt(0)")
        srd(k, self.SWB, P_W2, 0, 1792 * 512 * 2)
    def compute(self, k, vt, vt2, vt3):
        SX = 24
        self.xr = k.valloc(8, 4)
        k("s_waitcnt lgkmcnt(0)")
        srd(k, SX, P_WS, self.xsrc, XB)
        resid_load64(k, SX, vt, vt2, self.xr)
        k("s_lshr_b32 s52, s3, 1")
        k("s_lshl_b32 s52, s52, 5")
        k("s_and_b32 s53, s3, 1")
        B = Bases(k)
        a_read_bases(k, B, 256, 52, 2, vt, vt2)
        k(f"v_bfe_u32 {v(vt)}, {v(k.vL)}, 2, 2")
        k(f"v_and_b32 {v(vt2)}, 1, {v(k.vG)}")
        k(f"v_lshlrev_b32 {v(vt2)}, 1, {v(vt2)}")
        k(f"v_bfe_u32 {v(vt3)}, {v(k.vL)}, 3, 1")
        k(f"v_or_b32 {v(vt2)}, {v(vt2)}, {v(vt3)}")
        k("s_lshl_b32 s57, s53, 1")
        k(f"v_xor_b32 {v(vt2)}, s57, {v(vt2)}")
        k(f"v_lshl_add_u32 {v(vt)}, {v(k.vG)}, 3, {v(vt)}")
        k(f"v_lshlrev_b32 {v(vt)}, 7, {v(vt)}")
        k(f"v_and_b32 {v(vt3)}, 3, {v(k.vL)}")
        k(f"v_lshl_add_u32 {v(vt)}, {v(vt3)}, 3, {v(vt)}")
        for t in range(2):
            r = k.valloc()
            k(f"v_xor_b32 {v(vt3)}, {t}, {v(vt2)}")
            k(f"v_lshl_add_u32 {v(r)}, {v(vt3)}, 5, {v(vt)}")
            B.add(("W", t), r, 3)
        acc = k.valloc(16, 4)
        for i in range(16): k(f"v_mov_b32 {v(acc+i)}, 0")
        Ab = [k.valloc(32, 4), k.valloc(32, 4)]; Wb = [k.valloc(32, 4), k.valloc(32, 4)]
        def reads(c):
            A_ = Ab[c & 1]; W_ = Wb[c & 1]; o = []
            for kk in range(4):
                ra = [f"ds_read_b128 {v(A_+8*kk+4*rt,4)}, {B.at(('A',kk), self.aslot(c) + rt*4096)}" for rt in range(2)]
                rw = [f"ds_read_b64_tr_b16 {v(W_+8*kk+4*t+2*hh,2)}, {B.at(('W',t), self.bslot[c] + kk*4096 + hh*512)}" for t in range(2) for hh in range(2)]
                o += [ra[0]] + rw + ra[1:]
            if os.environ.get("G_NOREAD"): return o[:int(os.environ["G_NOREAD"])]
            return o
        def mfmas(c):
            A_ = Ab[c & 1]; W_ = Wb[c & 1]
            return [f"v_mfma_f32_16x16x32_bf16 {v(acc+(rt*2+t)*4,4)}, {v(W_+8*kk+4*t,4)}, {v(A_+8*kk+4*rt,4)}, {v(acc+(rt*2+t)*4,4)}" for kk in range(4) for rt in range(2) for t in range(2)]
        for c in range(self.NC + 1):
            if c < self.NC:
                if c: k("s_waitcnt lgkmcnt(0)")
                k.dstamp()
                k("s_barrier")
                if c == 0: k.stamp()
            rd = reads(c) if c < self.NC else []
            mf = mfmas(c - 1) if c else []
            i = j = 0
            while i < len(mf) or j < len(rd):
                for _ in range(2):
                    if j < len(rd): k(rd[j]); j += 1
                if i < len(mf): k(mf[i]); i += 1
                if j < len(rd): k(rd[j]); j += 1
                if i < len(mf): k(mf[i]); i += 1
        k.stamp()
        k("s_barrier")
        vs = k.valloc()
        k(f"v_add_u32 {v(vs)}, s52, {v(k.vR16)}")
        k(f"v_mul_u32_u24 {v(vs)}, 144, {v(vs)}")
        k(f"v_lshl_add_u32 {v(vs)}, {v(k.vG)}, 3, {v(vs)}")
        k("s_lshl_b32 s57, s53, 6")
        k(f"v_add_u32 {v(vs)}, s57, {v(vs)}")
        for rt in range(2):
            for t in range(2):
                ac = acc + (rt * 2 + t) * 4
                k(f"v_cvt_pk_bf16_f32 {v(ac)}, {v(ac)}, {v(ac+1)}")
                k(f"v_cvt_pk_bf16_f32 {v(ac+1)}, {v(ac+2)}, {v(ac+3)}")
                k(f"ds_write_b64 {v(vs)}, {v(ac,2)} offset:{rt*16*144 + t*32}")
        k("s_waitcnt lgkmcnt(0)")
    def store(self, k, vt, vt2, vt3, emit_stores):
        store64(self, k, emit_stores)

def gen_fused(name, phases, flagbase, xtidx, stamps=False, first=False):
    k = Kern(name); k.stamps_on = stamps
    if os.environ.get("G_DET"): k.det = int(os.environ["G_DET"])
    prologue(k, 256, wait=False)
    k("s_sub_u32 s59, s3, 4")
    k("s_and_b32 s48, s2, 7"); k("s_lshl_b32 s48, s48, 1"); k("s_lshr_b32 s49, s2, 7")
    k(f"s_add_u32 s{SC_}, s48, s49"); k(f"s_bfe_u32 s{SM_}, s2, 0x40003")
    vt, vt2, vt3 = k.valloc(), k.valloc(), k.valloc()
    vfl = k.valloc(); vfd = k.valloc()
    mark = k.nv
    k.lds = 163840
    n = len(phases)
    bars = []
    for i, p in enumerate(phases):
        bars += [(i, "b", c) for c in range(p.NC)] + [(i, "e", 0), (i, "s", 0)] + ([(i, "u", 0)] if i < n - 1 else [])
    bidx = {b: j for j, b in enumerate(bars)}
    chunks = []
    for i, p in enumerate(phases):
        for c in range(p.NC):
            rel = bidx[(i, "b", c + 1)] if c + 1 < p.NC else bidx[(i, "e", 0)]
            chunks.append((i, c, bidx[(i, "b", c)], rel, True))
        for x in range(p.pseudo):
            chunks.append((i, p.NC + x, None, bidx[(i, "e", 0)], False))
    for j, (i, c, _, _, _) in enumerate(chunks): phases[i].bslot[c] = BRING + (j % NB) * 16384
    for i, p in enumerate(phases): p.SWB = 24 + 4 * i; p.sBW = 44 + i
    k("s_cmp_lt_u32 s3, 4")
    k(f"s_cbranch_scc1 {name}_compute")
    k("s_cmp_lt_u32 s3, 6")
    k(f"s_cbranch_scc1 {name}_aload")
    k("s_sub_u32 s59, s3, 6")
    k.stamp_set(0); k.stamp()
    tmp5 = [k.valloc() for _ in range(5)]
    NV = int(os.environ.get("G_NV", "0"))
    vl16 = k.valloc()
    k(f"v_lshlrev_b32 {v(vl16)}, 4, {v(k.vL)}")
    for p in phases: p._vo = None
    vslots = [256 - 32 * (x + 1) for x in range(NV)]
    k.maxv = 256 if NV else k.maxv
    freev = list(vslots); vq = []
    setup_done = set(); nxt = [0]; placed = set(); pend = []
    def slot_free(j, after_bar): return j < NB or chunks[j - NB][3] <= after_bar
    def b_step(after_bar, maxn, curphase=None, spare=0):
        if pend:
            k("s_waitcnt lgkmcnt(0)")
            for (j, vs) in pend: placed.add(j); freev.append(vs)
            pend.clear()
        while vq and slot_free(vq[0][0], after_bar):
            j, vs = vq.pop(0); i, c = chunks[j][0], chunks[j][1]
            phases[i].place_Bv(k, c, vs, vl16, vt); pend.append((j, vs))
        cnt = 0
        while nxt[0] < len(chunks) and cnt < maxn:
            j = nxt[0]; i, c, need, rel, real = chunks[j]
            if not real:
                if not slot_free(j, after_bar): break
                placed.add(j); nxt[0] += 1; continue
            direct = (not vq) and slot_free(j, after_bar)
            if not direct and not freev: break
            if curphase is not None and i != curphase:
                if spare <= 0: break
                spare -= 1
            if i not in setup_done:
                phases[i].setup_B(k, vt, vt2, vt3, tmp5); setup_done.add(i)
                assert k.nv <= 256 - 32 * NV
            k.vm_limit(int(os.environ.get("G_VML", "24")))
            if direct:
                phases[i].issue_B(k, c); placed.add(j)
            else:
                vs = freev.pop(0); phases[i].issue_Bv(k, c, vs); vq.append((j, vs))
            cnt += 1; nxt[0] += 1
    b_step(-1, int(os.environ.get("G_B0", "2")))
    if True:
        endlab = "all_code_end" if first else f"{name}_end"
        ca = k.valloc(2, 2); cd = k.valloc(4)
        k("s_getpc_b64 s[40:41]")
        k.L(f"{name}_pc")
        k(f"s_mov_b32 s42, {endlab}-{name}_pc-16")
        k("s_bfe_u32 s43, s2, 0x50003")
        k("s_lshl_b32 s43, s43, 1"); k("s_add_u32 s43, s43, s59"); k("s_lshl_b32 s43, s43, 10")
        nrep = 2 if first else 1
        for x in range(nrep):
            k(f"v_add_u32 {v(vt)}, s43, {v(vl16)}")
            if x: k(f"v_add_u32 {v(vt)}, {x*65536}, {v(vt)}")
            k(f"v_min_u32 {v(vt)}, s42, {v(vt)}")
            k(f"v_and_b32 {v(vt)}, -4, {v(vt)}")
            k(f"global_load_dwordx4 {v(cd,4)}, {v(vt)}, s[40:41]")
    for j, (i, kind, c) in enumerate(bars):
        if kind == "b":
            jj = next(x for x, ch in enumerate(chunks) if ch[0] == i and ch[1] == c)
            if jj not in placed:
                assert any(x[0] == jj for x in pend), (i, c)
                k("s_waitcnt lgkmcnt(0)")
                for (j_, vs) in pend: placed.add(j_); freev.append(vs)
                pend.clear()
            k.wait_tag(f"{phases[i].tag}b{c}")
        k.cur = i; k.dstamp()
        k("s_barrier")
        if first and kind == "b" and c == 2:
            sw = k.valloc(16, 4); sacc = k.valloc(8, 4); svo = k.valloc()
            srd(k, 28, P_W1, 0, 512 * 1792 * 2)
            k("s_min_u32 s40, s2, 223")
            k("s_mul_i32 s41, s40, 2341"); k("s_lshr_b32 s41, s41, 16")
            k("s_mul_i32 s48, s41, 28"); k("s_sub_u32 s40, s40, s48")
            k("s_lshl_b32 s48, s41, 6"); k("s_lshl_b32 s49, s59, 5"); k("s_add_u32 s48, s48, s49")
            k(f"v_lshrrev_b32 {v(svo)}, 3, {v(k.vL)}")
            k(f"v_add_u32 {v(svo)}, s48, {v(svo)}")
            k(f"v_mul_u32_u24 {v(svo)}, 3584, {v(svo)}")
            k(f"v_and_b32 {v(vt)}, 7, {v(k.vL)}")
            k(f"v_lshl_add_u32 {v(svo)}, {v(vt)}, 4, {v(svo)}")
            k("s_lshl_b32 s48, s40, 7")
            k(f"v_add_u32 {v(svo)}, s48, {v(svo)}")
            for x in range(4):
                k(f"s_mov_b32 s49, {x*8*3584}")
                k(f"buffer_load_dwordx4 {v(sw+4*x,4)}, {v(svo)}, s[28:31], s49 offen")
        if first and kind == "b" and c == 4:
            tw = k.valloc(20, 4)
            srd(k, 32, P_W2, 0, 1792 * 512 * 2)
            srd(k, 36, P_WO, 0, 512 * 512 * 2)
            k("s_mul_i32 s48, s2, 7168"); k("s_mul_i32 s49, s59, 3584"); k("s_add_u32 s48, s48, s49")
            k(f"v_add_u32 {v(vt)}, s48, {v(vl16)}")
            for x in range(4):
                k(f"buffer_load_dwordx4 {v(tw+4*x,4)}, {v(vt)}, s[32:35], 0 offen offset:{x*1024 if x < 3 else 2560}")
            k("s_lshl_b32 s48, s2, 11"); k("s_lshl_b32 s49, s59, 10"); k("s_add_u32 s48, s48, s49")
            k(f"v_add_u32 {v(vt)}, s48, {v(vl16)}")
            k(f"buffer_load_dwordx4 {v(tw+16,4)}, {v(vt)}, s[36:39], 0 offen")
            if os.environ.get("G_TLB"):
                tl = k.valloc(2, 2)
                srd(k, 32, P_WS, 0, 0x1000000)
                srd(k, 36, P_OUT, 0, XB)
                k(f"v_lshlrev_b32 {v(vt)}, 18, {v(k.vL)}")
                k(f"buffer_load_dword {v(tl)}, {v(vt)}, s[32:35], 0 offen")
                k(f"v_lshlrev_b32 {v(vt)}, 15, {v(k.vL)}")
                k(f"buffer_load_dword {v(tl+1)}, {v(vt)}, s[36:39], 0 offen")
        if first and kind == "b" and c == 5:
            k("s_mov_b32 s60, 0x00003f80"); k("s_mov_b32 s61, 0x3f800000")
            for x in range(8): k(f"v_mov_b32 {v(sacc+x)}, 0")
            for x in range(4):
                for y in range(4):
                    k(f"v_dot2_f32_bf16 {v(sacc+2*y)}, {v(sw+4*x+y)}, s60, {v(sacc+2*y)}")
                    k(f"v_dot2_f32_bf16 {v(sacc+2*y+1)}, {v(sw+4*x+y)}, s61, {v(sacc+2*y+1)}")
        if first and kind == "b" and c == 6:
            for x in range(8):
                k(f"v_add_f32_dpp {v(sw+x)}, {v(sacc+x)}, {v(sacc+x)} row_ror:8 row_mask:0xf bank_mask:0xf")
            for x in range(8): gen.xlane_sum_g(k, sw + x, sacc + x)
            k("s_lshl_b32 s48, s59, 8"); k(f"s_add_u32 s48, s48, {EX+8192}")
            k(f"v_and_b32 {v(vt)}, 7, {v(k.vL)}")
            k(f"v_lshlrev_b32 {v(svo)}, 5, {v(vt)}")
            k(f"v_add_u32 {v(vt)}, s48, {v(svo)}")
            k(f"ds_write_b128 {v(vt)}, {v(sw,4)}"); k(f"ds_write_b128 {v(vt)}, {v(sw+4,4)} offset:16")
            k("s_waitcnt lgkmcnt(0)")
        if first and kind == "b" and c == 7:
            k(f"v_add_u32 {v(vt)}, {EX+8192}, {v(svo)}")
            for x in range(2):
                k(f"ds_read_b128 {v(sw+4*x,4)}, {v(vt)} offset:{16*x}")
                k(f"ds_read_b128 {v(sw+8+4*x,4)}, {v(vt)} offset:{256+16*x}")
            for x in range(8): k(f"v_add_f32 {v(sw+x)}, {v(sw+x)}, {v(sw+8+x)}")
            srd(k, 28, P_WS, WS_CS + 0x2000, 8 * 1792 * 4)
            k("s_mul_i32 s48, s41, 7168"); k("s_lshl_b32 s49, s40, 8"); k("s_add_u32 s48, s48, s49")
            k(f"v_add_u32 {v(vt)}, s48, {v(svo)}")
            k("s_mov_b64 exec, 0xff")
            k(f"buffer_store_dwordx4 {v(sw,4)}, {v(vt)}, s[28:31], 0 offen")
            k(f"buffer_store_dwordx4 {v(sw+4,4)}, {v(vt)}, s[28:31], 0 offen offset:16")
            k("s_mov_b64 exec, -1")
        if os.environ.get("G_L2PF") and kind == "b" and i + 1 < n and isinstance(phases[i + 1], P4) and c < 7:
            if c == 0:
                tpf = k.valloc(2, 2); vpf = k.valloc()
                srd(k, 40, P_W2, 0, 1792 * 512 * 2)
                k(f"s_and_b32 s48, s{SM_}, 7"); k("s_lshl_b32 s48, s48, 7")
                k("s_lshl_b32 s49, s59, 16"); k("s_add_u32 s48, s48, s49")
                k(f"v_lshlrev_b32 {v(vpf)}, 10, {v(k.vL)}"); k(f"v_add_u32 {v(vpf)}, s48, {v(vpf)}")
            for x in range(2):
                k(f"s_mov_b32 s49, {(2*c+x)*131072}")
                k(f"buffer_load_dword {v(tpf+x)}, {v(vpf)}, s[40:43], s49 offen")
        if kind in ("e", "u"): k.stamp()
        if kind == "b":
            b_step(j, 2 if (i == 0 or c == 0) else 1, i, phases[i].spare(c) if not os.environ.get("G_SPALL") else 1)
        else:
            b_step(j, {"e": int(os.environ.get("G_QE", phases[i].Qe)), "s": int(os.environ.get("G_QS", "3")), "u": int(os.environ.get("G_QU", "7"))}[kind])
    assert nxt[0] == len(chunks) and not vq
    if stamps: k.stamp(); k.stamp_flush(P_WS, vt, vt2)
    k("s_endpgm")
    k.L(f"{name}_aload"); k.reset()
    k.stamp_set(0); k.stamp()
    k("s_lshl_b32 s55, s59, 13")
    for i, p in enumerate(phases):
        k.nv = mark
        p.tile(k)
        p.setup_A(k, vt, vt2)
        if first:
            vz = k.valloc(4)
            for x in range(4): k(f"v_mov_b32 {v(vz+x)}, 0")
            srd(k, 28, P_WS, WS_KV, 0x20000)
            srd(k, 32, 18, 0, 256)
            l1 = f"{name}_tk"; l2 = f"{name}_tkd"
            k("s_cmp_eq_u32 s59, 0")
            k(f"s_cbranch_scc1 {l1}")
            k("s_lshl_b32 s48, s2, 8"); k("s_add_u32 s48, s48, 0x10000")
            k(f"v_lshlrev_b32 {v(vfl)}, 4, {v(k.vL)}"); k(f"v_add_u32 {v(vfl)}, s48, {v(vfl)}")
            k("s_mov_b64 exec, 0xffff")
            k(f"buffer_store_dwordx4 {v(vz,4)}, {v(vfl)}, s[28:31], 0 offen")
            k("s_mov_b64 exec, -1")
            k(f"s_branch {l2}")
            k.L(l1)
            k(f"s_lshl_b32 s48, s{SM_}, 2")
            k(f"v_mov_b32 {v(vfl)}, s48"); k(f"v_mov_b32 {v(vfd)}, 1")
            k("s_mov_b64 exec, 1")
            k(f"buffer_atomic_add {v(vfd)}, {v(vfl)}, s[32:35], 0 offen sc0")
            k("s_mov_b64 exec, -1")
            k.L(l2)
        if i == 0 and n > 1:
            srd(k, SFL, P_WS, WS_FLAG, 0x7000)
            k("s_getreg_b32 s98, hwreg(HW_REG_XCC_ID)")
            k("s_and_b32 s98, s98, 15"); k("s_add_u32 s98, s98, 1")
            k(f"s_lshl_b32 s48, s{SC_}, 6"); k(f"s_lshl_b32 s49, s{SM_}, 2"); k("s_add_u32 s48, s48, s49")
            k(f"s_add_u32 s48, s48, {WS_XT - WS_FLAG + xtidx*1024}")
            k(f"v_mov_b32 {v(vfl)}, s48"); k(f"v_mov_b32 {v(vfd)}, s98")
            k("s_mov_b64 exec, 1")
            k(f"buffer_store_dword {v(vfd)}, {v(vfl)}, s[{SFL}:{SFL+3}], 0 offen sc0 sc1")
            k("s_mov_b64 exec, -1")
        if i > 0:
            lab = f"{name}_poll{i}"; done = f"{name}_polld{i}"
            k(f"s_lshl_b32 s48, s{SC_}, 8"); k(f"s_add_u32 s48, s48, {(flagbase+i-1)*4096}")
            k(f"v_lshlrev_b32 {v(vfl)}, 2, {v(k.vL)}"); k(f"v_add_u32 {v(vfl)}, s48, {v(vfl)}")
            k(f"s_mov_b64 exec, {(1<<phases[i-1].nprod)-1:#x}")
            k("s_mov_b32 s49, 0")
            k.L(lab)
            k(f"buffer_load_dword {v(vfd)}, {v(vfl)}, s[{SFL}:{SFL+3}], 0 offen sc1")
            k("s_add_u32 s49, s49, 1")
            k("s_waitcnt vmcnt(0)")
            k(f"v_cmp_ne_u32 vcc, 1, {v(vfd)}")
            k("s_cmp_gt_u32 s49, 200000")
            k(f"s_cbranch_scc1 {done}")
            k(f"s_cbranch_vccnz {lab}")
            k.L(done)
            k("s_mov_b64 exec, -1")
        k.stamp()
        A0N = int(os.environ.get("G_A0N", "3")) if i > 0 else p.D
        issued = 0
        for c in range(A0N): p.issue_A(k, c); issued += 1
        for c in range(p.NC):
            k.wait_tag(f"{p.tag}a{c}")
            k.cur = i; k.dstamp()
            k("s_barrier")
            while issued < p.NC and issued <= c + p.D: p.issue_A(k, issued); issued += 1
            if c == 0 and p.has_ln:
                stv = k.valloc(16, 4)
                srd(k, 28, P_WS, p.st_off, 2048 * 64)
                k("s_lshl_b32 s48, s59, 6")
                k("s_add_u32 s48, s48, s50")
                k(f"v_add_u32 {v(vt)}, s48, {v(k.vL)}")
                k(f"v_lshlrev_b32 {v(vt)}, 6, {v(vt)}")
                for x in range(4):
                    k(f"buffer_load_dwordx4 {v(stv+4*x,4)}, {v(vt)}, s[28:31], 0 offen offset:{16*x}")
            if first and c == 0:
                l3 = f"{name}_zk"
                k.vm_save()
                k("s_cmp_lg_u32 s59, 0")
                k(f"s_cbranch_scc1 {l3}")
                k(f"v_readfirstlane_b32 s48, {v(vfd)}")
                k("s_nop 3")
                k("s_cmp_lg_u32 s48, 0")
                k(f"s_cbranch_scc1 {l3}")
                k(f"s_lshl_b32 s48, s{SM_}, 11")
                k(f"v_lshlrev_b32 {v(vfl)}, 4, {v(k.vL)}"); k(f"v_add_u32 {v(vt)}, s48, {v(vfl)}")
                k(f"buffer_store_dwordx4 {v(vz,4)}, {v(vt)}, s[28:31], 0 offen sc0 sc1")
                k(f"buffer_store_dwordx4 {v(vz,4)}, {v(vt)}, s[28:31], 0 offen offset:1024 sc0 sc1")
                k(f"s_lshl_b32 s48, s{SM_}, 7"); k("s_add_u32 s48, s48, 32768")
                k(f"v_add_u32 {v(vt)}, s48, {v(vfl)}")
                k("s_mov_b64 exec, 0xff")
                k(f"buffer_store_dwordx4 {v(vz,4)}, {v(vt)}, s[28:31], 0 offen sc0 sc1")
                k("s_waitcnt vmcnt(0)")
                k(f"s_lshl_b32 s48, s{SM_}, 2"); k("s_add_u32 s48, s48, 64")
                k(f"v_mov_b32 {v(vfl)}, s48"); k(f"v_mov_b32 {v(vfd)}, 1")
                k("s_mov_b64 exec, 1")
                k(f"buffer_store_dword {v(vfd)}, {v(vfl)}, s[32:35], 0 offen sc0 sc1")
                k("s_mov_b64 exec, -1")
                k.L(l3)
                k.vm_restore()
            if first and c == p.NC - 1:
                lab = f"{name}_rp"; done = f"{name}_rpd"
                k(f"s_lshl_b32 s48, s{SM_}, 2"); k("s_add_u32 s48, s48, 64")
                k(f"v_mov_b32 {v(vfl)}, s48")
                k("s_mov_b64 exec, 1")
                k("s_mov_b32 s49, 0")
                k.L(lab)
                k(f"buffer_load_dword {v(vfd)}, {v(vfl)}, s[32:35], 0 offen sc0 sc1")
                k("s_add_u32 s49, s49, 1")
                k("s_waitcnt vmcnt(0)")
                k(f"v_cmp_ne_u32 vcc, 1, {v(vfd)}")
                k("s_cmp_gt_u32 s49, 200000")
                k(f"s_cbranch_scc1 {done}")
                k(f"s_cbranch_vccnz {lab}")
                k.L(done)
                k("s_mov_b64 exec, -1")
            if isinstance(p, P2) and c == 0:
                cp = k.valloc(16, 4)
                srd(k, 28, P_WS, WS_CS + 0x2000, 8 * 1792 * 4)
                k(f"s_mul_i32 s48, s{SM_}, 448")
                k(f"v_lshlrev_b32 {v(vt)}, 3, {v(k.vL)}"); k(f"v_add_u32 {v(vt)}, s48, {v(vt)}")
                for g_ in range(8):
                    k(f"s_mov_b32 s49, {g_*7168}")
                    k(f"buffer_load_dwordx2 {v(cp+2*g_,2)}, {v(vt)}, s[28:31], s49 offen")
            if isinstance(p, P2) and c == 2:
                for g_ in range(1, 8): k(f"v_pk_add_f32 {v(cp,2)}, {v(cp,2)}, {v(cp+2*g_,2)}")
                k(f"v_lshlrev_b32 {v(vt)}, 3, {v(k.vL)}"); k(f"v_add_u32 {v(vt)}, {LDS_CS}, {v(vt)}")
                k(f"ds_write_b64 {v(vt)}, {v(cp,2)}")
                k("s_waitcnt lgkmcnt(0)")
            if c == 4 and p.has_ln:
                ab = k.valloc(2, 2)
                gen.ln_params(k, stv, ab, ab + 1, vt, vt2)
                k("s_lshl_b32 s48, s59, 9")
                k(f"s_add_u32 s48, s48, {LDS_AB}")
                k(f"v_lshlrev_b32 {v(vt)}, 3, {v(k.vL)}")
                k(f"v_add_u32 {v(vt)}, s48, {v(vt)}")
                k(f"ds_write_b64 {v(vt)}, {v(ab,2)}")
                k("s_waitcnt lgkmcnt(0)")
            if i == 0 and n > 1 and c == p.NC - 1:
                k(f"s_lshl_b32 s48, s{SC_}, 6"); k(f"s_add_u32 s48, s48, {WS_XT - WS_FLAG + xtidx*1024}")
                k(f"v_and_b32 {v(vfl)}, 15, {v(k.vL)}")
                k(f"v_lshlrev_b32 {v(vfl)}, 2, {v(vfl)}"); k(f"v_add_u32 {v(vfl)}, s48, {v(vfl)}")
                k(f"buffer_load_dword {v(vfd)}, {v(vfl)}, s[{SFL}:{SFL+3}], 0 offen sc0 sc1")
                k(f"v_cmp_ne_u32 vcc, s98, {v(vfd)}")
                k("s_cmp_eq_u64 vcc, 0")
                k("s_cselect_b32 s99, 1, 0")
                if FORCE == "fast": k("s_mov_b32 s99, 1")
                if FORCE == "slow": k("s_mov_b32 s99, 0")
                k(f"v_mov_b32 {v(vfd)}, s99"); k(f"v_mov_b32 {v(vfl)}, {LDS_MODE}")
                k(f"s_lshl_b32 s48, s59, 2"); k(f"v_add_u32 {v(vfl)}, s48, {v(vfl)}")
                k(f"ds_write_b32 {v(vfl)}, {v(vfd)}")
                k("s_waitcnt lgkmcnt(0)")
        k.stamp()
        k("s_barrier")
        k("s_barrier")
        if i < n - 1:
            k("s_barrier")
            k.stamp()
            lab = f"{name}_pub{i}"; lab2 = f"{name}_pubs{i}"
            k("s_cmp_lg_u32 s59, 0")
            k(f"s_cbranch_scc1 {lab}")
            k(f"s_lshl_b32 s48, s{SC_}, 8"); k(f"s_lshl_b32 s49, s{SM_}, 2"); k("s_add_u32 s48, s48, s49")
            k(f"s_add_u32 s48, s48, {(flagbase+i)*4096}")
            k(f"v_mov_b32 {v(vfl)}, s48"); k(f"v_mov_b32 {v(vfd)}, 1")
            k("s_mov_b64 exec, 1")
            k("s_cmp_eq_u32 s99, 1")
            k(f"s_cbranch_scc0 {lab2}")
            k(f"buffer_store_dword {v(vfd)}, {v(vfl)}, s[{SFL}:{SFL+3}], 0 offen")
            k(f"s_branch {lab}")
            k.L(lab2)
            k(f"buffer_store_dword {v(vfd)}, {v(vfl)}, s[{SFL}:{SFL+3}], 0 offen sc0 sc1")
            k.L(lab)
            k("s_mov_b64 exec, -1")
    if stamps: k.stamp(); k.stamp_flush(P_WS, vt, vt2)
    k("s_endpgm")
    k.L(f"{name}_compute"); k.reset()
    k.stamp_set(0); k.stamp()
    DIAG = os.environ.get("G_DIAG")
    if DIAG:
        k("s_memrealtime s[88:89]"); k("s_waitcnt lgkmcnt(0)")
    for i, p in enumerate(phases):
        k.nv = mark; k.cur = i
        p.tile(k)
        p.compute(k, vt, vt2, vt3)
        if os.environ.get("G_BND"): k.stamp()
        k.nv = mark + 12
        def emit_stores(lst, i=i):
            if i == n - 1:
                for x in lst: k(x)
                return
            if i == 0:
                k(f"v_mov_b32 {v(vfl)}, {LDS_MODE}")
                k(f"ds_read_b32 {v(vfd)}, {v(vfl)}")
                k(f"v_readfirstlane_b32 s99, {v(vfd)}")
            l1 = f"{name}_st{i}_slow"; l2 = f"{name}_st{i}_done"
            k("s_waitcnt vmcnt(0) lgkmcnt(0)")
            k("s_nop 4")
            k("s_cmp_eq_u32 s99, 1")
            k(f"s_cbranch_scc0 {l1}")
            for x in lst: k(x)
            k(f"s_branch {l2}")
            k.L(l1)
            for x in lst: k(x + (" sc0 sc1" if x.startswith("buffer_store") else ""))
            k.L(l2)
        p.store(k, vt, vt2, vt3, emit_stores)
        if os.environ.get("G_BND"): k.stamp()
        if i < n - 1:
            k("s_waitcnt vmcnt(0)")
            if os.environ.get("G_BND"): k.stamp()
            k("s_barrier")
    if stamps:
        k("s_waitcnt vmcnt(0)"); k.stamp(); k.stamp_flush(P_WS, vt, vt2)
    if DIAG:
        kid = {"kA": 0, "kB": 1, "kC": 2}[name[:2]]
        k("s_waitcnt vmcnt(0)")
        k("s_memrealtime s[90:91]"); k("s_waitcnt lgkmcnt(0)")
        k("s_or_b32 s48, s2, s3"); k("s_cmp_lg_u32 s48, 0"); k(f"s_cbranch_scc1 {name}_end")
        srd(k, 24, P_WS, 0xF80000, 64)
        dd = k.valloc(8, 4)
        k(f"v_mov_b32 {v(dd)}, s88"); k(f"v_mov_b32 {v(dd+1)}, s90"); k(f"v_mov_b32 {v(vt)}, 0")
        k("s_mov_b64 exec, 1")
        k(f"buffer_store_dwordx2 {v(dd,2)}, {v(vt)}, s[24:27], 0 offen offset:{kid*8}")
        if kid == 2:
            k(f"buffer_load_dwordx4 {v(dd+4,4)}, {v(vt)}, s[24:27], 0 offen")
            srd(k, 28, 18, 0, 256)
            k(f"buffer_store_dwordx4 {v(dd+4,4)}, {v(vt)}, s[28:31], 0 offen")
            k(f"buffer_store_dwordx2 {v(dd,2)}, {v(vt)}, s[28:31], 0 offen offset:16")
    epilogue_end(k)
    return k

def build(path, stamps=False):
    kA = gen_fused("kA_kernel", [P1("p1a", "in", WS_KV, None)], 0, 0, stamps and os.environ.get("G_STA") == "1", True)
    kB = gen_fused("kB_kernel", [P2("p2a", "in", WS_KV, WS_X1, WS_ST1), P3("p3a", WS_X1, WS_ST1, WS_H), P4("p4a", WS_X1, WS_X2, WS_ST2, WS_H),
                                 P1("p1b", WS_X2, WS_KV + 0x10000, WS_ST2)], 0, 0, stamps and os.environ.get("G_STA") != "1")
    kC = gen_fused("kC_kernel", [P2("p2b", WS_X2, WS_KV + 0x10000, WS_X1, WS_ST1), P3("p3b", WS_X1, WS_ST1, WS_H), P4("p4b", WS_X1, "out", None, WS_H)], 3, 1)
    ks = [kA, kB, kC]
    launches = [(k.name, 256, 512, k.lds) for i, k in enumerate(ks)]
    open(path, "w").write(build_file(HEADER, launches, ks))
    for k in ks: print(k.name, "vgpr", k.maxv, "lds", k.lds, "ninst", sum(1 for i in k.items if isinstance(i, Ins)))

if __name__ == "__main__":
    build(sys.argv[1] if len(sys.argv) > 1 else "interleave_layers__linear_attn_block__dense_activation_silu__prompt.s")
    build(sys.argv[2] if len(sys.argv) > 2 else "fused_stamps.s", True)
```

```python
import sys, struct, os
from asmlib import *
from gen import (S_, D_, F_, WS_PQ, WS_X1, WS_X2, WS_H, WS_KV, WS_CS, WS_ST0, WS_ST1, WS_ST2, XB, P_X, P_WQKV, P_WO, P_W1, P_W2, P_OUT, P_WS,
                 LOG2E, fbits, prologue, srd, epilogue_end, HEADER)
from gen2 import Bases, interleave, a_read_bases, phi4
import gen

WS_FLAG = 0xE18800
WS_XT = 0xE1E800
SC_, SM_ = 96, 97
NA = int(os.environ.get("G_NA", "4")); NB = 9 - NA
ARING, BRING, EX = 0, NA * 16384, 147456
LDS_AB, LDS_MODE, LDS_CS = EX, EX + 1024, EX + 7168
SFL = 92
FORCE = os.environ.get("G_MODE", "")

def a_dma_offsets(k, nins, PA, rowpitch, rowbase_s, t0, t1):
    UA = PA // 16; RA = 64 // UA; sh = {8: 3, 16: 4}[UA]
    out = []
    k(f"s_mul_i32 s58, s59, {nins*RA}")
    k(f"s_add_u32 s58, s58, s{rowbase_s}")
    for i in range(nins):
        r = k.valloc(); out.append(r)
        k(f"v_lshrrev_b32 {v(t0)}, {sh}, {v(k.vL)}")
        if i: k(f"v_add_u32 {v(t0)}, {RA*i}, {v(t0)}")
        if PA == 128: k(f"v_bfe_u32 {v(t1)}, {v(t0)}, 1, 3")
        else: k(f"v_and_b32 {v(t1)}, 15, {v(t0)}")
        k(f"v_and_b32 {v(r)}, {UA-1}, {v(k.vL)}")
        k(f"v_xor_b32 {v(t1)}, {v(t1)}, {v(r)}")
        k(f"v_add_u32 {v(t0)}, s58, {v(t0)}")
        k(f"v_mul_u32_u24 {v(t0)}, {rowpitch}, {v(t0)}")
        k(f"v_lshl_add_u32 {v(r)}, {v(t1)}, 4, {v(t0)}")
    assert (nins * RA) % 16 == 0
    return out

def ln_finish(k, m, q, ab):
    k(f"v_mul_f32 {v(m)}, {fbits(1/512):#x}, {v(m)}")
    k(f"v_mul_f32 {v(q)}, {fbits(1/512):#x}, {v(q)}")
    k(f"v_fma_f32 {v(q)}, -{v(m)}, {v(m)}, {v(q)}")
    k(f"v_max_f32 {v(q)}, 0, {v(q)}")
    gen.bf16_round(k, m, m); gen.bf16_round(k, q, q)
    k(f"v_add_f32 {v(q)}, {fbits(1e-5):#x}, {v(q)}")
    gen.bf16_round(k, q, q)
    k(f"v_sqrt_f32 {v(q)}, {v(q)}")
    gen.bf16_round(k, q, q)
    k(f"v_rcp_f32 {v(ab)}, {v(q)}")
    k(f"v_mul_f32 {v(ab+1)}, {v(m)}, {v(ab)}")
    k(f"v_sub_f32 {v(ab+1)}, 0, {v(ab+1)}")

def tile64(k):
    k(f"s_lshr_b32 s48, s{SM_}, 3")
    k(f"s_lshl_b32 s22, s{SC_}, 1")
    k("s_add_u32 s22, s22, s48")
    k(f"s_and_b32 s23, s{SM_}, 7")
    k("s_lshl_b32 s50, s22, 6")
    k("s_lshl_b32 s54, s23, 7")

def resid_load64(k, SX, t0, t1, xr):
    k(f"v_lshrrev_b32 {v(t0)}, 3, v0")
    k(f"v_and_b32 {v(t1)}, 7, v0")
    k(f"v_add_u32 {v(t0)}, s50, {v(t0)}")
    k(f"v_lshlrev_b32 {v(t0)}, 10, {v(t0)}")
    k(f"v_lshl_add_u32 {v(t0)}, {v(t1)}, 4, {v(t0)}")
    k(f"v_add_u32 {v(t0)}, s54, {v(t0)}")
    k("s_mov_b32 s60, 32768")
    k(f"buffer_load_dwordx4 {v(xr,4)}, {v(t0)}, s[{SX}:{SX+3}], 0 offen")
    k(f"buffer_load_dwordx4 {v(xr+4,4)}, {v(t0)}, s[{SX}:{SX+3}], s60 offen")

def store64_prep(k, xr, do_stats):
    vy = k.valloc(8, 4); va_ = k.valloc(); vo = k.valloc(); sm = k.valloc(4, 4); tt = k.valloc(2, 2)
    t0, t1, t2, t3 = [k.valloc() for _ in range(4)]
    k(f"v_lshrrev_b32 {v(t0)}, 3, v0")
    k(f"v_and_b32 {v(t1)}, 7, v0")
    k(f"v_mul_u32_u24 {v(va_)}, 144, {v(t0)}")
    k(f"v_lshl_add_u32 {v(va_)}, {v(t1)}, 4, {v(va_)}")
    k(f"ds_read_b128 {v(vy,4)}, {v(va_)}")
    k(f"ds_read_b128 {v(vy+4,4)}, {v(va_)} offset:{32*144}")
    k(f"v_add_u32 {v(t0)}, s50, {v(t0)}")
    k(f"v_lshlrev_b32 {v(vo)}, 10, {v(t0)}")
    k(f"v_lshl_add_u32 {v(vo)}, {v(t1)}, 4, {v(vo)}")
    k(f"v_add_u32 {v(vo)}, s54, {v(vo)}")
    if do_stats:
        for i in range(4): k(f"v_mov_b32 {v(sm+i)}, 0")
        k("s_mov_b32 s60, 0x3f803f80")
        k(f"v_lshlrev_b32 {v(va_)}, 6, {v(t0)}")
        k(f"s_lshr_b32 s61, s54, 4")
        k(f"v_add_u32 {v(va_)}, s61, {v(va_)}")
    for i in range(8):
        k(f"v_lshlrev_b32 {v(t0)}, 16, {v(vy+i)}")
        k(f"v_and_b32 {v(t1)}, 0xffff0000, {v(vy+i)}")
        k(f"v_lshlrev_b32 {v(t2)}, 16, {v(xr+i)}")
        k(f"v_and_b32 {v(t3)}, 0xffff0000, {v(xr+i)}")
        k(f"v_add_f32 {v(t0)}, {v(t0)}, {v(t2)}")
        k(f"v_add_f32 {v(t1)}, {v(t1)}, {v(t3)}")
        k(f"v_cvt_pk_bf16_f32 {v(vy+i)}, {v(t0)}, {v(t1)}")
        if do_stats:
            s_ = sm + 2 * (i // 4)
            k(f"v_dot2_f32_bf16 {v(s_)}, {v(vy+i)}, s60, {v(s_)}")
            k(f"v_dot2_f32_bf16 {v(s_+1)}, {v(vy+i)}, {v(vy+i)}, {v(s_+1)}")
    if do_stats:
        for dpp in ("quad_perm:[1,0,3,2]", "quad_perm:[2,3,0,1]", "row_half_mirror"):
            for h in range(2):
                for c in range(2):
                    k(f"v_add_f32_dpp {v(tt+c)}, {v(sm+2*h+c)}, {v(sm+2*h+c)} {dpp} row_mask:0xf bank_mask:0xf")
                for c in range(2):
                    k(f"v_mov_b32 {v(sm+2*h+c)}, {v(tt+c)}")
    return vy, vo, sm, va_

def main_loop(k, nks, kpc, reads, mfmas, last=()):
    k.dstamp()
    k("s_barrier"); k.stamp()
    for r in reads(0): k(r)
    for ks in range(nks):
        if ks == nks - 1: interleave(k, mfmas(ks), list(last))
        else:
            if (ks + 1) % kpc == 0:
                k("s_waitcnt lgkmcnt(0)")
                k.dstamp()
                k("s_barrier")
            interleave(k, mfmas(ks), reads(ks + 1))
    k.stamp()

class Phase:
    D = NA - 1; has_ln = False; pseudo = 0
    def __init__(self, tag): self.tag = tag; self.bslot = {}
    def aslot(self, c): return ARING + (c % NA) * 16384
    rot = bool(os.environ.get("G_ROT"))
    def koff(self, k, dst, c, step):
        if not self.rot or isinstance(self, P2):
            k(f"s_mov_b32 s{dst}, {c*step}"); return
        if self.NC == 8:
            k(f"s_add_u32 s{dst}, s{SM_}, {c}"); k(f"s_and_b32 s{dst}, s{dst}, 7")
        else:
            k(f"s_and_b32 s{dst}, s{SM_}, 7"); k(f"s_add_u32 s{dst}, s{dst}, {c}")
            k(f"s_sub_u32 s58, s{dst}, {self.NC}"); k(f"s_cmp_ge_u32 s{dst}, {self.NC}"); k(f"s_cselect_b32 s{dst}, s58, s{dst}")
        k(f"s_mul_i32 s{dst}, s{dst}, {step}")
    def issue_A(self, k, c):
        self.koff(k, 56, c, self.PA)
        for i in range(8):
            k(f"s_add_u32 m0, s55, {self.aslot(c)+i*1024}")
            k.I(f"buffer_load_dwordx4 {v(self.voA[i])}, s[24:27], s56 offen lds", tag=f"{self.tag}a{c}")
    def issue_B(self, k, c):
        self.koff(k, 57, c, self.BSTEP)
        for i in range(self.NBI):
            k(f"s_add_u32 m0, s{self.sBW}, {self.bslot[c]+i*1024}")
            k.I(f"buffer_load_dwordx4 {v(self.voB[i])}, s[{self.SWB}:{self.SWB+3}], s57 offen lds", tag=f"{self.tag}b{c}")
    def issue_Bv(self, k, c, vs):
        k(f"s_mov_b32 s57, {c*self.BSTEP}")
        for i in range(self.NBI):
            k.I(f"buffer_load_dwordx4 {v(vs+4*i,4)}, {v(self.voB[i])}, s[{self.SWB}:{self.SWB+3}], s57 offen", tag=f"{self.tag}b{c}")
    def place_Bv(self, k, c, vs, vl16, vtmp):
        k(f"s_add_u32 s58, s{self.sBW}, {self.bslot[c]}")
        k(f"v_add_u32 {v(vtmp)}, s58, {v(vl16)}")
        for i in range(self.NBI):
            k(f"ds_write_b128 {v(vtmp)}, {v(vs+4*i,4)} offset:{i*1024}")
    Qe = 1
    def spare(self, c): return 1 if c >= self.NC - self.D else 0

class P1(Phase):
    Qe = 5
    def spare(self, c): return 1 if (c >= self.NC - self.D or c % 2 == 1) else 0
    NC = 8; PA = 128; NBI = 6; BSTEP = 64 * 3072; has_ln = True; nprod = 16
    LDS_KV, LDS_Z, SP = EX + 2048, EX + 6144, 80
    def __init__(self, tag, xsrc, kv_off, st_off):
        super().__init__(tag); self.xsrc, self.kv_off, self.st_off = xsrc, kv_off, st_off
        self.instat = st_off is None
        self.has_ln = not self.instat
    def tile(self, k):
        k(f"s_mov_b32 s22, s{SC_}"); k(f"s_mov_b32 s23, s{SM_}")
        k("s_lshl_b32 s50, s22, 7"); k("s_lshl_b32 s54, s23, 6")
    def setup_A(self, k, vt, vt2):
        self.voA = a_dma_offsets(k, 8, 128, 1024, 50, vt, vt2)
        k("s_waitcnt lgkmcnt(0)")
        if self.xsrc == "in": srd(k, 24, P_X, 0, XB)
        else: srd(k, 24, P_WS, self.xsrc, XB)
    def setup_B(self, k, vt, vt2, vt3, tmp):
        self.voB = [k.valloc() for _ in range(6)]
        u, row, rem, t_, c_ = tmp
        k("s_mul_i32 s53, s59, 384")
        k(f"s_lshl_b32 s54, s{SM_}, 6")
        for i in range(6):
            k(f"v_add_u32 {v(u)}, s53, {v(k.vL)}")
            if i: k(f"v_add_u32 {v(u)}, {64*i}, {v(u)}")
            k(f"v_mul_u32_u24 {v(row)}, 0xaaab, {v(u)}")
            k(f"v_lshrrev_b32 {v(row)}, 19, {v(row)}")
            k(f"v_mul_u32_u24 {v(rem)}, 12, {v(row)}")
            k(f"v_sub_u32 {v(rem)}, {v(u)}, {v(rem)}")
            k(f"v_lshrrev_b32 {v(t_)}, 1, {v(rem)}")
            k(f"v_bfe_u32 {v(c_)}, {v(row)}, 3, 1")
            k(f"v_sub_u32 {v(t_)}, {v(t_)}, {v(c_)}")
            k(f"v_add_u32 {v(c_)}, 6, {v(t_)}")
            k(f"v_min_u32 {v(t_)}, {v(t_)}, {v(c_)}")
            k(f"v_lshrrev_b32 {v(c_)}, 1, {v(t_)}")
            k(f"v_lshlrev_b32 {v(c_)}, 10, {v(c_)}")
            k(f"v_and_b32 {v(t_)}, 1, {v(t_)}")
            k(f"v_lshl_add_u32 {v(c_)}, {v(t_)}, 5, {v(c_)}")
            k(f"v_and_b32 {v(rem)}, 1, {v(rem)}")
            k(f"v_lshl_add_u32 {v(c_)}, {v(rem)}, 4, {v(c_)}")
            k(f"v_mul_u32_u24 {v(row)}, 3072, {v(row)}")
            k(f"v_add3_u32 {v(self.voB[i])}, {v(row)}, {v(c_)}, s54")
        k(f"s_mul_i32 s{self.sBW}, s59, 6144")
        k("s_waitcnt lgkmcnt(0)")
        srd(k, self.SWB, P_WQKV, 0, 512 * 1536 * 2)
    def compute(self, k, vt, vt2, vt3):
        SP = self.SP; SCS = 40
        k("s_lshr_b32 s52, s3, 1")
        k("s_lshl_b32 s52, s52, 6")
        k("s_and_b32 s53, s3, 1")
        cs3 = k.valloc(12, 4)
        csq = cs3
        vcq = k.valloc(); vck = k.valloc()
        k("s_lshl_b32 s56, s23, 7")
        k("s_lshl_b32 s57, s53, 6")
        k("s_add_u32 s56, s56, s57")
        k(f"v_lshlrev_b32 {v(vcq)}, 4, {v(k.vG)}")
        k(f"v_add_u32 {v(vcq)}, s56, {v(vcq)}")
        k(f"v_lshlrev_b32 {v(vck)}, 2, {v(k.vR16)}")
        k(f"v_add_u32 {v(vck)}, s56, {v(vck)}")
        k(f"v_add_u32 {v(vck)}, 2048, {v(vck)}")
        if self.instat:
            for i in range(12): k(f"v_mov_b32 {v(cs3+i)}, 0")
            if os.environ.get("G_T0", "1") == "1":
                t0_ = k.valloc(4)
                k("s_waitcnt lgkmcnt(0)")
                srd(k, 24, P_WQKV, 0, 512 * 1536 * 2)
                srd(k, 28, P_X, 0, XB)
                k(f"v_lshlrev_b32 {v(vt)}, 4, v0")
                k("s_mul_i32 s57, s2, 6144")
                k(f"buffer_load_dword {v(t0_)}, {v(vt)}, s[24:27], s57 offen")
                k(f"buffer_load_dword {v(t0_+1)}, {v(vt)}, s[24:27], s57 offen offset:2048")
                k("s_lshl_b32 s57, s2, 13")
                k(f"buffer_load_dword {v(t0_+2)}, {v(vt)}, s[28:31], s57 offen")
                k("s_add_u32 s57, s57, 4096")
                k(f"buffer_load_dword {v(t0_+3)}, {v(vt)}, s[28:31], s57 offen")
        else:
            k("s_waitcnt lgkmcnt(0)")
            srd(k, SCS, P_WS, WS_CS, 1536 * 4)
            k(f"buffer_load_dwordx4 {v(cs3,4)}, {v(vcq)}, s[{SCS}:{SCS+3}], 0 offen")
            for kv in range(2):
                k(f"buffer_load_dword {v(cs3+4+4*kv)}, {v(vck)}, s[{SCS}:{SCS+3}], 0 offen offset:{2048*kv}")
        ones = k.valloc(4)
        for i in range(4): k(f"v_mov_b32 {v(ones+i)}, 0x3f803f80")
        k("s_lshl_b32 s57, s53, 5")
        k("s_add_u32 s66, s52, s57")
        k("s_xor_b32 s57, s57, 32")
        k("s_add_u32 s67, s52, s57")
        B = Bases(k)
        a_read_bases(k, B, 128, 66, 2, vt, vt2)
        B2 = Bases(k)
        a_read_bases(k, B2, 128, 67, 2, vt, vt2)
        k(f"v_bfe_u32 {v(vt)}, {v(k.vL)}, 2, 2")
        k(f"v_lshl_add_u32 {v(vt)}, {v(k.vG)}, 3, {v(vt)}")
        k(f"v_mul_u32_u24 {v(vt)}, 192, {v(vt)}")
        k(f"v_and_b32 {v(vt2)}, 3, {v(k.vL)}")
        k(f"v_lshl_add_u32 {v(vt)}, {v(vt2)}, 3, {v(vt)}")
        k(f"v_and_b32 {v(vt2)}, 1, {v(k.vG)}")
        k(f"v_add_u32 {v(vt2)}, s53, {v(vt2)}")
        for j in range(3):
            r = k.valloc()
            k(f"v_add_u32 {v(vt3)}, {2*j}, {v(vt2)}")
            if j == 2:
                k(f"v_subrev_u32 {v(r)}, 6, {v(vt3)}")
                k(f"v_min_u32 {v(vt3)}, {v(vt3)}, {v(r)}")
            k(f"v_lshl_add_u32 {v(r)}, {v(vt3)}, 5, {v(vt)}")
            B.add(("W", j), r, 3)
        acc = k.valloc(48, 4)
        for i in range(48): k(f"v_mov_b32 {v(acc+i)}, 0")
        Ab = [k.valloc(16, 4), k.valloc(16, 4)]; Wb = [k.valloc(12, 4), k.valloc(12, 4)]
        ab = [k.valloc(2, 2) for _ in range(4)]
        abn = [k.valloc(8, 4) for _ in range(4)]
        vab = [k.valloc(), k.valloc()]; vabn = [k.valloc(), k.valloc()]
        for h in range(2):
            k(f"v_add_u32 {v(vab[h])}, s{66+h}, {v(k.vR16)}")
            k(f"v_lshlrev_b32 {v(vab[h])}, 3, {v(vab[h])}")
            k(f"v_add_u32 {v(vab[h])}, {LDS_AB}, {v(vab[h])}")
            k(f"v_lshlrev_b32 {v(vabn[h])}, 2, {v(k.vG)}")
            k(f"v_add_u32 {v(vabn[h])}, s{66+h}, {v(vabn[h])}")
            k(f"v_lshlrev_b32 {v(vabn[h])}, 3, {v(vabn[h])}")
            k(f"v_add_u32 {v(vabn[h])}, {LDS_AB}, {v(vabn[h])}")
        if self.instat:
            sta = k.valloc(16, 4)
            for i in range(16): k(f"v_mov_b32 {v(sta+i)}, 0")
        def reads(ks):
            c = ks // 2; kk = ks & 1; A_ = Ab[ks & 1]; W_ = Wb[ks & 1]
            ra = [f"ds_read_b128 {v(A_+4*rt,4)}, {(B if rt < 2 else B2).at(('A',kk), self.aslot(c) + (rt&1)*2048)}" for rt in range(4)]
            rw = [f"ds_read_b64_tr_b16 {v(W_+4*j+2*hh,2)}, {B.at(('W',j), self.bslot[c] + kk*6144 + hh*768)}" for j in range(3) for hh in range(2)]
            return [ra[0]] + rw + ra[1:]
        def mfmas(ks):
            A_ = Ab[ks & 1]; W_ = Wb[ks & 1]; out = []
            for rt in range(4):
                for j in range(3):
                    ac = acc + (rt * 3 + j) * 4
                    if j == 0: out.append(f"v_mfma_f32_16x16x32_bf16 {v(ac,4)}, {v(W_,4)}, {v(A_+4*rt,4)}, {v(ac,4)}")
                    else: out.append(f"v_mfma_f32_16x16x32_bf16 {v(ac,4)}, {v(A_+4*rt,4)}, {v(W_+4*j,4)}, {v(ac,4)}")
            if self.instat:
                out.append(f"v_mfma_f32_16x16x32_bf16 {v(cs3,4)}, {v(W_,4)}, {v(ones,4)}, {v(cs3,4)}")
                for j in (1, 2): out.append(f"v_mfma_f32_16x16x32_bf16 {v(cs3+4*j,4)}, {v(ones,4)}, {v(W_+4*j,4)}, {v(cs3+4*j,4)}")
                for rt in range(2):
                    out.append(f"v_mfma_f32_16x16x32_bf16 {v(sta+8*rt,4)}, {v(ones,4)}, {v(A_+4*rt,4)}, {v(sta+8*rt,4)}")
                    out.append(f"v_mfma_f32_16x16x32_bf16 {v(sta+8*rt+4,4)}, {v(A_+4*rt,4)}, {v(A_+4*rt,4)}, {v(sta+8*rt+4,4)}")
            return out
        o = []
        for rt in range(4):
            o.append(f"ds_read_b128 {v(abn[rt],4)}, {v(vabn[rt>>1])} offset:{(rt&1)*128}")
            o.append(f"ds_read_b128 {v(abn[rt]+4,4)}, {v(vabn[rt>>1])} offset:{(rt&1)*128+16}")
            o.append(f"ds_read_b64 {v(ab[rt],2)}, {v(vab[rt>>1])} offset:{(rt&1)*128}")
        main_loop(k, 16, 2, reads, mfmas, [] if self.instat else o)
        if self.instat:
            k(f"v_and_b32 {v(vt)}, 3, {v(k.vL)}")
            k(f"v_lshrrev_b32 {v(vt2)}, 2, {v(k.vR16)}")
            k(f"v_cmp_eq_u32 s[60:61], {v(vt2)}, {v(k.vG)}")
            for rt in range(2):
                g_ = sta + 8 * rt + 4; q = sta + 8 * rt + 1; m = sta + 8 * rt
                for j in range(1, 4):
                    k(f"v_cmp_eq_u32 vcc, {j}, {v(vt)}")
                    k(f"v_cndmask_b32 {v(g_)}, {v(g_)}, {v(g_+j)}, vcc")
                k(f"v_cndmask_b32 {v(q)}, 0, {v(g_)}, s[60:61]")
                gen.xlane_sum_g(k, q, vt3)
                ln_finish(k, m, q, ab[rt])
                k(f"ds_write_b64 {v(vab[0])}, {v(ab[rt],2)} offset:{rt*128}")
            k("s_waitcnt lgkmcnt(0)")
        k("s_barrier")
        if self.instat:
            for x in o: k(x)
            srd(k, SCS, P_WS, WS_CS, 1536 * 4)
            k(f"s_or_b32 s57, s{SC_}, s52")
            k("s_cmp_eq_u32 s57, 0")
            k(f"s_cselect_b32 s{SCS+2}, s{SCS+2}, 0")
            k(f"buffer_store_dwordx4 {v(cs3,4)}, {v(vcq)}, s[{SCS}:{SCS+3}], 0 offen")
            for kv in range(2):
                k(f"buffer_store_dword {v(cs3+4+4*kv)}, {v(vck)}, s[{SCS}:{SCS+3}], 0 offen offset:{2048*kv}")
        k(f"s_mov_b32 s62, {LOG2E:#x}"); k(f"s_mov_b32 s63, {LOG2E:#x}")
        k(f"s_mov_b32 s64, {fbits(1e-6):#x}"); k(f"s_mov_b32 s65, {fbits(1e-6):#x}")
        T = k.valloc(4)
        fk = k.valloc(8, 4); fv = k.valloc(8, 4)
        for rt in range(4):
            for j in (1, 2):
                ac = acc + (rt * 3 + j) * 4; f = (fk, fv)[j - 1] + 2 * rt
                for jj in range(4): k(f"v_mul_f32 {v(T+jj)}, {v(abn[rt]+2*jj+1)}, {v(cs3+4*j)}")
                for jj in range(4): k(f"v_fma_f32 {v(ac+jj)}, {v(abn[rt]+2*jj)}, {v(ac+jj)}, {v(T+jj)}")
                if j == 1: phi4(k, ac, T)
                k(f"v_cvt_pk_bf16_f32 {v(f)}, {v(ac)}, {v(ac+1)}")
                k(f"v_cvt_pk_bf16_f32 {v(f+1)}, {v(ac+2)}, {v(ac+3)}")
        kvp = k.valloc(4); zp = k.valloc(4)
        k(f"v_mfma_f32_16x16x32_bf16 {v(kvp,4)}, {v(fk,4)}, {v(fv,4)}, 0")
        k(f"v_mfma_f32_16x16x32_bf16 {v(zp,4)}, {v(fk,4)}, {v(ones,4)}, 0")
        k(f"v_mfma_f32_16x16x32_bf16 {v(kvp,4)}, {v(fk+4,4)}, {v(fv+4,4)}, {v(kvp,4)}")
        k(f"v_mfma_f32_16x16x32_bf16 {v(zp,4)}, {v(fk+4,4)}, {v(ones,4)}, {v(zp,4)}")
        vs = [k.valloc(), k.valloc()]
        k("s_lshl_b32 s57, s53, 5")
        for h in range(2):
            k(f"v_add_u32 {v(vs[h])}, s{66+h}, {v(k.vR16)}")
            k(f"v_mul_u32_u24 {v(vs[h])}, {SP}, {v(vs[h])}")
            k(f"v_lshl_add_u32 {v(vs[h])}, {v(k.vG)}, 3, {v(vs[h])}")
            k(f"v_add_u32 {v(vs[h])}, s57, {v(vs[h])}")
        for rt in range(4):
            ac = acc + rt * 12
            for p in range(2):
                k(f"v_pk_mul_f32 {v(T+2*p,2)}, {v(csq+2*p,2)}, {v(ab[rt],2)} op_sel:[0,1] op_sel_hi:[1,1]")
            for p in range(2):
                k(f"v_pk_fma_f32 {v(ac+2*p,2)}, {v(ac+2*p,2)}, {v(ab[rt],2)}, {v(T+2*p,2)} op_sel:[0,0,0] op_sel_hi:[1,0,1]")
            phi4(k, ac, T)
            k(f"v_cvt_pk_bf16_f32 {v(ac)}, {v(ac)}, {v(ac+1)}")
            k(f"v_cvt_pk_bf16_f32 {v(ac+1)}, {v(ac+2)}, {v(ac+3)}")
            k(f"ds_write_b64 {v(vs[rt>>1])}, {v(ac,2)} offset:{(rt&1)*16*SP}")
        k("s_lshl_b32 s57, s3, 10")
        k(f"s_add_u32 s57, s57, {self.LDS_KV}")
        k(f"v_lshlrev_b32 {v(vt)}, 4, {v(k.vL)}")
        k(f"v_add_u32 {v(vt)}, s57, {v(vt)}")
        k("s_lshl_b32 s58, s3, 6")
        k(f"s_add_u32 s58, s58, {self.LDS_Z}")
        k(f"v_lshlrev_b32 {v(vt2)}, 4, {v(k.vG)}")
        k(f"v_add_u32 {v(vt2)}, s58, {v(vt2)}")
        k(f"ds_write_b128 {v(vt)}, {v(kvp,4)}")
        k(f"ds_write_b128 {v(vt2)}, {v(zp,4)}")
        k("s_waitcnt lgkmcnt(0)")
    def store(self, k, vt, vt2, vt3, emit_stores):
        SPQ, SKV, SP = 32, 36, self.SP
        srd(k, SPQ, P_WS, WS_PQ, XB)
        srd(k, SKV, P_WS, self.kv_off, 34816)
        k("s_barrier")
        vy = k.valloc(8, 4); va_ = k.valloc(); vo = k.valloc(); rd = k.valloc(8, 4)
        k(f"v_lshrrev_b32 {v(vt)}, 2, v0")
        k(f"v_and_b32 {v(vt2)}, 3, v0")
        k(f"v_mul_u32_u24 {v(va_)}, {SP}, {v(vt)}")
        k(f"v_lshl_add_u32 {v(va_)}, {v(vt2)}, 4, {v(va_)}")
        k(f"ds_read_b128 {v(vy,4)}, {v(va_)}")
        k(f"ds_read_b128 {v(vy+4,4)}, {v(va_)} offset:{64*SP}")
        k(f"v_add_u32 {v(vt)}, s50, {v(vt)}")
        k(f"v_lshlrev_b32 {v(vo)}, 10, {v(vt)}")
        k(f"v_lshl_add_u32 {v(vo)}, {v(vt2)}, 4, {v(vo)}")
        k(f"v_add_u32 {v(vo)}, s54, {v(vo)}")
        k(f"v_bfe_u32 {v(vt)}, v0, 3, 4")
        k(f"v_lshlrev_b32 {v(vt)}, 4, {v(vt)}")
        k(f"v_bfe_u32 {v(vt2)}, v0, 7, 1")
        k(f"v_lshl_add_u32 {v(vt)}, {v(vt2)}, 9, {v(vt)}")
        k(f"v_bfe_u32 {v(vt2)}, v0, 2, 1")
        k(f"v_lshl_add_u32 {v(vt)}, {v(vt2)}, 8, {v(vt)}")
        k(f"v_and_b32 {v(vt2)}, 3, v0")
        k(f"v_lshl_add_u32 {v(vt)}, {v(vt2)}, 2, {v(vt)}")
        k(f"v_add_u32 {v(vt)}, {self.LDS_KV}, {v(vt)}")
        for h in range(2):
            k(f"ds_read_b32 {v(rd+2*h)}, {v(vt)} offset:{h*1024}")
            k(f"ds_read_b32 {v(rd+2*h+1)}, {v(vt)} offset:{h*1024+2048}")
        k(f"v_and_b32 {v(vt3)}, 31, v0")
        k(f"v_lshlrev_b32 {v(vt3)}, 2, {v(vt3)}")
        k(f"v_add_u32 {v(vt2)}, {self.LDS_Z}, {v(vt3)}")
        k(f"ds_read_b32 {v(rd+4)}, {v(vt2)}")
        k(f"ds_read_b32 {v(rd+5)}, {v(vt2)} offset:128")
        k("s_mov_b32 s60, 65536")
        emit_stores([f"buffer_store_dwordx4 {v(vy,4)}, {v(vo)}, s[{SPQ}:{SPQ+3}], 0 offen",
                     f"buffer_store_dwordx4 {v(vy+4,4)}, {v(vo)}, s[{SPQ}:{SPQ+3}], s60 offen"])
        k("s_lshl_b32 s57, s23, 11")
        k(f"v_lshlrev_b32 {v(vt2)}, 2, v0")
        k(f"v_add_u32 {v(vt2)}, s57, {v(vt2)}")
        for h in range(2):
            k(f"v_add_f32 {v(rd+2*h)}, {v(rd+2*h)}, {v(rd+2*h+1)}")
            k(f"buffer_atomic_add_f32 {v(rd+2*h)}, {v(vt2)}, s[{SKV}:{SKV+3}], 0 offen offset:{h*1024}")
        k("s_lshl_b32 s57, s23, 7")
        k(f"s_add_u32 s57, s57, 32768")
        k(f"v_add_u32 {v(vt3)}, s57, {v(vt3)}")
        k(f"v_mov_b32 {v(vt2)}, 0x7ffffff0")
        k(f"v_cmp_gt_u32 vcc, 32, v0")
        k(f"v_cndmask_b32 {v(vt3)}, {v(vt2)}, {v(vt3)}, vcc")
        k(f"v_add_f32 {v(rd+4)}, {v(rd+4)}, {v(rd+5)}")
        k(f"buffer_atomic_add_f32 {v(rd+4)}, {v(vt3)}, s[{SKV}:{SKV+3}], 0 offen")

class P2(Phase):
    NC = 4; PA = 256; NBI = 8; BSTEP = 131072; nprod = 16; pseudo = 1
    LDS_Z, LDS_0 = EX + 2048, EX + 3072
    def __init__(self, tag, xsrc, kv_off, xdst, st_off): super().__init__(tag); self.xsrc, self.kv_off, self.xdst, self.st_off = xsrc, kv_off, xdst, st_off
    def tile(self, k): tile64(k)
    def setup_A(self, k, vt, vt2):
        self.voA = a_dma_offsets(k, 8, 256, 1024, 50, vt, vt2)
        k("s_waitcnt lgkmcnt(0)")
        srd(k, 24, P_WS, WS_PQ, XB)
    def setup_B(self, k, vt, vt2, vt3, tmp):
        self.voB = [k.valloc() for _ in range(8)]
        k(f"v_lshrrev_b32 {v(vt)}, 3, {v(k.vL)}")
        k(f"v_bfe_u32 {v(vt2)}, {v(k.vL)}, 4, 2")
        k(f"v_lshlrev_b32 {v(vt2)}, 1, {v(vt2)}")
        k(f"v_and_b32 {v(vt3)}, 7, {v(k.vL)}")
        k(f"v_xor_b32 {v(vt2)}, {v(vt2)}, {v(vt3)}")
        k(f"v_lshlrev_b32 {v(vt2)}, 4, {v(vt2)}")
        k(f"v_lshl_add_u32 {v(vt)}, {v(vt)}, 10, {v(vt2)}")
        k("s_lshl_b32 s52, s59, 16")
        k(f"s_and_b32 s54, s{SM_}, 7"); k("s_lshl_b32 s54, s54, 7")
        k("s_add_u32 s52, s52, s54")
        k(f"v_add_u32 {v(self.voB[0])}, s52, {v(vt)}")
        for i in range(1, 8): k(f"v_add_u32 {v(self.voB[i])}, {8192*i}, {v(self.voB[0])}")
        k(f"s_lshl_b32 s{self.sBW}, s59, 13")
        k("s_waitcnt lgkmcnt(0)")
        srd(k, self.SWB, P_WO, 0, 512 * 512 * 2)
    def compute(self, k, vt, vt2, vt3):
        SKV, SX = 36, 24
        LDS_F, LDS_Z, LDS_0 = self.bslot[self.NC], self.LDS_Z, self.LDS_0
        self.xr = k.valloc(8, 4)
        kvf = k.valloc(32, 4); zf = k.valloc(2, 2)
        k("s_lshl_b32 s52, s3, 13")
        k(f"v_lshlrev_b32 {v(vt)}, 5, {v(k.vL)}")
        k(f"v_add_u32 {v(vt)}, s52, {v(vt)}")
        k(f"v_add_u32 {v(vt2)}, 4096, {v(vt)}")
        k("s_waitcnt lgkmcnt(0)")
        srd(k, SKV, P_WS, self.kv_off, 34816)
        for p in range(4):
            for hlf in range(2):
                k(f"buffer_load_dwordx4 {v(kvf+8*p+4*hlf,4)}, {v(vt if p < 2 else vt2)}, s[{SKV}:{SKV+3}], 0 offen offset:{(p&1)*2048+hlf*16}")
        k(f"v_lshlrev_b32 {v(vt3)}, 3, v0")
        k(f"v_add_u32 {v(vt3)}, 32768, {v(vt3)}")
        k(f"buffer_load_dwordx2 {v(zf,2)}, {v(vt3)}, s[{SKV}:{SKV+3}], 0 offen")
        if self.xsrc == "in": srd(k, SX, P_X, 0, XB)
        else: srd(k, SX, P_WS, self.xsrc, XB)
        resid_load64(k, SX, vt, vt2, self.xr)
        k("s_lshl_b32 s52, s3, 4")
        B = Bases(k)
        a_read_bases(k, B, 256, 52, 2, vt, vt2)
        aA0, aA1, aAz, sA0, sA1, sAz = [k.valloc() for _ in range(6)]
        k(f"v_lshlrev_b32 {v(vt)}, 4, {v(k.vL)}")
        k(f"v_add_u32 {v(vt)}, {LDS_F}, {v(vt)}")
        k(f"v_mov_b32 {v(vt2)}, {LDS_0}")
        k(f"v_cmp_gt_u32 vcc, 2, {v(k.vG)}")
        k(f"v_cndmask_b32 {v(aA0)}, {v(vt2)}, {v(vt)}, vcc")
        k(f"v_cndmask_b32 {v(aA1)}, {v(vt)}, {v(vt2)}, vcc")
        k(f"v_mov_b32 {v(vt3)}, 1024")
        k(f"v_cndmask_b32 {v(sA0)}, 0, {v(vt3)}, vcc")
        k(f"v_cndmask_b32 {v(sA1)}, {v(vt3)}, 0, vcc")
        k(f"v_and_b32 {v(vt)}, 3, {v(k.vL)}")
        k(f"v_lshrrev_b32 {v(vt3)}, 1, {v(k.vG)}")
        k(f"v_cmp_eq_u32 vcc, {v(vt)}, {v(vt3)}")
        k(f"v_lshlrev_b32 {v(vt)}, 4, {v(k.vG)}")
        k(f"v_add_u32 {v(vt)}, {LDS_Z}, {v(vt)}")
        k(f"v_cndmask_b32 {v(aAz)}, {v(vt2)}, {v(vt)}, vcc")
        k(f"v_cndmask_b32 {v(sAz)}, 0, 64, vcc")
        k(f"v_bfe_u32 {v(vt)}, {v(k.vL)}, 2, 2")
        k(f"v_lshl_add_u32 {v(vt)}, {v(k.vG)}, 2, {v(vt)}")
        k(f"v_bfe_u32 {v(vt2)}, {v(vt)}, 1, 2")
        k(f"v_lshlrev_b32 {v(vt)}, 7, {v(vt)}")
        k(f"v_and_b32 {v(vt3)}, 3, {v(k.vL)}")
        k(f"v_lshl_add_u32 {v(vt)}, {v(vt3)}, 3, {v(vt)}")
        for t in range(4):
            r = k.valloc()
            k(f"v_xor_b32 {v(vt3)}, {t}, {v(vt2)}")
            k(f"v_lshl_add_u32 {v(r)}, {v(vt3)}, 5, {v(vt)}")
            B.add(("W", t), r, 3)
        acc = k.valloc(16, 4)
        for i in range(16): k(f"v_mov_b32 {v(acc+i)}, 0")
        k("s_lshl_b32 s57, s3, 12")
        k(f"s_add_u32 s57, s57, {LDS_F}")
        k(f"v_lshlrev_b32 {v(vt)}, 4, {v(k.vL)}")
        k(f"v_add_u32 {v(vt)}, s57, {v(vt)}")
        for p in range(4):
            for i in range(4):
                k(f"v_cvt_pk_bf16_f32 {v(kvf+8*p+i)}, {v(kvf+8*p+2*i)}, {v(kvf+8*p+2*i+1)}")
            k(f"ds_write_b128 {v(vt)}, {v(kvf+8*p,4)} offset:{p*1024}")
        k(f"v_cvt_pk_bf16_f32 {v(zf)}, {v(zf)}, {v(zf+1)}")
        k(f"v_lshlrev_b32 {v(vt2)}, 2, v0")
        k(f"v_add_u32 {v(vt2)}, {LDS_Z}, {v(vt2)}")
        k(f"ds_write_b32 {v(vt2)}, {v(zf)}")
        k(f"v_mov_b32 {v(zf)}, 0")
        k(f"v_and_b32 {v(vt2)}, 3, v0")
        k(f"v_lshlrev_b32 {v(vt2)}, 2, {v(vt2)}")
        k(f"v_add_u32 {v(vt2)}, {LDS_0}, {v(vt2)}")
        k(f"ds_write_b32 {v(vt2)}, {v(zf)}")
        Wb = [kvf, k.valloc(32, 4)]
        Fb = k.valloc(24, 4); Pb = k.valloc(8, 4)
        N = [k.valloc(24, 4), k.valloc(24, 4)]
        O = [k.valloc(8, 4), k.valloc(8, 4)]; rr = k.valloc(4, 4)
        k(f"s_mov_b32 s62, {fbits(1e-6):#x}"); k(f"s_mov_b32 s63, {fbits(1e-6):#x}")
        def freads(hc):
            o = []
            for q in range(2):
                o += [f"ds_read_b128 {v(Pb+4*q,4)}, {B.at(('A',(hc&1)*2+q), self.aslot(hc//2))}",
                      f"ds_read_b128 {v(Fb+12*q,4)}, {v(aA0)}", f"ds_read_b128 {v(Fb+12*q+4,4)}, {v(aA1)}", f"ds_read_b128 {v(Fb+12*q+8,4)}, {v(aAz)}",
                      f"v_add_u32 {v(aA0)}, {v(aA0)}, {v(sA0)}", f"v_add_u32 {v(aA1)}, {v(aA1)}, {v(sA1)}", f"v_add_u32 {v(aAz)}, {v(aAz)}, {v(sAz)}"]
            return o
        def wreads(hc):
            b = Wb[hc & 1]
            return [f"ds_read_b64_tr_b16 {v(b+16*q+4*t+2*hh,2)}, {B.at(('W',t), self.bslot[hc//2] + ((hc&1)*2+q)*4096 + hh*2048)}" for q in range(2) for t in range(4) for hh in range(2)]
        def amfma(c):
            n = N[c & 1]
            return [f"v_mfma_f32_16x16x32_bf16 {v(n+12*q+4*i,4)}, {v(Fb+12*q+4*i,4)}, {v(Pb+4*q,4)}, 0" for q in range(2) for i in range(3)]
        def cmfma(c):
            b = Wb[c & 1]; o = O[c & 1]
            return [f"v_mfma_f32_16x16x32_bf16 {v(acc+4*t,4)}, {v(b+16*q+4*t,4)}, {v(o+4*q,4)}, {v(acc+4*t,4)}" for q in range(2) for t in range(4)]
        def ovalu(c):
            n0 = N[c & 1]; Oo = O[c & 1]; o = []
            for q in range(2):
                for i in range(2): o.append(f"v_add_f32 {v(rr+2*q+i)}, s62, {v(n0+12*q+8+i)}")
            for i in range(4): o.append(f"v_rcp_f32 {v(rr+i)}, {v(rr+i)}")
            for q in range(2):
                n = n0 + 12 * q
                for x in range(8): o.append(f"v_mul_f32 {v(n+x)}, {v(n+x)}, {v(rr+2*q+x//4)}")
            for q in range(2):
                n = n0 + 12 * q
                for h in range(2):
                    o.append(f"v_cvt_pk_bf16_f32 {v(Oo+4*q+2*h)}, {v(n+4*h)}, {v(n+4*h+1)}")
                    o.append(f"v_cvt_pk_bf16_f32 {v(Oo+4*q+2*h+1)}, {v(n+4*h+2)}, {v(n+4*h+3)}")
            return o
        k("s_waitcnt lgkmcnt(0)")
        k("s_barrier"); k.stamp()
        for r in freads(0) + wreads(0): k(r)
        for r in amfma(0): k(r)
        for c in range(9):
            if c + 1 < 8:
                if (c + 1) % 2 == 0:
                    k("s_waitcnt lgkmcnt(0)")
                    k("s_barrier")
                for r in freads(c + 1): k(r)
            mf = (cmfma(c - 1) if c >= 1 else []) + (amfma(c + 1) if c + 1 < 8 else [])
            va = (ovalu(c) if c < 8 else [])
            wr = wreads(c + 1) if c + 1 < 8 else []
            nc_ = 8 if c >= 1 else 0
            i_ = j_ = w_ = 0
            while i_ < len(mf) or j_ < len(va) or w_ < len(wr):
                if i_ < len(mf): k(mf[i_]); i_ += 1
                for _ in range(2):
                    if j_ < len(va): k(va[j_]); j_ += 1
                if i_ >= nc_:
                    for _ in range(3):
                        if w_ < len(wr): k(wr[w_]); w_ += 1
        k.stamp()
        k("s_barrier")
        vs = k.valloc()
        k(f"v_add_u32 {v(vs)}, s52, {v(k.vR16)}")
        k(f"v_mul_u32_u24 {v(vs)}, 144, {v(vs)}")
        k(f"v_lshl_add_u32 {v(vs)}, {v(k.vG)}, 3, {v(vs)}")
        for t in range(4):
            ac = acc + 4 * t
            k(f"v_cvt_pk_bf16_f32 {v(ac)}, {v(ac)}, {v(ac+1)}")
            k(f"v_cvt_pk_bf16_f32 {v(ac+1)}, {v(ac+2)}, {v(ac+3)}")
            k(f"ds_write_b64 {v(vs)}, {v(ac,2)} offset:{t*32}")
        k("s_waitcnt lgkmcnt(0)")
    def store(self, k, vt, vt2, vt3, emit_stores):
        store64(self, k, emit_stores)

def store64(p, k, emit_stores):
    SD, SST = 40, 44
    if p.xdst == "out": srd(k, SD, P_OUT, 0, XB)
    else: srd(k, SD, P_WS, p.xdst, XB)
    if p.st_off is not None: srd(k, SST, P_WS, p.st_off, 2048 * 64)
    k("s_barrier")
    vy, vo, sm, va_ = store64_prep(k, p.xr, p.st_off is not None)
    k("s_mov_b32 s60, 32768")
    st = [f"buffer_store_dwordx4 {v(vy,4)}, {v(vo)}, s[{SD}:{SD+3}], 0 offen", f"buffer_store_dwordx4 {v(vy+4,4)}, {v(vo)}, s[{SD}:{SD+3}], s60 offen"]
    if p.st_off is not None:
        st += [f"buffer_store_dwordx2 {v(sm,2)}, {v(va_)}, s[{SST}:{SST+3}], 0 offen", f"buffer_store_dwordx2 {v(sm+2,2)}, {v(va_)}, s[{SST}:{SST+3}], 0 offen offset:2048"]
    emit_stores(st)

class P3(Phase):
    Qe = 6
    def spare(self, c): return 1 if (c >= self.NC - self.D or c % 2 == 1) else 0
    NC = 8; PA = 128; NBI = 8; BSTEP = 64 * 3584; has_ln = True; nprod = 16
    SP = 240
    def __init__(self, tag, xsrc, st_off, hoff): super().__init__(tag); self.xsrc, self.st_off, self.hoff = xsrc, st_off, hoff
    def tile(self, k):
        k(f"s_mov_b32 s22, s{SC_}"); k(f"s_mov_b32 s23, s{SM_}")
        k("s_lshl_b32 s50, s22, 7"); k("s_mul_i32 s54, s23, 224")
    def setup_A(self, k, vt, vt2):
        self.voA = a_dma_offsets(k, 8, 128, 1024, 50, vt, vt2)
        k("s_waitcnt lgkmcnt(0)")
        srd(k, 24, P_WS, self.xsrc, XB)
    def setup_B(self, k, vt, vt2, vt3, tmp):
        self.voB = [k.valloc() for _ in range(8)]
        k("s_lshl_b32 s52, s59, 5")
        k(f"s_mul_i32 s54, s{SM_}, 224")
        for i in range(8):
            k(f"v_lshlrev_b32 {v(vt)}, 1, {v(k.vG)}")
            if (i >> 1) & 1: k(f"v_or_b32 {v(vt)}, 8, {v(vt)}")
            k(f"v_xor_b32 {v(vt)}, {v(vt)}, {v(k.vR16)}")
            if i in (0, 2): k(f"v_cmp_gt_u32 s[{62+i}:{63+i}], 14, {v(vt)}")
            k(f"v_lshlrev_b32 {v(vt)}, 4, {v(vt)}")
            k(f"v_add3_u32 {v(vt2)}, {v(k.vG)}, s52, {4*i}")
            k(f"v_mul_u32_u24 {v(vt2)}, 3584, {v(vt2)}")
            k(f"v_add3_u32 {v(self.voB[i])}, {v(vt2)}, {v(vt)}, s54")
        k(f"s_lshl_b32 s{self.sBW}, s59, 13")
        k("s_waitcnt lgkmcnt(0)")
        srd(k, self.SWB, P_W1, 0, 512 * 1792 * 2)
    def issue_B(self, k, c):
        self.koff(k, 57, c, self.BSTEP)
        for i in range(self.NBI):
            if i % 2 == 0: k(f"s_mov_b64 exec, s[{62+(i&2)}:{63+(i&2)}]")
            k(f"s_add_u32 m0, s{self.sBW}, {self.bslot[c]+i*1024}")
            k.I(f"buffer_load_dwordx4 {v(self.voB[i])}, s[{self.SWB}:{self.SWB+3}], s57 offen lds", tag=f"{self.tag}b{c}")
        k("s_mov_b64 exec, -1")
    def compute(self, k, vt, vt2, vt3):
        SP = self.SP
        k("s_lshl_b32 s52, s3, 5")
        cs = k.valloc(28, 4); vcs = k.valloc()
        k(f"v_lshlrev_b32 {v(vcs)}, 4, {v(k.vG)}")
        k(f"v_add_u32 {v(vcs)}, {LDS_CS}, {v(vcs)}")
        B = Bases(k)
        a_read_bases(k, B, 128, 52, 1, vt, vt2)
        k(f"v_bfe_u32 {v(vt)}, {v(k.vL)}, 2, 2")
        k(f"v_and_b32 {v(vt2)}, 1, {v(k.vG)}")
        k(f"v_lshl_add_u32 {v(vt2)}, {v(vt2)}, 2, {v(vt)}")
        k(f"v_lshl_add_u32 {v(vt)}, {v(k.vG)}, 3, {v(vt)}")
        k(f"v_lshlrev_b32 {v(vt)}, 8, {v(vt)}")
        k(f"v_and_b32 {v(vt3)}, 3, {v(k.vL)}")
        k(f"v_lshl_add_u32 {v(vt)}, {v(vt3)}, 3, {v(vt)}")
        k(f"v_add_u32 {v(vt)}, 65536, {v(vt)}")
        W0 = {}
        for t in range(7):
            r = k.valloc(); r2 = k.valloc()
            k(f"v_xor_b32 {v(vt3)}, {t}, {v(vt2)}")
            k(f"v_lshl_add_u32 {v(r)}, {v(vt3)}, 5, {v(vt)}")
            k(f"v_add_u32 {v(r2)}, 65536, {v(r)}")
            W0[t] = (r, r2)
        assert BRING == 65536
        def wat(t, off): return f"{v(W0[t][(off >> 16) - 1])} offset:{off & 65535}"
        acc = k.valloc(56, 4)
        for i in range(56): k(f"v_mov_b32 {v(acc+i)}, 0")
        Ab = [k.valloc(8, 4), k.valloc(8, 4)]; Wb = [k.valloc(28, 4), k.valloc(28, 4)]
        ab = [k.valloc(2, 2) for _ in range(2)]
        vab = k.valloc()
        k(f"v_add_u32 {v(vab)}, s52, {v(k.vR16)}")
        k(f"v_lshlrev_b32 {v(vab)}, 3, {v(vab)}")
        k(f"v_add_u32 {v(vab)}, {LDS_AB}, {v(vab)}")
        def reads(ks):
            c = ks // 2; kk = ks & 1; A_ = Ab[ks & 1]; W_ = Wb[ks & 1]
            ra = [f"ds_read_b128 {v(A_+4*rt,4)}, {B.at(('A',kk), self.aslot(c) + rt*2048)}" for rt in range(2)]
            rw = [f"ds_read_b64_tr_b16 {v(W_+4*t+2*hh,2)}, {wat(t, self.bslot[c] + kk*8192 + hh*1024)}" for t in range(7) for hh in range(2)]
            return ra + rw
        def mfmas(ks):
            A_ = Ab[ks & 1]; W_ = Wb[ks & 1]
            return [f"v_mfma_f32_16x16x32_bf16 {v(acc+(rt*7+t)*4,4)}, {v(W_+4*t,4)}, {v(A_+4*rt,4)}, {v(acc+(rt*7+t)*4,4)}" for t in range(7) for rt in range(2)]
        last = [f"ds_read_b64 {v(ab[rt],2)}, {v(vab)} offset:{rt*128}" for rt in range(2)] + [f"ds_read_b128 {v(cs+4*t,4)}, {v(vcs)} offset:{t*64}" for t in range(7)]
        k.dstamp()
        k("s_barrier"); k.stamp()
        for r in reads(0): k(r)
        for ks in range(16):
            if ks == 15: interleave(k, mfmas(ks), last)
            else:
                if (ks + 1) % 2 == 0:
                    k("s_waitcnt lgkmcnt(0)")
                    k.dstamp()
                    k("s_barrier")
                rd = reads(ks + 1); mf = mfmas(ks)
                k(rd[0]); k(rd[1])
                interleave(k, mf, rd[2:])
        k.stamp()
        k("s_barrier")
        vs = k.valloc()
        k(f"v_add_u32 {v(vs)}, s52, {v(k.vR16)}")
        k(f"v_mul_u32_u24 {v(vs)}, {SP}, {v(vs)}")
        k(f"v_lshl_add_u32 {v(vs)}, {v(k.vG)}, 3, {v(vs)}")
        tmp = k.valloc(8, 4)
        k(f"s_mov_b32 s62, {LOG2E | 0x80000000:#x}")
        k(f"s_mov_b32 s63, {LOG2E | 0x80000000:#x}")
        k("s_mov_b32 s64, 1.0"); k("s_mov_b32 s65, 1.0")
        for rt in range(2):
            for t in range(7):
                ac = acc + (rt * 7 + t) * 4; T = tmp + 4 * (t & 1)
                for p in range(2):
                    k(f"v_pk_mul_f32 {v(T+2*p,2)}, {v(cs+4*t+2*p,2)}, {v(ab[rt],2)} op_sel:[0,1] op_sel_hi:[1,1]")
                for p in range(2):
                    k(f"v_pk_fma_f32 {v(ac+2*p,2)}, {v(ac+2*p,2)}, {v(ab[rt],2)}, {v(T+2*p,2)} op_sel:[0,0,0] op_sel_hi:[1,0,1]")
                for p in range(2):
                    k(f"v_pk_mul_f32 {v(T+2*p,2)}, {v(ac+2*p,2)}, s[62:63]")
                for j in range(4): k(f"v_exp_f32 {v(T+j)}, {v(T+j)}")
                for p in range(2):
                    k(f"v_pk_add_f32 {v(T+2*p,2)}, {v(T+2*p,2)}, s[64:65]")
                for j in range(4): k(f"v_rcp_f32 {v(T+j)}, {v(T+j)}")
                for p in range(2):
                    k(f"v_pk_mul_f32 {v(ac+2*p,2)}, {v(ac+2*p,2)}, {v(T+2*p,2)}")
                k(f"v_cvt_pk_bf16_f32 {v(ac)}, {v(ac)}, {v(ac+1)}")
                k(f"v_cvt_pk_bf16_f32 {v(ac+1)}, {v(ac+2)}, {v(ac+3)}")
                k(f"ds_write_b64 {v(vs)}, {v(ac,2)} offset:{rt*16*SP + t*32}")
        k("s_waitcnt lgkmcnt(0)")
    def store(self, k, vt, vt2, vt3, emit_stores):
        SH, SP = 32, self.SP
        srd(k, SH, P_WS, self.hoff, S_ * F_ * 2)
        vy = k.valloc(32, 4); va_ = k.valloc(); vo = k.valloc()
        k(f"v_lshrrev_b32 {v(vt)}, 4, v0")
        k(f"v_and_b32 {v(vt2)}, 15, v0")
        k(f"v_min_u32 {v(vt3)}, 13, {v(vt2)}")
        k(f"v_mul_u32_u24 {v(va_)}, {SP}, {v(vt)}")
        k(f"v_lshl_add_u32 {v(va_)}, {v(vt3)}, 4, {v(va_)}")
        k(f"v_add_u32 {v(vt)}, s50, {v(vt)}")
        k(f"v_mul_u32_u24 {v(vo)}, 3584, {v(vt)}")
        k(f"v_lshl_add_u32 {v(vo)}, {v(vt2)}, 4, {v(vo)}")
        k(f"v_add_u32 {v(vo)}, s54, {v(vo)}")
        k(f"v_mov_b32 {v(vt3)}, 0x7f000000")
        k(f"v_cmp_gt_u32 vcc, 14, {v(vt2)}")
        k(f"v_cndmask_b32 {v(vo)}, {v(vt3)}, {v(vo)}, vcc")
        k("s_barrier")
        for p in range(8):
            k(f"ds_read_b128 {v(vy+4*p,4)}, {v(va_)} offset:{p*16*SP}")
        st = []
        for p in range(8):
            st.append(f"s_mov_b32 s56, {p*16*3584}")
            st.append(f"buffer_store_dwordx4 {v(vy+4*p,4)}, {v(vo)}, s[{SH}:{SH+3}], s56 offen")
        emit_stores(st)

class P4(Phase):
    NC = 14; PA = 256; NBI = 8; BSTEP = 131072; nprod = 16
    def __init__(self, tag, xsrc, xdst, st_off, hoff): super().__init__(tag); self.xsrc, self.xdst, self.st_off, self.hoff = xsrc, xdst, st_off, hoff
    def tile(self, k): tile64(k)
    def setup_A(self, k, vt, vt2):
        self.voA = a_dma_offsets(k, 8, 256, 3584, 50, vt, vt2)
        k("s_waitcnt lgkmcnt(0)")
        srd(k, 24, P_WS, self.hoff, S_ * F_ * 2)
    def setup_B(self, k, vt, vt2, vt3, tmp):
        self.voB = [k.valloc() for _ in range(8)]
        k("s_lshl_b32 s52, s59, 16")
        k(f"s_and_b32 s54, s{SM_}, 7"); k("s_lshl_b32 s54, s54, 7")
        k("s_add_u32 s52, s52, s54")
        for i in range(8):
            k(f"v_bfe_u32 {v(vt)}, {v(k.vL)}, 4, 1")
            k(f"v_lshlrev_b32 {v(vt)}, 1, {v(vt)}")
            if i & 1: k(f"v_or_b32 {v(vt)}, 4, {v(vt)}")
            k(f"v_and_b32 {v(vt2)}, 7, {v(k.vL)}")
            k(f"v_xor_b32 {v(vt)}, {v(vt)}, {v(vt2)}")
            k(f"v_lshlrev_b32 {v(vt)}, 4, {v(vt)}")
            k(f"v_lshrrev_b32 {v(vt2)}, 3, {v(k.vL)}")
            k(f"v_add_u32 {v(vt2)}, {8*i}, {v(vt2)}")
            k(f"v_lshl_add_u32 {v(vt)}, {v(vt2)}, 10, {v(vt)}")
            k(f"v_add_u32 {v(self.voB[i])}, s52, {v(vt)}")
        k(f"s_lshl_b32 s{self.sBW}, s59, 13")
        k("s_waitcnt lgkmcnt(0)")
        srd(k, self.SWB, P_W2, 0, 1792 * 512 * 2)
    def compute(self, k, vt, vt2, vt3):
        SX = 24
        self.xr = k.valloc(8, 4)
        k("s_waitcnt lgkmcnt(0)")
        srd(k, SX, P_WS, self.xsrc, XB)
        resid_load64(k, SX, vt, vt2, self.xr)
        k("s_lshr_b32 s52, s3, 1")
        k("s_lshl_b32 s52, s52, 5")
        k("s_and_b32 s53, s3, 1")
        B = Bases(k)
        a_read_bases(k, B, 256, 52, 2, vt, vt2)
        k(f"v_bfe_u32 {v(vt)}, {v(k.vL)}, 2, 2")
        k(f"v_and_b32 {v(vt2)}, 1, {v(k.vG)}")
        k(f"v_lshlrev_b32 {v(vt2)}, 1, {v(vt2)}")
        k(f"v_bfe_u32 {v(vt3)}, {v(k.vL)}, 3, 1")
        k(f"v_or_b32 {v(vt2)}, {v(vt2)}, {v(vt3)}")
        k("s_lshl_b32 s57, s53, 1")
        k(f"v_xor_b32 {v(vt2)}, s57, {v(vt2)}")
        k(f"v_lshl_add_u32 {v(vt)}, {v(k.vG)}, 3, {v(vt)}")
        k(f"v_lshlrev_b32 {v(vt)}, 7, {v(vt)}")
        k(f"v_and_b32 {v(vt3)}, 3, {v(k.vL)}")
        k(f"v_lshl_add_u32 {v(vt)}, {v(vt3)}, 3, {v(vt)}")
        for t in range(2):
            r = k.valloc()
            k(f"v_xor_b32 {v(vt3)}, {t}, {v(vt2)}")
            k(f"v_lshl_add_u32 {v(r)}, {v(vt3)}, 5, {v(vt)}")
            B.add(("W", t), r, 3)
        acc = k.valloc(16, 4)
        for i in range(16): k(f"v_mov_b32 {v(acc+i)}, 0")
        Ab = [k.valloc(32, 4), k.valloc(32, 4)]; Wb = [k.valloc(32, 4), k.valloc(32, 4)]
        def reads(c):
            A_ = Ab[c & 1]; W_ = Wb[c & 1]; o = []
            for kk in range(4):
                ra = [f"ds_read_b128 {v(A_+8*kk+4*rt,4)}, {B.at(('A',kk), self.aslot(c) + rt*4096)}" for rt in range(2)]
                rw = [f"ds_read_b64_tr_b16 {v(W_+8*kk+4*t+2*hh,2)}, {B.at(('W',t), self.bslot[c] + kk*4096 + hh*512)}" for t in range(2) for hh in range(2)]
                o += [ra[0]] + rw + ra[1:]
            if os.environ.get("G_NOREAD"): return o[:int(os.environ["G_NOREAD"])]
            return o
        def mfmas(c):
            A_ = Ab[c & 1]; W_ = Wb[c & 1]
            return [f"v_mfma_f32_16x16x32_bf16 {v(acc+(rt*2+t)*4,4)}, {v(W_+8*kk+4*t,4)}, {v(A_+8*kk+4*rt,4)}, {v(acc+(rt*2+t)*4,4)}" for kk in range(4) for rt in range(2) for t in range(2)]
        for c in range(self.NC + 1):
            if c < self.NC:
                if c: k("s_waitcnt lgkmcnt(0)")
                k.dstamp()
                k("s_barrier")
                if c == 0: k.stamp()
            rd = reads(c) if c < self.NC else []
            mf = mfmas(c - 1) if c else []
            i = j = 0
            while i < len(mf) or j < len(rd):
                for _ in range(2):
                    if j < len(rd): k(rd[j]); j += 1
                if i < len(mf): k(mf[i]); i += 1
                if j < len(rd): k(rd[j]); j += 1
                if i < len(mf): k(mf[i]); i += 1
        k.stamp()
        k("s_barrier")
        vs = k.valloc()
        k(f"v_add_u32 {v(vs)}, s52, {v(k.vR16)}")
        k(f"v_mul_u32_u24 {v(vs)}, 144, {v(vs)}")
        k(f"v_lshl_add_u32 {v(vs)}, {v(k.vG)}, 3, {v(vs)}")
        k("s_lshl_b32 s57, s53, 6")
        k(f"v_add_u32 {v(vs)}, s57, {v(vs)}")
        for rt in range(2):
            for t in range(2):
                ac = acc + (rt * 2 + t) * 4
                k(f"v_cvt_pk_bf16_f32 {v(ac)}, {v(ac)}, {v(ac+1)}")
                k(f"v_cvt_pk_bf16_f32 {v(ac+1)}, {v(ac+2)}, {v(ac+3)}")
                k(f"ds_write_b64 {v(vs)}, {v(ac,2)} offset:{rt*16*144 + t*32}")
        k("s_waitcnt lgkmcnt(0)")
    def store(self, k, vt, vt2, vt3, emit_stores):
        store64(self, k, emit_stores)

def gen_fused(name, phases, flagbase, xtidx, stamps=False, first=False):
    k = Kern(name); k.stamps_on = stamps
    if os.environ.get("G_DET"): k.det = int(os.environ["G_DET"])
    prologue(k, 256, wait=False)
    k("s_sub_u32 s59, s3, 4")
    k("s_and_b32 s48, s2, 7"); k("s_lshl_b32 s48, s48, 1"); k("s_lshr_b32 s49, s2, 7")
    k(f"s_add_u32 s{SC_}, s48, s49"); k(f"s_bfe_u32 s{SM_}, s2, 0x40003")
    vt, vt2, vt3 = k.valloc(), k.valloc(), k.valloc()
    vfl = k.valloc(); vfd = k.valloc()
    mark = k.nv
    k.lds = 163840
    n = len(phases)
    bars = []
    for i, p in enumerate(phases):
        bars += [(i, "b", c) for c in range(p.NC)] + [(i, "e", 0), (i, "s", 0)] + ([(i, "u", 0)] if i < n - 1 else [])
    bidx = {b: j for j, b in enumerate(bars)}
    chunks = []
    for i, p in enumerate(phases):
        for c in range(p.NC):
            rel = bidx[(i, "b", c + 1)] if c + 1 < p.NC else bidx[(i, "e", 0)]
            chunks.append((i, c, bidx[(i, "b", c)], rel, True))
        for x in range(p.pseudo):
            chunks.append((i, p.NC + x, None, bidx[(i, "e", 0)], False))
    for j, (i, c, _, _, _) in enumerate(chunks): phases[i].bslot[c] = BRING + (j % NB) * 16384
    for i, p in enumerate(phases): p.SWB = 24 + 4 * i; p.sBW = 44 + i
    k("s_cmp_lt_u32 s3, 4")
    k(f"s_cbranch_scc1 {name}_compute")
    k("s_cmp_lt_u32 s3, 6")
    k(f"s_cbranch_scc1 {name}_aload")
    k("s_sub_u32 s59, s3, 6")
    k.stamp_set(0); k.stamp()
    tmp5 = [k.valloc() for _ in range(5)]
    NV = int(os.environ.get("G_NV", "0"))
    vl16 = k.valloc()
    k(f"v_lshlrev_b32 {v(vl16)}, 4, {v(k.vL)}")
    for p in phases: p._vo = None
    vslots = [256 - 32 * (x + 1) for x in range(NV)]
    k.maxv = 256 if NV else k.maxv
    freev = list(vslots); vq = []
    setup_done = set(); nxt = [0]; placed = set(); pend = []
    def slot_free(j, after_bar): return j < NB or chunks[j - NB][3] <= after_bar
    def b_step(after_bar, maxn, curphase=None, spare=0):
        if pend:
            k("s_waitcnt lgkmcnt(0)")
            for (j, vs) in pend: placed.add(j); freev.append(vs)
            pend.clear()
        while vq and slot_free(vq[0][0], after_bar):
            j, vs = vq.pop(0); i, c = chunks[j][0], chunks[j][1]
            phases[i].place_Bv(k, c, vs, vl16, vt); pend.append((j, vs))
        cnt = 0
        while nxt[0] < len(chunks) and cnt < maxn:
            j = nxt[0]; i, c, need, rel, real = chunks[j]
            if not real:
                if not slot_free(j, after_bar): break
                placed.add(j); nxt[0] += 1; continue
            direct = (not vq) and slot_free(j, after_bar)
            if not direct and not freev: break
            if curphase is not None and i != curphase:
                if spare <= 0: break
                spare -= 1
            if i not in setup_done:
                phases[i].setup_B(k, vt, vt2, vt3, tmp5); setup_done.add(i)
                assert k.nv <= 256 - 32 * NV
            k.vm_limit(int(os.environ.get("G_VML", "24")))
            if direct:
                phases[i].issue_B(k, c); placed.add(j)
            else:
                vs = freev.pop(0); phases[i].issue_Bv(k, c, vs); vq.append((j, vs))
            cnt += 1; nxt[0] += 1
    b_step(-1, int(os.environ.get("G_B0", "2")))
    if True:
        endlab = "all_code_end" if first else f"{name}_end"
        ca = k.valloc(2, 2); cd = k.valloc(4)
        k("s_getpc_b64 s[40:41]")
        k.L(f"{name}_pc")
        k(f"s_mov_b32 s42, {endlab}-{name}_pc-16")
        k("s_bfe_u32 s43, s2, 0x50003")
        k("s_lshl_b32 s43, s43, 1"); k("s_add_u32 s43, s43, s59"); k("s_lshl_b32 s43, s43, 10")
        nrep = 2 if first else 1
        for x in range(nrep):
            k(f"v_add_u32 {v(vt)}, s43, {v(vl16)}")
            if x: k(f"v_add_u32 {v(vt)}, {x*65536}, {v(vt)}")
            k(f"v_min_u32 {v(vt)}, s42, {v(vt)}")
            k(f"v_and_b32 {v(vt)}, -4, {v(vt)}")
            k(f"global_load_dwordx4 {v(cd,4)}, {v(vt)}, s[40:41]")
    for j, (i, kind, c) in enumerate(bars):
        if kind == "b":
            jj = next(x for x, ch in enumerate(chunks) if ch[0] == i and ch[1] == c)
            if jj not in placed:
                assert any(x[0] == jj for x in pend), (i, c)
                k("s_waitcnt lgkmcnt(0)")
                for (j_, vs) in pend: placed.add(j_); freev.append(vs)
                pend.clear()
            k.wait_tag(f"{phases[i].tag}b{c}")
        k.cur = i; k.dstamp()
        k("s_barrier")
        if first and kind == "b" and c == 2:
            sw = k.valloc(16, 4); sacc = k.valloc(8, 4); svo = k.valloc()
            srd(k, 28, P_W1, 0, 512 * 1792 * 2)
            k("s_min_u32 s40, s2, 223")
            k("s_mul_i32 s41, s40, 2341"); k("s_lshr_b32 s41, s41, 16")
            k("s_mul_i32 s48, s41, 28"); k("s_sub_u32 s40, s40, s48")
            k("s_lshl_b32 s48, s41, 6"); k("s_lshl_b32 s49, s59, 5"); k("s_add_u32 s48, s48, s49")
            k(f"v_lshrrev_b32 {v(svo)}, 3, {v(k.vL)}")
            k(f"v_add_u32 {v(svo)}, s48, {v(svo)}")
            k(f"v_mul_u32_u24 {v(svo)}, 3584, {v(svo)}")
            k(f"v_and_b32 {v(vt)}, 7, {v(k.vL)}")
            k(f"v_lshl_add_u32 {v(svo)}, {v(vt)}, 4, {v(svo)}")
            k("s_lshl_b32 s48, s40, 7")
            k(f"v_add_u32 {v(svo)}, s48, {v(svo)}")
            for x in range(4):
                k(f"s_mov_b32 s49, {x*8*3584}")
                k(f"buffer_load_dwordx4 {v(sw+4*x,4)}, {v(svo)}, s[28:31], s49 offen")
        if first and kind == "b" and c == 4:
            tw = k.valloc(20, 4)
            srd(k, 32, P_W2, 0, 1792 * 512 * 2)
            srd(k, 36, P_WO, 0, 512 * 512 * 2)
            k("s_mul_i32 s48, s2, 7168"); k("s_mul_i32 s49, s59, 3584"); k("s_add_u32 s48, s48, s49")
            k(f"v_add_u32 {v(vt)}, s48, {v(vl16)}")
            for x in range(4):
                k(f"buffer_load_dwordx4 {v(tw+4*x,4)}, {v(vt)}, s[32:35], 0 offen offset:{x*1024 if x < 3 else 2560}")
            k("s_lshl_b32 s48, s2, 11"); k("s_lshl_b32 s49, s59, 10"); k("s_add_u32 s48, s48, s49")
            k(f"v_add_u32 {v(vt)}, s48, {v(vl16)}")
            k(f"buffer_load_dwordx4 {v(tw+16,4)}, {v(vt)}, s[36:39], 0 offen")
            if os.environ.get("G_TLB"):
                tl = k.valloc(2, 2)
                srd(k, 32, P_WS, 0, 0x1000000)
                srd(k, 36, P_OUT, 0, XB)
                k(f"v_lshlrev_b32 {v(vt)}, 18, {v(k.vL)}")
                k(f"buffer_load_dword {v(tl)}, {v(vt)}, s[32:35], 0 offen")
                k(f"v_lshlrev_b32 {v(vt)}, 15, {v(k.vL)}")
                k(f"buffer_load_dword {v(tl+1)}, {v(vt)}, s[36:39], 0 offen")
        if first and kind == "b" and c == 5:
            k("s_mov_b32 s60, 0x00003f80"); k("s_mov_b32 s61, 0x3f800000")
            for x in range(8): k(f"v_mov_b32 {v(sacc+x)}, 0")
            for x in range(4):
                for y in range(4):
                    k(f"v_dot2_f32_bf16 {v(sacc+2*y)}, {v(sw+4*x+y)}, s60, {v(sacc+2*y)}")
                    k(f"v_dot2_f32_bf16 {v(sacc+2*y+1)}, {v(sw+4*x+y)}, s61, {v(sacc+2*y+1)}")
        if first and kind == "b" and c == 6:
            for x in range(8):
                k(f"v_add_f32_dpp {v(sw+x)}, {v(sacc+x)}, {v(sacc+x)} row_ror:8 row_mask:0xf bank_mask:0xf")
            for x in range(8): gen.xlane_sum_g(k, sw + x, sacc + x)
            k("s_lshl_b32 s48, s59, 8"); k(f"s_add_u32 s48, s48, {EX+8192}")
            k(f"v_and_b32 {v(vt)}, 7, {v(k.vL)}")
            k(f"v_lshlrev_b32 {v(svo)}, 5, {v(vt)}")
            k(f"v_add_u32 {v(vt)}, s48, {v(svo)}")
            k(f"ds_write_b128 {v(vt)}, {v(sw,4)}"); k(f"ds_write_b128 {v(vt)}, {v(sw+4,4)} offset:16")
            k("s_waitcnt lgkmcnt(0)")
        if first and kind == "b" and c == 7:
            k(f"v_add_u32 {v(vt)}, {EX+8192}, {v(svo)}")
            for x in range(2):
                k(f"ds_read_b128 {v(sw+4*x,4)}, {v(vt)} offset:{16*x}")
                k(f"ds_read_b128 {v(sw+8+4*x,4)}, {v(vt)} offset:{256+16*x}")
            for x in range(8): k(f"v_add_f32 {v(sw+x)}, {v(sw+x)}, {v(sw+8+x)}")
            srd(k, 28, P_WS, WS_CS + 0x2000, 8 * 1792 * 4)
            k("s_mul_i32 s48, s41, 7168"); k("s_lshl_b32 s49, s40, 8"); k("s_add_u32 s48, s48, s49")
            k(f"v_add_u32 {v(vt)}, s48, {v(svo)}")
            k("s_mov_b64 exec, 0xff")
            k(f"buffer_store_dwordx4 {v(sw,4)}, {v(vt)}, s[28:31], 0 offen")
            k(f"buffer_store_dwordx4 {v(sw+4,4)}, {v(vt)}, s[28:31], 0 offen offset:16")
            k("s_mov_b64 exec, -1")
        if os.environ.get("G_L2PF") and kind == "b" and i + 1 < n and isinstance(phases[i + 1], P4) and c < 7:
            if c == 0:
                tpf = k.valloc(2, 2); vpf = k.valloc()
                srd(k, 40, P_W2, 0, 1792 * 512 * 2)
                k(f"s_and_b32 s48, s{SM_}, 7"); k("s_lshl_b32 s48, s48, 7")
                k("s_lshl_b32 s49, s59, 16"); k("s_add_u32 s48, s48, s49")
                k(f"v_lshlrev_b32 {v(vpf)}, 10, {v(k.vL)}"); k(f"v_add_u32 {v(vpf)}, s48, {v(vpf)}")
            for x in range(2):
                k(f"s_mov_b32 s49, {(2*c+x)*131072}")
                k(f"buffer_load_dword {v(tpf+x)}, {v(vpf)}, s[40:43], s49 offen")
        if kind in ("e", "u"): k.stamp()
        if kind == "b":
            b_step(j, 2 if (i == 0 or c == 0) else 1, i, phases[i].spare(c) if not os.environ.get("G_SPALL") else 1)
        else:
            b_step(j, {"e": int(os.environ.get("G_QE", phases[i].Qe)), "s": int(os.environ.get("G_QS", "3")), "u": int(os.environ.get("G_QU", "7"))}[kind])
    assert nxt[0] == len(chunks) and not vq
    if stamps: k.stamp(); k.stamp_flush(P_WS, vt, vt2)
    k("s_endpgm")
    k.L(f"{name}_aload"); k.reset()
    k.stamp_set(0); k.stamp()
    k("s_lshl_b32 s55, s59, 13")
    for i, p in enumerate(phases):
        k.nv = mark
        p.tile(k)
        p.setup_A(k, vt, vt2)
        if first:
            vz = k.valloc(4)
            for x in range(4): k(f"v_mov_b32 {v(vz+x)}, 0")
            srd(k, 28, P_WS, WS_KV, 0x20000)
            srd(k, 32, 18, 0, 256)
            l1 = f"{name}_tk"; l2 = f"{name}_tkd"
            k("s_cmp_eq_u32 s59, 0")
            k(f"s_cbranch_scc1 {l1}")
            k("s_lshl_b32 s48, s2, 8"); k("s_add_u32 s48, s48, 0x10000")
            k(f"v_lshlrev_b32 {v(vfl)}, 4, {v(k.vL)}"); k(f"v_add_u32 {v(vfl)}, s48, {v(vfl)}")
            k("s_mov_b64 exec, 0xffff")
            k(f"buffer_store_dwordx4 {v(vz,4)}, {v(vfl)}, s[28:31], 0 offen")
            k("s_mov_b64 exec, -1")
            k(f"s_branch {l2}")
            k.L(l1)
            k(f"s_lshl_b32 s48, s{SM_}, 2")
            k(f"v_mov_b32 {v(vfl)}, s48"); k(f"v_mov_b32 {v(vfd)}, 1")
            k("s_mov_b64 exec, 1")
            k(f"buffer_atomic_add {v(vfd)}, {v(vfl)}, s[32:35], 0 offen sc0")
            k("s_mov_b64 exec, -1")
            k.L(l2)
        if i == 0 and n > 1:
            srd(k, SFL, P_WS, WS_FLAG, 0x7000)
            k("s_getreg_b32 s98, hwreg(HW_REG_XCC_ID)")
            k("s_and_b32 s98, s98, 15"); k("s_add_u32 s98, s98, 1")
            k(f"s_lshl_b32 s48, s{SC_}, 6"); k(f"s_lshl_b32 s49, s{SM_}, 2"); k("s_add_u32 s48, s48, s49")
            k(f"s_add_u32 s48, s48, {WS_XT - WS_FLAG + xtidx*1024}")
            k(f"v_mov_b32 {v(vfl)}, s48"); k(f"v_mov_b32 {v(vfd)}, s98")
            k("s_mov_b64 exec, 1")
            k(f"buffer_store_dword {v(vfd)}, {v(vfl)}, s[{SFL}:{SFL+3}], 0 offen sc0 sc1")
            k("s_mov_b64 exec, -1")
        if i > 0:
            lab = f"{name}_poll{i}"; done = f"{name}_polld{i}"
            k(f"s_lshl_b32 s48, s{SC_}, 8"); k(f"s_add_u32 s48, s48, {(flagbase+i-1)*4096}")
            k(f"v_lshlrev_b32 {v(vfl)}, 2, {v(k.vL)}"); k(f"v_add_u32 {v(vfl)}, s48, {v(vfl)}")
            k(f"s_mov_b64 exec, {(1<<phases[i-1].nprod)-1:#x}")
            k("s_mov_b32 s49, 0")
            k.L(lab)
            k(f"buffer_load_dword {v(vfd)}, {v(vfl)}, s[{SFL}:{SFL+3}], 0 offen sc1")
            k("s_add_u32 s49, s49, 1")
            k("s_waitcnt vmcnt(0)")
            k(f"v_cmp_ne_u32 vcc, 1, {v(vfd)}")
            k("s_cmp_gt_u32 s49, 200000")
            k(f"s_cbranch_scc1 {done}")
            k(f"s_cbranch_vccnz {lab}")
            k.L(done)
            k("s_mov_b64 exec, -1")
        k.stamp()
        A0N = int(os.environ.get("G_A0N", "3")) if i > 0 else p.D
        issued = 0
        for c in range(A0N): p.issue_A(k, c); issued += 1
        for c in range(p.NC):
            k.wait_tag(f"{p.tag}a{c}")
            k.cur = i; k.dstamp()
            k("s_barrier")
            while issued < p.NC and issued <= c + p.D: p.issue_A(k, issued); issued += 1
            if c == 0 and p.has_ln:
                stv = k.valloc(16, 4)
                srd(k, 28, P_WS, p.st_off, 2048 * 64)
                k("s_lshl_b32 s48, s59, 6")
                k("s_add_u32 s48, s48, s50")
                k(f"v_add_u32 {v(vt)}, s48, {v(k.vL)}")
                k(f"v_lshlrev_b32 {v(vt)}, 6, {v(vt)}")
                for x in range(4):
                    k(f"buffer_load_dwordx4 {v(stv+4*x,4)}, {v(vt)}, s[28:31], 0 offen offset:{16*x}")
            if first and c == 0:
                l3 = f"{name}_zk"
                k.vm_save()
                k("s_cmp_lg_u32 s59, 0")
                k(f"s_cbranch_scc1 {l3}")
                k(f"v_readfirstlane_b32 s48, {v(vfd)}")
                k("s_nop 3")
                k("s_cmp_lg_u32 s48, 0")
                k(f"s_cbranch_scc1 {l3}")
                k(f"s_lshl_b32 s48, s{SM_}, 11")
                k(f"v_lshlrev_b32 {v(vfl)}, 4, {v(k.vL)}"); k(f"v_add_u32 {v(vt)}, s48, {v(vfl)}")
                k(f"buffer_store_dwordx4 {v(vz,4)}, {v(vt)}, s[28:31], 0 offen sc0 sc1")
                k(f"buffer_store_dwordx4 {v(vz,4)}, {v(vt)}, s[28:31], 0 offen offset:1024 sc0 sc1")
                k(f"s_lshl_b32 s48, s{SM_}, 7"); k("s_add_u32 s48, s48, 32768")
                k(f"v_add_u32 {v(vt)}, s48, {v(vfl)}")
                k("s_mov_b64 exec, 0xff")
                k(f"buffer_store_dwordx4 {v(vz,4)}, {v(vt)}, s[28:31], 0 offen sc0 sc1")
                k("s_waitcnt vmcnt(0)")
                k(f"s_lshl_b32 s48, s{SM_}, 2"); k("s_add_u32 s48, s48, 64")
                k(f"v_mov_b32 {v(vfl)}, s48"); k(f"v_mov_b32 {v(vfd)}, 1")
                k("s_mov_b64 exec, 1")
                k(f"buffer_store_dword {v(vfd)}, {v(vfl)}, s[32:35], 0 offen sc0 sc1")
                k("s_mov_b64 exec, -1")
                k.L(l3)
                k.vm_restore()
            if first and c == p.NC - 1:
                lab = f"{name}_rp"; done = f"{name}_rpd"
                k(f"s_lshl_b32 s48, s{SM_}, 2"); k("s_add_u32 s48, s48, 64")
                k(f"v_mov_b32 {v(vfl)}, s48")
                k("s_mov_b64 exec, 1")
                k("s_mov_b32 s49, 0")
                k.L(lab)
                k(f"buffer_load_dword {v(vfd)}, {v(vfl)}, s[32:35], 0 offen sc0 sc1")
                k("s_add_u32 s49, s49, 1")
                k("s_waitcnt vmcnt(0)")
                k(f"v_cmp_ne_u32 vcc, 1, {v(vfd)}")
                k("s_cmp_gt_u32 s49, 200000")
                k(f"s_cbranch_scc1 {done}")
                k(f"s_cbranch_vccnz {lab}")
                k.L(done)
                k("s_mov_b64 exec, -1")
            if isinstance(p, P2) and c == 0:
                cp = k.valloc(16, 4)
                srd(k, 28, P_WS, WS_CS + 0x2000, 8 * 1792 * 4)
                k(f"s_mul_i32 s48, s{SM_}, 448")
                k(f"v_lshlrev_b32 {v(vt)}, 3, {v(k.vL)}"); k(f"v_add_u32 {v(vt)}, s48, {v(vt)}")
                for g_ in range(8):
                    k(f"s_mov_b32 s49, {g_*7168}")
                    k(f"buffer_load_dwordx2 {v(cp+2*g_,2)}, {v(vt)}, s[28:31], s49 offen")
            if isinstance(p, P2) and c == 2:
                for g_ in range(1, 8): k(f"v_pk_add_f32 {v(cp,2)}, {v(cp,2)}, {v(cp+2*g_,2)}")
                k(f"v_lshlrev_b32 {v(vt)}, 3, {v(k.vL)}"); k(f"v_add_u32 {v(vt)}, {LDS_CS}, {v(vt)}")
                k(f"ds_write_b64 {v(vt)}, {v(cp,2)}")
                k("s_waitcnt lgkmcnt(0)")
            if c == 4 and p.has_ln:
                ab = k.valloc(2, 2)
                gen.ln_params(k, stv, ab, ab + 1, vt, vt2)
                k("s_lshl_b32 s48, s59, 9")
                k(f"s_add_u32 s48, s48, {LDS_AB}")
                k(f"v_lshlrev_b32 {v(vt)}, 3, {v(k.vL)}")
                k(f"v_add_u32 {v(vt)}, s48, {v(vt)}")
                k(f"ds_write_b64 {v(vt)}, {v(ab,2)}")
                k("s_waitcnt lgkmcnt(0)")
            if i == 0 and n > 1 and c == p.NC - 1:
                k(f"s_lshl_b32 s48, s{SC_}, 6"); k(f"s_add_u32 s48, s48, {WS_XT - WS_FLAG + xtidx*1024}")
                k(f"v_and_b32 {v(vfl)}, 15, {v(k.vL)}")
                k(f"v_lshlrev_b32 {v(vfl)}, 2, {v(vfl)}"); k(f"v_add_u32 {v(vfl)}, s48, {v(vfl)}")
                k(f"buffer_load_dword {v(vfd)}, {v(vfl)}, s[{SFL}:{SFL+3}], 0 offen sc0 sc1")
                k(f"v_cmp_ne_u32 vcc, s98, {v(vfd)}")
                k("s_cmp_eq_u64 vcc, 0")
                k("s_cselect_b32 s99, 1, 0")
                if FORCE == "fast": k("s_mov_b32 s99, 1")
                if FORCE == "slow": k("s_mov_b32 s99, 0")
                k(f"v_mov_b32 {v(vfd)}, s99"); k(f"v_mov_b32 {v(vfl)}, {LDS_MODE}")
                k(f"s_lshl_b32 s48, s59, 2"); k(f"v_add_u32 {v(vfl)}, s48, {v(vfl)}")
                k(f"ds_write_b32 {v(vfl)}, {v(vfd)}")
                k("s_waitcnt lgkmcnt(0)")
        k.stamp()
        k("s_barrier")
        k("s_barrier")
        if i < n - 1:
            k("s_barrier")
            k.stamp()
            lab = f"{name}_pub{i}"; lab2 = f"{name}_pubs{i}"
            k("s_cmp_lg_u32 s59, 0")
            k(f"s_cbranch_scc1 {lab}")
            k(f"s_lshl_b32 s48, s{SC_}, 8"); k(f"s_lshl_b32 s49, s{SM_}, 2"); k("s_add_u32 s48, s48, s49")
            k(f"s_add_u32 s48, s48, {(flagbase+i)*4096}")
            k(f"v_mov_b32 {v(vfl)}, s48"); k(f"v_mov_b32 {v(vfd)}, 1")
            k("s_mov_b64 exec, 1")
            k("s_cmp_eq_u32 s99, 1")
            k(f"s_cbranch_scc0 {lab2}")
            k(f"buffer_store_dword {v(vfd)}, {v(vfl)}, s[{SFL}:{SFL+3}], 0 offen")
            k(f"s_branch {lab}")
            k.L(lab2)
            k(f"buffer_store_dword {v(vfd)}, {v(vfl)}, s[{SFL}:{SFL+3}], 0 offen sc0 sc1")
            k.L(lab)
            k("s_mov_b64 exec, -1")
    if stamps: k.stamp(); k.stamp_flush(P_WS, vt, vt2)
    k("s_endpgm")
    k.L(f"{name}_compute"); k.reset()
    k.stamp_set(0); k.stamp()
    DIAG = os.environ.get("G_DIAG")
    if DIAG:
        k("s_memrealtime s[88:89]"); k("s_waitcnt lgkmcnt(0)")
    for i, p in enumerate(phases):
        k.nv = mark; k.cur = i
        p.tile(k)
        p.compute(k, vt, vt2, vt3)
        if os.environ.get("G_BND"): k.stamp()
        k.nv = mark + 12
        def emit_stores(lst, i=i):
            if i == n - 1:
                for x in lst: k(x)
                return
            if i == 0:
                k(f"v_mov_b32 {v(vfl)}, {LDS_MODE}")
                k(f"ds_read_b32 {v(vfd)}, {v(vfl)}")
                k(f"v_readfirstlane_b32 s99, {v(vfd)}")
            l1 = f"{name}_st{i}_slow"; l2 = f"{name}_st{i}_done"
            k("s_waitcnt vmcnt(0) lgkmcnt(0)")
            k("s_nop 4")
            k("s_cmp_eq_u32 s99, 1")
            k(f"s_cbranch_scc0 {l1}")
            for x in lst: k(x)
            k(f"s_branch {l2}")
            k.L(l1)
            for x in lst: k(x + (" sc0 sc1" if x.startswith("buffer_store") else ""))
            k.L(l2)
        p.store(k, vt, vt2, vt3, emit_stores)
        if os.environ.get("G_BND"): k.stamp()
        if i < n - 1:
            k("s_waitcnt vmcnt(0)")
            if os.environ.get("G_BND"): k.stamp()
            k("s_barrier")
    if stamps:
        k("s_waitcnt vmcnt(0)"); k.stamp(); k.stamp_flush(P_WS, vt, vt2)
    if DIAG:
        kid = {"kA": 0, "kB": 1, "kC": 2}[name[:2]]
        k("s_waitcnt vmcnt(0)")
        k("s_memrealtime s[90:91]"); k("s_waitcnt lgkmcnt(0)")
        k("s_or_b32 s48, s2, s3"); k("s_cmp_lg_u32 s48, 0"); k(f"s_cbranch_scc1 {name}_end")
        srd(k, 24, P_WS, 0xF80000, 64)
        dd = k.valloc(8, 4)
        k(f"v_mov_b32 {v(dd)}, s88"); k(f"v_mov_b32 {v(dd+1)}, s90"); k(f"v_mov_b32 {v(vt)}, 0")
        k("s_mov_b64 exec, 1")
        k(f"buffer_store_dwordx2 {v(dd,2)}, {v(vt)}, s[24:27], 0 offen offset:{kid*8}")
        if kid == 2:
            k(f"buffer_load_dwordx4 {v(dd+4,4)}, {v(vt)}, s[24:27], 0 offen")
            srd(k, 28, 18, 0, 256)
            k(f"buffer_store_dwordx4 {v(dd+4,4)}, {v(vt)}, s[28:31], 0 offen")
            k(f"buffer_store_dwordx2 {v(dd,2)}, {v(vt)}, s[28:31], 0 offen offset:16")
    epilogue_end(k)
    return k

def build(path, stamps=False):
    kA = gen_fused("kA_kernel", [P1("p1a", "in", WS_KV, None)], 0, 0, stamps and os.environ.get("G_STA") == "1", True)
    kB = gen_fused("kB_kernel", [P2("p2a", "in", WS_KV, WS_X1, WS_ST1), P3("p3a", WS_X1, WS_ST1, WS_H), P4("p4a", WS_X1, WS_X2, WS_ST2, WS_H),
                                 P1("p1b", WS_X2, WS_KV + 0x10000, WS_ST2)], 0, 0, stamps and os.environ.get("G_STA") != "1")
    kC = gen_fused("kC_kernel", [P2("p2b", WS_X2, WS_KV + 0x10000, WS_X1, WS_ST1), P3("p3b", WS_X1, WS_ST1, WS_H), P4("p4b", WS_X1, "out", None, WS_H)], 3, 1)
    ks = [kA, kB, kC]
    launches = [(k.name, 256, 512, k.lds) for i, k in enumerate(ks)]
    open(path, "w").write(build_file(HEADER, launches, ks))
    for k in ks: print(k.name, "vgpr", k.maxv, "lds", k.lds, "ninst", sum(1 for i in k.items if isinstance(i, Ins)))

if __name__ == "__main__":
    build(sys.argv[1] if len(sys.argv) > 1 else "interleave_layers__linear_attn_block__dense_activation_silu__prompt.s")
    build(sys.argv[2] if len(sys.argv) > 2 else "fused_stamps.s", True)
```

```python
import sys, struct, os
from asmlib import *
from gen import (S_, D_, F_, WS_PQ, WS_X1, WS_X2, WS_H, WS_KV, WS_CS, WS_ST0, WS_ST1, WS_ST2, XB, P_X, P_WQKV, P_WO, P_W1, P_W2, P_OUT, P_WS,
                 LOG2E, fbits, prologue, srd, epilogue_end, HEADER)
from gen2 import Bases, interleave, a_read_bases, phi4
import gen

WS_FLAG = 0xE18800
WS_XT = 0xE1E800
SC_, SM_ = 96, 97
NA = int(os.environ.get("G_NA", "4")); NB = 9 - NA
ARING, BRING, EX = 0, NA * 16384, 147456
LDS_AB, LDS_MODE, LDS_CS = EX, EX + 1024, EX + 7168
SFL = 92
FORCE = os.environ.get("G_MODE", "")

def a_dma_offsets(k, nins, PA, rowpitch, rowbase_s, t0, t1):
    UA = PA // 16; RA = 64 // UA; sh = {8: 3, 16: 4}[UA]
    out = []
    k(f"s_mul_i32 s58, s59, {nins*RA}")
    k(f"s_add_u32 s58, s58, s{rowbase_s}")
    for i in range(nins):
        r = k.valloc(); out.append(r)
        k(f"v_lshrrev_b32 {v(t0)}, {sh}, {v(k.vL)}")
        if i: k(f"v_add_u32 {v(t0)}, {RA*i}, {v(t0)}")
        if PA == 128: k(f"v_bfe_u32 {v(t1)}, {v(t0)}, 1, 3")
        else: k(f"v_and_b32 {v(t1)}, 15, {v(t0)}")
        k(f"v_and_b32 {v(r)}, {UA-1}, {v(k.vL)}")
        k(f"v_xor_b32 {v(t1)}, {v(t1)}, {v(r)}")
        k(f"v_add_u32 {v(t0)}, s58, {v(t0)}")
        k(f"v_mul_u32_u24 {v(t0)}, {rowpitch}, {v(t0)}")
        k(f"v_lshl_add_u32 {v(r)}, {v(t1)}, 4, {v(t0)}")
    assert (nins * RA) % 16 == 0
    return out

def ln_finish(k, m, q, ab):
    k(f"v_mul_f32 {v(m)}, {fbits(1/512):#x}, {v(m)}")
    k(f"v_mul_f32 {v(q)}, {fbits(1/512):#x}, {v(q)}")
    k(f"v_fma_f32 {v(q)}, -{v(m)}, {v(m)}, {v(q)}")
    k(f"v_max_f32 {v(q)}, 0, {v(q)}")
    gen.bf16_round(k, m, m); gen.bf16_round(k, q, q)
    k(f"v_add_f32 {v(q)}, {fbits(1e-5):#x}, {v(q)}")
    gen.bf16_round(k, q, q)
    k(f"v_sqrt_f32 {v(q)}, {v(q)}")
    gen.bf16_round(k, q, q)
    k(f"v_rcp_f32 {v(ab)}, {v(q)}")
    k(f"v_mul_f32 {v(ab+1)}, {v(m)}, {v(ab)}")
    k(f"v_sub_f32 {v(ab+1)}, 0, {v(ab+1)}")

def tile64(k):
    k(f"s_lshr_b32 s48, s{SM_}, 3")
    k(f"s_lshl_b32 s22, s{SC_}, 1")
    k("s_add_u32 s22, s22, s48")
    k(f"s_and_b32 s23, s{SM_}, 7")
    k("s_lshl_b32 s50, s22, 6")
    k("s_lshl_b32 s54, s23, 7")

def resid_load64(k, SX, t0, t1, xr):
    k(f"v_lshrrev_b32 {v(t0)}, 3, v0")
    k(f"v_and_b32 {v(t1)}, 7, v0")
    k(f"v_add_u32 {v(t0)}, s50, {v(t0)}")
    k(f"v_lshlrev_b32 {v(t0)}, 10, {v(t0)}")
    k(f"v_lshl_add_u32 {v(t0)}, {v(t1)}, 4, {v(t0)}")
    k(f"v_add_u32 {v(t0)}, s54, {v(t0)}")
    k("s_mov_b32 s60, 32768")
    k(f"buffer_load_dwordx4 {v(xr,4)}, {v(t0)}, s[{SX}:{SX+3}], 0 offen")
    k(f"buffer_load_dwordx4 {v(xr+4,4)}, {v(t0)}, s[{SX}:{SX+3}], s60 offen")

def store64_prep(k, xr, do_stats):
    vy = k.valloc(8, 4); va_ = k.valloc(); vo = k.valloc(); sm = k.valloc(4, 4); tt = k.valloc(2, 2)
    t0, t1, t2, t3 = [k.valloc() for _ in range(4)]
    k(f"v_lshrrev_b32 {v(t0)}, 3, v0")
    k(f"v_and_b32 {v(t1)}, 7, v0")
    k(f"v_mul_u32_u24 {v(va_)}, 144, {v(t0)}")
    k(f"v_lshl_add_u32 {v(va_)}, {v(t1)}, 4, {v(va_)}")
    k(f"ds_read_b128 {v(vy,4)}, {v(va_)}")
    k(f"ds_read_b128 {v(vy+4,4)}, {v(va_)} offset:{32*144}")
    k(f"v_add_u32 {v(t0)}, s50, {v(t0)}")
    k(f"v_lshlrev_b32 {v(vo)}, 10, {v(t0)}")
    k(f"v_lshl_add_u32 {v(vo)}, {v(t1)}, 4, {v(vo)}")
    k(f"v_add_u32 {v(vo)}, s54, {v(vo)}")
    if do_stats:
        for i in range(4): k(f"v_mov_b32 {v(sm+i)}, 0")
        k("s_mov_b32 s60, 0x3f803f80")
        k(f"v_lshlrev_b32 {v(va_)}, 6, {v(t0)}")
        k(f"s_lshr_b32 s61, s54, 4")
        k(f"v_add_u32 {v(va_)}, s61, {v(va_)}")
    for i in range(8):
        k(f"v_lshlrev_b32 {v(t0)}, 16, {v(vy+i)}")
        k(f"v_and_b32 {v(t1)}, 0xffff0000, {v(vy+i)}")
        k(f"v_lshlrev_b32 {v(t2)}, 16, {v(xr+i)}")
        k(f"v_and_b32 {v(t3)}, 0xffff0000, {v(xr+i)}")
        k(f"v_add_f32 {v(t0)}, {v(t0)}, {v(t2)}")
        k(f"v_add_f32 {v(t1)}, {v(t1)}, {v(t3)}")
        k(f"v_cvt_pk_bf16_f32 {v(vy+i)}, {v(t0)}, {v(t1)}")
        if do_stats:
            s_ = sm + 2 * (i // 4)
            k(f"v_dot2_f32_bf16 {v(s_)}, {v(vy+i)}, s60, {v(s_)}")
            k(f"v_dot2_f32_bf16 {v(s_+1)}, {v(vy+i)}, {v(vy+i)}, {v(s_+1)}")
    if do_stats:
        for dpp in ("quad_perm:[1,0,3,2]", "quad_perm:[2,3,0,1]", "row_half_mirror"):
            for h in range(2):
                for c in range(2):
                    k(f"v_add_f32_dpp {v(tt+c)}, {v(sm+2*h+c)}, {v(sm+2*h+c)} {dpp} row_mask:0xf bank_mask:0xf")
                for c in range(2):
                    k(f"v_mov_b32 {v(sm+2*h+c)}, {v(tt+c)}")
    return vy, vo, sm, va_

def main_loop(k, nks, kpc, reads, mfmas, last=()):
    k.dstamp()
    k("s_barrier"); k.stamp()
    for r in reads(0): k(r)
    for ks in range(nks):
        if ks == nks - 1: interleave(k, mfmas(ks), list(last))
        else:
            if (ks + 1) % kpc == 0:
                k("s_waitcnt lgkmcnt(0)")
                k.dstamp()
                k("s_barrier")
            interleave(k, mfmas(ks), reads(ks + 1))
    k.stamp()

class Phase:
    D = NA - 1; has_ln = False; pseudo = 0
    def __init__(self, tag): self.tag = tag; self.bslot = {}
    def aslot(self, c): return ARING + (c % NA) * 16384
    rot = bool(os.environ.get("G_ROT"))
    def koff(self, k, dst, c, step):
        if not self.rot or isinstance(self, P2):
            k(f"s_mov_b32 s{dst}, {c*step}"); return
        if self.NC == 8:
            k(f"s_add_u32 s{dst}, s{SM_}, {c}"); k(f"s_and_b32 s{dst}, s{dst}, 7")
        else:
            k(f"s_and_b32 s{dst}, s{SM_}, 7"); k(f"s_add_u32 s{dst}, s{dst}, {c}")
            k(f"s_sub_u32 s58, s{dst}, {self.NC}"); k(f"s_cmp_ge_u32 s{dst}, {self.NC}"); k(f"s_cselect_b32 s{dst}, s58, s{dst}")
        k(f"s_mul_i32 s{dst}, s{dst}, {step}")
    def issue_A(self, k, c):
        self.koff(k, 56, c, self.PA)
        for i in range(8):
            k(f"s_add_u32 m0, s55, {self.aslot(c)+i*1024}")
            k.I(f"buffer_load_dwordx4 {v(self.voA[i])}, s[24:27], s56 offen lds", tag=f"{self.tag}a{c}")
    def issue_B(self, k, c):
        self.koff(k, 57, c, self.BSTEP)
        for i in range(self.NBI):
            k(f"s_add_u32 m0, s{self.sBW}, {self.bslot[c]+i*1024}")
            k.I(f"buffer_load_dwordx4 {v(self.voB[i])}, s[{self.SWB}:{self.SWB+3}], s57 offen lds", tag=f"{self.tag}b{c}")
    def issue_Bv(self, k, c, vs):
        k(f"s_mov_b32 s57, {c*self.BSTEP}")
        for i in range(self.NBI):
            k.I(f"buffer_load_dwordx4 {v(vs+4*i,4)}, {v(self.voB[i])}, s[{self.SWB}:{self.SWB+3}], s57 offen", tag=f"{self.tag}b{c}")
    def place_Bv(self, k, c, vs, vl16, vtmp):
        k(f"s_add_u32 s58, s{self.sBW}, {self.bslot[c]}")
        k(f"v_add_u32 {v(vtmp)}, s58, {v(vl16)}")
        for i in range(self.NBI):
            k(f"ds_write_b128 {v(vtmp)}, {v(vs+4*i,4)} offset:{i*1024}")
    Qe = 1
    def spare(self, c): return 1 if c >= self.NC - self.D else 0

class P1(Phase):
    Qe = 5
    def spare(self, c): return 1 if (c >= self.NC - self.D or c % 2 == 1) else 0
    NC = 8; PA = 128; NBI = 6; BSTEP = 64 * 3072; has_ln = True; nprod = 16
    LDS_KV, LDS_Z, SP = EX + 2048, EX + 6144, 80
    def __init__(self, tag, xsrc, kv_off, st_off):
        super().__init__(tag); self.xsrc, self.kv_off, self.st_off = xsrc, kv_off, st_off
        self.instat = st_off is None
        self.has_ln = not self.instat
    def tile(self, k):
        k(f"s_mov_b32 s22, s{SC_}"); k(f"s_mov_b32 s23, s{SM_}")
        k("s_lshl_b32 s50, s22, 7"); k("s_lshl_b32 s54, s23, 6")
    def setup_A(self, k, vt, vt2):
        self.voA = a_dma_offsets(k, 8, 128, 1024, 50, vt, vt2)
        k("s_waitcnt lgkmcnt(0)")
        if self.xsrc == "in": srd(k, 24, P_X, 0, XB)
        else: srd(k, 24, P_WS, self.xsrc, XB)
    def setup_B(self, k, vt, vt2, vt3, tmp):
        self.voB = [k.valloc() for _ in range(6)]
        u, row, rem, t_, c_ = tmp
        k("s_mul_i32 s53, s59, 384")
        k(f"s_lshl_b32 s54, s{SM_}, 6")
        for i in range(6):
            k(f"v_add_u32 {v(u)}, s53, {v(k.vL)}")
            if i: k(f"v_add_u32 {v(u)}, {64*i}, {v(u)}")
            k(f"v_mul_u32_u24 {v(row)}, 0xaaab, {v(u)}")
            k(f"v_lshrrev_b32 {v(row)}, 19, {v(row)}")
            k(f"v_mul_u32_u24 {v(rem)}, 12, {v(row)}")
            k(f"v_sub_u32 {v(rem)}, {v(u)}, {v(rem)}")
            k(f"v_lshrrev_b32 {v(t_)}, 1, {v(rem)}")
            k(f"v_bfe_u32 {v(c_)}, {v(row)}, 3, 1")
            k(f"v_sub_u32 {v(t_)}, {v(t_)}, {v(c_)}")
            k(f"v_add_u32 {v(c_)}, 6, {v(t_)}")
            k(f"v_min_u32 {v(t_)}, {v(t_)}, {v(c_)}")
            k(f"v_lshrrev_b32 {v(c_)}, 1, {v(t_)}")
            k(f"v_lshlrev_b32 {v(c_)}, 10, {v(c_)}")
            k(f"v_and_b32 {v(t_)}, 1, {v(t_)}")
            k(f"v_lshl_add_u32 {v(c_)}, {v(t_)}, 5, {v(c_)}")
            k(f"v_and_b32 {v(rem)}, 1, {v(rem)}")
            k(f"v_lshl_add_u32 {v(c_)}, {v(rem)}, 4, {v(c_)}")
            k(f"v_mul_u32_u24 {v(row)}, 3072, {v(row)}")
            k(f"v_add3_u32 {v(self.voB[i])}, {v(row)}, {v(c_)}, s54")
        k(f"s_mul_i32 s{self.sBW}, s59, 6144")
        k("s_waitcnt lgkmcnt(0)")
        srd(k, self.SWB, P_WQKV, 0, 512 * 1536 * 2)
    def compute(self, k, vt, vt2, vt3):
        SP = self.SP; SCS = 40
        k("s_lshr_b32 s52, s3, 1")
        k("s_lshl_b32 s52, s52, 6")
        k("s_and_b32 s53, s3, 1")
        cs3 = k.valloc(12, 4)
        csq = cs3
        vcq = k.valloc(); vck = k.valloc()
        k("s_lshl_b32 s56, s23, 7")
        k("s_lshl_b32 s57, s53, 6")
        k("s_add_u32 s56, s56, s57")
        k(f"v_lshlrev_b32 {v(vcq)}, 4, {v(k.vG)}")
        k(f"v_add_u32 {v(vcq)}, s56, {v(vcq)}")
        k(f"v_lshlrev_b32 {v(vck)}, 2, {v(k.vR16)}")
        k(f"v_add_u32 {v(vck)}, s56, {v(vck)}")
        k(f"v_add_u32 {v(vck)}, 2048, {v(vck)}")
        if self.instat:
            for i in range(12): k(f"v_mov_b32 {v(cs3+i)}, 0")
            if os.environ.get("G_T0", "1") == "1":
                t0_ = k.valloc(4)
                k("s_waitcnt lgkmcnt(0)")
                srd(k, 24, P_WQKV, 0, 512 * 1536 * 2)
                srd(k, 28, P_X, 0, XB)
                k(f"v_lshlrev_b32 {v(vt)}, 4, v0")
                k("s_mul_i32 s57, s2, 6144")
                k(f"buffer_load_dword {v(t0_)}, {v(vt)}, s[24:27], s57 offen")
                k(f"buffer_load_dword {v(t0_+1)}, {v(vt)}, s[24:27], s57 offen offset:2048")
                k("s_lshl_b32 s57, s2, 13")
                k(f"buffer_load_dword {v(t0_+2)}, {v(vt)}, s[28:31], s57 offen")
                k("s_add_u32 s57, s57, 4096")
                k(f"buffer_load_dword {v(t0_+3)}, {v(vt)}, s[28:31], s57 offen")
        else:
            k("s_waitcnt lgkmcnt(0)")
            srd(k, SCS, P_WS, WS_CS, 1536 * 4)
            k(f"buffer_load_dwordx4 {v(cs3,4)}, {v(vcq)}, s[{SCS}:{SCS+3}], 0 offen")
            for kv in range(2):
                k(f"buffer_load_dword {v(cs3+4+4*kv)}, {v(vck)}, s[{SCS}:{SCS+3}], 0 offen offset:{2048*kv}")
        ones = k.valloc(4)
        for i in range(4): k(f"v_mov_b32 {v(ones+i)}, 0x3f803f80")
        k("s_lshl_b32 s57, s53, 5")
        k("s_add_u32 s66, s52, s57")
        k("s_xor_b32 s57, s57, 32")
        k("s_add_u32 s67, s52, s57")
        B = Bases(k)
        a_read_bases(k, B, 128, 66, 2, vt, vt2)
        B2 = Bases(k)
        a_read_bases(k, B2, 128, 67, 2, vt, vt2)
        k(f"v_bfe_u32 {v(vt)}, {v(k.vL)}, 2, 2")
        k(f"v_lshl_add_u32 {v(vt)}, {v(k.vG)}, 3, {v(vt)}")
        k(f"v_mul_u32_u24 {v(vt)}, 192, {v(vt)}")
        k(f"v_and_b32 {v(vt2)}, 3, {v(k.vL)}")
        k(f"v_lshl_add_u32 {v(vt)}, {v(vt2)}, 3, {v(vt)}")
        k(f"v_and_b32 {v(vt2)}, 1, {v(k.vG)}")
        k(f"v_add_u32 {v(vt2)}, s53, {v(vt2)}")
        for j in range(3):
            r = k.valloc()
            k(f"v_add_u32 {v(vt3)}, {2*j}, {v(vt2)}")
            if j == 2:
                k(f"v_subrev_u32 {v(r)}, 6, {v(vt3)}")
                k(f"v_min_u32 {v(vt3)}, {v(vt3)}, {v(r)}")
            k(f"v_lshl_add_u32 {v(r)}, {v(vt3)}, 5, {v(vt)}")
            B.add(("W", j), r, 3)
        acc = k.valloc(48, 4)
        for i in range(48): k(f"v_mov_b32 {v(acc+i)}, 0")
        Ab = [k.valloc(16, 4), k.valloc(16, 4)]; Wb = [k.valloc(12, 4), k.valloc(12, 4)]
        ab = [k.valloc(2, 2) for _ in range(4)]
        abn = [k.valloc(8, 4) for _ in range(4)]
        vab = [k.valloc(), k.valloc()]; vabn = [k.valloc(), k.valloc()]
        for h in range(2):
            k(f"v_add_u32 {v(vab[h])}, s{66+h}, {v(k.vR16)}")
            k(f"v_lshlrev_b32 {v(vab[h])}, 3, {v(vab[h])}")
            k(f"v_add_u32 {v(vab[h])}, {LDS_AB}, {v(vab[h])}")
            k(f"v_lshlrev_b32 {v(vabn[h])}, 2, {v(k.vG)}")
            k(f"v_add_u32 {v(vabn[h])}, s{66+h}, {v(vabn[h])}")
            k(f"v_lshlrev_b32 {v(vabn[h])}, 3, {v(vabn[h])}")
            k(f"v_add_u32 {v(vabn[h])}, {LDS_AB}, {v(vabn[h])}")
        if self.instat:
            sta = k.valloc(16, 4)
            for i in range(16): k(f"v_mov_b32 {v(sta+i)}, 0")
        def reads(ks):
            c = ks // 2; kk = ks & 1; A_ = Ab[ks & 1]; W_ = Wb[ks & 1]
            ra = [f"ds_read_b128 {v(A_+4*rt,4)}, {(B if rt < 2 else B2).at(('A',kk), self.aslot(c) + (rt&1)*2048)}" for rt in range(4)]
            rw = [f"ds_read_b64_tr_b16 {v(W_+4*j+2*hh,2)}, {B.at(('W',j), self.bslot[c] + kk*6144 + hh*768)}" for j in range(3) for hh in range(2)]
            return [ra[0]] + rw + ra[1:]
        def mfmas(ks):
            A_ = Ab[ks & 1]; W_ = Wb[ks & 1]; out = []
            for rt in range(4):
                for j in range(3):
                    ac = acc + (rt * 3 + j) * 4
                    if j == 0: out.append(f"v_mfma_f32_16x16x32_bf16 {v(ac,4)}, {v(W_,4)}, {v(A_+4*rt,4)}, {v(ac,4)}")
                    else: out.append(f"v_mfma_f32_16x16x32_bf16 {v(ac,4)}, {v(A_+4*rt,4)}, {v(W_+4*j,4)}, {v(ac,4)}")
            if self.instat:
                out.append(f"v_mfma_f32_16x16x32_bf16 {v(cs3,4)}, {v(W_,4)}, {v(ones,4)}, {v(cs3,4)}")
                for j in (1, 2): out.append(f"v_mfma_f32_16x16x32_bf16 {v(cs3+4*j,4)}, {v(ones,4)}, {v(W_+4*j,4)}, {v(cs3+4*j,4)}")
                for rt in range(2):
                    out.append(f"v_mfma_f32_16x16x32_bf16 {v(sta+8*rt,4)}, {v(ones,4)}, {v(A_+4*rt,4)}, {v(sta+8*rt,4)}")
                    out.append(f"v_mfma_f32_16x16x32_bf16 {v(sta+8*rt+4,4)}, {v(A_+4*rt,4)}, {v(A_+4*rt,4)}, {v(sta+8*rt+4,4)}")
            return out
        o = []
        for rt in range(4):
            o.append(f"ds_read_b128 {v(abn[rt],4)}, {v(vabn[rt>>1])} offset:{(rt&1)*128}")
            o.append(f"ds_read_b128 {v(abn[rt]+4,4)}, {v(vabn[rt>>1])} offset:{(rt&1)*128+16}")
            o.append(f"ds_read_b64 {v(ab[rt],2)}, {v(vab[rt>>1])} offset:{(rt&1)*128}")
        main_loop(k, 16, 2, reads, mfmas, [] if self.instat else o)
        if self.instat:
            k(f"v_and_b32 {v(vt)}, 3, {v(k.vL)}")
            k(f"v_lshrrev_b32 {v(vt2)}, 2, {v(k.vR16)}")
            k(f"v_cmp_eq_u32 s[60:61], {v(vt2)}, {v(k.vG)}")
            for rt in range(2):
                g_ = sta + 8 * rt + 4; q = sta + 8 * rt + 1; m = sta + 8 * rt
                for j in range(1, 4):
                    k(f"v_cmp_eq_u32 vcc, {j}, {v(vt)}")
                    k(f"v_cndmask_b32 {v(g_)}, {v(g_)}, {v(g_+j)}, vcc")
                k(f"v_cndmask_b32 {v(q)}, 0, {v(g_)}, s[60:61]")
                gen.xlane_sum_g(k, q, vt3)
                ln_finish(k, m, q, ab[rt])
                k(f"ds_write_b64 {v(vab[0])}, {v(ab[rt],2)} offset:{rt*128}")
            k("s_waitcnt lgkmcnt(0)")
        k("s_barrier")
        if self.instat:
            for x in o: k(x)
            srd(k, SCS, P_WS, WS_CS, 1536 * 4)
            k(f"s_or_b32 s57, s{SC_}, s52")
            k("s_cmp_eq_u32 s57, 0")
            k(f"s_cselect_b32 s{SCS+2}, s{SCS+2}, 0")
            k(f"buffer_store_dwordx4 {v(cs3,4)}, {v(vcq)}, s[{SCS}:{SCS+3}], 0 offen")
            for kv in range(2):
                k(f"buffer_store_dword {v(cs3+4+4*kv)}, {v(vck)}, s[{SCS}:{SCS+3}], 0 offen offset:{2048*kv}")
        k(f"s_mov_b32 s62, {LOG2E:#x}"); k(f"s_mov_b32 s63, {LOG2E:#x}")
        k(f"s_mov_b32 s64, {fbits(1e-6):#x}"); k(f"s_mov_b32 s65, {fbits(1e-6):#x}")
        T = k.valloc(4)
        fk = k.valloc(8, 4); fv = k.valloc(8, 4)
        for rt in range(4):
            for j in (1, 2):
                ac = acc + (rt * 3 + j) * 4; f = (fk, fv)[j - 1] + 2 * rt
                for jj in range(4): k(f"v_mul_f32 {v(T+jj)}, {v(abn[rt]+2*jj+1)}, {v(cs3+4*j)}")
                for jj in range(4): k(f"v_fma_f32 {v(ac+jj)}, {v(abn[rt]+2*jj)}, {v(ac+jj)}, {v(T+jj)}")
                if j == 1: phi4(k, ac, T)
                k(f"v_cvt_pk_bf16_f32 {v(f)}, {v(ac)}, {v(ac+1)}")
                k(f"v_cvt_pk_bf16_f32 {v(f+1)}, {v(ac+2)}, {v(ac+3)}")
        kvp = k.valloc(4); zp = k.valloc(4)
        k(f"v_mfma_f32_16x16x32_bf16 {v(kvp,4)}, {v(fk,4)}, {v(fv,4)}, 0")
        k(f"v_mfma_f32_16x16x32_bf16 {v(zp,4)}, {v(fk,4)}, {v(ones,4)}, 0")
        k(f"v_mfma_f32_16x16x32_bf16 {v(kvp,4)}, {v(fk+4,4)}, {v(fv+4,4)}, {v(kvp,4)}")
        k(f"v_mfma_f32_16x16x32_bf16 {v(zp,4)}, {v(fk+4,4)}, {v(ones,4)}, {v(zp,4)}")
        vs = [k.valloc(), k.valloc()]
        k("s_lshl_b32 s57, s53, 5")
        for h in range(2):
            k(f"v_add_u32 {v(vs[h])}, s{66+h}, {v(k.vR16)}")
            k(f"v_mul_u32_u24 {v(vs[h])}, {SP}, {v(vs[h])}")
            k(f"v_lshl_add_u32 {v(vs[h])}, {v(k.vG)}, 3, {v(vs[h])}")
            k(f"v_add_u32 {v(vs[h])}, s57, {v(vs[h])}")
        for rt in range(4):
            ac = acc + rt * 12
            for p in range(2):
                k(f"v_pk_mul_f32 {v(T+2*p,2)}, {v(csq+2*p,2)}, {v(ab[rt],2)} op_sel:[0,1] op_sel_hi:[1,1]")
            for p in range(2):
                k(f"v_pk_fma_f32 {v(ac+2*p,2)}, {v(ac+2*p,2)}, {v(ab[rt],2)}, {v(T+2*p,2)} op_sel:[0,0,0] op_sel_hi:[1,0,1]")
            phi4(k, ac, T)
            k(f"v_cvt_pk_bf16_f32 {v(ac)}, {v(ac)}, {v(ac+1)}")
            k(f"v_cvt_pk_bf16_f32 {v(ac+1)}, {v(ac+2)}, {v(ac+3)}")
            k(f"ds_write_b64 {v(vs[rt>>1])}, {v(ac,2)} offset:{(rt&1)*16*SP}")
        k("s_lshl_b32 s57, s3, 10")
        k(f"s_add_u32 s57, s57, {self.LDS_KV}")
        k(f"v_lshlrev_b32 {v(vt)}, 4, {v(k.vL)}")
        k(f"v_add_u32 {v(vt)}, s57, {v(vt)}")
        k("s_lshl_b32 s58, s3, 6")
        k(f"s_add_u32 s58, s58, {self.LDS_Z}")
        k(f"v_lshlrev_b32 {v(vt2)}, 4, {v(k.vG)}")
        k(f"v_add_u32 {v(vt2)}, s58, {v(vt2)}")
        k(f"ds_write_b128 {v(vt)}, {v(kvp,4)}")
        k(f"ds_write_b128 {v(vt2)}, {v(zp,4)}")
        k("s_waitcnt lgkmcnt(0)")
    def store(self, k, vt, vt2, vt3, emit_stores):
        SPQ, SKV, SP = 32, 36, self.SP
        srd(k, SPQ, P_WS, WS_PQ, XB)
        srd(k, SKV, P_WS, self.kv_off, 34816)
        k("s_barrier")
        vy = k.valloc(8, 4); va_ = k.valloc(); vo = k.valloc(); rd = k.valloc(8, 4)
        k(f"v_lshrrev_b32 {v(vt)}, 2, v0")
        k(f"v_and_b32 {v(vt2)}, 3, v0")
        k(f"v_mul_u32_u24 {v(va_)}, {SP}, {v(vt)}")
        k(f"v_lshl_add_u32 {v(va_)}, {v(vt2)}, 4, {v(va_)}")
        k(f"ds_read_b128 {v(vy,4)}, {v(va_)}")
        k(f"ds_read_b128 {v(vy+4,4)}, {v(va_)} offset:{64*SP}")
        k(f"v_add_u32 {v(vt)}, s50, {v(vt)}")
        k(f"v_lshlrev_b32 {v(vo)}, 10, {v(vt)}")
        k(f"v_lshl_add_u32 {v(vo)}, {v(vt2)}, 4, {v(vo)}")
        k(f"v_add_u32 {v(vo)}, s54, {v(vo)}")
        k(f"v_bfe_u32 {v(vt)}, v0, 3, 4")
        k(f"v_lshlrev_b32 {v(vt)}, 4, {v(vt)}")
        k(f"v_bfe_u32 {v(vt2)}, v0, 7, 1")
        k(f"v_lshl_add_u32 {v(vt)}, {v(vt2)}, 9, {v(vt)}")
        k(f"v_bfe_u32 {v(vt2)}, v0, 2, 1")
        k(f"v_lshl_add_u32 {v(vt)}, {v(vt2)}, 8, {v(vt)}")
        k(f"v_and_b32 {v(vt2)}, 3, v0")
        k(f"v_lshl_add_u32 {v(vt)}, {v(vt2)}, 2, {v(vt)}")
        k(f"v_add_u32 {v(vt)}, {self.LDS_KV}, {v(vt)}")
        for h in range(2):
            k(f"ds_read_b32 {v(rd+2*h)}, {v(vt)} offset:{h*1024}")
            k(f"ds_read_b32 {v(rd+2*h+1)}, {v(vt)} offset:{h*1024+2048}")
        k(f"v_and_b32 {v(vt3)}, 31, v0")
        k(f"v_lshlrev_b32 {v(vt3)}, 2, {v(vt3)}")
        k(f"v_add_u32 {v(vt2)}, {self.LDS_Z}, {v(vt3)}")
        k(f"ds_read_b32 {v(rd+4)}, {v(vt2)}")
        k(f"ds_read_b32 {v(rd+5)}, {v(vt2)} offset:128")
        k("s_mov_b32 s60, 65536")
        emit_stores([f"buffer_store_dwordx4 {v(vy,4)}, {v(vo)}, s[{SPQ}:{SPQ+3}], 0 offen",
                     f"buffer_store_dwordx4 {v(vy+4,4)}, {v(vo)}, s[{SPQ}:{SPQ+3}], s60 offen"])
        k("s_lshl_b32 s57, s23, 11")
        k(f"v_lshlrev_b32 {v(vt2)}, 2, v0")
        k(f"v_add_u32 {v(vt2)}, s57, {v(vt2)}")
        for h in range(2):
            k(f"v_add_f32 {v(rd+2*h)}, {v(rd+2*h)}, {v(rd+2*h+1)}")
            k(f"buffer_atomic_add_f32 {v(rd+2*h)}, {v(vt2)}, s[{SKV}:{SKV+3}], 0 offen offset:{h*1024}")
        k("s_lshl_b32 s57, s23, 7")
        k(f"s_add_u32 s57, s57, 32768")
        k(f"v_add_u32 {v(vt3)}, s57, {v(vt3)}")
        k(f"v_mov_b32 {v(vt2)}, 0x7ffffff0")
        k(f"v_cmp_gt_u32 vcc, 32, v0")
        k(f"v_cndmask_b32 {v(vt3)}, {v(vt2)}, {v(vt3)}, vcc")
        k(f"v_add_f32 {v(rd+4)}, {v(rd+4)}, {v(rd+5)}")
        k(f"buffer_atomic_add_f32 {v(rd+4)}, {v(vt3)}, s[{SKV}:{SKV+3}], 0 offen")

class P2(Phase):
    NC = 4; PA = 256; NBI = 8; BSTEP = 131072; nprod = 16; pseudo = 1
    LDS_Z, LDS_0 = EX + 2048, EX + 3072
    def __init__(self, tag, xsrc, kv_off, xdst, st_off): super().__init__(tag); self.xsrc, self.kv_off, self.xdst, self.st_off = xsrc, kv_off, xdst, st_off
    def tile(self, k): tile64(k)
    def setup_A(self, k, vt, vt2):
        self.voA = a_dma_offsets(k, 8, 256, 1024, 50, vt, vt2)
        k("s_waitcnt lgkmcnt(0)")
        srd(k, 24, P_WS, WS_PQ, XB)
    def setup_B(self, k, vt, vt2, vt3, tmp):
        self.voB = [k.valloc() for _ in range(8)]
        k(f"v_lshrrev_b32 {v(vt)}, 3, {v(k.vL)}")
        k(f"v_bfe_u32 {v(vt2)}, {v(k.vL)}, 4, 2")
        k(f"v_lshlrev_b32 {v(vt2)}, 1, {v(vt2)}")
        k(f"v_and_b32 {v(vt3)}, 7, {v(k.vL)}")
        k(f"v_xor_b32 {v(vt2)}, {v(vt2)}, {v(vt3)}")
        k(f"v_lshlrev_b32 {v(vt2)}, 4, {v(vt2)}")
        k(f"v_lshl_add_u32 {v(vt)}, {v(vt)}, 10, {v(vt2)}")
        k("s_lshl_b32 s52, s59, 16")
        k(f"s_and_b32 s54, s{SM_}, 7"); k("s_lshl_b32 s54, s54, 7")
        k("s_add_u32 s52, s52, s54")
        k(f"v_add_u32 {v(self.voB[0])}, s52, {v(vt)}")
        for i in range(1, 8): k(f"v_add_u32 {v(self.voB[i])}, {8192*i}, {v(self.voB[0])}")
        k(f"s_lshl_b32 s{self.sBW}, s59, 13")
        k("s_waitcnt lgkmcnt(0)")
        srd(k, self.SWB, P_WO, 0, 512 * 512 * 2)
    def compute(self, k, vt, vt2, vt3):
        SKV, SX = 36, 24
        LDS_F, LDS_Z, LDS_0 = self.bslot[self.NC], self.LDS_Z, self.LDS_0
        self.xr = k.valloc(8, 4)
        kvf = k.valloc(32, 4); zf = k.valloc(2, 2)
        k("s_lshl_b32 s52, s3, 13")
        k(f"v_lshlrev_b32 {v(vt)}, 5, {v(k.vL)}")
        k(f"v_add_u32 {v(vt)}, s52, {v(vt)}")
        k(f"v_add_u32 {v(vt2)}, 4096, {v(vt)}")
        k("s_waitcnt lgkmcnt(0)")
        srd(k, SKV, P_WS, self.kv_off, 34816)
        for p in range(4):
            for hlf in range(2):
                k(f"buffer_load_dwordx4 {v(kvf+8*p+4*hlf,4)}, {v(vt if p < 2 else vt2)}, s[{SKV}:{SKV+3}], 0 offen offset:{(p&1)*2048+hlf*16}")
        k(f"v_lshlrev_b32 {v(vt3)}, 3, v0")
        k(f"v_add_u32 {v(vt3)}, 32768, {v(vt3)}")
        k(f"buffer_load_dwordx2 {v(zf,2)}, {v(vt3)}, s[{SKV}:{SKV+3}], 0 offen")
        if self.xsrc == "in": srd(k, SX, P_X, 0, XB)
        else: srd(k, SX, P_WS, self.xsrc, XB)
        resid_load64(k, SX, vt, vt2, self.xr)
        k("s_lshl_b32 s52, s3, 4")
        B = Bases(k)
        a_read_bases(k, B, 256, 52, 2, vt, vt2)
        aA0, aA1, aAz, sA0, sA1, sAz = [k.valloc() for _ in range(6)]
        k(f"v_lshlrev_b32 {v(vt)}, 4, {v(k.vL)}")
        k(f"v_add_u32 {v(vt)}, {LDS_F}, {v(vt)}")
        k(f"v_mov_b32 {v(vt2)}, {LDS_0}")
        k(f"v_cmp_gt_u32 vcc, 2, {v(k.vG)}")
        k(f"v_cndmask_b32 {v(aA0)}, {v(vt2)}, {v(vt)}, vcc")
        k(f"v_cndmask_b32 {v(aA1)}, {v(vt)}, {v(vt2)}, vcc")
        k(f"v_mov_b32 {v(vt3)}, 1024")
        k(f"v_cndmask_b32 {v(sA0)}, 0, {v(vt3)}, vcc")
        k(f"v_cndmask_b32 {v(sA1)}, {v(vt3)}, 0, vcc")
        k(f"v_and_b32 {v(vt)}, 3, {v(k.vL)}")
        k(f"v_lshrrev_b32 {v(vt3)}, 1, {v(k.vG)}")
        k(f"v_cmp_eq_u32 vcc, {v(vt)}, {v(vt3)}")
        k(f"v_lshlrev_b32 {v(vt)}, 4, {v(k.vG)}")
        k(f"v_add_u32 {v(vt)}, {LDS_Z}, {v(vt)}")
        k(f"v_cndmask_b32 {v(aAz)}, {v(vt2)}, {v(vt)}, vcc")
        k(f"v_cndmask_b32 {v(sAz)}, 0, 64, vcc")
        k(f"v_bfe_u32 {v(vt)}, {v(k.vL)}, 2, 2")
        k(f"v_lshl_add_u32 {v(vt)}, {v(k.vG)}, 2, {v(vt)}")
        k(f"v_bfe_u32 {v(vt2)}, {v(vt)}, 1, 2")
        k(f"v_lshlrev_b32 {v(vt)}, 7, {v(vt)}")
        k(f"v_and_b32 {v(vt3)}, 3, {v(k.vL)}")
        k(f"v_lshl_add_u32 {v(vt)}, {v(vt3)}, 3, {v(vt)}")
        for t in range(4):
            r = k.valloc()
            k(f"v_xor_b32 {v(vt3)}, {t}, {v(vt2)}")
            k(f"v_lshl_add_u32 {v(r)}, {v(vt3)}, 5, {v(vt)}")
            B.add(("W", t), r, 3)
        acc = k.valloc(16, 4)
        for i in range(16): k(f"v_mov_b32 {v(acc+i)}, 0")
        k("s_lshl_b32 s57, s3, 12")
        k(f"s_add_u32 s57, s57, {LDS_F}")
        k(f"v_lshlrev_b32 {v(vt)}, 4, {v(k.vL)}")
        k(f"v_add_u32 {v(vt)}, s57, {v(vt)}")
        for p in range(4):
            for i in range(4):
                k(f"v_cvt_pk_bf16_f32 {v(kvf+8*p+i)}, {v(kvf+8*p+2*i)}, {v(kvf+8*p+2*i+1)}")
            k(f"ds_write_b128 {v(vt)}, {v(kvf+8*p,4)} offset:{p*1024}")
        k(f"v_cvt_pk_bf16_f32 {v(zf)}, {v(zf)}, {v(zf+1)}")
        k(f"v_lshlrev_b32 {v(vt2)}, 2, v0")
        k(f"v_add_u32 {v(vt2)}, {LDS_Z}, {v(vt2)}")
        k(f"ds_write_b32 {v(vt2)}, {v(zf)}")
        k(f"v_mov_b32 {v(zf)}, 0")
        k(f"v_and_b32 {v(vt2)}, 3, v0")
        k(f"v_lshlrev_b32 {v(vt2)}, 2, {v(vt2)}")
        k(f"v_add_u32 {v(vt2)}, {LDS_0}, {v(vt2)}")
        k(f"ds_write_b32 {v(vt2)}, {v(zf)}")
        Wb = [kvf, k.valloc(32, 4)]
        Fb = k.valloc(24, 4); Pb = k.valloc(8, 4)
        N = [k.valloc(24, 4), k.valloc(24, 4)]
        O = [k.valloc(8, 4), k.valloc(8, 4)]; rr = k.valloc(4, 4)
        k(f"s_mov_b32 s62, {fbits(1e-6):#x}"); k(f"s_mov_b32 s63, {fbits(1e-6):#x}")
        def freads(hc):
            o = []
            for q in range(2):
                o += [f"ds_read_b128 {v(Pb+4*q,4)}, {B.at(('A',(hc&1)*2+q), self.aslot(hc//2))}",
                      f"ds_read_b128 {v(Fb+12*q,4)}, {v(aA0)}", f"ds_read_b128 {v(Fb+12*q+4,4)}, {v(aA1)}", f"ds_read_b128 {v(Fb+12*q+8,4)}, {v(aAz)}",
                      f"v_add_u32 {v(aA0)}, {v(aA0)}, {v(sA0)}", f"v_add_u32 {v(aA1)}, {v(aA1)}, {v(sA1)}", f"v_add_u32 {v(aAz)}, {v(aAz)}, {v(sAz)}"]
            return o
        def wreads(hc):
            b = Wb[hc & 1]
            return [f"ds_read_b64_tr_b16 {v(b+16*q+4*t+2*hh,2)}, {B.at(('W',t), self.bslot[hc//2] + ((hc&1)*2+q)*4096 + hh*2048)}" for q in range(2) for t in range(4) for hh in range(2)]
        def amfma(c):
            n = N[c & 1]
            return [f"v_mfma_f32_16x16x32_bf16 {v(n+12*q+4*i,4)}, {v(Fb+12*q+4*i,4)}, {v(Pb+4*q,4)}, 0" for q in range(2) for i in range(3)]
        def cmfma(c):
            b = Wb[c & 1]; o = O[c & 1]
            return [f"v_mfma_f32_16x16x32_bf16 {v(acc+4*t,4)}, {v(b+16*q+4*t,4)}, {v(o+4*q,4)}, {v(acc+4*t,4)}" for q in range(2) for t in range(4)]
        def ovalu(c):
            n0 = N[c & 1]; Oo = O[c & 1]; o = []
            for q in range(2):
                for i in range(2): o.append(f"v_add_f32 {v(rr+2*q+i)}, s62, {v(n0+12*q+8+i)}")
            for i in range(4): o.append(f"v_rcp_f32 {v(rr+i)}, {v(rr+i)}")
            for q in range(2):
                n = n0 + 12 * q
                for x in range(8): o.append(f"v_mul_f32 {v(n+x)}, {v(n+x)}, {v(rr+2*q+x//4)}")
            for q in range(2):
                n = n0 + 12 * q
                for h in range(2):
                    o.append(f"v_cvt_pk_bf16_f32 {v(Oo+4*q+2*h)}, {v(n+4*h)}, {v(n+4*h+1)}")
                    o.append(f"v_cvt_pk_bf16_f32 {v(Oo+4*q+2*h+1)}, {v(n+4*h+2)}, {v(n+4*h+3)}")
            return o
        k("s_waitcnt lgkmcnt(0)")
        k("s_barrier"); k.stamp()
        for r in freads(0) + wreads(0): k(r)
        for r in amfma(0): k(r)
        for c in range(9):
            if c + 1 < 8:
                if (c + 1) % 2 == 0:
                    k("s_waitcnt lgkmcnt(0)")
                    k("s_barrier")
                for r in freads(c + 1): k(r)
            mf = (cmfma(c - 1) if c >= 1 else []) + (amfma(c + 1) if c + 1 < 8 else [])
            va = (ovalu(c) if c < 8 else [])
            wr = wreads(c + 1) if c + 1 < 8 else []
            nc_ = 8 if c >= 1 else 0
            i_ = j_ = w_ = 0
            while i_ < len(mf) or j_ < len(va) or w_ < len(wr):
                if i_ < len(mf): k(mf[i_]); i_ += 1
                for _ in range(2):
                    if j_ < len(va): k(va[j_]); j_ += 1
                if i_ >= nc_:
                    for _ in range(3):
                        if w_ < len(wr): k(wr[w_]); w_ += 1
        k.stamp()
        k("s_barrier")
        vs = k.valloc()
        k(f"v_add_u32 {v(vs)}, s52, {v(k.vR16)}")
        k(f"v_mul_u32_u24 {v(vs)}, 144, {v(vs)}")
        k(f"v_lshl_add_u32 {v(vs)}, {v(k.vG)}, 3, {v(vs)}")
        for t in range(4):
            ac = acc + 4 * t
            k(f"v_cvt_pk_bf16_f32 {v(ac)}, {v(ac)}, {v(ac+1)}")
            k(f"v_cvt_pk_bf16_f32 {v(ac+1)}, {v(ac+2)}, {v(ac+3)}")
            k(f"ds_write_b64 {v(vs)}, {v(ac,2)} offset:{t*32}")
        k("s_waitcnt lgkmcnt(0)")
    def store(self, k, vt, vt2, vt3, emit_stores):
        store64(self, k, emit_stores)

def store64(p, k, emit_stores):
    SD, SST = 40, 44
    if p.xdst == "out": srd(k, SD, P_OUT, 0, XB)
    else: srd(k, SD, P_WS, p.xdst, XB)
    if p.st_off is not None: srd(k, SST, P_WS, p.st_off, 2048 * 64)
    k("s_barrier")
    vy, vo, sm, va_ = store64_prep(k, p.xr, p.st_off is not None)
    k("s_mov_b32 s60, 32768")
    st = [f"buffer_store_dwordx4 {v(vy,4)}, {v(vo)}, s[{SD}:{SD+3}], 0 offen", f"buffer_store_dwordx4 {v(vy+4,4)}, {v(vo)}, s[{SD}:{SD+3}], s60 offen"]
    if p.st_off is not None:
        st += [f"buffer_store_dwordx2 {v(sm,2)}, {v(va_)}, s[{SST}:{SST+3}], 0 offen", f"buffer_store_dwordx2 {v(sm+2,2)}, {v(va_)}, s[{SST}:{SST+3}], 0 offen offset:2048"]
    emit_stores(st)

class P3(Phase):
    Qe = 6
    def spare(self, c): return 1 if (c >= self.NC - self.D or c % 2 == 1) else 0
    NC = 8; PA = 128; NBI = 8; BSTEP = 64 * 3584; has_ln = True; nprod = 16
    SP = 240
    def __init__(self, tag, xsrc, st_off, hoff): super().__init__(tag); self.xsrc, self.st_off, self.hoff = xsrc, st_off, hoff
    def tile(self, k):
        k(f"s_mov_b32 s22, s{SC_}"); k(f"s_mov_b32 s23, s{SM_}")
        k("s_lshl_b32 s50, s22, 7"); k("s_mul_i32 s54, s23, 224")
    def setup_A(self, k, vt, vt2):
        self.voA = a_dma_offsets(k, 8, 128, 1024, 50, vt, vt2)
        k("s_waitcnt lgkmcnt(0)")
        srd(k, 24, P_WS, self.xsrc, XB)
    def setup_B(self, k, vt, vt2, vt3, tmp):
        self.voB = [k.valloc() for _ in range(8)]
        k("s_lshl_b32 s52, s59, 5")
        k(f"s_mul_i32 s54, s{SM_}, 224")
        for i in range(8):
            k(f"v_lshlrev_b32 {v(vt)}, 1, {v(k.vG)}")
            if (i >> 1) & 1: k(f"v_or_b32 {v(vt)}, 8, {v(vt)}")
            k(f"v_xor_b32 {v(vt)}, {v(vt)}, {v(k.vR16)}")
            if i in (0, 2): k(f"v_cmp_gt_u32 s[{62+i}:{63+i}], 14, {v(vt)}")
            k(f"v_lshlrev_b32 {v(vt)}, 4, {v(vt)}")
            k(f"v_add3_u32 {v(vt2)}, {v(k.vG)}, s52, {4*i}")
            k(f"v_mul_u32_u24 {v(vt2)}, 3584, {v(vt2)}")
            k(f"v_add3_u32 {v(self.voB[i])}, {v(vt2)}, {v(vt)}, s54")
        k(f"s_lshl_b32 s{self.sBW}, s59, 13")
        k("s_waitcnt lgkmcnt(0)")
        srd(k, self.SWB, P_W1, 0, 512 * 1792 * 2)
    def issue_B(self, k, c):
        self.koff(k, 57, c, self.BSTEP)
        for i in range(self.NBI):
            if i % 2 == 0: k(f"s_mov_b64 exec, s[{62+(i&2)}:{63+(i&2)}]")
            k(f"s_add_u32 m0, s{self.sBW}, {self.bslot[c]+i*1024}")
            k.I(f"buffer_load_dwordx4 {v(self.voB[i])}, s[{self.SWB}:{self.SWB+3}], s57 offen lds", tag=f"{self.tag}b{c}")
        k("s_mov_b64 exec, -1")
    def compute(self, k, vt, vt2, vt3):
        SP = self.SP
        k("s_lshl_b32 s52, s3, 5")
        cs = k.valloc(28, 4); vcs = k.valloc()
        k(f"v_lshlrev_b32 {v(vcs)}, 4, {v(k.vG)}")
        k(f"v_add_u32 {v(vcs)}, {LDS_CS}, {v(vcs)}")
        B = Bases(k)
        a_read_bases(k, B, 128, 52, 1, vt, vt2)
        k(f"v_bfe_u32 {v(vt)}, {v(k.vL)}, 2, 2")
        k(f"v_and_b32 {v(vt2)}, 1, {v(k.vG)}")
        k(f"v_lshl_add_u32 {v(vt2)}, {v(vt2)}, 2, {v(vt)}")
        k(f"v_lshl_add_u32 {v(vt)}, {v(k.vG)}, 3, {v(vt)}")
        k(f"v_lshlrev_b32 {v(vt)}, 8, {v(vt)}")
        k(f"v_and_b32 {v(vt3)}, 3, {v(k.vL)}")
        k(f"v_lshl_add_u32 {v(vt)}, {v(vt3)}, 3, {v(vt)}")
        k(f"v_add_u32 {v(vt)}, 65536, {v(vt)}")
        W0 = {}
        for t in range(7):
            r = k.valloc(); r2 = k.valloc()
            k(f"v_xor_b32 {v(vt3)}, {t}, {v(vt2)}")
            k(f"v_lshl_add_u32 {v(r)}, {v(vt3)}, 5, {v(vt)}")
            k(f"v_add_u32 {v(r2)}, 65536, {v(r)}")
            W0[t] = (r, r2)
        assert BRING == 65536
        def wat(t, off): return f"{v(W0[t][(off >> 16) - 1])} offset:{off & 65535}"
        acc = k.valloc(56, 4)
        for i in range(56): k(f"v_mov_b32 {v(acc+i)}, 0")
        Ab = [k.valloc(8, 4), k.valloc(8, 4)]; Wb = [k.valloc(28, 4), k.valloc(28, 4)]
        ab = [k.valloc(2, 2) for _ in range(2)]
        vab = k.valloc()
        k(f"v_add_u32 {v(vab)}, s52, {v(k.vR16)}")
        k(f"v_lshlrev_b32 {v(vab)}, 3, {v(vab)}")
        k(f"v_add_u32 {v(vab)}, {LDS_AB}, {v(vab)}")
        def reads(ks):
            c = ks // 2; kk = ks & 1; A_ = Ab[ks & 1]; W_ = Wb[ks & 1]
            ra = [f"ds_read_b128 {v(A_+4*rt,4)}, {B.at(('A',kk), self.aslot(c) + rt*2048)}" for rt in range(2)]
            rw = [f"ds_read_b64_tr_b16 {v(W_+4*t+2*hh,2)}, {wat(t, self.bslot[c] + kk*8192 + hh*1024)}" for t in range(7) for hh in range(2)]
            return ra + rw
        def mfmas(ks):
            A_ = Ab[ks & 1]; W_ = Wb[ks & 1]
            return [f"v_mfma_f32_16x16x32_bf16 {v(acc+(rt*7+t)*4,4)}, {v(W_+4*t,4)}, {v(A_+4*rt,4)}, {v(acc+(rt*7+t)*4,4)}" for t in range(7) for rt in range(2)]
        last = [f"ds_read_b64 {v(ab[rt],2)}, {v(vab)} offset:{rt*128}" for rt in range(2)] + [f"ds_read_b128 {v(cs+4*t,4)}, {v(vcs)} offset:{t*64}" for t in range(7)]
        k.dstamp()
        k("s_barrier"); k.stamp()
        for r in reads(0): k(r)
        for ks in range(16):
            if ks == 15: interleave(k, mfmas(ks), last)
            else:
                if (ks + 1) % 2 == 0:
                    k("s_waitcnt lgkmcnt(0)")
                    k.dstamp()
                    k("s_barrier")
                rd = reads(ks + 1); mf = mfmas(ks)
                k(rd[0]); k(rd[1])
                interleave(k, mf, rd[2:])
        k.stamp()
        k("s_barrier")
        vs = k.valloc()
        k(f"v_add_u32 {v(vs)}, s52, {v(k.vR16)}")
        k(f"v_mul_u32_u24 {v(vs)}, {SP}, {v(vs)}")
        k(f"v_lshl_add_u32 {v(vs)}, {v(k.vG)}, 3, {v(vs)}")
        tmp = k.valloc(8, 4)
        k(f"s_mov_b32 s62, {LOG2E | 0x80000000:#x}")
        k(f"s_mov_b32 s63, {LOG2E | 0x80000000:#x}")
        k("s_mov_b32 s64, 1.0"); k("s_mov_b32 s65, 1.0")
        for rt in range(2):
            for t in range(7):
                ac = acc + (rt * 7 + t) * 4; T = tmp + 4 * (t & 1)
                for p in range(2):
                    k(f"v_pk_mul_f32 {v(T+2*p,2)}, {v(cs+4*t+2*p,2)}, {v(ab[rt],2)} op_sel:[0,1] op_sel_hi:[1,1]")
                for p in range(2):
                    k(f"v_pk_fma_f32 {v(ac+2*p,2)}, {v(ac+2*p,2)}, {v(ab[rt],2)}, {v(T+2*p,2)} op_sel:[0,0,0] op_sel_hi:[1,0,1]")
                for p in range(2):
                    k(f"v_pk_mul_f32 {v(T+2*p,2)}, {v(ac+2*p,2)}, s[62:63]")
                for j in range(4): k(f"v_exp_f32 {v(T+j)}, {v(T+j)}")
                for p in range(2):
                    k(f"v_pk_add_f32 {v(T+2*p,2)}, {v(T+2*p,2)}, s[64:65]")
                for j in range(4): k(f"v_rcp_f32 {v(T+j)}, {v(T+j)}")
                for p in range(2):
                    k(f"v_pk_mul_f32 {v(ac+2*p,2)}, {v(ac+2*p,2)}, {v(T+2*p,2)}")
                k(f"v_cvt_pk_bf16_f32 {v(ac)}, {v(ac)}, {v(ac+1)}")
                k(f"v_cvt_pk_bf16_f32 {v(ac+1)}, {v(ac+2)}, {v(ac+3)}")
                k(f"ds_write_b64 {v(vs)}, {v(ac,2)} offset:{rt*16*SP + t*32}")
        k("s_waitcnt lgkmcnt(0)")
    def store(self, k, vt, vt2, vt3, emit_stores):
        SH, SP = 32, self.SP
        srd(k, SH, P_WS, self.hoff, S_ * F_ * 2)
        vy = k.valloc(32, 4); va_ = k.valloc(); vo = k.valloc()
        k(f"v_lshrrev_b32 {v(vt)}, 4, v0")
        k(f"v_and_b32 {v(vt2)}, 15, v0")
        k(f"v_min_u32 {v(vt3)}, 13, {v(vt2)}")
        k(f"v_mul_u32_u24 {v(va_)}, {SP}, {v(vt)}")
        k(f"v_lshl_add_u32 {v(va_)}, {v(vt3)}, 4, {v(va_)}")
        k(f"v_add_u32 {v(vt)}, s50, {v(vt)}")
        k(f"v_mul_u32_u24 {v(vo)}, 3584, {v(vt)}")
        k(f"v_lshl_add_u32 {v(vo)}, {v(vt2)}, 4, {v(vo)}")
        k(f"v_add_u32 {v(vo)}, s54, {v(vo)}")
        k(f"v_mov_b32 {v(vt3)}, 0x7f000000")
        k(f"v_cmp_gt_u32 vcc, 14, {v(vt2)}")
        k(f"v_cndmask_b32 {v(vo)}, {v(vt3)}, {v(vo)}, vcc")
        k("s_barrier")
        for p in range(8):
            k(f"ds_read_b128 {v(vy+4*p,4)}, {v(va_)} offset:{p*16*SP}")
        st = []
        for p in range(8):
            st.append(f"s_mov_b32 s56, {p*16*3584}")
            st.append(f"buffer_store_dwordx4 {v(vy+4*p,4)}, {v(vo)}, s[{SH}:{SH+3}], s56 offen")
        emit_stores(st)

class P4(Phase):
    NC = 14; PA = 256; NBI = 8; BSTEP = 131072; nprod = 16
    def __init__(self, tag, xsrc, xdst, st_off, hoff): super().__init__(tag); self.xsrc, self.xdst, self.st_off, self.hoff = xsrc, xdst, st_off, hoff
    def tile(self, k): tile64(k)
    def setup_A(self, k, vt, vt2):
        self.voA = a_dma_offsets(k, 8, 256, 3584, 50, vt, vt2)
        k("s_waitcnt lgkmcnt(0)")
        srd(k, 24, P_WS, self.hoff, S_ * F_ * 2)
    def setup_B(self, k, vt, vt2, vt3, tmp):
        self.voB = [k.valloc() for _ in range(8)]
        k("s_lshl_b32 s52, s59, 16")
        k(f"s_and_b32 s54, s{SM_}, 7"); k("s_lshl_b32 s54, s54, 7")
        k("s_add_u32 s52, s52, s54")
        for i in range(8):
            k(f"v_bfe_u32 {v(vt)}, {v(k.vL)}, 4, 1")
            k(f"v_lshlrev_b32 {v(vt)}, 1, {v(vt)}")
            if i & 1: k(f"v_or_b32 {v(vt)}, 4, {v(vt)}")
            k(f"v_and_b32 {v(vt2)}, 7, {v(k.vL)}")
            k(f"v_xor_b32 {v(vt)}, {v(vt)}, {v(vt2)}")
            k(f"v_lshlrev_b32 {v(vt)}, 4, {v(vt)}")
            k(f"v_lshrrev_b32 {v(vt2)}, 3, {v(k.vL)}")
            k(f"v_add_u32 {v(vt2)}, {8*i}, {v(vt2)}")
            k(f"v_lshl_add_u32 {v(vt)}, {v(vt2)}, 10, {v(vt)}")
            k(f"v_add_u32 {v(self.voB[i])}, s52, {v(vt)}")
        k(f"s_lshl_b32 s{self.sBW}, s59, 13")
        k("s_waitcnt lgkmcnt(0)")
        srd(k, self.SWB, P_W2, 0, 1792 * 512 * 2)
    def compute(self, k, vt, vt2, vt3):
        SX = 24
        self.xr = k.valloc(8, 4)
        k("s_waitcnt lgkmcnt(0)")
        srd(k, SX, P_WS, self.xsrc, XB)
        resid_load64(k, SX, vt, vt2, self.xr)
        k("s_lshr_b32 s52, s3, 1")
        k("s_lshl_b32 s52, s52, 5")
        k("s_and_b32 s53, s3, 1")
        B = Bases(k)
        a_read_bases(k, B, 256, 52, 2, vt, vt2)
        k(f"v_bfe_u32 {v(vt)}, {v(k.vL)}, 2, 2")
        k(f"v_and_b32 {v(vt2)}, 1, {v(k.vG)}")
        k(f"v_lshlrev_b32 {v(vt2)}, 1, {v(vt2)}")
        k(f"v_bfe_u32 {v(vt3)}, {v(k.vL)}, 3, 1")
        k(f"v_or_b32 {v(vt2)}, {v(vt2)}, {v(vt3)}")
        k("s_lshl_b32 s57, s53, 1")
        k(f"v_xor_b32 {v(vt2)}, s57, {v(vt2)}")
        k(f"v_lshl_add_u32 {v(vt)}, {v(k.vG)}, 3, {v(vt)}")
        k(f"v_lshlrev_b32 {v(vt)}, 7, {v(vt)}")
        k(f"v_and_b32 {v(vt3)}, 3, {v(k.vL)}")
        k(f"v_lshl_add_u32 {v(vt)}, {v(vt3)}, 3, {v(vt)}")
        for t in range(2):
            r = k.valloc()
            k(f"v_xor_b32 {v(vt3)}, {t}, {v(vt2)}")
            k(f"v_lshl_add_u32 {v(r)}, {v(vt3)}, 5, {v(vt)}")
            B.add(("W", t), r, 3)
        acc = k.valloc(16, 4)
        for i in range(16): k(f"v_mov_b32 {v(acc+i)}, 0")
        Ab = [k.valloc(32, 4), k.valloc(32, 4)]; Wb = [k.valloc(32, 4), k.valloc(32, 4)]
        def reads(c):
            A_ = Ab[c & 1]; W_ = Wb[c & 1]; o = []
            for kk in range(4):
                ra = [f"ds_read_b128 {v(A_+8*kk+4*rt,4)}, {B.at(('A',kk), self.aslot(c) + rt*4096)}" for rt in range(2)]
                rw = [f"ds_read_b64_tr_b16 {v(W_+8*kk+4*t+2*hh,2)}, {B.at(('W',t), self.bslot[c] + kk*4096 + hh*512)}" for t in range(2) for hh in range(2)]
                o += [ra[0]] + rw + ra[1:]
            if os.environ.get("G_NOREAD"): return o[:int(os.environ["G_NOREAD"])]
            return o
        def mfmas(c):
            A_ = Ab[c & 1]; W_ = Wb[c & 1]
            return [f"v_mfma_f32_16x16x32_bf16 {v(acc+(rt*2+t)*4,4)}, {v(W_+8*kk+4*t,4)}, {v(A_+8*kk+4*rt,4)}, {v(acc+(rt*2+t)*4,4)}" for kk in range(4) for rt in range(2) for t in range(2)]
        for c in range(self.NC + 1):
            if c < self.NC:
                if c: k("s_waitcnt lgkmcnt(0)")
                k.dstamp()
                k("s_barrier")
                if c == 0: k.stamp()
            rd = reads(c) if c < self.NC else []
            mf = mfmas(c - 1) if c else []
            i = j = 0
            while i < len(mf) or j < len(rd):
                for _ in range(2):
                    if j < len(rd): k(rd[j]); j += 1
                if i < len(mf): k(mf[i]); i += 1
                if j < len(rd): k(rd[j]); j += 1
                if i < len(mf): k(mf[i]); i += 1
        k.stamp()
        k("s_barrier")
        vs = k.valloc()
        k(f"v_add_u32 {v(vs)}, s52, {v(k.vR16)}")
        k(f"v_mul_u32_u24 {v(vs)}, 144, {v(vs)}")
        k(f"v_lshl_add_u32 {v(vs)}, {v(k.vG)}, 3, {v(vs)}")
        k("s_lshl_b32 s57, s53, 6")
        k(f"v_add_u32 {v(vs)}, s57, {v(vs)}")
        for rt in range(2):
            for t in range(2):
                ac = acc + (rt * 2 + t) * 4
                k(f"v_cvt_pk_bf16_f32 {v(ac)}, {v(ac)}, {v(ac+1)}")
                k(f"v_cvt_pk_bf16_f32 {v(ac+1)}, {v(ac+2)}, {v(ac+3)}")
                k(f"ds_write_b64 {v(vs)}, {v(ac,2)} offset:{rt*16*144 + t*32}")
        k("s_waitcnt lgkmcnt(0)")
    def store(self, k, vt, vt2, vt3, emit_stores):
        store64(self, k, emit_stores)

def gen_fused(name, phases, flagbase, xtidx, stamps=False, first=False):
    k = Kern(name); k.stamps_on = stamps
    if os.environ.get("G_DET"): k.det = int(os.environ["G_DET"])
    prologue(k, 256, wait=False)
    k("s_sub_u32 s59, s3, 4")
    k("s_and_b32 s48, s2, 7"); k("s_lshl_b32 s48, s48, 1"); k("s_lshr_b32 s49, s2, 7")
    k(f"s_add_u32 s{SC_}, s48, s49"); k(f"s_bfe_u32 s{SM_}, s2, 0x40003")
    vt, vt2, vt3 = k.valloc(), k.valloc(), k.valloc()
    vfl = k.valloc(); vfd = k.valloc()
    mark = k.nv
    k.lds = 163840
    n = len(phases)
    bars = []
    for i, p in enumerate(phases):
        bars += [(i, "b", c) for c in range(p.NC)] + [(i, "e", 0), (i, "s", 0)] + ([(i, "u", 0)] if i < n - 1 else [])
    bidx = {b: j for j, b in enumerate(bars)}
    chunks = []
    for i, p in enumerate(phases):
        for c in range(p.NC):
            rel = bidx[(i, "b", c + 1)] if c + 1 < p.NC else bidx[(i, "e", 0)]
            chunks.append((i, c, bidx[(i, "b", c)], rel, True))
        for x in range(p.pseudo):
            chunks.append((i, p.NC + x, None, bidx[(i, "e", 0)], False))
    for j, (i, c, _, _, _) in enumerate(chunks): phases[i].bslot[c] = BRING + (j % NB) * 16384
    for i, p in enumerate(phases): p.SWB = 24 + 4 * i; p.sBW = 44 + i
    k("s_cmp_lt_u32 s3, 4")
    k(f"s_cbranch_scc1 {name}_compute")
    k("s_cmp_lt_u32 s3, 6")
    k(f"s_cbranch_scc1 {name}_aload")
    k("s_sub_u32 s59, s3, 6")
    k.stamp_set(0); k.stamp()
    tmp5 = [k.valloc() for _ in range(5)]
    NV = int(os.environ.get("G_NV", "0"))
    vl16 = k.valloc()
    k(f"v_lshlrev_b32 {v(vl16)}, 4, {v(k.vL)}")
    for p in phases: p._vo = None
    vslots = [256 - 32 * (x + 1) for x in range(NV)]
    k.maxv = 256 if NV else k.maxv
    freev = list(vslots); vq = []
    setup_done = set(); nxt = [0]; placed = set(); pend = []
    def slot_free(j, after_bar): return j < NB or chunks[j - NB][3] <= after_bar
    def b_step(after_bar, maxn, curphase=None, spare=0):
        if pend:
            k("s_waitcnt lgkmcnt(0)")
            for (j, vs) in pend: placed.add(j); freev.append(vs)
            pend.clear()
        while vq and slot_free(vq[0][0], after_bar):
            j, vs = vq.pop(0); i, c = chunks[j][0], chunks[j][1]
            phases[i].place_Bv(k, c, vs, vl16, vt); pend.append((j, vs))
        cnt = 0
        while nxt[0] < len(chunks) and cnt < maxn:
            j = nxt[0]; i, c, need, rel, real = chunks[j]
            if not real:
                if not slot_free(j, after_bar): break
                placed.add(j); nxt[0] += 1; continue
            direct = (not vq) and slot_free(j, after_bar)
            if not direct and not freev: break
            if curphase is not None and i != curphase:
                if spare <= 0: break
                spare -= 1
            if i not in setup_done:
                phases[i].setup_B(k, vt, vt2, vt3, tmp5); setup_done.add(i)
                assert k.nv <= 256 - 32 * NV
            k.vm_limit(int(os.environ.get("G_VML", "24")))
            if direct:
                phases[i].issue_B(k, c); placed.add(j)
            else:
                vs = freev.pop(0); phases[i].issue_Bv(k, c, vs); vq.append((j, vs))
            cnt += 1; nxt[0] += 1
    b_step(-1, int(os.environ.get("G_B0", "2")))
    if True:
        endlab = "all_code_end" if first else f"{name}_end"
        ca = k.valloc(2, 2); cd = k.valloc(4)
        k("s_getpc_b64 s[40:41]")
        k.L(f"{name}_pc")
        k(f"s_mov_b32 s42, {endlab}-{name}_pc-16")
        k("s_bfe_u32 s43, s2, 0x50003")
        k("s_lshl_b32 s43, s43, 1"); k("s_add_u32 s43, s43, s59"); k("s_lshl_b32 s43, s43, 10")
        nrep = 2 if first else 1
        for x in range(nrep):
            k(f"v_add_u32 {v(vt)}, s43, {v(vl16)}")
            if x: k(f"v_add_u32 {v(vt)}, {x*65536}, {v(vt)}")
            k(f"v_min_u32 {v(vt)}, s42, {v(vt)}")
            k(f"v_and_b32 {v(vt)}, -4, {v(vt)}")
            k(f"global_load_dwordx4 {v(cd,4)}, {v(vt)}, s[40:41]")
    for j, (i, kind, c) in enumerate(bars):
        if kind == "b":
            jj = next(x for x, ch in enumerate(chunks) if ch[0] == i and ch[1] == c)
            if jj not in placed:
                assert any(x[0] == jj for x in pend), (i, c)
                k("s_waitcnt lgkmcnt(0)")
                for (j_, vs) in pend: placed.add(j_); freev.append(vs)
                pend.clear()
            k.wait_tag(f"{phases[i].tag}b{c}")
        k.cur = i; k.dstamp()
        k("s_barrier")
        if first and kind == "b" and c == 2:
            sw = k.valloc(16, 4); sacc = k.valloc(8, 4); svo = k.valloc()
            srd(k, 28, P_W1, 0, 512 * 1792 * 2)
            k("s_min_u32 s40, s2, 223")
            k("s_mul_i32 s41, s40, 2341"); k("s_lshr_b32 s41, s41, 16")
            k("s_mul_i32 s48, s41, 28"); k("s_sub_u32 s40, s40, s48")
            k("s_lshl_b32 s48, s41, 6"); k("s_lshl_b32 s49, s59, 5"); k("s_add_u32 s48, s48, s49")
            k(f"v_lshrrev_b32 {v(svo)}, 3, {v(k.vL)}")
            k(f"v_add_u32 {v(svo)}, s48, {v(svo)}")
            k(f"v_mul_u32_u24 {v(svo)}, 3584, {v(svo)}")
            k(f"v_and_b32 {v(vt)}, 7, {v(k.vL)}")
            k(f"v_lshl_add_u32 {v(svo)}, {v(vt)}, 4, {v(svo)}")
            k("s_lshl_b32 s48, s40, 7")
            k(f"v_add_u32 {v(svo)}, s48, {v(svo)}")
            for x in range(4):
                k(f"s_mov_b32 s49, {x*8*3584}")
                k(f"buffer_load_dwordx4 {v(sw+4*x,4)}, {v(svo)}, s[28:31], s49 offen")
        if first and kind == "b" and c == 4:
            tw = k.valloc(20, 4)
            srd(k, 32, P_W2, 0, 1792 * 512 * 2)
            srd(k, 36, P_WO, 0, 512 * 512 * 2)
            k("s_mul_i32 s48, s2, 7168"); k("s_mul_i32 s49, s59, 3584"); k("s_add_u32 s48, s48, s49")
            k(f"v_add_u32 {v(vt)}, s48, {v(vl16)}")
            for x in range(4):
                k(f"buffer_load_dwordx4 {v(tw+4*x,4)}, {v(vt)}, s[32:35], 0 offen offset:{x*1024 if x < 3 else 2560}")
            k("s_lshl_b32 s48, s2, 11"); k("s_lshl_b32 s49, s59, 10"); k("s_add_u32 s48, s48, s49")
            k(f"v_add_u32 {v(vt)}, s48, {v(vl16)}")
            k(f"buffer_load_dwordx4 {v(tw+16,4)}, {v(vt)}, s[36:39], 0 offen")
            if os.environ.get("G_TLB"):
                tl = k.valloc(2, 2)
                srd(k, 32, P_WS, 0, 0x1000000)
                srd(k, 36, P_OUT, 0, XB)
                k(f"v_lshlrev_b32 {v(vt)}, 18, {v(k.vL)}")
                k(f"buffer_load_dword {v(tl)}, {v(vt)}, s[32:35], 0 offen")
                k(f"v_lshlrev_b32 {v(vt)}, 15, {v(k.vL)}")
                k(f"buffer_load_dword {v(tl+1)}, {v(vt)}, s[36:39], 0 offen")
        if first and kind == "b" and c == 5:
            k("s_mov_b32 s60, 0x00003f80"); k("s_mov_b32 s61, 0x3f800000")
            for x in range(8): k(f"v_mov_b32 {v(sacc+x)}, 0")
            for x in range(4):
                for y in range(4):
                    k(f"v_dot2_f32_bf16 {v(sacc+2*y)}, {v(sw+4*x+y)}, s60, {v(sacc+2*y)}")
                    k(f"v_dot2_f32_bf16 {v(sacc+2*y+1)}, {v(sw+4*x+y)}, s61, {v(sacc+2*y+1)}")
        if first and kind == "b" and c == 6:
            for x in range(8):
                k(f"v_add_f32_dpp {v(sw+x)}, {v(sacc+x)}, {v(sacc+x)} row_ror:8 row_mask:0xf bank_mask:0xf")
            for x in range(8): gen.xlane_sum_g(k, sw + x, sacc + x)
            k("s_lshl_b32 s48, s59, 8"); k(f"s_add_u32 s48, s48, {EX+8192}")
            k(f"v_and_b32 {v(vt)}, 7, {v(k.vL)}")
            k(f"v_lshlrev_b32 {v(svo)}, 5, {v(vt)}")
            k(f"v_add_u32 {v(vt)}, s48, {v(svo)}")
            k(f"ds_write_b128 {v(vt)}, {v(sw,4)}"); k(f"ds_write_b128 {v(vt)}, {v(sw+4,4)} offset:16")
            k("s_waitcnt lgkmcnt(0)")
        if first and kind == "b" and c == 7:
            k(f"v_add_u32 {v(vt)}, {EX+8192}, {v(svo)}")
            for x in range(2):
                k(f"ds_read_b128 {v(sw+4*x,4)}, {v(vt)} offset:{16*x}")
                k(f"ds_read_b128 {v(sw+8+4*x,4)}, {v(vt)} offset:{256+16*x}")
            for x in range(8): k(f"v_add_f32 {v(sw+x)}, {v(sw+x)}, {v(sw+8+x)}")
            srd(k, 28, P_WS, WS_CS + 0x2000, 8 * 1792 * 4)
            k("s_mul_i32 s48, s41, 7168"); k("s_lshl_b32 s49, s40, 8"); k("s_add_u32 s48, s48, s49")
            k(f"v_add_u32 {v(vt)}, s48, {v(svo)}")
            k("s_mov_b64 exec, 0xff")
            k(f"buffer_store_dwordx4 {v(sw,4)}, {v(vt)}, s[28:31], 0 offen")
            k(f"buffer_store_dwordx4 {v(sw+4,4)}, {v(vt)}, s[28:31], 0 offen offset:16")
            k("s_mov_b64 exec, -1")
        if os.environ.get("G_L2PF") and kind == "b" and i + 1 < n and isinstance(phases[i + 1], P4) and c < 7:
            if c == 0:
                tpf = k.valloc(2, 2); vpf = k.valloc()
                srd(k, 40, P_W2, 0, 1792 * 512 * 2)
                k(f"s_and_b32 s48, s{SM_}, 7"); k("s_lshl_b32 s48, s48, 7")
                k("s_lshl_b32 s49, s59, 16"); k("s_add_u32 s48, s48, s49")
                k(f"v_lshlrev_b32 {v(vpf)}, 10, {v(k.vL)}"); k(f"v_add_u32 {v(vpf)}, s48, {v(vpf)}")
            for x in range(2):
                k(f"s_mov_b32 s49, {(2*c+x)*131072}")
                k(f"buffer_load_dword {v(tpf+x)}, {v(vpf)}, s[40:43], s49 offen")
        if os.environ.get("G_WOPF") and kind == "e" and isinstance(phases[i], P1):
            tpf = k.valloc(4); vpf = k.valloc()
            srd(k, 40, P_WO, 0, 512 * 512 * 2)
            k(f"s_and_b32 s48, s{SM_}, 7"); k("s_lshl_b32 s48, s48, 7")
            k("s_lshl_b32 s49, s59, 18"); k("s_add_u32 s48, s48, s49")
            k(f"v_lshlrev_b32 {v(vpf)}, 10, {v(k.vL)}"); k(f"v_add_u32 {v(vpf)}, s48, {v(vpf)}")
            for x in range(4):
                k(f"s_mov_b32 s49, {x*65536}")
                k(f"buffer_load_dword {v(tpf+x)}, {v(vpf)}, s[40:43], s49 offen")
        if kind in ("e", "u"): k.stamp()
        if kind == "b":
            b_step(j, 2 if (i == 0 or c == 0) else 1, i, phases[i].spare(c) if not os.environ.get("G_SPALL") else 1)
        else:
            b_step(j, {"e": int(os.environ.get("G_QE", phases[i].Qe)), "s": int(os.environ.get("G_QS", "3")), "u": int(os.environ.get("G_QU", "7"))}[kind])
    assert nxt[0] == len(chunks) and not vq
    if stamps: k.stamp(); k.stamp_flush(P_WS, vt, vt2)
    k("s_endpgm")
    k.L(f"{name}_aload"); k.reset()
    k.stamp_set(0); k.stamp()
    k("s_lshl_b32 s55, s59, 13")
    for i, p in enumerate(phases):
        k.nv = mark
        p.tile(k)
        p.setup_A(k, vt, vt2)
        if first:
            vz = k.valloc(4)
            for x in range(4): k(f"v_mov_b32 {v(vz+x)}, 0")
            srd(k, 28, P_WS, WS_KV, 0x20000)
            srd(k, 32, 18, 0, 256)
            l1 = f"{name}_tk"; l2 = f"{name}_tkd"
            k("s_cmp_eq_u32 s59, 0")
            k(f"s_cbranch_scc1 {l1}")
            k("s_lshl_b32 s48, s2, 8"); k("s_add_u32 s48, s48, 0x10000")
            k(f"v_lshlrev_b32 {v(vfl)}, 4, {v(k.vL)}"); k(f"v_add_u32 {v(vfl)}, s48, {v(vfl)}")
            k("s_mov_b64 exec, 0xffff")
            k(f"buffer_store_dwordx4 {v(vz,4)}, {v(vfl)}, s[28:31], 0 offen")
            k("s_mov_b64 exec, -1")
            k(f"s_branch {l2}")
            k.L(l1)
            k(f"s_lshl_b32 s48, s{SM_}, 2")
            k(f"v_mov_b32 {v(vfl)}, s48"); k(f"v_mov_b32 {v(vfd)}, 1")
            k("s_mov_b64 exec, 1")
            k(f"buffer_atomic_add {v(vfd)}, {v(vfl)}, s[32:35], 0 offen sc0")
            k("s_mov_b64 exec, -1")
            k.L(l2)
        if i == 0 and n > 1:
            srd(k, SFL, P_WS, WS_FLAG, 0x7000)
            k("s_getreg_b32 s98, hwreg(HW_REG_XCC_ID)")
            k("s_and_b32 s98, s98, 15"); k("s_add_u32 s98, s98, 1")
            k(f"s_lshl_b32 s48, s{SC_}, 6"); k(f"s_lshl_b32 s49, s{SM_}, 2"); k("s_add_u32 s48, s48, s49")
            k(f"s_add_u32 s48, s48, {WS_XT - WS_FLAG + xtidx*1024}")
            k(f"v_mov_b32 {v(vfl)}, s48"); k(f"v_mov_b32 {v(vfd)}, s98")
            k("s_mov_b64 exec, 1")
            k(f"buffer_store_dword {v(vfd)}, {v(vfl)}, s[{SFL}:{SFL+3}], 0 offen sc0 sc1")
            k("s_mov_b64 exec, -1")
        if i > 0:
            lab = f"{name}_poll{i}"; done = f"{name}_polld{i}"
            k(f"s_lshl_b32 s48, s{SC_}, 8"); k(f"s_add_u32 s48, s48, {(flagbase+i-1)*4096}")
            k(f"v_lshlrev_b32 {v(vfl)}, 2, {v(k.vL)}"); k(f"v_add_u32 {v(vfl)}, s48, {v(vfl)}")
            k(f"s_mov_b64 exec, {(1<<phases[i-1].nprod)-1:#x}")
            k("s_mov_b32 s49, 0")
            k.L(lab)
            k(f"buffer_load_dword {v(vfd)}, {v(vfl)}, s[{SFL}:{SFL+3}], 0 offen sc1")
            k("s_add_u32 s49, s49, 1")
            k("s_waitcnt vmcnt(0)")
            k(f"v_cmp_ne_u32 vcc, 1, {v(vfd)}")
            k("s_cmp_gt_u32 s49, 200000")
            k(f"s_cbranch_scc1 {done}")
            k(f"s_cbranch_vccnz {lab}")
            k.L(done)
            k("s_mov_b64 exec, -1")
        k.stamp()
        A0N = int(os.environ.get("G_A0N", "3")) if i > 0 else p.D
        issued = 0
        for c in range(A0N): p.issue_A(k, c); issued += 1
        for c in range(p.NC):
            k.wait_tag(f"{p.tag}a{c}")
            k.cur = i; k.dstamp()
            k("s_barrier")
            while issued < p.NC and issued <= c + p.D: p.issue_A(k, issued); issued += 1
            if c == 0 and p.has_ln:
                stv = k.valloc(16, 4)
                srd(k, 28, P_WS, p.st_off, 2048 * 64)
                k("s_lshl_b32 s48, s59, 6")
                k("s_add_u32 s48, s48, s50")
                k(f"v_add_u32 {v(vt)}, s48, {v(k.vL)}")
                k(f"v_lshlrev_b32 {v(vt)}, 6, {v(vt)}")
                for x in range(4):
                    k(f"buffer_load_dwordx4 {v(stv+4*x,4)}, {v(vt)}, s[28:31], 0 offen offset:{16*x}")
            if first and c == 0:
                l3 = f"{name}_zk"
                k.vm_save()
                k("s_cmp_lg_u32 s59, 0")
                k(f"s_cbranch_scc1 {l3}")
                k(f"v_readfirstlane_b32 s48, {v(vfd)}")
                k("s_nop 3")
                k("s_cmp_lg_u32 s48, 0")
                k(f"s_cbranch_scc1 {l3}")
                k(f"s_lshl_b32 s48, s{SM_}, 11")
                k(f"v_lshlrev_b32 {v(vfl)}, 4, {v(k.vL)}"); k(f"v_add_u32 {v(vt)}, s48, {v(vfl)}")
                k(f"buffer_store_dwordx4 {v(vz,4)}, {v(vt)}, s[28:31], 0 offen sc0 sc1")
                k(f"buffer_store_dwordx4 {v(vz,4)}, {v(vt)}, s[28:31], 0 offen offset:1024 sc0 sc1")
                k(f"s_lshl_b32 s48, s{SM_}, 7"); k("s_add_u32 s48, s48, 32768")
                k(f"v_add_u32 {v(vt)}, s48, {v(vfl)}")
                k("s_mov_b64 exec, 0xff")
                k(f"buffer_store_dwordx4 {v(vz,4)}, {v(vt)}, s[28:31], 0 offen sc0 sc1")
                k("s_waitcnt vmcnt(0)")
                k(f"s_lshl_b32 s48, s{SM_}, 2"); k("s_add_u32 s48, s48, 64")
                k(f"v_mov_b32 {v(vfl)}, s48"); k(f"v_mov_b32 {v(vfd)}, 1")
                k("s_mov_b64 exec, 1")
                k(f"buffer_store_dword {v(vfd)}, {v(vfl)}, s[32:35], 0 offen sc0 sc1")
                k("s_mov_b64 exec, -1")
                k.L(l3)
                k.vm_restore()
            if first and c == p.NC - 1:
                lab = f"{name}_rp"; done = f"{name}_rpd"
                k(f"s_lshl_b32 s48, s{SM_}, 2"); k("s_add_u32 s48, s48, 64")
                k(f"v_mov_b32 {v(vfl)}, s48")
                k("s_mov_b64 exec, 1")
                k("s_mov_b32 s49, 0")
                k.L(lab)
                k(f"buffer_load_dword {v(vfd)}, {v(vfl)}, s[32:35], 0 offen sc0 sc1")
                k("s_add_u32 s49, s49, 1")
                k("s_waitcnt vmcnt(0)")
                k(f"v_cmp_ne_u32 vcc, 1, {v(vfd)}")
                k("s_cmp_gt_u32 s49, 200000")
                k(f"s_cbranch_scc1 {done}")
                k(f"s_cbranch_vccnz {lab}")
                k.L(done)
                k("s_mov_b64 exec, -1")
            if isinstance(p, P2) and c == 0:
                cp = k.valloc(16, 4)
                srd(k, 28, P_WS, WS_CS + 0x2000, 8 * 1792 * 4)
                k(f"s_mul_i32 s48, s{SM_}, 448")
                k(f"v_lshlrev_b32 {v(vt)}, 3, {v(k.vL)}"); k(f"v_add_u32 {v(vt)}, s48, {v(vt)}")
                for g_ in range(8):
                    k(f"s_mov_b32 s49, {g_*7168}")
                    k(f"buffer_load_dwordx2 {v(cp+2*g_,2)}, {v(vt)}, s[28:31], s49 offen")
            if isinstance(p, P2) and c == 2:
                for g_ in range(1, 8): k(f"v_pk_add_f32 {v(cp,2)}, {v(cp,2)}, {v(cp+2*g_,2)}")
                k(f"v_lshlrev_b32 {v(vt)}, 3, {v(k.vL)}"); k(f"v_add_u32 {v(vt)}, {LDS_CS}, {v(vt)}")
                k(f"ds_write_b64 {v(vt)}, {v(cp,2)}")
                k("s_waitcnt lgkmcnt(0)")
            if c == 4 and p.has_ln:
                ab = k.valloc(2, 2)
                gen.ln_params(k, stv, ab, ab + 1, vt, vt2)
                k("s_lshl_b32 s48, s59, 9")
                k(f"s_add_u32 s48, s48, {LDS_AB}")
                k(f"v_lshlrev_b32 {v(vt)}, 3, {v(k.vL)}")
                k(f"v_add_u32 {v(vt)}, s48, {v(vt)}")
                k(f"ds_write_b64 {v(vt)}, {v(ab,2)}")
                k("s_waitcnt lgkmcnt(0)")
            if i == 0 and n > 1 and c == p.NC - 1:
                k(f"s_lshl_b32 s48, s{SC_}, 6"); k(f"s_add_u32 s48, s48, {WS_XT - WS_FLAG + xtidx*1024}")
                k(f"v_and_b32 {v(vfl)}, 15, {v(k.vL)}")
                k(f"v_lshlrev_b32 {v(vfl)}, 2, {v(vfl)}"); k(f"v_add_u32 {v(vfl)}, s48, {v(vfl)}")
                k(f"buffer_load_dword {v(vfd)}, {v(vfl)}, s[{SFL}:{SFL+3}], 0 offen sc0 sc1")
                k(f"v_cmp_ne_u32 vcc, s98, {v(vfd)}")
                k("s_cmp_eq_u64 vcc, 0")
                k("s_cselect_b32 s99, 1, 0")
                if FORCE == "fast": k("s_mov_b32 s99, 1")
                if FORCE == "slow": k("s_mov_b32 s99, 0")
                k(f"v_mov_b32 {v(vfd)}, s99"); k(f"v_mov_b32 {v(vfl)}, {LDS_MODE}")
                k(f"s_lshl_b32 s48, s59, 2"); k(f"v_add_u32 {v(vfl)}, s48, {v(vfl)}")
                k(f"ds_write_b32 {v(vfl)}, {v(vfd)}")
                k("s_waitcnt lgkmcnt(0)")
        k.stamp()
        k("s_barrier")
        k("s_barrier")
        if i < n - 1:
            k("s_barrier")
            k.stamp()
            lab = f"{name}_pub{i}"; lab2 = f"{name}_pubs{i}"
            k("s_cmp_lg_u32 s59, 0")
            k(f"s_cbranch_scc1 {lab}")
            k(f"s_lshl_b32 s48, s{SC_}, 8"); k(f"s_lshl_b32 s49, s{SM_}, 2"); k("s_add_u32 s48, s48, s49")
            k(f"s_add_u32 s48, s48, {(flagbase+i)*4096}")
            k(f"v_mov_b32 {v(vfl)}, s48"); k(f"v_mov_b32 {v(vfd)}, 1")
            k("s_mov_b64 exec, 1")
            k("s_cmp_eq_u32 s99, 1")
            k(f"s_cbranch_scc0 {lab2}")
            k(f"buffer_store_dword {v(vfd)}, {v(vfl)}, s[{SFL}:{SFL+3}], 0 offen")
            k(f"s_branch {lab}")
            k.L(lab2)
            k(f"buffer_store_dword {v(vfd)}, {v(vfl)}, s[{SFL}:{SFL+3}], 0 offen sc0 sc1")
            k.L(lab)
            k("s_mov_b64 exec, -1")
    if stamps: k.stamp(); k.stamp_flush(P_WS, vt, vt2)
    k("s_endpgm")
    k.L(f"{name}_compute"); k.reset()
    k.stamp_set(0); k.stamp()
    DIAG = os.environ.get("G_DIAG")
    if DIAG:
        k("s_memrealtime s[88:89]"); k("s_waitcnt lgkmcnt(0)")
    for i, p in enumerate(phases):
        k.nv = mark; k.cur = i
        p.tile(k)
        p.compute(k, vt, vt2, vt3)
        if os.environ.get("G_BND"): k.stamp()
        k.nv = mark + 12
        def emit_stores(lst, i=i):
            if i == n - 1:
                for x in lst: k(x)
                return
            if i == 0:
                k(f"v_mov_b32 {v(vfl)}, {LDS_MODE}")
                k(f"ds_read_b32 {v(vfd)}, {v(vfl)}")
                k(f"v_readfirstlane_b32 s99, {v(vfd)}")
            l1 = f"{name}_st{i}_slow"; l2 = f"{name}_st{i}_done"
            k("s_waitcnt vmcnt(0) lgkmcnt(0)")
            k("s_nop 4")
            k("s_cmp_eq_u32 s99, 1")
            k(f"s_cbranch_scc0 {l1}")
            for x in lst: k(x)
            k(f"s_branch {l2}")
            k.L(l1)
            for x in lst: k(x + (" sc0 sc1" if x.startswith("buffer_store") else ""))
            k.L(l2)
        p.store(k, vt, vt2, vt3, emit_stores)
        if os.environ.get("G_BND"): k.stamp()
        if i < n - 1:
            k("s_waitcnt vmcnt(0)")
            if os.environ.get("G_BND"): k.stamp()
            k("s_barrier")
    if stamps:
        k("s_waitcnt vmcnt(0)"); k.stamp(); k.stamp_flush(P_WS, vt, vt2)
    if DIAG:
        kid = {"kA": 0, "kB": 1, "kC": 2}[name[:2]]
        k("s_waitcnt vmcnt(0)")
        k("s_memrealtime s[90:91]"); k("s_waitcnt lgkmcnt(0)")
        k("s_or_b32 s48, s2, s3"); k("s_cmp_lg_u32 s48, 0"); k(f"s_cbranch_scc1 {name}_end")
        srd(k, 24, P_WS, 0xF80000, 64)
        dd = k.valloc(8, 4)
        k(f"v_mov_b32 {v(dd)}, s88"); k(f"v_mov_b32 {v(dd+1)}, s90"); k(f"v_mov_b32 {v(vt)}, 0")
        k("s_mov_b64 exec, 1")
        k(f"buffer_store_dwordx2 {v(dd,2)}, {v(vt)}, s[24:27], 0 offen offset:{kid*8}")
        if kid == 2:
            k(f"buffer_load_dwordx4 {v(dd+4,4)}, {v(vt)}, s[24:27], 0 offen")
            srd(k, 28, 18, 0, 256)
            k(f"buffer_store_dwordx4 {v(dd+4,4)}, {v(vt)}, s[28:31], 0 offen")
            k(f"buffer_store_dwordx2 {v(dd,2)}, {v(vt)}, s[28:31], 0 offen offset:16")
    epilogue_end(k)
    return k

def build(path, stamps=False):
    kA = gen_fused("kA_kernel", [P1("p1a", "in", WS_KV, None)], 0, 0, stamps and os.environ.get("G_STA") == "1", True)
    kB = gen_fused("kB_kernel", [P2("p2a", "in", WS_KV, WS_X1, WS_ST1), P3("p3a", WS_X1, WS_ST1, WS_H), P4("p4a", WS_X1, WS_X2, WS_ST2, WS_H),
                                 P1("p1b", WS_X2, WS_KV + 0x10000, WS_ST2)], 0, 0, stamps and os.environ.get("G_STA") != "1")
    kC = gen_fused("kC_kernel", [P2("p2b", WS_X2, WS_KV + 0x10000, WS_X1, WS_ST1), P3("p3b", WS_X1, WS_ST1, WS_H), P4("p4b", WS_X1, "out", None, WS_H)], 3, 1)
    ks = [kA, kB, kC]
    launches = [(k.name, 256, 512, k.lds) for i, k in enumerate(ks)]
    open(path, "w").write(build_file(HEADER, launches, ks))
    for k in ks: print(k.name, "vgpr", k.maxv, "lds", k.lds, "ninst", sum(1 for i in k.items if isinstance(i, Ins)))

if __name__ == "__main__":
    build(sys.argv[1] if len(sys.argv) > 1 else "interleave_layers__linear_attn_block__dense_activation_silu__prompt.s")
    build(sys.argv[2] if len(sys.argv) > 2 else "fused_stamps.s", True)
```
